```python
import torch

def _softmax(x, axis=-1):
    return torch.softmax(x, dim=axis)
def _gelu(x):
    return torch.nn.functional.gelu(x, approximate="tanh")
def _silu(x):
    return torch.nn.functional.silu(x)
def _sigmoid(x):
    return torch.sigmoid(x)
def _layernorm(x, axis=-1, eps=1e-5):
    m = x.mean(dim=axis, keepdim=True)
    v = x.var(dim=axis, keepdim=True, unbiased=False)
    return (x - m) / torch.sqrt(v + eps)
def _scatter_add(tgt, idx, src, axis=0):
    return tgt.clone().index_add_(axis, idx, src)
def _segment_sum(src, seg, n):
    out = torch.zeros((n,) + src.shape[1:], dtype=src.dtype)
    return out.index_add_(0, seg, src)
def _pad(x, pw):
    flat = tuple(v for pair in reversed(pw) for v in pair)
    return torch.nn.functional.pad(x, flat)

kernel_name = 'gated_mix__spectral_fnet__dense_activation_squared_relu__prompt'

def setup_inputs():

    _w = (lambda a: (lambda t: t.to(torch.bfloat16) if t.is_floating_point() else t)(torch.as_tensor(a)))
    def _A_setup():
        B, S, D = 1, 2048, 1024
        ns = torch.arange(S)[:, None] * torch.arange(S)[None, :]
        nd = torch.arange(D)[:, None] * torch.arange(D)[None, :]
        Ws_re = torch.cos(-2.0 * torch.pi * ns / S).to(float)
        Ws_im = torch.sin(-2.0 * torch.pi * ns / S).to(float)
        Wd_re = torch.cos(-2.0 * torch.pi * nd / D).to(float)
        Wd_im = torch.sin(-2.0 * torch.pi * nd / D).to(float)
        return {
            "x": _w((lambda *s: torch.randn(*s, dtype=torch.bfloat16) * 0.05)(B, S, D)),
            "dft_seq_re": _w(Ws_re),
            "dft_seq_im": _w(Ws_im),
            "dft_hid_re": _w(Wd_re),
            "dft_hid_im": _w(Wd_im),
        }
    _A_in = _A_setup()

    def _B_setup():
        B, S, D, F = 1, 2048, 1024, 3584
        return {
            "x": _w((lambda *s: torch.randn(*s, dtype=torch.bfloat16) * 0.05)(B, S, D)),
            "w1": _w((lambda *s: torch.randn(*s, dtype=torch.bfloat16) * 0.4)(D, F)),
            "b1": _w((lambda *s: torch.randn(*s, dtype=torch.bfloat16) * 0.4)(F)),
            "w2": _w((lambda *s: torch.randn(*s, dtype=torch.bfloat16) * 0.4)(F, D)),
            "b2": _w((lambda *s: torch.randn(*s, dtype=torch.bfloat16) * 12.8)(D)),
        }
    _B_in = _B_setup()

    return {
        "A_x": _A_in["x"],
        "A_dft_seq_re": _A_in["dft_seq_re"],
        "A_dft_seq_im": _A_in["dft_seq_im"],
        "A_dft_hid_re": _A_in["dft_hid_re"],
        "A_dft_hid_im": _A_in["dft_hid_im"],
        "B_x": _B_in["x"],
        "B_w1": _B_in["w1"],
        "B_b1": _B_in["b1"],
        "B_w2": _B_in["w2"],
        "B_b2": _B_in["b2"],
        "gate_w": _w((lambda *s: torch.randn(*s, dtype=torch.bfloat16) * 0.05)(1024) * 16.0),
    }

def reference(A_x, A_dft_seq_re, A_dft_seq_im, A_dft_hid_re, A_dft_hid_im, B_x, B_w1, B_b1, B_w2, B_b2, gate_w):
    def _A_ref(x, dft_seq_re, dft_seq_im, dft_hid_re, dft_hid_im):
        a = torch.einsum("bsd,ed->bse", x, dft_hid_re)
        b = torch.einsum("bsd,ed->bse", x, dft_hid_im)
        y = torch.einsum("ts,bse->bte", dft_seq_re, a) - torch.einsum("ts,bse->bte", dft_seq_im, b)
        return y

    def _B_ref(x, w1, b1, w2, b2):
        h = torch.einsum("bsd,df->bsf", x, w1) + b1
        zero = torch.zeros_like(h)
        r = torch.where(h > zero, h, zero)
        h = r * r
        out = torch.einsum("bsf,fd->bsd", h, w2) + b2
        return out

    x = A_x
    g = _sigmoid((x * gate_w).sum(-1, keepdims=True))
    a = _A_ref(x, A_dft_seq_re, A_dft_seq_im, A_dft_hid_re, A_dft_hid_im)
    b = _B_ref(x, B_w1, B_b1, B_w2, B_b2)
    return g * a + (1 - g) * b
```

```python
class Asm:
    def __init__(self):
        self.lines = []
        self.nlabel = 0
    def __call__(self, s=""):
        for l in s.split("\n"):
            self.lines.append(l)
    def c(self, s):
        self.lines.append("    ; " + s)
    def label(self, name):
        self.lines.append(name + ":")
    def newlabel(self, p="L"):
        self.nlabel += 1
        return f"{p}_{self.nlabel}"
    def text(self):
        return "\n".join(self.lines) + "\n"

def I(a, s):
    a.lines.append("    " + s)

def kernel_begin(a, name):
    a(f".globl {name}")
    a(".p2align 8")
    a(f".type {name},@function")
    a(f"{name}:")

def kernel_desc(a, name, vgpr, sgpr, accum, wgy=False):
    a(f".amdhsa_kernel {name}")
    a(f"  .amdhsa_next_free_vgpr {vgpr}")
    a(f"  .amdhsa_next_free_sgpr {sgpr}")
    a(f"  .amdhsa_accum_offset {accum}")
    a(f"  .amdhsa_group_segment_fixed_size 0")
    a(f"  .amdhsa_kernarg_size 112")
    a(f"  .amdhsa_user_sgpr_count 2")
    a(f"  .amdhsa_user_sgpr_kernarg_segment_ptr 1")
    a(f"  .amdhsa_system_sgpr_workgroup_id_x 1")
    if wgy:
        a(f"  .amdhsa_system_sgpr_workgroup_id_y 1")
    a(f"  .amdhsa_float_denorm_mode_32 3")
    a(f"  .amdhsa_float_denorm_mode_16_64 3")
    a(".end_amdhsa_kernel")

def srd(a, s, ptr, nbytes):
    I(a, f"s_mov_b32 s{s}, s{ptr}")
    I(a, f"s_and_b32 s{s+1}, s{ptr+1}, 0xffff")
    I(a, f"s_mov_b32 s{s+2}, {nbytes}")
    I(a, f"s_mov_b32 s{s+3}, 0x00020000")
```

```python
from asmgen import *
from gemm import *

def epi_store_lds(a, g, conv, out_srd, ld_out, s_rowbase, s_colbyte, vtmp=16, stampfn=None):
    assert g.wn == 64
    W = 50
    I(a, f"s_mul_i32 s{S_TMP}, s{S_WAVE}, {g.wm*128}")
    I(a, f"v_and_b32 v{W}, 31, v1")
    I(a, f"v_lshlrev_b32 v{W+1}, 7, v{W}")
    I(a, f"v_add_u32 v{W+1}, s{S_TMP}, v{W+1}")
    I(a, f"v_lshrrev_b32 v{W+2}, 5, v1")
    I(a, f"v_lshl_add_u32 v{W+1}, v{W+2}, 3, v{W+1}")
    I(a, f"v_and_b32 v{W}, 7, v{W}")
    for ch in range(8):
        I(a, f"v_xor_b32 v{W+2}, {ch}, v{W}")
        I(a, f"v_lshl_add_u32 v{W+4+ch}, v{W+2}, 4, v{W+1}")
    I(a, f"v_lshrrev_b32 v{W}, 3, v1")
    I(a, f"v_and_b32 v{W+2}, 7, v1")
    I(a, f"v_xor_b32 v{W+2}, v{W+2}, v{W}")
    I(a, f"v_lshlrev_b32 v{W+3}, 7, v{W}")
    I(a, f"v_lshl_add_u32 v{W+3}, v{W+2}, 4, v{W+3}")
    I(a, f"v_add_u32 v{W+12}, s{S_TMP}, v{W+3}")
    I(a, f"v_add_u32 v{W}, s{s_rowbase}, v{W}")
    I(a, f"s_mov_b32 s{S_DELTA}, {ld_out}")
    I(a, f"v_mul_lo_u32 v{W}, v{W}, s{S_DELTA}")
    I(a, f"v_and_b32 v{W+2}, 7, v1")
    I(a, f"v_lshl_add_u32 v{W}, v{W+2}, 4, v{W}")
    I(a, f"v_add_u32 v{W+13}, s{s_colbyte}, v{W}")
    RD = 64
    k = 0
    def do_stores(mb):
        for i in range(4):
            r = RD + (mb & 1) * 16 + i * 4
            I(a, f"s_mov_b32 s{S_TMP2}, {(mb*32 + i*8) * ld_out}")
            I(a, f"buffer_store_dwordx4 v[{r}:{r+3}], v{W+13}, s[{out_srd}:{out_srd+3}], s{S_TMP2} offen")
    for mb in range(g.MB):
        for nb in range(g.NB):
            c = acc_reg(g, nb, mb)
            for q in range(4):
                t = vtmp + (k % 8) * 2; k += 1
                conv(c + 4*q, t)
                I(a, f"ds_write_b64 v{W+4+nb*4+q}, v[{t}:{t+1}] offset:{mb*4096}")
        if mb > 0:
            I(a, f"s_waitcnt lgkmcnt({g.NB*4})")
            do_stores(mb - 1)
        I(a, "s_waitcnt lgkmcnt(0)")
        for i in range(4):
            r = RD + (mb & 1) * 16 + i * 4
            I(a, f"ds_read_b128 v[{r}:{r+3}], v{W+12} offset:{mb*4096 + i*1024}")
    I(a, "s_waitcnt lgkmcnt(0)")
    do_stores(g.MB - 1)

def conv_relu2(a):
    def f(c, t):
        for r in range(4): I(a, f"v_max_f32 v{c+r}, 0, v{c+r}")
        for r in (0, 2): I(a, f"v_pk_mul_f32 v[{c+r}:{c+r+1}], v[{c+r}:{c+r+1}], v[{c+r}:{c+r+1}]")
        I(a, f"v_cvt_pk_bf16_f32 v{t}, v{c}, v{c+1}")
        I(a, f"v_cvt_pk_bf16_f32 v{t+1}, v{c+2}, v{c+3}")
    return f

def conv_plain(a, neg=False):
    def f(c, t):
        n = "-" if neg else ""
        I(a, f"v_cvt_pk_bf16_f32 v{t}, {n}v{c}, {n}v{c+1}")
        I(a, f"v_cvt_pk_bf16_f32 v{t+1}, {n}v{c+2}, {n}v{c+3}")
    return f
```

```python
from asmgen import *
import math

class G:
    def __init__(self, BM, BN, WM, WN, NS, ldq, ldp, nk, sep_loader=True, pref="g"):
        self.BM, self.BN, self.WM, self.WN, self.NS = BM, BN, WM, WN, NS
        self.ldq, self.ldp, self.nk = ldq, ldp, nk
        self.sep = sep_loader
        self.wm = BM // WM; self.wn = BN // WN
        self.MB = self.wm // 32; self.NB = self.wn // 32
        self.QB = BM * 128; self.PB = 64 * BN * 2
        self.STAGE = self.QB + self.PB
        self.LDS = self.STAGE * NS
        self.nq = BM // 8 // 4
        self.np_ = BN // 8 // 4
        self.PER = self.nq + self.np_
        self.pref = pref

S_QSRD = 8; S_PSRD = 12
S_QOFF = 40; S_POFF = 41; S_M0 = 42; S_STG = 43; S_CNT = 44; S_WAVE = 45; S_TMP = 46; S_TMP2 = 47; S_DELTA=48; S_LEFT=49

def loader_setup(a, g, vbase=2):
    I(a, "v_lshrrev_b32 v40, 3, v1")
    I(a, "v_lshrrev_b32 v41, 4, v1")
    I(a, "v_and_b32 v42, 7, v1")
    I(a, f"s_mul_i32 s{S_TMP}, s{S_WAVE}, {g.nq}")
    for i in range(g.nq):
        I(a, f"s_add_u32 s{S_TMP2}, s{S_TMP}, {i}")
        I(a, f"s_lshl_b32 s{S_DELTA}, s{S_TMP2}, 2")
        I(a, f"v_add_u32 v43, s{S_DELTA}, v41")
        I(a, f"v_and_b32 v43, 7, v43")
        I(a, f"v_xor_b32 v43, v42, v43")
        I(a, f"s_lshl_b32 s{S_DELTA}, s{S_TMP2}, 3")
        I(a, f"v_add_u32 v44, s{S_DELTA}, v40")
        I(a, f"v_mul_u32_u24 v44, {g.ldq}, v44") if g.ldq < (1<<24) else None
        I(a, f"v_lshl_add_u32 v44, v43, 4, v44")
        I(a, f"v_subrev_u32 v{vbase+i}, {(i&3)*1024}, v44")
    pb = vbase + g.nq
    I(a, f"s_mul_i32 s{S_TMP}, s{S_WAVE}, {g.np_}")
    if g.BN == 128:
        I(a, "v_and_b32 v42, 15, v1")
        I(a, "v_lshlrev_b32 v43, 2, v41")
        I(a, "v_xor_b32 v43, v42, v43")
        for i in range(g.np_):
            I(a, f"s_add_u32 s{S_TMP2}, s{S_TMP}, {i}")
            I(a, f"s_lshl_b32 s{S_DELTA}, s{S_TMP2}, 2")
            I(a, f"v_add_u32 v44, s{S_DELTA}, v41")
            I(a, f"v_mul_u32_u24 v44, {g.ldp}, v44")
            I(a, f"v_lshl_add_u32 v44, v43, 4, v44")
            I(a, f"v_subrev_u32 v{pb+i}, {(i&3)*1024}, v44")
    elif g.BN == 64:
        I(a, "v_and_b32 v43, 1, v41")
        I(a, "v_lshlrev_b32 v43, 2, v43")
        I(a, "v_xor_b32 v43, v42, v43")
        for i in range(g.np_):
            I(a, f"s_add_u32 s{S_TMP2}, s{S_TMP}, {i}")
            I(a, f"s_lshl_b32 s{S_DELTA}, s{S_TMP2}, 3")
            I(a, f"v_add_u32 v44, s{S_DELTA}, v40")
            I(a, f"v_mul_u32_u24 v44, {g.ldp}, v44")
            I(a, f"v_lshl_add_u32 v44, v43, 4, v44")
            I(a, f"v_subrev_u32 v{pb+i}, {(i&3)*1024}, v44")
    else:
        raise NotImplementedError

def dma_instrs(a, g, vbase=2):
    out = []
    for i in range(g.nq):
        pre = []
        if i % 4 == 0:
            pre.append(f"s_add_u32 m0, s{S_STG}, s50" if i == 0 else f"s_add_u32 m0, m0, 4096")
        out.append((pre, f"buffer_load_dwordx4 v{vbase+i}, s[{S_QSRD}:{S_QSRD+3}], s{S_QOFF} offen offset:{(i&3)*1024} lds"))
    for i in range(g.np_):
        pre = []
        if i % 4 == 0:
            pre.append(f"s_add_u32 m0, s{S_STG}, s51" if i == 0 else f"s_add_u32 m0, m0, 4096")
        out.append((pre, f"buffer_load_dwordx4 v{vbase+g.nq+i}, s[{S_PSRD}:{S_PSRD+3}], s{S_POFF} offen offset:{(i&3)*1024} lds"))
    return out

def emit_stage_issue(a, g, vbase=2):
    if getattr(g, "switch", None):
        I(a, f"s_cmp_eq_u32 s54, {g.switch}")
        I(a, f"s_cselect_b32 s{S_QSRD}, s56, s{S_QSRD}")
        I(a, f"s_cselect_b32 s{S_QSRD+1}, s57, s{S_QSRD+1}")
        I(a, f"s_cselect_b32 s{S_QOFF}, s55, s{S_QOFF}")
        I(a, f"s_add_u32 s54, s54, 1")
    for pre, ins in dma_instrs(a, g, vbase):
        for p in pre:
            I(a, p); I(a, "s_nop 0")
        I(a, ins)
    I(a, f"s_add_u32 s{S_QOFF}, s{S_QOFF}, 128")
    I(a, f"s_add_u32 s{S_POFF}, s{S_POFF}, {64*g.ldp}")
    I(a, f"s_add_u32 s{S_STG}, s{S_STG}, {g.STAGE}")
    I(a, f"s_cmp_ge_u32 s{S_STG}, {g.LDS}")
    I(a, f"s_cselect_b32 s{S_STG}, 0, s{S_STG}")

def loader(a, g):
    p = g.pref
    loader_setup(a, g)
    I(a, f"s_mul_i32 s50, s{S_WAVE}, {g.nq*1024}")
    I(a, f"s_mul_i32 s51, s{S_WAVE}, {g.np_*1024}")
    I(a, f"s_add_u32 s51, s51, {g.QB}")
    I(a, f"s_mov_b32 s{S_STG}, 0")
    nk = g.nk
    npre = min(g.NS, nk)
    for s in range(npre):
        emit_stage_issue(a, g)
    I(a, f"s_waitcnt vmcnt({(npre-1)*g.PER})")
    I(a, "s_barrier")
    nsteady = max(nk - g.NS, 0)
    if nsteady > 0:
        I(a, f"s_mov_b32 s{S_CNT}, {nsteady}")
        a.label(f"{p}_ld_loop")
        I(a, f"s_waitcnt vmcnt({(g.NS-2)*g.PER})")
        I(a, "s_barrier")
        emit_stage_issue(a, g)
        I(a, f"s_sub_u32 s{S_CNT}, s{S_CNT}, 1")
        I(a, f"s_cmp_lg_u32 s{S_CNT}, 0")
        I(a, f"s_cbranch_scc1 {p}_ld_loop")
    for t in range(nsteady, nk):
        rem = max(min(t + g.NS - 1, nk - 1) - (t + 1), 0)
        I(a, f"s_waitcnt vmcnt({rem*g.PER})")
        I(a, "s_barrier")

V_QA = 2
V_PA = 6
V_FR = 64
V_ACC = 128

def frag_regs(g, s):
    base = V_FR + s * (g.NB + g.MB) * 4
    A = [base + i * 4 for i in range(g.NB)]
    B = [base + g.NB * 4 + i * 4 for i in range(g.MB)]
    return A, B

def acc_reg(g, nb, mb):
    return V_ACC + (nb * g.MB + mb) * 16

def compute_setup(a, g):
    lw = int(math.log2(g.WM))
    I(a, f"s_and_b32 s{S_TMP}, s{S_WAVE}, {g.WM-1}")
    I(a, f"s_lshr_b32 s{S_TMP2}, s{S_WAVE}, {lw}")
    I(a, "v_and_b32 v40, 31, v1")
    I(a, f"s_mul_i32 s{S_DELTA}, s{S_TMP}, {g.wm*128}")
    I(a, "v_lshlrev_b32 v40, 7, v40")
    I(a, f"v_add_u32 v40, s{S_DELTA}, v40")
    I(a, "v_lshrrev_b32 v41, 5, v1")
    I(a, "v_bfe_u32 v42, v1, 1, 3")
    I(a, "v_xor_b32 v41, v41, v42")
    for kk in range(4):
        I(a, f"v_xor_b32 v43, {2*kk}, v41")
        I(a, f"v_lshl_add_u32 v{V_QA+kk}, v43, 4, v40")
    I(a, "v_bfe_u32 v40, v1, 2, 2")
    I(a, "v_lshrrev_b32 v41, 5, v1")
    I(a, "v_lshl_add_u32 v41, v41, 3, v40")
    rowb = g.BN * 2
    I(a, f"v_mul_u32_u24 v41, {rowb}, v41")
    I(a, f"v_add_u32 v41, {g.QB}, v41")
    I(a, "v_bfe_u32 v42, v1, 4, 1")
    I(a, "v_lshlrev_b32 v42, 1, v42")
    I(a, "v_bfe_u32 v43, v1, 1, 1")
    I(a, "v_add_u32 v42, v42, v43")
    I(a, f"s_mul_i32 s{S_DELTA}, s{S_TMP2}, {g.wn//8}")
    I(a, f"v_add_u32 v42, s{S_DELTA}, v42")
    if g.BN == 128:
        I(a, "v_lshlrev_b32 v43, 2, v40")
    else:
        I(a, "v_bfe_u32 v43, v1, 3, 1")
        I(a, "v_lshlrev_b32 v43, 2, v43")
    I(a, "v_and_b32 v44, 1, v1")
    I(a, "v_lshl_add_u32 v41, v44, 3, v41")
    for nb in range(g.NB):
        I(a, f"v_add_u32 v45, {nb*4}, v42")
        I(a, "v_xor_b32 v45, v45, v43")
        I(a, f"v_lshl_add_u32 v{V_PA+nb}, v45, 4, v41")

def frag_reads(g, s, kk):
    A, B = frag_regs(g, s)
    rowb = g.BN * 2
    out = []
    def a_reads(nb):
        return [f"ds_read_b64_tr_b16 v[{A[nb]+2*h}:{A[nb]+2*h+1}], v{V_PA+nb} offset:{(16*kk+4*h)*rowb}" for h in range(2)]
    def b_read(mb):
        return [f"ds_read_b128 v[{B[mb]}:{B[mb]+3}], v{V_QA+kk} offset:{mb*4096}"]
    out += a_reads(0)
    for mb in range(g.MB): out += b_read(mb)
    for nb in range(1, g.NB): out += a_reads(nb)
    return out

def mfmas(g, s):
    A, B = frag_regs(g, s)
    out = []
    for nb in range(g.NB):
        for mb in range(g.MB):
            c = acc_reg(g, nb, mb)
            out.append(f"v_mfma_f32_32x32x16_bf16 v[{c}:{c+15}], v[{A[nb]}:{A[nb]+3}], v[{B[mb]}:{B[mb]+3}], v[{c}:{c+15}]")
    return out

def interleave(a, mf, fill, per=2):
    fill = list(fill)
    for i, m in enumerate(mf):
        I(a, m)
        for _ in range(per):
            if fill: I(a, fill.pop(0))
    for f in fill: I(a, f)

def compute_loop(a, g, selfload=False, vbase=16, stamp=None):
    p = g.pref
    naddr = 4 + g.NB
    I(a, "s_barrier")
    if stamp: I(a, stamp); I(a, "s_waitcnt lgkmcnt(0)")
    for r in frag_reads(g, 0, 0): I(a, r)
    I(a, f"s_mov_b32 s{S_CNT}, {g.nk}")
    I(a, f"s_mov_b32 s{S_LEFT}, 0")
    a(".p2align 6")
    a.label(f"{p}_c_loop")
    per = 2 if len(frag_reads(g,0,0)) > len(mfmas(g,0)) // 2 else 2
    for kk in range(3):
        I(a, "s_waitcnt lgkmcnt(0)")
        interleave(a, mfmas(g, kk & 1), frag_reads(g, (kk + 1) & 1, kk + 1), per)
    I(a, "s_waitcnt lgkmcnt(0)")
    I(a, "s_barrier")
    upd = [f"s_add_u32 s{S_LEFT}, s{S_LEFT}, {g.STAGE}",
           f"s_cmp_ge_u32 s{S_LEFT}, {g.LDS}",
           f"s_cselect_b32 s{S_DELTA}, s52, s53",
           f"s_cselect_b32 s{S_LEFT}, 0, s{S_LEFT}"]
    vupd = [f"v_add_u32 v{V_QA+i}, s{S_DELTA}, v{V_QA+i}" for i in range(naddr)]
    mf = mfmas(g, 1)
    for u in upd: I(a, u)
    I(a, mf[0])
    for u in vupd: I(a, u)
    interleave(a, mf[1:], frag_reads(g, 0, 0) + [f"s_sub_u32 s{S_CNT}, s{S_CNT}, 1", f"s_cmp_lg_u32 s{S_CNT}, 0"], per)
    I(a, f"s_cbranch_scc1 {p}_c_loop")
    I(a, "s_waitcnt lgkmcnt(0)")

def compute_consts(a, g):
    I(a, f"s_mov_b32 s52, {(-(g.NS-1)*g.STAGE) & 0xffffffff}")
    I(a, f"s_mov_b32 s53, {g.STAGE}")
```

```python
import sys, json
from asmgen import *
from gemm import *
from epi import *
PFX = "gated_mix__spectral_fnet__dense_activation_squared_relu__prompt"
H_OFF = 0
AB_OFF = 16 << 20
Y_OFF = 24 << 20
G_OFF = 28 << 20

def load_ptr(a, sreg, koff):
    I(a, f"s_load_dwordx2 s[{sreg}:{sreg+1}], s[0:1], {koff}")

def add64(a, sreg, off):
    if off:
        I(a, f"s_add_u32 s{sreg}, s{sreg}, {off}")
        I(a, f"s_addc_u32 s{sreg+1}, s{sreg+1}, 0")

def prologue_common(a):
    I(a, "v_and_b32 v1, 63, v0")
    I(a, "v_lshrrev_b32 v2, 6, v0")
    I(a, "s_nop 0")
    I(a, f"v_readfirstlane_b32 s{S_WAVE}, v2")

def init_acc_zero(a, g):
    for nb in range(g.NB):
        for mb in range(g.MB):
            for r in range(16):
                I(a, f"v_mov_b32 v{acc_reg(g,nb,mb)+r}, 0")

def init_acc_bias(a, g, srd_b, s_colbyte):
    I(a, "v_lshrrev_b32 v40, 5, v1")
    I(a, "v_lshlrev_b32 v40, 3, v40")
    for nb in range(g.NB):
        for q in range(4):
            r = 16 + (nb*4+q)*2
            I(a, f"buffer_load_dwordx2 v[{r}:{r+1}], v40, s[{srd_b}:{srd_b+3}], s{s_colbyte} offen offset:{nb*64+q*16}")
    I(a, "s_waitcnt vmcnt(0)")
    for nb in range(g.NB):
        for q in range(4):
            r = 16 + (nb*4+q)*2
            for j in range(4):
                src = r + j//2
                for mb in range(g.MB):
                    d = acc_reg(g, nb, mb) + 4*q + j
                    if mb == 0:
                        if j % 2 == 0: I(a, f"v_lshlrev_b32 v{d}, 16, v{src}")
                        else: I(a, f"v_and_b32 v{d}, 0xffff0000, v{src}")
                    else:
                        I(a, f"v_mov_b32 v{d}, v{acc_reg(g, nb, 0) + 4*q + j}")

def wave_origin(a, g, s_tm, s_tn, s_row, s_colb):
    lw = int(math.log2(g.WM))
    I(a, f"s_and_b32 s{S_TMP}, s{S_WAVE}, {g.WM-1}")
    I(a, f"s_mul_i32 s{S_TMP}, s{S_TMP}, {g.wm}")
    I(a, f"s_mul_i32 s{s_row}, s{s_tm}, {g.BM}")
    I(a, f"s_add_u32 s{s_row}, s{s_row}, s{S_TMP}")
    I(a, f"s_lshr_b32 s{S_TMP}, s{S_WAVE}, {lw}")
    I(a, f"s_mul_i32 s{S_TMP}, s{S_TMP}, {g.wn*2}")
    I(a, f"s_mul_i32 s{s_colb}, s{s_tn}, {g.BN*2}")
    I(a, f"s_add_u32 s{s_colb}, s{s_colb}, s{S_TMP}")

def k_p1(a, name):
    g = G(BM=256, BN=128, WM=2, WN=2, NS=3, ldq=2048, ldp=7168, nk=16, pref="p1")
    kernel_begin(a, name)
    I(a, "s_cmp_ge_u32 s2, 224"); I(a, "s_cbranch_scc1 p1_end")
    load_ptr(a, 4, 0); load_ptr(a, 6, 48); load_ptr(a, 20, 56); load_ptr(a, 22, 104)
    prologue_common(a)
    I(a, "s_and_b32 s24, s2, 7"); I(a, "s_lshr_b32 s25, s2, 3")
    I(a, "s_mul_i32 s26, s25, 37"); I(a, "s_lshr_b32 s26, s26, 8")
    I(a, "s_mul_i32 s27, s26, 7"); I(a, "s_sub_u32 s27, s25, s27")
    I(a, "s_lshr_b32 s28, s24, 2"); I(a, "s_and_b32 s29, s24, 3")
    I(a, "s_lshl_b32 s28, s28, 2"); I(a, "s_add_u32 s28, s28, s26")
    I(a, "s_mul_i32 s29, s29, 7"); I(a, "s_add_u32 s29, s29, s27")
    I(a, "s_waitcnt lgkmcnt(0)")
    add64(a, 22, H_OFF)
    srd(a, S_QSRD, 4, 2048*1024*2); srd(a, S_PSRD, 6, 1024*3584*2)
    srd(a, 16, 22, 2048*3584*2); srd(a, 32, 20, 3584*2)
    I(a, f"s_mul_i32 s{S_QOFF}, s28, {256*2048}")
    I(a, f"s_mul_i32 s{S_POFF}, s29, {128*2}")
    I(a, f"s_cmp_ge_u32 s{S_WAVE}, 4"); I(a, "s_cbranch_scc0 p1_compute")
    I(a, f"s_sub_u32 s{S_WAVE}, s{S_WAVE}, 4")
    loader(a, g)
    I(a, "s_endpgm")
    a.label("p1_compute")
    compute_setup(a, g); compute_consts(a, g)
    wave_origin(a, g, 28, 29, 30, 31)
    init_acc_bias(a, g, 32, 31)
    compute_loop(a, g)
    I(a, "s_nop 7"); I(a, "s_nop 7")
    epi_store_lds(a, g, conv_relu2(a), 16, 7168, 30, 31)
    a.label("p1_end")
    I(a, "s_endpgm")
    return g

def k_a1(a, name):
    g = G(BM=256, BN=128, WM=2, WN=2, NS=3, ldq=2048, ldp=2048, nk=16, pref="a1")
    kernel_begin(a, name)
    I(a, "s_cmp_ge_u32 s2, 128"); I(a, "s_cbranch_scc1 a1_end")
    load_ptr(a, 4, 0); load_ptr(a, 6, 24); load_ptr(a, 20, 32); load_ptr(a, 22, 104)
    prologue_common(a)
    I(a, "s_and_b32 s28, s2, 7")
    I(a, "s_lshr_b32 s29, s2, 3")
    I(a, "s_lshr_b32 s27, s29, 3")
    I(a, "s_and_b32 s29, s29, 7")
    I(a, "s_waitcnt lgkmcnt(0)")
    I(a, "s_cmp_eq_u32 s27, 1")
    I(a, "s_cselect_b32 s6, s20, s6"); I(a, "s_cselect_b32 s7, s21, s7")
    add64(a, 22, AB_OFF)
    I(a, f"s_mul_i32 s26, s27, {2048*2048}")
    I(a, "s_add_u32 s22, s22, s26"); I(a, "s_addc_u32 s23, s23, 0")
    srd(a, S_QSRD, 4, 2048*1024*2); srd(a, S_PSRD, 6, 1024*1024*2); srd(a, 16, 22, 2048*1024*2)
    I(a, f"s_mul_i32 s{S_QOFF}, s28, {256*2048}")
    I(a, f"s_mul_i32 s{S_POFF}, s29, {128*2}")
    I(a, f"s_cmp_ge_u32 s{S_WAVE}, 4"); I(a, "s_cbranch_scc0 a1_compute")
    I(a, f"s_sub_u32 s{S_WAVE}, s{S_WAVE}, 4")
    loader(a, g)
    I(a, "s_endpgm")
    a.label("a1_compute")
    compute_setup(a, g); compute_consts(a, g)
    wave_origin(a, g, 28, 29, 30, 31)
    init_acc_zero(a, g)
    compute_loop(a, g)
    I(a, "s_nop 7"); I(a, "s_nop 7")
    I(a, "s_cmp_eq_u32 s27, 1"); I(a, "s_cbranch_scc1 a1_neg")
    epi_store_lds(a, g, conv_plain(a), 16, 2048, 30, 31)
    I(a, "s_endpgm")
    a.label("a1_neg")
    epi_store_lds(a, g, conv_plain(a, True), 16, 2048, 30, 31)
    a.label("a1_end")
    I(a, "s_endpgm")
    return g

def k_a2(a, name):
    g = G(BM=256, BN=128, WM=2, WN=2, NS=3, ldq=4096, ldp=2048, nk=64, pref="a2")
    g.switch = 32
    kernel_begin(a, name)
    I(a, "s_cmp_ge_u32 s2, 64"); I(a, "s_cbranch_scc1 a2_end")
    load_ptr(a, 4, 8); load_ptr(a, 56, 16); load_ptr(a, 22, 104)
    prologue_common(a)
    I(a, "s_and_b32 s28, s2, 7"); I(a, "s_lshr_b32 s29, s2, 3")
    I(a, "s_waitcnt lgkmcnt(0)")
    I(a, "s_and_b32 s57, s57, 0xffff")
    I(a, "s_mov_b32 s6, s22"); I(a, "s_mov_b32 s7, s23")
    add64(a, 6, AB_OFF); add64(a, 22, Y_OFF)
    srd(a, S_QSRD, 4, 2048*2048*2); srd(a, S_PSRD, 6, 4096*1024*2); srd(a, 16, 22, 2048*1024*2)
    I(a, f"s_mul_i32 s{S_QOFF}, s28, {256*4096}")
    I(a, f"s_mov_b32 s55, s{S_QOFF}")
    I(a, f"s_mov_b32 s54, 0")
    I(a, f"s_mul_i32 s{S_POFF}, s29, {128*2}")
    I(a, f"s_cmp_ge_u32 s{S_WAVE}, 4"); I(a, "s_cbranch_scc0 a2_compute")
    I(a, f"s_sub_u32 s{S_WAVE}, s{S_WAVE}, 4")
    loader(a, g)
    I(a, "s_endpgm")
    a.label("a2_compute")
    compute_setup(a, g); compute_consts(a, g)
    wave_origin(a, g, 28, 29, 30, 31)
    init_acc_zero(a, g)
    compute_loop(a, g)
    I(a, "s_nop 7"); I(a, "s_nop 7")
    epi_store_lds(a, g, conv_plain(a), 16, 2048, 30, 31)
    a.label("a2_end")
    I(a, "s_endpgm")
    return g

def rne_bf16(a, v, tmp):
    I(a, f"v_cvt_pk_bf16_f32 v{v}, v{v}, v{v}")
    I(a, f"v_lshlrev_b32 v{v}, 16, v{v}")

def k_gate(a, name):
    kernel_begin(a, name)
    I(a, "s_cmp_ge_u32 s2, 512"); I(a, "s_cbranch_scc1 kg_end")
    load_ptr(a, 4, 0); load_ptr(a, 6, 80); load_ptr(a, 22, 104)
    prologue_common(a)
    I(a, "s_waitcnt lgkmcnt(0)")
    add64(a, 22, G_OFF)
    srd(a, 8, 4, 2048*1024*2); srd(a, 12, 6, 2048); srd(a, 16, 22, 2048*8)
    I(a, "s_lshl_b32 s24, s2, 2"); I(a, f"s_add_u32 s24, s24, s{S_WAVE}")
    I(a, "s_lshl_b32 s25, s24, 11")
    I(a, "v_lshlrev_b32 v2, 4, v1")
    I(a, "buffer_load_dwordx4 v[4:7], v2, s[8:11], s25 offen")
    I(a, "buffer_load_dwordx4 v[8:11], v2, s[8:11], s25 offen offset:1024")
    I(a, "buffer_load_dwordx4 v[12:15], v2, s[12:15], 0 offen")
    I(a, "buffer_load_dwordx4 v[16:19], v2, s[12:15], 0 offen offset:1024")
    I(a, "s_waitcnt vmcnt(0)")
    I(a, "v_mov_b32 v20, 0")
    for i in range(8):
        x, w = 4 + i, 12 + i
        I(a, f"v_lshlrev_b32 v21, 16, v{x}"); I(a, f"v_lshlrev_b32 v22, 16, v{w}")
        I(a, f"v_and_b32 v23, 0xffff0000, v{x}"); I(a, f"v_and_b32 v24, 0xffff0000, v{w}")
        I(a, "v_mul_f32 v21, v21, v22"); I(a, "v_mul_f32 v23, v23, v24")
        I(a, "v_cvt_pk_bf16_f32 v21, v21, v23")
        I(a, "v_lshlrev_b32 v22, 16, v21"); I(a, "v_and_b32 v23, 0xffff0000, v21")
        I(a, "v_add_f32 v20, v20, v22"); I(a, "v_add_f32 v20, v20, v23")
    for off in (0x041F, 0x081F, 0x101F, 0x201F, 0x401F):
        I(a, f"ds_swizzle_b32 v21, v20 offset:{off}")
        I(a, "s_waitcnt lgkmcnt(0)")
        I(a, "v_add_f32 v20, v20, v21")
    I(a, "s_nop 0")
    I(a, "v_readlane_b32 s26, v20, 32")
    I(a, "s_nop 1")
    I(a, "v_add_f32 v20, s26, v20")
    rne_bf16(a, 20, 21)
    I(a, "v_mul_f32 v21, 0xbfb8aa3b, v20")
    I(a, "v_exp_f32 v21, v21")
    I(a, "s_nop 0")
    I(a, "v_add_f32 v21, 1.0, v21")
    I(a, "v_rcp_f32 v21, v21")
    I(a, "s_nop 0")
    rne_bf16(a, 21, 22)
    I(a, "v_sub_f32 v22, 1.0, v21")
    rne_bf16(a, 22, 23)
    I(a, "v_mov_b32 v24, v21"); I(a, "v_mov_b32 v25, v22")
    I(a, "s_lshl_b32 s25, s24, 3")
    I(a, "v_mov_b32 v2, s25")
    I(a, "v_cmp_eq_u32 vcc, 0, v1")
    I(a, "s_and_saveexec_b64 s[30:31], vcc")
    I(a, "s_cbranch_execz kg_end")
    I(a, "buffer_store_dwordx2 v[24:25], v2, s[16:19], 0 offen")
    a.label("kg_end")
    I(a, "s_endpgm")

def epi_final(a, g, perturb=0.0):
    W = 50
    I(a, f"s_mul_i32 s{S_TMP}, s{S_WAVE}, {g.wm*128}")
    I(a, f"v_and_b32 v{W}, 31, v1")
    I(a, f"v_lshlrev_b32 v{W+1}, 7, v{W}")
    I(a, f"v_add_u32 v{W+1}, s{S_TMP}, v{W+1}")
    I(a, f"v_lshrrev_b32 v{W+2}, 5, v1")
    I(a, f"v_lshl_add_u32 v{W+1}, v{W+2}, 3, v{W+1}")
    I(a, f"v_and_b32 v{W}, 7, v{W}")
    for ch in range(8):
        I(a, f"v_xor_b32 v{W+2}, {ch}, v{W}")
        I(a, f"v_lshl_add_u32 v{W+4+ch}, v{W+2}, 4, v{W+1}")
    I(a, f"v_lshrrev_b32 v{W}, 3, v1")
    I(a, f"v_and_b32 v{W+2}, 7, v1")
    I(a, f"v_xor_b32 v{W+2}, v{W+2}, v{W}")
    I(a, f"v_lshlrev_b32 v{W+3}, 7, v{W}")
    I(a, f"v_lshl_add_u32 v{W+3}, v{W+2}, 4, v{W+3}")
    I(a, f"v_add_u32 v{W+12}, s{S_TMP}, v{W+3}")
    I(a, f"v_add_u32 v{W}, s30, v{W}")
    I(a, f"v_lshlrev_b32 v47, 3, v{W}")
    I(a, f"v_lshlrev_b32 v{W}, 11, v{W}")
    I(a, f"v_and_b32 v{W+2}, 7, v1")
    I(a, f"v_lshl_add_u32 v{W}, v{W+2}, 4, v{W}")
    I(a, f"v_add_u32 v{W+13}, s31, v{W}")
    I(a, "v_lshrrev_b32 v40, 5, v1")
    I(a, "v_lshlrev_b32 v40, 3, v40")
    for nb in range(g.NB):
        for q in range(4):
            r = 16 + (nb*4+q)*2
            I(a, f"buffer_load_dwordx2 v[{r}:{r+1}], v40, s[32:35], s31 offen offset:{nb*64+q*16}")
    I(a, "s_waitcnt vmcnt(0)")
    for nb in range(g.NB):
        for q in range(4):
            r = 16 + (nb*4+q)*2
            d = 96 + (nb*4+q)*4
            I(a, f"v_lshlrev_b32 v{d}, 16, v{r}"); I(a, f"v_and_b32 v{d+1}, 0xffff0000, v{r}")
            I(a, f"v_lshlrev_b32 v{d+2}, 16, v{r+1}"); I(a, f"v_and_b32 v{d+3}, 0xffff0000, v{r+1}")
    for mb in range(g.MB):
        for nb in range(g.NB):
            c = acc_reg(g, nb, mb)
            for q in range(4):
                cc = c + 4*q; d = 96 + (nb*4+q)*4
                t = 16
                I(a, f"v_cvt_pk_bf16_f32 v{t}, v{cc}, v{cc+1}")
                I(a, f"v_cvt_pk_bf16_f32 v{t+1}, v{cc+2}, v{cc+3}")
                I(a, f"v_lshlrev_b32 v{cc}, 16, v{t}"); I(a, f"v_and_b32 v{cc+1}, 0xffff0000, v{t}")
                I(a, f"v_lshlrev_b32 v{cc+2}, 16, v{t+1}"); I(a, f"v_and_b32 v{cc+3}, 0xffff0000, v{t+1}")
                for r in range(4): I(a, f"v_add_f32 v{cc+r}, v{cc+r}, v{d+r}")
                tt = 18 + ((nb*4+q) % 4) * 2
                I(a, f"v_cvt_pk_bf16_f32 v{tt}, v{cc}, v{cc+1}")
                I(a, f"v_cvt_pk_bf16_f32 v{tt+1}, v{cc+2}, v{cc+3}")
                I(a, f"ds_write_b64 v{W+4+nb*4+q}, v[{tt}:{tt+1}] offset:{mb*4096}")
        I(a, "s_waitcnt lgkmcnt(0)")
        for i in range(4):
            r = 64 + i * 4
            I(a, f"ds_read_b128 v[{r}:{r+3}], v{W+12} offset:{mb*4096 + i*1024}")
            I(a, f"s_mov_b32 s{S_TMP2}, {(mb*32 + i*8) * 2048}")
            I(a, f"buffer_load_dwordx4 v[{80+i*4}:{80+i*4+3}], v{W+13}, s[24:27], s{S_TMP2} offen")
            I(a, f"s_mov_b32 s{S_TMP2}, {(mb*32 + i*8) * 8}")
            I(a, f"buffer_load_dwordx2 v[{28+i*2}:{28+i*2+1}], v47, s[36:39], s{S_TMP2} offen")
        I(a, "s_waitcnt lgkmcnt(0) vmcnt(0)")
        for i in range(4):
            gv, og = 28 + i*2, 28 + i*2 + 1
            for j in range(4):
                b = 64 + i*4 + j; y = 80 + i*4 + j
                I(a, f"v_lshlrev_b32 v40, 16, v{b}"); I(a, f"v_and_b32 v41, 0xffff0000, v{b}")
                I(a, f"v_lshlrev_b32 v42, 16, v{y}"); I(a, f"v_and_b32 v43, 0xffff0000, v{y}")
                I(a, f"v_mul_f32 v40, v40, v{og}"); I(a, f"v_mul_f32 v41, v41, v{og}")
                I(a, f"v_mul_f32 v42, v42, v{gv}"); I(a, f"v_mul_f32 v43, v43, v{gv}")
                I(a, "v_cvt_pk_bf16_f32 v40, v40, v41"); I(a, "v_cvt_pk_bf16_f32 v42, v42, v43")
                I(a, "v_lshlrev_b32 v44, 16, v40"); I(a, "v_and_b32 v45, 0xffff0000, v40")
                I(a, "v_lshlrev_b32 v46, 16, v42"); I(a, "v_and_b32 v43, 0xffff0000, v42")
                I(a, "v_add_f32 v44, v44, v46"); I(a, "v_add_f32 v45, v45, v43")
                if perturb:
                    I(a, f"v_mul_f32 v44, s58, v44"); I(a, f"v_mul_f32 v45, s58, v45")
                I(a, f"v_cvt_pk_bf16_f32 v{b}, v44, v45")
            I(a, f"s_mov_b32 s{S_TMP2}, {(mb*32 + i*8) * 2048}")
            I(a, f"buffer_store_dwordx4 v[{64+i*4}:{64+i*4+3}], v{W+13}, s[16:19], s{S_TMP2} offen")
        I(a, "s_nop 1")

def k_p2(a, name, perturb=0.0):
    import struct
    g = G(BM=256, BN=128, WM=2, WN=2, NS=3, ldq=7168, ldp=2048, nk=56, pref="p2")
    kernel_begin(a, name)
    I(a, "s_cmp_ge_u32 s2, 64"); I(a, "s_cbranch_scc1 p2_end")
    load_ptr(a, 6, 64); load_ptr(a, 20, 72); load_ptr(a, 22, 88); load_ptr(a, 4, 104)
    prologue_common(a)
    I(a, "s_and_b32 s28, s2, 7"); I(a, "s_lshr_b32 s29, s2, 3")
    I(a, "s_waitcnt lgkmcnt(0)")
    srd(a, S_PSRD, 6, 3584*1024*2); srd(a, 16, 22, 2048*1024*2); srd(a, 32, 20, 2048)
    I(a, "s_mov_b32 s6, s4"); I(a, "s_mov_b32 s7, s5"); add64(a, 6, Y_OFF); srd(a, 24, 6, 2048*1024*2)
    I(a, "s_mov_b32 s6, s4"); I(a, "s_mov_b32 s7, s5"); add64(a, 6, G_OFF); srd(a, 36, 6, 2048*8)
    add64(a, 4, H_OFF); srd(a, S_QSRD, 4, 2048*3584*2)
    if perturb:
        I(a, f"s_mov_b32 s58, {struct.unpack('<I', struct.pack('<f', 1.0+perturb))[0]}")
    I(a, f"s_mul_i32 s{S_QOFF}, s28, {256*7168}")
    I(a, f"s_mul_i32 s{S_POFF}, s29, {128*2}")
    I(a, f"s_cmp_ge_u32 s{S_WAVE}, 4"); I(a, "s_cbranch_scc0 p2_compute")
    I(a, f"s_sub_u32 s{S_WAVE}, s{S_WAVE}, 4")
    loader(a, g)
    I(a, "s_endpgm")
    a.label("p2_compute")
    compute_setup(a, g); compute_consts(a, g)
    wave_origin(a, g, 28, 29, 30, 31)
    init_acc_zero(a, g)
    compute_loop(a, g)
    I(a, "s_nop 7"); I(a, "s_nop 7")
    epi_final(a, g, perturb)
    a.label("p2_end")
    I(a, "s_endpgm")
    return g

HEADER = open("cdna_kernels/" + PFX + ".s.ref").read().split("; Override launch")[0]

def gen(perturb=0.0):
    a = Asm()
    a(HEADER.rstrip())
    L = 147456
    a(f"; @launch kernel=gate_kernel grid=(512,1,1) block=(256,1,1) lds=0")
    a(f"; @launch kernel=p1_kernel grid=(224,1,1) block=(512,1,1) lds={L}")
    a(f"; @launch kernel=a1_kernel grid=(128,1,1) block=(512,1,1) lds={L}")
    a(f"; @launch kernel=a2_kernel grid=(64,1,1) block=(512,1,1) lds={L}")
    a(f"; @launch kernel=p2_kernel grid=(64,1,1) block=(512,1,1) lds={L}")
    a('.amdgcn_target "amdgcn-amd-amdhsa--gfx950"')
    a(".text")
    k_gate(a, "gate_kernel"); k_p1(a, "p1_kernel"); k_a1(a, "a1_kernel"); k_a2(a, "a2_kernel"); k_p2(a, "p2_kernel", perturb)
    a('.section .rodata,"a"')
    for n in ("gate_kernel", "p1_kernel", "a1_kernel", "a2_kernel", "p2_kernel"):
        a(".p2align 6")
        kernel_desc(a, n, 256 if n != "gate_kernel" else 32, 96, 256 if n != "gate_kernel" else 32)
    return a.text()
if __name__ == "__main__":
    p = float(sys.argv[2]) if len(sys.argv) > 2 else 0.0
    open(sys.argv[1], "w").write(gen(p))
```

```python
from asmgen import *
from gemm2 import S_WAVE, S_TMP, S_TMP2, S_DELTA, S_CNT, S_LEFT, S_STG, S_QOFF, S_POFF, S_MQ, S_MP, S_DN, S_DP, interleave
from p1v2 import load_ptr
from p2 import add64, Y_OFF, YP, YARR
from k0 import XF_OFF, XFP, XFARR
QSRD = 8; PSRD = 12; MSRD = 16; YSRD = 20
STG = 53248; QB = 16384
TP = 560
TB = 128*TP
MA = TB; MBF = 106496
CV = 139264
ACC_A = 112; ACC_B = 128
FA = 16

def a_regs(s):
    b = FA + 40*s
    return [b + 4*i for i in range(9)], b + 36
def b_regs(s):
    b = FA + 36*s
    return [b + 4*i for i in range(8)], b + 32

def a_reads(s, kk):
    A, B = a_regs(s)
    out = [f"ds_read_b128 v[{B}:{B+3}], v{3+kk}"]
    for nb in range(9):
        for h in range(2):
            out.append(f"ds_read_b64_tr_b16 v[{A[nb]+2*h}:{A[nb]+2*h+1}], v2 offset:{(16*kk+4*h)*XFP + nb*64}")
    return out
def a_mfmas(s):
    A, B = a_regs(s)
    return [f"v_mfma_f32_32x32x16_bf16 v[{ACC_A+16*nb}:{ACC_A+16*nb+15}], v[{A[nb]}:{A[nb]+3}], v[{B}:{B+3}], v[{ACC_A+16*nb}:{ACC_A+16*nb+15}]" for nb in range(9)]
def b_reads(s, kk, stage):
    A, B = b_regs(s)
    out = [f"ds_read_b128 v[{B}:{B+3}], v7 offset:{stage*128 + kk*32}"]
    for nb in range(8):
        out.append(f"ds_read_b128 v[{A[nb]}:{A[nb]+3}], v{8+kk} offset:{nb*4096}")
    return out
def b_mfmas(s):
    A, B = b_regs(s)
    return [f"v_mfma_f32_32x32x16_bf16 v[{ACC_B+16*nb}:{ACC_B+16*nb+15}], v[{A[nb]}:{A[nb]+3}], v[{B}:{B+3}], v[{ACC_B+16*nb}:{ACC_B+16*nb+15}]" for nb in range(8)]

def a_stage_issue(a):
    I(a, f"s_add_u32 m0, s{S_STG}, s{S_MQ}"); I(a, "s_nop 0")
    for i in range(4):
        I(a, f"buffer_load_dwordx4 v{2+i}, s[{QSRD}:{QSRD+3}], s{S_QOFF} offen offset:{i*1024} lds")
    I(a, f"s_add_u32 m0, s{S_STG}, s{S_MP}")
    I(a, f"s_mov_b32 s{S_TMP}, s{S_POFF}")
    for i in range(9):
        if i and i % 4 == 0:
            I(a, "s_add_u32 m0, m0, 4096"); I(a, f"s_add_u32 s{S_TMP}, s{S_TMP}, 4096")
        elif i == 0: I(a, "s_nop 0")
        if i and i % 4 == 0: I(a, "s_nop 0")
        I(a, f"buffer_load_dwordx4 v6, s[{PSRD}:{PSRD+3}], s{S_TMP} offen offset:{(i%4)*1024} lds")
    I(a, f"s_add_u32 s{S_QOFF}, s{S_QOFF}, 128")
    I(a, f"s_add_u32 s{S_POFF}, s{S_POFF}, {64*XFP}")
    I(a, f"s_add_u32 s{S_STG}, s{S_STG}, {STG}")
    I(a, f"s_cmp_ge_u32 s{S_STG}, {3*STG}")
    I(a, f"s_cselect_b32 s{S_STG}, 0, s{S_STG}")

def m_stage_issue(a, buf):
    for i in range(8):
        if i % 4 == 0:
            I(a, f"s_add_u32 m0, s55, {buf}" if i == 0 else "s_add_u32 m0, m0, 4096"); I(a, "s_nop 0")
        I(a, f"buffer_load_dwordx4 v{8+i}, s[{MSRD}:{MSRD+3}], s54 offen offset:{(i&3)*1024} lds")
    I(a, "s_add_u32 s54, s54, 128")

def side_a(a, stage_off_s, nquads, tag):
    I(a, f"v_add_u32 v21, s{stage_off_s}, v20")
    for q in range(nquads):
        r = 32 + (q % 8)*2
        I(a, f"ds_read_b64_tr_b16 v[{r}:{r+1}], v21 offset:{q*4*XFP}")
        if q % 8 == 7 or q == nquads-1:
            n = (q % 8) + 1
            I(a, "s_waitcnt lgkmcnt(0)")
            for z in range(n):
                rr = 32 + z*2
                I(a, f"v_dot2_f32_bf16 v24, v{rr}, v22, v24"); I(a, f"v_dot2_f32_bf16 v24, v{rr+1}, v22, v24")
    lab = a.newlabel("sd")
    I(a, f"s_cmp_eq_u32 s{S_WAVE}, 0"); I(a, f"s_cbranch_scc0 {lab}")
    I(a, f"v_add_u32 v21, s{stage_off_s}, v23")
    for q in range(nquads):
        r = 32 + (q % 8)*2
        I(a, f"ds_read_b64_tr_b16 v[{r}:{r+1}], v21 offset:{q*4*XFP}")
        if q % 8 == 7 or q == nquads-1:
            n = (q % 8) + 1
            I(a, "s_waitcnt lgkmcnt(0)")
            for z in range(n):
                rr = 32 + z*2
                I(a, f"v_dot2_f32_bf16 v25, v{rr}, v22, v25"); I(a, f"v_dot2_f32_bf16 v25, v{rr+1}, v22, v25")
    a.label(lab)

def side_b(a, buf, stage, nchunks):
    for ch in range(nchunks):
        I(a, f"v_xor_b32 v29, {ch}, v27"); I(a, "v_lshl_add_u32 v29, v29, 4, v26"); I(a, f"v_add_u32 v29, {buf}, v29")
        I(a, f"ds_read_b128 v[32:35], v29")
        I(a, f"ds_read_b128 v[36:39], v30 offset:{stage*128 + ch*16}")
        I(a, "s_waitcnt lgkmcnt(0)")
        for z in range(4):
            I(a, f"v_dot2_f32_bf16 v28, v{32+z}, v{36+z}, v28")

def a_wg(a, stamps=None, pref="aw"):
    st = stamps or (lambda i: None)
    load_ptr(a, 24, 8, 4); load_ptr(a, 28, 24, 4); load_ptr(a, 4, 104)
    I(a, "s_and_b32 s60, s2, 7")
    I(a, "s_sub_u32 s61, s2, 224"); I(a, "s_lshr_b32 s61, s61, 3")
    I(a, "s_lshr_b32 s62, s60, 2")
    I(a, "s_bfe_u32 s63, s60, 0x10001")
    I(a, "s_and_b32 s64, s60, 1")
    I(a, "s_lshr_b32 s65, s60, 1"); I(a, "s_cmp_eq_u32 s65, 0"); I(a, "s_cselect_b32 s65, 1, 0"); I(a, "s_cmp_eq_u32 s61, 3"); I(a, "s_cselect_b32 s65, s65, 0")
    I(a, f"s_cmp_ge_u32 s{S_WAVE}, 4"); I(a, f"s_cbranch_scc0 {pref}_compute")
    I(a, f"s_sub_u32 s{S_WAVE}, s{S_WAVE}, 4")
    I(a, "v_lshrrev_b32 v40, 3, v1"); I(a, "v_lshrrev_b32 v41, 4, v1"); I(a, "v_and_b32 v42, 7, v1")
    I(a, f"s_mul_i32 s{S_TMP}, s{S_WAVE}, {32*8192}")
    I(a, "v_mul_u32_u24 v43, 8192, v40"); I(a, "v_xor_b32 v42, v42, v41"); I(a, f"v_add_u32 v43, s{S_TMP}, v43"); I(a, "v_lshl_add_u32 v43, v42, 4, v43"); I(a, "v_xor_b32 v44, 64, v43")
    for i in range(4):
        I(a, f"v_add_u32 v{2+i}, {i*8*8192 - i*1024}, v{44 if i & 1 else 43}")
    I(a, "v_lshlrev_b32 v6, 4, v1")
    I(a, f"s_mul_i32 s{S_TMP}, s{S_WAVE}, {64*4096}")
    I(a, "v_mul_u32_u24 v43, 4096, v40"); I(a, f"v_add_u32 v43, s{S_TMP}, v43"); I(a, "v_lshl_add_u32 v43, v42, 4, v43"); I(a, "v_xor_b32 v44, 64, v43")
    for i in range(8):
        I(a, f"v_add_u32 v{8+i}, {i*8*4096 - (i&3)*1024}, v{44 if i & 1 else 43}")
    I(a, f"s_mul_i32 s{S_MQ}, s{S_WAVE}, 4096")
    I(a, f"s_mul_i32 s{S_MP}, s{S_WAVE}, 9216"); I(a, f"s_add_u32 s{S_MP}, s{S_MP}, {QB}")
    I(a, f"s_mul_i32 s55, s{S_WAVE}, 8192")
    I(a, f"s_mov_b32 s{S_STG}, 0")
    I(a, "s_lshl_b32 s56, s61, 8"); I(a, "s_add_u32 s56, s56, s63"); I(a, f"s_lshl_b32 s{S_QOFF}, s56, 12")
    I(a, f"s_mul_i32 s{S_POFF}, s60, {XFARR}"); I(a, f"s_mul_i32 s56, s{S_WAVE}, 9216"); I(a, f"s_add_u32 s{S_POFF}, s{S_POFF}, s56")
    I(a, "s_lshl_b32 s54, s64, 11")
    I(a, "v_bfe_u32 v40, v1, 2, 2")
    I(a, f"v_mul_u32_u24 v40, {XFP}, v40")
    I(a, "v_and_b32 v41, 3, v1"); I(a, "v_lshl_add_u32 v40, v41, 3, v40")
    I(a, f"v_add_u32 v40, {QB}, v40")
    I(a, "v_lshrrev_b32 v41, 4, v1")
    I(a, f"s_lshl_b32 s56, s{S_WAVE}, 7"); I(a, "v_lshl_add_u32 v20, v41, 5, v40"); I(a, "v_add_u32 v20, s56, v20")
    I(a, "v_and_b32 v41, 1, v41"); I(a, "v_lshl_add_u32 v23, v41, 5, v40"); I(a, "v_add_u32 v23, 512, v23")
    I(a, "v_mov_b32 v22, 0xbf803f80"); I(a, "v_mov_b32 v24, 0"); I(a, "v_mov_b32 v25, 0"); I(a, "v_mov_b32 v28, 0")
    I(a, f"s_lshl_b32 s56, s{S_WAVE}, 6"); I(a, "v_add_u32 v26, s56, v1"); I(a, "v_bfe_u32 v27, v26, 1, 3"); I(a, "v_lshlrev_b32 v26, 7, v26")
    I(a, f"v_mov_b32 v30, {CV}")
    I(a, "s_waitcnt lgkmcnt(0)")
    st(1)
    I(a, "s_cmp_eq_u32 s62, 1")
    I(a, "s_cselect_b32 s24, s26, s24"); I(a, "s_cselect_b32 s25, s27, s25"); I(a, "s_cselect_b32 s28, s30, s28"); I(a, "s_cselect_b32 s29, s31, s29")
    srd(a, QSRD, 24, 2048*2048*2); srd(a, MSRD, 28, 1024*1024*2)
    I(a, "s_mov_b32 s6, s4"); I(a, "s_mov_b32 s7, s5"); add64(a, 6, XF_OFF); srd(a, PSRD, 6, 8*XFARR)
    a_stage_issue(a); a_stage_issue(a)
    I(a, "s_waitcnt vmcnt(13)"); I(a, "s_barrier")
    a_stage_issue(a)
    I(a, f"s_mov_b32 s57, 0")
    for t in range(8):
        lab = a.newlabel("ns")
        I(a, "s_cmp_eq_u32 s65, 1"); I(a, f"s_cbranch_scc0 {lab}")
        side_a(a, 57, 16, f"a{t}")
        a.label(lab)
        I(a, f"s_add_u32 s57, s57, {STG}"); I(a, f"s_cmp_ge_u32 s57, {3*STG}"); I(a, "s_cselect_b32 s57, 0, s57")
        rem = 13 if t + 2 <= 8 else 0
        I(a, f"s_waitcnt vmcnt({rem})"); I(a, "s_barrier")
        if t + 3 <= 8: a_stage_issue(a)
    m_stage_issue(a, MA)
    lab = a.newlabel("ns")
    I(a, "s_cmp_eq_u32 s65, 1"); I(a, f"s_cbranch_scc0 {lab}")
    side_a(a, 57, 4, "a8")
    I(a, "v_cvt_pk_bf16_f32 v31, v24, v24"); I(a, f"s_lshl_b32 s56, s{S_WAVE}, 7"); I(a, "v_lshlrev_b32 v40, 1, v1"); I(a, "v_add_u32 v40, s56, v40"); I(a, f"v_add_u32 v40, {CV}, v40")
    I(a, f"ds_write_b16 v40, v31")
    I(a, "v_cvt_pk_bf16_f32 v31, v25, v25"); I(a, "v_and_b32 v40, 31, v1"); I(a, "v_lshlrev_b32 v40, 1, v40"); I(a, f"v_add_u32 v40, {CV+512}, v40")
    lab2 = a.newlabel("ns")
    I(a, f"s_cmp_eq_u32 s{S_WAVE}, 0"); I(a, f"s_cbranch_scc0 {lab2}")
    I(a, f"ds_write_b16 v40, v31")
    a.label(lab2)
    I(a, "s_waitcnt lgkmcnt(0)")
    a.label(lab)
    I(a, "s_barrier")
    m_stage_issue(a, MBF)
    I(a, "s_waitcnt vmcnt(8)"); I(a, "s_barrier")
    for s in range(4):
        buf = MA if s % 2 == 0 else MBF
        lab = a.newlabel("ns")
        I(a, "s_cmp_eq_u32 s65, 1"); I(a, f"s_cbranch_scc0 {lab}")
        side_b(a, buf, s, 8)
        a.label(lab)
        I(a, "s_waitcnt vmcnt(0)"); I(a, "s_barrier")
        if s + 2 <= 4: m_stage_issue(a, buf)
    lab = a.newlabel("ns")
    I(a, "s_cmp_eq_u32 s65, 1"); I(a, f"s_cbranch_scc0 {lab}")
    side_b(a, MA, 4, 2)
    I(a, "s_mov_b32 s6, s4"); I(a, "s_mov_b32 s7, s5"); add64(a, 6, Y_OFF); srd(a, YSRD, 6, 4*YARR)
    I(a, f"s_mul_i32 s56, s64, {YARR}"); I(a, f"s_add_u32 s56, s56, {1024*YP}")
    I(a, "v_cvt_pk_bf16_f32 v31, v28, v28")
    I(a, f"s_lshl_b32 s57, s{S_WAVE}, 7"); I(a, "v_lshlrev_b32 v40, 1, v1"); I(a, "v_add_u32 v40, s57, v40")
    I(a, f"buffer_store_short v31, v40, s[{YSRD}:{YSRD+3}], s56 offen")
    I(a, "v_mov_b32 v32, 0")
    I(a, f"s_add_u32 s57, s56, {2*YARR}")
    I(a, f"buffer_store_short v32, v40, s[{YSRD}:{YSRD+3}], s57 offen")
    I(a, f"v_mov_b32 v41, {CV+544}"); I(a, "ds_read_u16 v33, v41"); I(a, "v_mov_b32 v40, 512")
    I(a, "v_cmp_eq_u32 vcc, 0, v0"); I(a, "v_mov_b32 v42, 0x7ffffff0")
    I(a, f"s_cmp_eq_u32 s{S_WAVE}, 0"); I(a, "s_cselect_b32 s58, 0, 1")
    I(a, "v_cmp_eq_u32 vcc, 0, v1"); I(a, "s_nop 1"); I(a, "v_cndmask_b32 v40, v42, v40, vcc")
    I(a, "s_waitcnt lgkmcnt(0)")
    lab3 = a.newlabel("ns")
    I(a, f"s_cmp_eq_u32 s{S_WAVE}, 0"); I(a, f"s_cbranch_scc0 {lab3}")
    I(a, f"buffer_store_short v33, v40, s[{YSRD}:{YSRD+3}], s56 offen")
    I(a, f"buffer_store_short v32, v40, s[{YSRD}:{YSRD+3}], s57 offen")
    a.label(lab3)
    a.label(lab)
    I(a, "s_barrier")
    st(7)
    if stamps: stamps.dump(8, 1)
    I(a, "s_endpgm")
    a.label(f"{pref}_compute")
    I(a, "v_bfe_u32 v40, v1, 2, 2"); I(a, "v_lshrrev_b32 v41, 5, v1"); I(a, "v_lshl_add_u32 v41, v41, 3, v40")
    I(a, f"v_mul_u32_u24 v41, {XFP}, v41"); I(a, f"v_add_u32 v41, {QB}, v41")
    I(a, "v_bfe_u32 v42, v1, 4, 1"); I(a, "v_lshl_add_u32 v41, v42, 5, v41")
    I(a, "v_and_b32 v42, 3, v1"); I(a, "v_lshl_add_u32 v2, v42, 3, v41")
    I(a, "v_and_b32 v40, 31, v1"); I(a, f"s_lshl_b32 s{S_DELTA}, s{S_WAVE}, 12"); I(a, "v_lshlrev_b32 v43, 7, v40"); I(a, f"v_add_u32 v43, s{S_DELTA}, v43")
    I(a, "v_lshrrev_b32 v41, 5, v1"); I(a, "v_bfe_u32 v42, v1, 1, 3"); I(a, "v_xor_b32 v41, v41, v42")
    for kk in range(4):
        I(a, f"v_xor_b32 v44, {2*kk}, v41"); I(a, f"v_lshl_add_u32 v{3+kk}, v44, 4, v43")
    I(a, "v_lshlrev_b32 v43, 7, v40")
    for kk in range(4):
        I(a, f"v_xor_b32 v44, {2*kk}, v41"); I(a, f"v_lshl_add_u32 v{8+kk}, v44, 4, v43"); I(a, f"v_add_u32 v{8+kk}, {MA}, v{8+kk}")
    I(a, f"s_lshl_b32 s{S_DELTA}, s{S_WAVE}, 5"); I(a, f"v_add_u32 v43, s{S_DELTA}, v40"); I(a, f"v_mul_u32_u24 v43, {TP}, v43")
    I(a, "v_lshrrev_b32 v44, 5, v1"); I(a, "v_lshl_add_u32 v7, v44, 4, v43")
    I(a, "v_lshl_add_u32 v12, v44, 3, v43")
    for r in range(144): I(a, f"v_mov_b32 v{ACC_A+r}, 0")
    I(a, f"s_mov_b32 s{S_DN}, {(-2*STG) & 0xffffffff}"); I(a, f"s_mov_b32 s{S_DP}, {STG}")
    I(a, "s_waitcnt lgkmcnt(0)")
    st(1)
    I(a, "s_barrier")
    st(4)
    for r in a_reads(0, 0): I(a, r)
    I(a, f"s_mov_b32 s{S_CNT}, 8"); I(a, f"s_mov_b32 s{S_LEFT}, 0")
    a(".p2align 6")
    a.label(f"{pref}_aloop")
    for kk in range(3):
        I(a, "s_waitcnt lgkmcnt(0)")
        interleave(a, a_mfmas(kk & 1), a_reads((kk+1) & 1, kk+1), 3)
    I(a, "s_waitcnt lgkmcnt(0)"); I(a, "s_barrier")
    mf = a_mfmas(1)
    I(a, mf[0])
    I(a, f"s_add_u32 s{S_LEFT}, s{S_LEFT}, {STG}"); I(a, f"s_cmp_ge_u32 s{S_LEFT}, {3*STG}")
    I(a, f"s_cselect_b32 s{S_DELTA}, s{S_DN}, s{S_DP}"); I(a, f"s_cselect_b32 s{S_LEFT}, 0, s{S_LEFT}")
    for i in range(2, 7): I(a, f"v_add_u32 v{i}, s{S_DELTA}, v{i}")
    interleave(a, mf[1:], a_reads(0, 0) + [f"s_sub_u32 s{S_CNT}, s{S_CNT}, 1", f"s_cmp_lg_u32 s{S_CNT}, 0"], 3)
    I(a, f"s_cbranch_scc1 {pref}_aloop")
    I(a, "s_waitcnt lgkmcnt(0)")
    for m in a_mfmas(0): I(a, m)
    I(a, "s_barrier")
    st(2)
    I(a, "s_nop 7"); I(a, "s_nop 7")
    k = 0
    for nb in range(9):
        for q in range(4):
            if nb == 8 and q == 3: continue
            c = ACC_A + 16*nb + 4*q; t = FA + (k % 8)*2; k += 1
            I(a, f"v_cvt_pk_bf16_f32 v{t}, v{c}, v{c+1}"); I(a, f"v_cvt_pk_bf16_f32 v{t+1}, v{c+2}, v{c+3}")
            I(a, f"ds_write_b64 v12, v[{t}:{t+1}] offset:{nb*64 + q*16}")
    for r in range(128): I(a, f"v_mov_b32 v{ACC_B+r}, 0")
    I(a, "s_waitcnt lgkmcnt(0)"); I(a, "s_barrier")
    st(3)
    for r in b_reads(0, 0, 0): I(a, r)
    for s in range(4):
        for kk in range(3):
            I(a, "s_waitcnt lgkmcnt(0)")
            interleave(a, b_mfmas(kk & 1), b_reads((kk+1) & 1, kk+1, s), 2)
        I(a, "s_waitcnt lgkmcnt(0)"); I(a, "s_barrier")
        mf = b_mfmas(1)
        I(a, mf[0])
        d = (MBF - MA) if s % 2 == 0 else (MA - MBF) & 0xffffffff
        for i in range(8, 12): I(a, f"v_add_u32 v{i}, {d}, v{i}")
        interleave(a, mf[1:], b_reads(0, 0, s+1), 2)
    I(a, "s_waitcnt lgkmcnt(0)")
    for m in b_mfmas(0): I(a, m)
    st(5)
    I(a, f"v_and_b32 v40, 31, v1"); I(a, f"s_lshl_b32 s{S_DELTA}, s{S_WAVE}, 5"); I(a, f"v_add_u32 v41, s{S_DELTA}, v40")
    I(a, f"v_mul_u32_u24 v42, {TP}, v41"); I(a, "ds_read_u16 v45, v42 offset:544")
    I(a, "s_barrier")
    I(a, "s_mov_b32 s6, s4"); I(a, "s_mov_b32 s7, s5"); add64(a, 6, Y_OFF); srd(a, YSRD, 6, 4*YARR)
    I(a, "s_lshl_b32 s56, s62, 1"); I(a, "s_add_u32 s56, s56, s64"); I(a, f"s_mul_i32 s56, s56, {YARR}")
    I(a, "s_lshl_b32 s57, s61, 8"); I(a, "s_add_u32 s57, s57, s63")
    I(a, "v_lshlrev_b32 v41, 1, v41"); I(a, "v_add_u32 v41, s57, v41"); I(a, f"v_mul_u32_u24 v41, {YP}, v41"); I(a, "v_add_u32 v41, 512, v41")
    I(a, "v_cmp_gt_u32 vcc, 32, v1"); I(a, "v_mov_b32 v42, 0x7ffffff0"); I(a, "s_waitcnt lgkmcnt(0)"); I(a, "v_cndmask_b32 v41, v42, v41, vcc")
    I(a, f"buffer_store_short v45, v41, s[{YSRD}:{YSRD+3}], s56 offen")
    I(a, f"s_lshl_b32 s57, s{S_WAVE}, 14"); I(a, f"s_add_u32 s57, s57, {MA}")
    I(a, "v_lshlrev_b32 v43, 9, v40"); I(a, "v_add_u32 v43, s57, v43"); I(a, "v_lshrrev_b32 v44, 5, v1"); I(a, "v_lshl_add_u32 v43, v44, 3, v43")
    I(a, "v_and_b32 v44, 7, v40")
    for z in range(8):
        I(a, f"v_xor_b32 v46, {z}, v44"); I(a, f"v_lshl_add_u32 v{48+z}, v46, 4, v43")
    I(a, "s_nop 7")
    k = 0
    for nb in range(8):
        for q in range(4):
            c = ACC_B + 16*nb + 4*q; t = FA + (k % 8)*2; k += 1
            ch = nb*4 + q
            I(a, f"v_cvt_pk_bf16_f32 v{t}, v{c}, v{c+1}"); I(a, f"v_cvt_pk_bf16_f32 v{t+1}, v{c+2}, v{c+3}")
            I(a, f"ds_write_b64 v{48 + (ch & 7)}, v[{t}:{t+1}] offset:{(ch >> 3)*128}")
    I(a, "v_lshrrev_b32 v44, 5, v1"); I(a, "v_and_b32 v45, 31, v1")
    I(a, "s_waitcnt lgkmcnt(0)")
    I(a, "s_lshl_b32 s58, s61, 8"); I(a, "s_add_u32 s58, s58, s63"); I(a, f"s_lshl_b32 s59, s{S_WAVE}, 6"); I(a, "s_add_u32 s58, s58, s59")
    I(a, "v_lshl_add_u32 v46, v44, 1, s58"); I(a, f"v_mul_u32_u24 v46, {YP}, v46"); I(a, "v_lshl_add_u32 v46, v45, 4, v46")
    for i in range(16):
        I(a, f"v_add_u32 v47, {2*i}, v44"); I(a, "v_and_b32 v56, 7, v47"); I(a, "v_xor_b32 v56, v45, v56")
        I(a, "v_lshlrev_b32 v47, 9, v47"); I(a, "v_lshl_add_u32 v47, v56, 4, v47"); I(a, "v_add_u32 v47, s57, v47")
        r = 64 + (i % 8)*4
        I(a, f"ds_read_b128 v[{r}:{r+3}], v47")
        if i % 8 == 7:
            I(a, "s_waitcnt lgkmcnt(0)")
            for z in range(8):
                ii = i - 7 + z; rr = 64 + z*4
                I(a, f"s_add_u32 s59, s56, {ii*4*YP}")
                I(a, f"buffer_store_dwordx4 v[{rr}:{rr+3}], v46, s[{YSRD}:{YSRD+3}], s59 offen")
            I(a, "s_nop 1")
    st(6)
    if stamps:
        I(a, "s_waitcnt vmcnt(0)")
    st(7)
    if stamps: stamps.dump(8, 0)
    I(a, "s_endpgm")
```

```python
from asmgen import *
import math

class G:
    def __init__(self, BM, BN, WM, WN, NS, ldq, ldp, nk, pref="g"):
        self.BM, self.BN, self.WM, self.WN, self.NS = BM, BN, WM, WN, NS
        self.ldq, self.ldp, self.nk = ldq, ldp, nk
        self.wm = BM // WM; self.wn = BN // WN
        self.MB = self.wm // 32; self.NB = self.wn // 32
        self.QB = BM * 128; self.PB = 64 * BN * 2
        self.STAGE = self.QB + self.PB
        self.LDS = self.STAGE * NS
        self.nq = BM // 8 // 4
        self.np_ = BN // 8 // 4
        self.PER = self.nq + self.np_
        self.pref = pref

S_QSRD = 8; S_PSRD = 12
S_QOFF = 40; S_POFF = 41; S_STG = 43; S_CNT = 44; S_WAVE = 45; S_TMP = 46; S_TMP2 = 47; S_DELTA = 48; S_LEFT = 49
S_MQ = 50; S_MP = 51; S_DN = 52; S_DP = 53
VL = 2

def lane_wave(a):
    I(a, "v_and_b32 v1, 63, v0")
    I(a, "v_lshrrev_b32 v2, 6, v0")
    I(a, "s_nop 0")
    I(a, f"v_readfirstlane_b32 s{S_WAVE}, v2")

def loader_voffsets(a, g):
    I(a, "v_lshrrev_b32 v40, 3, v1")
    I(a, "v_lshrrev_b32 v41, 4, v1")
    I(a, "v_and_b32 v42, 7, v1")
    I(a, f"s_mul_i32 s{S_TMP}, s{S_WAVE}, {8*g.nq*g.ldq}")
    I(a, f"v_mul_u32_u24 v43, {g.ldq}, v40")
    I(a, "v_xor_b32 v42, v42, v41")
    I(a, f"v_add_u32 v43, s{S_TMP}, v43")
    I(a, "v_lshl_add_u32 v43, v42, 4, v43")
    I(a, "v_xor_b32 v44, 64, v43")
    for i in range(g.nq):
        c = i*8*g.ldq - (i & 3)*1024
        I(a, f"v_add_u32 v{VL+i}, {c}, v{44 if i & 1 else 43}")
    I(a, f"s_mul_i32 s{S_TMP}, s{S_WAVE}, {(4 if g.BN == 128 else 8)*g.np_*g.ldp}")
    if g.BN == 128:
        I(a, "v_and_b32 v42, 15, v1")
        I(a, "v_lshlrev_b32 v45, 2, v41")
        I(a, "v_xor_b32 v42, v42, v45")
        I(a, f"v_mul_u32_u24 v43, {g.ldp}, v41")
        rows = 4
    else:
        I(a, "v_and_b32 v42, 7, v1")
        I(a, "v_and_b32 v45, 1, v41")
        I(a, "v_lshlrev_b32 v45, 2, v45")
        I(a, "v_xor_b32 v42, v42, v45")
        I(a, f"v_mul_u32_u24 v43, {g.ldp}, v40")
        rows = 8
    I(a, f"v_add_u32 v43, s{S_TMP}, v43")
    I(a, "v_lshl_add_u32 v43, v42, 4, v43")
    for i in range(g.np_):
        c = i*rows*g.ldp - (i & 3)*1024
        I(a, f"v_add_u32 v{VL+g.nq+i}, {c}, v43")
    I(a, f"s_mul_i32 s{S_MQ}, s{S_WAVE}, {g.nq*1024}")
    I(a, f"s_mul_i32 s{S_MP}, s{S_WAVE}, {g.np_*1024}")
    I(a, f"s_add_u32 s{S_MP}, s{S_MP}, {g.QB}")
    I(a, f"s_mov_b32 s{S_STG}, 0")

def stage_issue(a, g, extra=None):
    if getattr(g, "switch", None):
        I(a, f"s_cmp_eq_u32 s54, {g.switch}")
        I(a, f"s_cselect_b32 s{S_QSRD}, s56, s{S_QSRD}")
        I(a, f"s_cselect_b32 s{S_QSRD+1}, s57, s{S_QSRD+1}")
        I(a, f"s_cselect_b32 s{S_QOFF}, s55, s{S_QOFF}")
        I(a, f"s_add_u32 s54, s54, 1")
    for i in range(g.nq):
        if i % 4 == 0:
            I(a, f"s_add_u32 m0, s{S_STG}, s{S_MQ}" if i == 0 else "s_add_u32 m0, m0, 4096")
            I(a, "s_nop 0")
        I(a, f"buffer_load_dwordx4 v{VL+i}, s[{S_QSRD}:{S_QSRD+3}], s{S_QOFF} offen offset:{(i&3)*1024} lds")
    for i in range(g.np_):
        if i % 4 == 0:
            I(a, f"s_add_u32 m0, s{S_STG}, s{S_MP}" if i == 0 else "s_add_u32 m0, m0, 4096")
            I(a, "s_nop 0")
        I(a, f"buffer_load_dwordx4 v{VL+g.nq+i}, s[{S_PSRD}:{S_PSRD+3}], s{S_POFF} offen offset:{(i&3)*1024} lds")
    I(a, f"s_add_u32 s{S_QOFF}, s{S_QOFF}, 128")
    I(a, f"s_add_u32 s{S_POFF}, s{S_POFF}, {64*g.ldp}")
    if getattr(g, "rot", False):
        I(a, f"s_add_u32 s55, s55, 1")
        I(a, f"s_cmp_eq_u32 s55, {g.nk}")
        I(a, f"s_cselect_b32 s55, 0, s55")
        I(a, f"s_cselect_b32 s54, {g.nk*128}, 0")
        I(a, f"s_sub_u32 s{S_QOFF}, s{S_QOFF}, s54")
        I(a, f"s_cselect_b32 s54, {g.nk*64*g.ldp}, 0") if False else None
        I(a, f"s_cmp_eq_u32 s55, 0")
        I(a, f"s_cselect_b32 s54, {g.nk*64*g.ldp}, 0")
        I(a, f"s_sub_u32 s{S_POFF}, s{S_POFF}, s54")
    I(a, f"s_add_u32 s{S_STG}, s{S_STG}, {g.STAGE}")
    I(a, f"s_cmp_ge_u32 s{S_STG}, {g.LDS}")
    I(a, f"s_cselect_b32 s{S_STG}, 0, s{S_STG}")

def loader_main(a, g, first_wait_all=True, hooks=None, stamp=None):
    p = g.pref; nk = g.nk; NS = g.NS
    hooks = hooks or {}
    npre = min(NS, nk)
    stage_issue(a, g)
    if stamp: stamp(3)
    if first_wait_all:
        n_ahead = min(2, npre)
        for s in range(1, n_ahead): stage_issue(a, g)
        I(a, f"s_waitcnt vmcnt({(n_ahead-1)*g.PER})")
        if stamp: stamp(4)
        I(a, "s_barrier")
        for s in range(n_ahead, npre): stage_issue(a, g)
    else:
        for s in range(1, npre): stage_issue(a, g)
        I(a, f"s_waitcnt vmcnt({(npre-1)*g.PER})")
        I(a, "s_barrier")
    nsteady = max(nk - NS, 0)
    if hooks:
        for t in range(nsteady):
            extra = 0
            I(a, f"s_waitcnt vmcnt({(NS-2)*g.PER + g.extra_inflight(t) if hasattr(g,'extra_inflight') else (NS-2)*g.PER})")
            I(a, "s_barrier")
            stage_issue(a, g)
            if t in hooks: hooks[t](a)
    elif nsteady > 0:
        I(a, f"s_mov_b32 s{S_CNT}, {nsteady}")
        a.label(f"{p}_ld_loop")
        I(a, f"s_waitcnt vmcnt({(NS-2)*g.PER})")
        I(a, "s_barrier")
        stage_issue(a, g)
        I(a, f"s_sub_u32 s{S_CNT}, s{S_CNT}, 1")
        I(a, f"s_cmp_lg_u32 s{S_CNT}, 0")
        I(a, f"s_cbranch_scc1 {p}_ld_loop")
    for t in range(nsteady, nk):
        rem = max(min(t + NS - 1, nk - 1) - (t + 1), 0)
        I(a, f"s_waitcnt vmcnt({rem*g.PER})")
        I(a, "s_barrier")

V_QA = 2; V_PA = 6; V_FR = 64; V_ACC = 128

def frag_regs(g, s):
    base = V_FR + s * (g.NB + g.MB) * 4
    A = [base + i * 4 for i in range(g.NB)]
    B = [base + g.NB * 4 + i * 4 for i in range(g.MB)]
    return A, B

def acc_reg(g, nb, mb):
    return V_ACC + (nb * g.MB + mb) * 16

def compute_setup(a, g):
    lw = int(math.log2(g.WM))
    I(a, f"s_and_b32 s{S_TMP}, s{S_WAVE}, {g.WM-1}")
    I(a, f"s_lshr_b32 s{S_TMP2}, s{S_WAVE}, {lw}")
    I(a, "v_and_b32 v40, 31, v1")
    I(a, f"s_mul_i32 s{S_DELTA}, s{S_TMP}, {g.wm*128}")
    I(a, "v_lshlrev_b32 v40, 7, v40")
    I(a, f"v_add_u32 v40, s{S_DELTA}, v40")
    I(a, "v_lshrrev_b32 v41, 5, v1")
    I(a, "v_bfe_u32 v42, v1, 1, 3")
    I(a, "v_xor_b32 v41, v41, v42")
    for kk in range(4):
        I(a, f"v_xor_b32 v43, {2*kk}, v41")
        I(a, f"v_lshl_add_u32 v{V_QA+kk}, v43, 4, v40")
    I(a, "v_bfe_u32 v40, v1, 2, 2")
    I(a, "v_lshrrev_b32 v41, 5, v1")
    I(a, "v_lshl_add_u32 v41, v41, 3, v40")
    rowb = g.BN * 2
    I(a, f"v_mul_u32_u24 v41, {rowb}, v41")
    I(a, f"v_add_u32 v41, {g.QB}, v41")
    I(a, "v_bfe_u32 v42, v1, 4, 1")
    I(a, "v_lshlrev_b32 v42, 1, v42")
    I(a, "v_bfe_u32 v43, v1, 1, 1")
    I(a, "v_add_u32 v42, v42, v43")
    I(a, f"s_mul_i32 s{S_DELTA}, s{S_TMP2}, {g.wn//8}")
    I(a, f"v_add_u32 v42, s{S_DELTA}, v42")
    if g.BN == 128:
        I(a, "v_lshlrev_b32 v43, 2, v40")
    else:
        I(a, "v_bfe_u32 v43, v1, 3, 1")
        I(a, "v_lshlrev_b32 v43, 2, v43")
    I(a, "v_and_b32 v44, 1, v1")
    I(a, "v_lshl_add_u32 v41, v44, 3, v41")
    for nb in range(g.NB):
        I(a, f"v_add_u32 v45, {nb*4}, v42")
        I(a, "v_xor_b32 v45, v45, v43")
        I(a, f"v_lshl_add_u32 v{V_PA+nb}, v45, 4, v41")
    I(a, f"s_mov_b32 s{S_DN}, {(-(g.NS-1)*g.STAGE) & 0xffffffff}")
    I(a, f"s_mov_b32 s{S_DP}, {g.STAGE}")

def frag_reads(g, s, kk):
    A, B = frag_regs(g, s)
    rowb = g.BN * 2
    out = []
    def a_reads(nb):
        return [f"ds_read_b64_tr_b16 v[{A[nb]+2*h}:{A[nb]+2*h+1}], v{V_PA+nb} offset:{(16*kk+4*h)*rowb}" for h in range(2)]
    def b_read(mb):
        return [f"ds_read_b128 v[{B[mb]}:{B[mb]+3}], v{V_QA+kk} offset:{mb*4096}"]
    out += a_reads(0)
    for mb in range(g.MB): out += b_read(mb)
    for nb in range(1, g.NB): out += a_reads(nb)
    return out

def mfmas(g, s):
    A, B = frag_regs(g, s)
    out = []
    for nb in range(g.NB):
        for mb in range(g.MB):
            c = acc_reg(g, nb, mb)
            out.append(f"v_mfma_f32_32x32x16_bf16 v[{c}:{c+15}], v[{A[nb]}:{A[nb]+3}], v[{B[mb]}:{B[mb]+3}], v[{c}:{c+15}]")
    return out

def interleave(a, mf, fill, per=2):
    fill = list(fill)
    for i, m in enumerate(mf):
        I(a, m)
        for _ in range(per):
            if fill: I(a, fill.pop(0))
    for f in fill: I(a, f)

def compute_loop(a, g, stamp=None, per=2):
    p = g.pref
    naddr = 4 + g.NB
    I(a, "s_barrier")
    if stamp: I(a, stamp); I(a, "s_waitcnt lgkmcnt(0)")
    for r in frag_reads(g, 0, 0): I(a, r)
    I(a, f"s_mov_b32 s{S_CNT}, {g.nk}")
    I(a, f"s_mov_b32 s{S_LEFT}, 0")
    a(".p2align 6")
    a.label(f"{p}_c_loop")
    for kk in range(3):
        I(a, "s_waitcnt lgkmcnt(0)")
        interleave(a, mfmas(g, kk & 1), frag_reads(g, (kk + 1) & 1, kk + 1), per)
    I(a, "s_waitcnt lgkmcnt(0)")
    I(a, "s_barrier")
    upd = [f"s_add_u32 s{S_LEFT}, s{S_LEFT}, {g.STAGE}",
           f"s_cmp_ge_u32 s{S_LEFT}, {g.LDS}",
           f"s_cselect_b32 s{S_DELTA}, s{S_DN}, s{S_DP}",
           f"s_cselect_b32 s{S_LEFT}, 0, s{S_LEFT}"]
    vupd = [f"v_add_u32 v{V_QA+i}, s{S_DELTA}, v{V_QA+i}" for i in range(naddr)]
    mf = mfmas(g, 1)
    I(a, mf[0])
    for u in upd: I(a, u)
    for u in vupd: I(a, u)
    interleave(a, mf[1:], frag_reads(g, 0, 0) + [f"s_sub_u32 s{S_CNT}, s{S_CNT}, 1", f"s_cmp_lg_u32 s{S_CNT}, 0"], per if len(mf) > 4 else 3)
    I(a, f"s_cbranch_scc1 {p}_c_loop")
    I(a, "s_waitcnt lgkmcnt(0)")
```

```python
from asmgen import *
from p1v2 import load_ptr
from p2 import add64, G_OFF
XF_OFF = 24 << 20
XFP = 576
XFARR = 576 * XFP

def wave_sum(a, v, tmp, sdst):
    for off in (0x041F, 0x081F, 0x101F, 0x201F, 0x401F):
        I(a, f"ds_swizzle_b32 v{tmp}, v{v} offset:{off}")
        I(a, "s_waitcnt lgkmcnt(0)")
        I(a, f"v_add_f32 v{v}, v{v}, v{tmp}")
    I(a, "s_nop 0")
    I(a, f"v_readlane_b32 s{sdst}, v{v}, 32")
    I(a, "s_nop 1")
    I(a, f"v_add_f32 v{v}, s{sdst}, v{v}")
    I(a, "s_nop 0")
    I(a, f"v_readlane_b32 s{sdst}, v{v}, 0")

def fold_wave(a, s_sp, pref, x_srd, gw_srd, xf_srd, g_srd):
    LD = 16; GW = 64; U = 80; GU = 152
    I(a, f"s_lshl_b32 s50, s{s_sp}, 11")
    I(a, f"s_sub_u32 s51, 2048, s{s_sp}"); I(a, "s_lshl_b32 s51, s51, 11")
    I(a, f"s_sub_u32 s52, 1024, s{s_sp}"); I(a, "s_lshl_b32 s52, s52, 11")
    I(a, f"s_add_u32 s53, 1024, s{s_sp}"); I(a, "s_lshl_b32 s53, s53, 11")
    I(a, f"s_cmp_eq_u32 s{s_sp}, 0"); I(a, "s_cselect_b32 s53, 0x400000, s53")
    I(a, f"s_cmp_eq_u32 s{s_sp}, 512"); I(a, "s_cselect_b32 s52, 0x400000, s52"); I(a, "s_cselect_b32 s53, 0x400000, s53")
    I(a, "v_lshlrev_b32 v2, 3, v1")
    I(a, "v_add_u32 v3, 1024, v2")
    I(a, "v_sub_u32 v4, 2040, v2")
    I(a, "v_sub_u32 v5, 1016, v2")
    for r in range(4):
        b = LD + 12*r
        I(a, f"buffer_load_dwordx2 v[{b}:{b+1}], v2, s[{x_srd}:{x_srd+3}], s{50+r} offen")
        I(a, f"buffer_load_dwordx2 v[{b+2}:{b+3}], v3, s[{x_srd}:{x_srd+3}], s{50+r} offen")
        I(a, f"buffer_load_dwordx3 v[{b+4}:{b+6}], v4, s[{x_srd}:{x_srd+3}], s{50+r} offen")
        I(a, f"buffer_load_dwordx3 v[{b+8}:{b+10}], v5, s[{x_srd}:{x_srd+3}], s{50+r} offen")
    b = GW
    I(a, f"buffer_load_dwordx2 v[{b}:{b+1}], v2, s[{gw_srd}:{gw_srd+3}], 0 offen")
    I(a, f"buffer_load_dwordx2 v[{b+2}:{b+3}], v3, s[{gw_srd}:{gw_srd+3}], 0 offen")
    I(a, f"buffer_load_dwordx3 v[{b+4}:{b+6}], v4, s[{gw_srd}:{gw_srd+3}], 0 offen")
    I(a, f"buffer_load_dwordx3 v[{b+8}:{b+10}], v5, s[{gw_srd}:{gw_srd+3}], 0 offen")
    I(a, "v_cmp_eq_u32 s[54:55], 0, v1")
    I(a, "v_cmp_eq_u32 s[56:57], 63, v1")
    def unpack(src, dst):
        lo = lambda d, s: I(a, f"v_lshlrev_b32 v{d}, 16, v{s}")
        hi = lambda d, s: I(a, f"v_and_b32 v{d}, 0xffff0000, v{s}")
        lo(dst+0, src); hi(dst+1, src); lo(dst+2, src+1); hi(dst+3, src+1)
        lo(dst+4, src+2); hi(dst+5, src+2); lo(dst+6, src+3); hi(dst+7, src+3)
        lo(dst+8, src+6); hi(dst+9, src+5); lo(dst+10, src+5); hi(dst+11, src+4)
        lo(dst+12, src+10); hi(dst+13, src+9); lo(dst+14, src+9); hi(dst+15, src+8)
        lo(dst+16, src+8)
        lo(dst+17, src+4)
    I(a, "s_waitcnt vmcnt(0)")
    for r in range(4):
        unpack(LD + 12*r, U + 18*r)
        I(a, f"v_cndmask_b32 v{U+18*r+8}, v{U+18*r+8}, 0, s[54:55]")
        I(a, f"v_cndmask_b32 v{U+18*r+4}, v{U+18*r+4}, 0, s[54:55]")
    unpack(GW, GU)
    I(a, f"v_cndmask_b32 v{GU+16}, 0, v{GU+16}, s[56:57]")
    I(a, f"v_cndmask_b32 v{GU+17}, 0, v{GU+17}, s[56:57]")
    for r in range(4):
        I(a, f"v_mul_f32 v{8+r}, v{U+18*r}, v{GU}")
        for e in range(1, 18):
            I(a, f"v_fmac_f32 v{8+r}, v{U+18*r+e}, v{GU+e}")
    def pk(op, d, x, y, neg=False):
        n = " neg_lo:[0,1] neg_hi:[0,1]" if neg else ""
        I(a, f"v_pk_add_f32 v[{d}:{d+1}], v[{x}:{x+1}], v[{y}:{y+1}]{n}")
    T = 172
    for e in range(0, 18, 2):
        R = [U + 18*r + e for r in range(4)]
        pk("+", T, R[0], R[1]); pk("-", T+2, R[0], R[1], True); pk("+", T+4, R[2], R[3]); pk("-", T+6, R[2], R[3], True)
        pk("+", R[0], T, T+4); pk("-", R[1], T, T+4, True)
        pk("-", R[2], T+2, T+6, True); pk("+", R[3], T+2, T+6)
    O = 16
    for X in range(4):
        b = U + 18*X
        typ = X >> 1; ps = X & 1
        c0 = typ*4 + ps*2; c1 = c0 + 1
        for j in (0, 2):
            if typ == 0:
                pk("+", T, b+j, b+8+j); pk("+", T+2, b+12+j, b+4+j)
                pk("+", O+c0*6+j, T, T+2); pk("-", O+c1*6+j, T, T+2, True)
            else:
                pk("-", T, b+j, b+8+j, True); pk("-", T+2, b+12+j, b+4+j, True)
                pk("-", O+c0*6+j, T, T+2, True); pk("+", O+c1*6+j, T, T+2)
        if typ == 0:
            I(a, f"v_add_f32 v{O+c0*6+4}, v{b+16}, v{b+17}"); I(a, f"v_mov_b32 v{O+c1*6+4}, 0")
        else:
            I(a, f"v_mov_b32 v{O+c0*6+4}, 0"); I(a, f"v_sub_f32 v{O+c1*6+4}, v{b+16}, v{b+17}")
            I(a, f"v_cndmask_b32 v{O+c0*6}, v{O+c0*6}, 0, s[54:55]"); I(a, f"v_cndmask_b32 v{O+c1*6}, v{O+c1*6}, 0, s[54:55]")
    I(a, f"s_cmp_eq_u32 s{s_sp}, 512"); I(a, "s_cselect_b32 s58, 0, 1.0"); I(a, "s_cselect_b32 s59, 0, 1.0")
    I(a, f"s_cmp_eq_u32 s{s_sp}, 0"); I(a, "s_cselect_b32 s59, 0, s59"); I(a, "s_cselect_b32 s60, 0, 1.0")
    for c, sm in ((2, 58), (3, 58), (4, 59), (5, 59), (6, 60), (7, 60)):
        for j in range(5): I(a, f"v_mul_f32 v{O+c*6+j}, s{sm}, v{O+c*6+j}")
    for c, rv in ((0, 12), (2, 13)):
        I(a, f"v_sub_f32 v{rv}, v{O+c*6}, v{O+c*6+1}"); I(a, f"v_add_f32 v{rv}, v{rv}, v{O+c*6+2}"); I(a, f"v_sub_f32 v{rv}, v{rv}, v{O+c*6+3}")
        I(a, f"v_cndmask_b32 v14, 0, v{O+c*6+4}, s[56:57]"); I(a, f"v_add_f32 v{rv}, v{rv}, v14")
    for v, s in ((8, 61), (9, 62), (10, 63), (11, 64), (12, 65), (13, 66)):
        wave_sum(a, v, 14, s)
    I(a, f"s_mul_i32 s67, s{s_sp}, {XFP}")
    for c in range(8):
        t = T + (c % 4)*2
        I(a, f"v_cvt_pk_bf16_f32 v{t}, v{O+c*6}, v{O+c*6+1}"); I(a, f"v_cvt_pk_bf16_f32 v{t+1}, v{O+c*6+2}, v{O+c*6+3}")
        I(a, f"s_add_u32 s68, s67, {c*XFARR}")
        I(a, f"buffer_store_dwordx2 v[{t}:{t+1}], v2, s[{xf_srd}:{xf_srd+3}], s68 offen")
    I(a, "v_lshlrev_b32 v6, 4, v1"); I(a, "v_add_u32 v6, 512, v6")
    I(a, "v_cmp_gt_u32 vcc, 4, v1"); I(a, "v_mov_b32 v7, 0x7ffffff0"); I(a, "s_nop 0"); I(a, "v_cndmask_b32 v6, v7, v6, vcc")
    I(a, "v_cmp_eq_u32 s[54:55], 2, v1")
    I(a, "v_cmp_eq_u32 s[56:57], 0, v1")
    I(a, f"v_mov_b32 v{T+9}, 0"); I(a, f"v_mov_b32 v{T+10}, 0"); I(a, f"v_mov_b32 v{T+11}, 0")
    for c in range(8):
        I(a, f"v_readlane_b32 s69, v{O+c*6+4}, 63")
        I(a, "s_nop 1")
        I(a, f"v_mov_b32 v7, s69")
        I(a, f"v_cndmask_b32 v7, 0, v7, s[56:57]")
        if c in (0, 2):
            I(a, f"v_mov_b32 v15, s{65 if c == 0 else 66}")
            I(a, f"v_cndmask_b32 v7, v7, v15, s[54:55]")
        I(a, f"v_cvt_pk_bf16_f32 v{T+8}, v7, 0")
        I(a, f"s_add_u32 s68, s67, {c*XFARR}")
        I(a, f"buffer_store_dwordx4 v[{T+8}:{T+11}], v6, s[{xf_srd}:{xf_srd+3}], s68 offen")
        I(a, "s_nop 1")
    I(a, "v_mov_b32 v8, s61")
    for i, s in ((1, 62), (2, 63), (3, 64)):
        I(a, f"v_cmp_eq_u32 vcc, {i}, v1"); I(a, f"v_mov_b32 v9, s{s}"); I(a, "s_nop 0"); I(a, "v_cndmask_b32 v8, v8, v9, vcc")
    I(a, "v_mul_f32 v9, 0xbfb8aa3b, v8"); I(a, "v_exp_f32 v9, v9"); I(a, "s_nop 0"); I(a, "v_add_f32 v9, 1.0, v9"); I(a, "v_rcp_f32 v10, v9"); I(a, "s_nop 0")
    I(a, "v_sub_f32 v11, 1.0, v10")
    I(a, "v_mov_b32 v12, s50")
    for i in (1, 2, 3):
        I(a, f"v_cmp_eq_u32 vcc, {i}, v1"); I(a, f"v_mov_b32 v9, s{50+i}"); I(a, "s_nop 0"); I(a, "v_cndmask_b32 v12, v12, v9, vcc")
    I(a, "v_lshrrev_b32 v12, 8, v12")
    I(a, "v_cmp_gt_u32 vcc, 4, v1"); I(a, "v_mov_b32 v9, 0x7ffffff0"); I(a, "s_nop 0"); I(a, "v_cndmask_b32 v12, v9, v12, vcc")
    I(a, f"buffer_store_dwordx2 v[10:11], v12, s[{g_srd}:{g_srd+3}], 0 offen")

def k_k0(a, name, prefetch=True):
    kernel_begin(a, name)
    load_ptr(a, 4, 0); load_ptr(a, 6, 80); load_ptr(a, 8, 104)
    import os
    NW = 256
    I(a, f"s_cmp_ge_u32 s2, {NW}"); I(a, "s_cbranch_scc1 k0_end")
    I(a, "v_and_b32 v1, 63, v0"); I(a, "v_lshrrev_b32 v2, 6, v0"); I(a, "s_nop 0"); I(a, "v_readfirstlane_b32 s45, v2")
    I(a, "s_cmp_ge_u32 s2, 132"); I(a, "s_cbranch_scc1 k0_pf")
    I(a, "s_lshl_b32 s44, s2, 2"); I(a, "s_add_u32 s44, s44, s45")
    I(a, "s_waitcnt lgkmcnt(0)")
    srd(a, 12, 4, 2048*2048); srd(a, 16, 6, 2048)
    I(a, "s_mov_b32 s10, s8"); I(a, "s_mov_b32 s11, s9"); add64(a, 10, XF_OFF); srd(a, 20, 10, 8*XFARR)
    I(a, "s_mov_b32 s10, s8"); I(a, "s_mov_b32 s11, s9"); add64(a, 10, G_OFF); srd(a, 24, 10, 2048*8)
    I(a, "s_cmp_gt_u32 s44, 512"); I(a, "s_cbranch_scc1 k0_zero")
    fold_wave(a, 44, "k0", 12, 16, 20, 24)
    I(a, "s_endpgm")
    a.label("k0_zero")
    I(a, "v_lshlrev_b32 v2, 4, v1"); I(a, "v_cmp_gt_u32 vcc, 36, v1"); I(a, "v_mov_b32 v3, 0x7ffffff0"); I(a, "s_nop 0"); I(a, "v_cndmask_b32 v2, v3, v2, vcc")
    for r in range(4, 8): I(a, f"v_mov_b32 v{r}, 0")
    I(a, f"s_mul_i32 s46, s44, {XFP}")
    for c in range(8):
        I(a, f"s_add_u32 s47, s46, {c*XFARR}")
        I(a, "buffer_store_dwordx4 v[4:7], v2, s[20:23], s47 offen")
    I(a, "s_endpgm")
    a.label("k0_pf")
    if prefetch:
        load_ptr(a, 10, 48); load_ptr(a, 28, 8, 4); load_ptr(a, 32, 24, 4)
        I(a, "s_sub_u32 s44, s2, 132"); I(a, "s_lshl_b32 s44, s44, 2"); I(a, "s_add_u32 s44, s44, s45")
        I(a, "s_waitcnt lgkmcnt(0)")
        srd(a, 12, 10, 1024*3584*2)
        I(a, "v_lshlrev_b32 v2, 7, v1")
        I(a, "s_lshl_b32 s46, s44, 13")
        I(a, "buffer_load_dword v3, v2, s[12:15], s46 offen")
        I(a, f"s_add_u32 s46, s46, {496*8192}")
        I(a, "buffer_load_dword v3, v2, s[12:15], s46 offen")
        I(a, "s_lshl_b32 s46, s44, 6"); I(a, "v_add_u32 v4, s46, v1")
        I(a, f"s_mov_b32 s47, {(1<<32)//9+1}"); I(a, "v_mul_hi_u32 v5, v4, s47"); I(a, "v_mul_u32_u24 v6, 9, v5"); I(a, "v_sub_u32 v6, v4, v6")
        I(a, "v_lshlrev_b32 v7, 12, v5"); I(a, "v_lshl_add_u32 v7, v6, 7, v7")
        I(a, "v_cmp_ge_u32 vcc, 1024, v5"); I(a, "v_mov_b32 v8, 0x7ffffff0"); I(a, "s_nop 0"); I(a, "v_cndmask_b32 v7, v8, v7, vcc")
        srd(a, 16, 28, 2048*2048*2); srd(a, 20, 30, 2048*2048*2)
        I(a, "buffer_load_dword v3, v7, s[16:19], 0 offen"); I(a, "buffer_load_dword v3, v7, s[20:23], 0 offen")
        I(a, f"s_mov_b32 s47, {(1<<32)//5+1}"); I(a, "v_mul_hi_u32 v5, v4, s47"); I(a, "v_mul_u32_u24 v6, 5, v5"); I(a, "v_sub_u32 v6, v4, v6")
        I(a, "v_lshlrev_b32 v7, 11, v5"); I(a, "v_lshl_add_u32 v7, v6, 7, v7")
        I(a, "v_cmp_ge_u32 vcc, 512, v5"); I(a, "v_mov_b32 v8, 0x7ffffff0"); I(a, "s_nop 0"); I(a, "v_cndmask_b32 v7, v8, v7, vcc")
        srd(a, 16, 32, 1024*1024*2); srd(a, 20, 34, 1024*1024*2)
        I(a, "buffer_load_dword v3, v7, s[16:19], 0 offen"); I(a, "buffer_load_dword v3, v7, s[20:23], 0 offen")
    a.label("k0_end")
    I(a, "s_endpgm")
```

```python
import sys, json
from asmgen import *
from gemm2 import *
NAME = "gated_mix__spectral_fnet__dense_activation_squared_relu__prompt_kernel"
H_OFF = 0
def load_ptr(a, sreg, koff, n=2):
    I(a, f"s_load_dwordx{n} s[{sreg}:{sreg+n-1}], s[0:1], {koff}")
class Stamps:
    def __init__(self, a, on): self.a = a; self.on = on
    def __call__(self, i):
        if self.on: I(self.a, f"s_memtime s[{64+2*i}:{64+2*i+1}]")
    def dump(self, n, role):
        if not self.on: return
        a = self.a
        I(a, "s_waitcnt vmcnt(0) lgkmcnt(0)")
        I(a, "s_load_dwordx2 s[4:5], s[0:1], 104")
        I(a, "s_waitcnt lgkmcnt(0)")
        I(a, "s_add_u32 s4, s4, 0x4000000"); I(a, "s_addc_u32 s5, s5, 0")
        srd(a, 8, 4, 1<<20)
        I(a, f"s_lshl_b32 s44, s2, 8")
        I(a, f"s_lshl_b32 s45, s{S_WAVE}, 5")
        I(a, f"s_add_u32 s44, s44, s45")
        I(a, f"s_add_u32 s44, s44, {role*128}")
        I(a, "v_mov_b32 v2, s44")
        for i in range(1, n):
            I(a, f"s_sub_u32 s{64+2*i}, s{64+2*i}, s64")
            I(a, f"v_mov_b32 v1, s{64+2*i}")
            I(a, f"buffer_store_dword v1, v2, s[8:11], 0 offen offset:{i*4}")
        I(a, f"v_mov_b32 v1, s64")
        I(a, f"buffer_store_dword v1, v2, s[8:11], 0 offen")

def pf_instr(a, kind, i, nwg=224):
    if kind == "W":
        I(a, f"s_lshl_b32 s{S_TMP}, s2, 13")
        I(a, f"s_add_u32 s{S_TMP}, s{S_TMP}, {i*nwg*64*128}")
        I(a, "v_lshlrev_b32 v46, 7, v1")
        I(a, f"buffer_load_dword v49, v46, s[{S_PSRD}:{S_PSRD+3}], s{S_TMP} offen")
    elif kind == "X":
        I(a, f"s_lshl_b32 s{S_TMP}, s2, 6")
        I(a, f"s_add_u32 s{S_TMP}, s{S_TMP}, {i*nwg*64}")
        I(a, f"v_add_u32 v46, s{S_TMP}, v1")
        I(a, "v_lshrrev_b32 v47, 11, v46")
        I(a, "v_and_b32 v48, 2047, v46")
        I(a, "v_lshlrev_b32 v48, 11, v48")
        I(a, "v_lshl_add_u32 v48, v47, 7, v48")
        I(a, "v_cmp_gt_u32 vcc, 16, v47")
        I(a, "s_nop 1")
        I(a, "v_mov_b32 v47, 0x7ffffff0")
        I(a, "v_cndmask_b32 v48, v47, v48, vcc")
        I(a, f"buffer_load_dword v49, v48, s[{S_QSRD}:{S_QSRD+3}], 0 offen")

def epi_addrs_write(a, g, W=50):
    I(a, f"s_mul_i32 s{S_TMP}, s{S_WAVE}, {g.wm*128}")
    I(a, f"v_and_b32 v{W}, 31, v1")
    I(a, f"v_lshlrev_b32 v{W+1}, 7, v{W}")
    I(a, f"v_add_u32 v{W+1}, s{S_TMP}, v{W+1}")
    I(a, f"v_lshrrev_b32 v{W+2}, 5, v1")
    I(a, f"v_lshl_add_u32 v{W+1}, v{W+2}, 3, v{W+1}")
    I(a, f"v_and_b32 v{W}, 7, v{W}")
    for ch in range(8):
        I(a, f"v_xor_b32 v{W+2}, {ch}, v{W}")
        I(a, f"v_lshl_add_u32 v{W+4+ch}, v{W+2}, 4, v{W+1}")

def epi_addrs_read(a, g, ld_out, s_rowbase, s_colbyte, W=50):
    I(a, f"s_mul_i32 s{S_TMP}, s{S_WAVE}, {g.wm*128}")
    I(a, f"v_lshrrev_b32 v{W}, 3, v1")
    I(a, f"v_and_b32 v{W+2}, 7, v1")
    I(a, f"v_xor_b32 v{W+2}, v{W+2}, v{W}")
    I(a, f"v_lshlrev_b32 v{W+3}, 7, v{W}")
    I(a, f"v_lshl_add_u32 v{W+3}, v{W+2}, 4, v{W+3}")
    I(a, f"v_add_u32 v{W+12}, s{S_TMP}, v{W+3}")
    I(a, f"v_add_u32 v{W}, s{s_rowbase}, v{W}")
    I(a, f"s_mov_b32 s{S_DELTA}, {ld_out}")
    I(a, f"v_mul_lo_u32 v{W}, v{W}, s{S_DELTA}")
    I(a, f"v_and_b32 v{W+2}, 7, v1")
    I(a, f"v_lshl_add_u32 v{W}, v{W+2}, 4, v{W}")
    I(a, f"v_add_u32 v{W+13}, s{s_colbyte}, v{W}")

def wave_origin(a, g, s_tm, s_tn, s_row, s_colb):
    lw = int(math.log2(g.WM))
    I(a, f"s_and_b32 s{S_TMP}, s{S_WAVE}, {g.WM-1}")
    I(a, f"s_mul_i32 s{S_TMP}, s{S_TMP}, {g.wm}")
    I(a, f"s_mul_i32 s{s_row}, s{s_tm}, {g.BM}")
    I(a, f"s_add_u32 s{s_row}, s{s_row}, s{S_TMP}")
    I(a, f"s_lshr_b32 s{S_TMP}, s{S_WAVE}, {lw}")
    I(a, f"s_mul_i32 s{S_TMP}, s{S_TMP}, {g.wn*2}")
    I(a, f"s_mul_i32 s{s_colb}, s{s_tn}, {g.BN*2}")
    I(a, f"s_add_u32 s{s_colb}, s{s_colb}, s{S_TMP}")

def gen(NS=3, stamps=True, pf_start=(), pf_bias=(), pf_b0=(), split_epi=True, first2=True, sc=""):
    a = Asm()
    g = G(BM=256, BN=128, WM=2, WN=2, NS=NS, ldq=2048, ldp=7168, nk=16, pref="p1")
    st = Stamps(a, stamps)
    a(f"; @launch grid=(224,1,1) block=(512,1,1) lds={g.LDS}")
    a('.amdgcn_target "amdgcn-amd-amdhsa--gfx950"')
    a(".text")
    kernel_begin(a, NAME)
    st(0)
    load_ptr(a, 4, 0); load_ptr(a, 20, 48, 4); load_ptr(a, 24, 104)
    I(a, "s_cmp_ge_u32 s2, 224"); I(a, "s_cbranch_scc1 p1_end")
    lane_wave(a)
    I(a, "s_and_b32 s26, s2, 7"); I(a, "s_lshr_b32 s27, s2, 3")
    I(a, "s_mul_i32 s28, s27, 37"); I(a, "s_lshr_b32 s28, s28, 8")
    I(a, "s_mul_i32 s29, s28, 7"); I(a, "s_sub_u32 s27, s27, s29")
    I(a, "s_lshr_b32 s29, s26, 2"); I(a, "s_and_b32 s26, s26, 3")
    I(a, "s_lshl_b32 s29, s29, 2"); I(a, "s_add_u32 s28, s28, s29")
    I(a, "s_mul_i32 s26, s26, 7"); I(a, "s_add_u32 s29, s26, s27")
    I(a, f"s_mul_i32 s{S_QOFF}, s28, {256*2048}")
    I(a, f"s_mul_i32 s{S_POFF}, s29, {128*2}")
    I(a, f"s_mov_b32 s{S_QSRD+2}, {2048*1024*2}"); I(a, f"s_mov_b32 s{S_QSRD+3}, 0x00020000")
    I(a, f"s_mov_b32 s{S_PSRD+2}, {1024*3584*2}"); I(a, f"s_mov_b32 s{S_PSRD+3}, 0x00020000")
    I(a, f"s_cmp_ge_u32 s{S_WAVE}, 4"); I(a, "s_cbranch_scc0 p1_compute")
    I(a, f"s_sub_u32 s{S_WAVE}, s{S_WAVE}, 4")
    loader_voffsets(a, g)
    I(a, "s_waitcnt lgkmcnt(0)")
    st(1)
    I(a, f"s_mov_b32 s{S_QSRD}, s4"); I(a, f"s_and_b32 s{S_QSRD+1}, s5, 0xffff")
    I(a, f"s_mov_b32 s{S_PSRD}, s20"); I(a, f"s_and_b32 s{S_PSRD+1}, s21, 0xffff")
    st(2)
    loader_main(a, g, first_wait_all=first2, stamp=st if stamps else None)
    st(5)
    if split_epi:
        srd(a, 16, 24, 2048*3584*2)
        wave_origin(a, g, 28, 29, 30, 31)
        epi_addrs_read(a, g, 7168, 30, 31)
        for mb in range(g.MB):
            I(a, "s_barrier")
            for i in range(4):
                r = 64 + mb*16 + i*4
                I(a, f"ds_read_b128 v[{r}:{r+3}], v62 offset:{mb*4096 + i*1024}")
            for i in range(4):
                r = 64 + mb*16 + i*4
                I(a, f"s_mov_b32 s{S_TMP2}, {(mb*32 + i*8) * 7168}")
                I(a, f"s_waitcnt lgkmcnt({3-i})")
                I(a, f"buffer_store_dwordx4 v[{r}:{r+3}], v63, s[16:19], s{S_TMP2} offen {sc}")
    st(6)
    if stamps:
        I(a, "s_waitcnt vmcnt(0)")
        st(7)
        st.dump(8, 1)
    I(a, "s_endpgm")
    a.label("p1_compute")
    compute_setup(a, g)
    wave_origin(a, g, 28, 29, 30, 31)
    I(a, "s_waitcnt lgkmcnt(0)")
    st(1)
    I(a, f"s_mov_b32 s{S_QSRD}, s4"); I(a, f"s_and_b32 s{S_QSRD+1}, s5, 0xffff")
    I(a, f"s_mov_b32 s{S_PSRD}, s20"); I(a, f"s_and_b32 s{S_PSRD+1}, s21, 0xffff")
    srd(a, 32, 22, 3584*2)
    def do_pf(lst, tag):
        for (w, kind, i) in lst:
            lab = a.newlabel("pfs")
            I(a, f"s_cmp_eq_u32 s{S_WAVE}, {w}"); I(a, f"s_cbranch_scc0 {lab}")
            pf_instr(a, kind, i)
            a.label(lab)
    do_pf(pf_start, "s")
    I(a, "v_lshrrev_b32 v40, 5, v1")
    I(a, "v_lshlrev_b32 v40, 3, v40")
    for nb in range(g.NB):
        for q in range(4):
            r = 16 + (nb*4+q)*2
            I(a, f"buffer_load_dwordx2 v[{r}:{r+1}], v40, s[32:35], s31 offen offset:{nb*64+q*16}")
    epi_addrs_write(a, g)
    I(a, "s_waitcnt vmcnt(0)")
    st(2)
    do_pf(pf_bias, "b")
    for nb in range(g.NB):
        for q in range(4):
            r = 16 + (nb*4+q)*2
            for j in range(4):
                src = r + j//2
                for mb in range(g.MB):
                    d = acc_reg(g, nb, mb) + 4*q + j
                    if mb == 0:
                        if j % 2 == 0: I(a, f"v_lshlrev_b32 v{d}, 16, v{src}")
                        else: I(a, f"v_and_b32 v{d}, 0xffff0000, v{src}")
                    else:
                        I(a, f"v_mov_b32 v{d}, v{acc_reg(g, nb, 0) + 4*q + j}")
    st(3)
    if pf_b0:
        g.post_b0 = lambda: do_pf(pf_b0, "z")
    compute_loop_x(a, g, stamp="s_memtime s[72:73]" if stamps else None)
    st(5)
    I(a, "s_nop 7"); I(a, "s_nop 7")
    k = 0
    for mb in range(g.MB):
        for nb in range(g.NB):
            c = acc_reg(g, nb, mb)
            for q in range(4):
                t = 16 + (k % 8) * 2; k += 1
                cc = c + 4*q
                for r in range(4): I(a, f"v_max_f32 v{cc+r}, 0, v{cc+r}")
                for r in (0, 2): I(a, f"v_pk_mul_f32 v[{cc+r}:{cc+r+1}], v[{cc+r}:{cc+r+1}], v[{cc+r}:{cc+r+1}]")
                I(a, f"v_cvt_pk_bf16_f32 v{t}, v{cc}, v{cc+1}")
                I(a, f"v_cvt_pk_bf16_f32 v{t+1}, v{cc+2}, v{cc+3}")
                I(a, f"ds_write_b64 v{54+nb*4+q}, v[{t}:{t+1}] offset:{mb*4096}")
        I(a, "s_waitcnt lgkmcnt(0)")
        I(a, "s_barrier")
    st(6)
    st(7)
    st.dump(8, 0)
    a.label("p1_end")
    I(a, "s_endpgm")
    a('.section .rodata,"a"')
    a(".p2align 6")
    kernel_desc(a, NAME, 256, 96, 256)
    return a.text()

def compute_loop_x(a, g, stamp=None, per=2):
    import gemm2
    p = g.pref
    naddr = 4 + g.NB
    I(a, "s_barrier")
    if stamp: I(a, stamp); I(a, "s_waitcnt lgkmcnt(0)")
    for r in frag_reads(g, 0, 0): I(a, r)
    if hasattr(g, "post_b0"): g.post_b0()
    I(a, f"s_mov_b32 s{S_CNT}, {g.nk}")
    I(a, f"s_mov_b32 s{S_LEFT}, 0")
    a(".p2align 6")
    a.label(f"{p}_c_loop")
    for kk in range(3):
        I(a, "s_waitcnt lgkmcnt(0)")
        interleave(a, mfmas(g, kk & 1), frag_reads(g, (kk + 1) & 1, kk + 1), per)
    I(a, "s_waitcnt lgkmcnt(0)")
    I(a, "s_barrier")
    upd = [f"s_add_u32 s{S_LEFT}, s{S_LEFT}, {g.STAGE}",
           f"s_cmp_ge_u32 s{S_LEFT}, {g.LDS}",
           f"s_cselect_b32 s{S_DELTA}, s{S_DN}, s{S_DP}",
           f"s_cselect_b32 s{S_LEFT}, 0, s{S_LEFT}"]
    vupd = [f"v_add_u32 v{V_QA+i}, s{S_DELTA}, v{V_QA+i}" for i in range(naddr)]
    mf = mfmas(g, 1)
    I(a, mf[0])
    for u in upd: I(a, u)
    for u in vupd: I(a, u)
    interleave(a, mf[1:], frag_reads(g, 0, 0) + [f"s_sub_u32 s{S_CNT}, s{S_CNT}, 1", f"s_cmp_lg_u32 s{S_CNT}, 0"], per)
    I(a, f"s_cbranch_scc1 {p}_c_loop")
    I(a, "s_waitcnt lgkmcnt(0)")

CFGS = {
 "nopf": dict(),
 "pfA": dict(pf_start=[(0,"W",0),(1,"X",0)], pf_bias=[(2,"W",1),(3,"X",1)], pf_b0=[(0,"W",2),(1,"X",2),(2,"W",3)]),
 "pfB": dict(pf_start=[(0,"W",0),(1,"X",0),(2,"W",1),(3,"X",1)], pf_bias=[(0,"W",2),(1,"X",2),(2,"W",3)]),
 "pfC": dict(pf_start=[(0,"W",0),(1,"X",0),(2,"W",1),(3,"X",1),(0,"W",2),(1,"X",2),(2,"W",3)]),
}
if __name__ == "__main__":
    for k, c in CFGS.items():
        open(f"p1v2_{k}.s", "w").write(gen(**c))
```

```python
import sys, json
from asmgen import *
from gemm2 import *
from p1v2 import Stamps, load_ptr, compute_loop_x
H_OFF = 0
Y_OFF = 16 << 20
YP = 640
YARR = 1032 * YP
G_OFF = 20 << 20
XS_OFF = 24 << 20
FLAG_OFF = 33 << 20

def add64(a, sreg, off):
    if off:
        I(a, f"s_add_u32 s{sreg}, s{sreg}, {off}")
        I(a, f"s_addc_u32 s{sreg+1}, s{sreg+1}, 0")

def final_block(a, g, s_row, s_colb, mb_regs, lds_base_s, y_pre=False):
    W = 50
    I(a, f"v_lshrrev_b32 v40, 3, v1")
    I(a, f"v_and_b32 v41, 7, v1")
    I(a, f"v_add_u32 v42, s{s_row}, v40")
    I(a, f"s_lshr_b32 s{S_TMP}, s{s_colb}, 1")
    I(a, f"s_cmp_ge_u32 s{S_TMP}, 512")
    I(a, f"s_cselect_b32 s62, 1, 0")
    I(a, f"s_cbranch_scc1 {g.pref}_ymir")
    I(a, f"v_lshl_add_u32 v43, v41, 3, s{S_TMP}")
    I(a, f"s_branch {g.pref}_ygo")
    a.label(f"{g.pref}_ymir")
    I(a, f"s_sub_u32 s{S_TMP}, 1016, s{S_TMP}")
    I(a, f"v_lshlrev_b32 v43, 3, v41")
    I(a, f"v_sub_u32 v43, s{S_TMP}, v43")
    a.label(f"{g.pref}_ygo")
    for i in range(4):
        I(a, f"v_add_u32 v44, {8*i}, v42")
        I(a, f"v_sub_u32 v45, 2048, v44")
        I(a, f"v_min_u32 v45, v44, v45")
        I(a, f"v_mul_u32_u24 v45, {YP}, v45")
        I(a, f"v_add_u32 v45, v45, v43")
        b = 64 + i*16
        I(a, f"buffer_load_dwordx3 v[{b}:{b+2}], v45, s[24:27], 0 offen")
        I(a, f"buffer_load_dwordx2 v[{b+4}:{b+5}], v45, s[24:27], s63 offen")
        I(a, f"buffer_load_dwordx3 v[{b+8}:{b+10}], v45, s[24:27], s64 offen")
        I(a, f"buffer_load_dwordx2 v[{b+12}:{b+13}], v45, s[24:27], s65 offen")
        I(a, f"v_lshlrev_b32 v44, 3, v44")
        I(a, f"buffer_load_dwordx2 v[{32+i*2}:{32+i*2+1}], v44, s[36:39], 0 offen")
    I(a, f"v_lshrrev_b32 v40, 5, v1")
    I(a, f"v_lshlrev_b32 v40, 3, v40")
    for nb in range(2):
        for q in range(4):
            r = 16 + (nb*4+q)*2
            I(a, f"buffer_load_dwordx2 v[{r}:{r+1}], v40, s[32:35], s{s_colb} offen offset:{nb*64+q*16}")
    I(a, f"v_and_b32 v{W}, 31, v1")
    I(a, f"v_lshlrev_b32 v{W+1}, 7, v{W}")
    I(a, f"v_add_u32 v{W+1}, s{lds_base_s}, v{W+1}")
    I(a, f"v_lshrrev_b32 v{W+2}, 5, v1")
    I(a, f"v_lshl_add_u32 v{W+1}, v{W+2}, 3, v{W+1}")
    I(a, f"v_and_b32 v{W}, 7, v{W}")
    for ch in range(8):
        I(a, f"v_xor_b32 v{W+2}, {ch}, v{W}")
        I(a, f"v_lshl_add_u32 v{W+4+ch}, v{W+2}, 4, v{W+1}")
    I(a, f"v_lshrrev_b32 v{W}, 3, v1")
    I(a, f"v_and_b32 v{W+2}, 7, v1")
    I(a, f"v_xor_b32 v{W+2}, v{W+2}, v{W}")
    I(a, f"v_lshlrev_b32 v{W+3}, 7, v{W}")
    I(a, f"v_lshl_add_u32 v{W+3}, v{W+2}, 4, v{W+3}")
    I(a, f"v_add_u32 v{W+12}, s{lds_base_s}, v{W+3}")
    I(a, f"v_add_u32 v{W}, s{s_row}, v{W}")
    I(a, f"v_lshlrev_b32 v{W}, 11, v{W}")
    I(a, f"v_and_b32 v{W+2}, 7, v1")
    I(a, f"v_lshl_add_u32 v{W}, v{W+2}, 4, v{W}")
    I(a, f"v_add_u32 v{W+13}, s{s_colb}, v{W}")
    I(a, "s_waitcnt vmcnt(0)")
    for nb in range(2):
        c = mb_regs[nb]
        for q in range(4):
            r = 16 + (nb*4+q)*2; cc = c + 4*q
            I(a, f"v_lshlrev_b32 v44, 16, v{r}"); I(a, f"v_and_b32 v45, 0xffff0000, v{r}")
            I(a, f"v_lshlrev_b32 v46, 16, v{r+1}"); I(a, f"v_and_b32 v47, 0xffff0000, v{r+1}")
            I(a, f"v_pk_add_f32 v[{cc}:{cc+1}], v[{cc}:{cc+1}], v[44:45]")
            I(a, f"v_pk_add_f32 v[{cc+2}:{cc+3}], v[{cc+2}:{cc+3}], v[46:47]")
            I(a, f"v_cvt_pk_bf16_f32 v{r}, v{cc}, v{cc+1}")
            I(a, f"v_cvt_pk_bf16_f32 v{r+1}, v{cc+2}, v{cc+3}")
            I(a, f"ds_write_b64 v{W+4+nb*4+q}, v[{r}:{r+1}]")
    I(a, "s_waitcnt lgkmcnt(0)")
    RB = mb_regs[0]
    for i in range(4):
        I(a, f"ds_read_b128 v[{RB+4*i}:{RB+4*i+3}], v{W+12} offset:{i*1024}")
    I(a, "s_waitcnt lgkmcnt(0)")
    T = mb_regs[1]
    for i in range(4):
        b = 64 + i*16; gv = 32 + i*2
        I(a, f"v_add_u32 v44, {8*i}, v42")
        I(a, f"v_cmp_lt_u32 vcc, 1024, v44")
        I(a, f"s_nop 1")
        I(a, f"v_cndmask_b32 v45, 0, 1, vcc")
        I(a, f"v_xor_b32 v45, s62, v45")
        I(a, f"v_cmp_eq_u32 vcc, 1, v45")
        I(a, f"v_sub_f32 v46, 0, v{gv}")
        I(a, f"s_nop 0")
        I(a, f"v_cndmask_b32 v46, v46, v{gv}, vcc")
        I(a, f"v_mov_b32 v47, v46")
        I(a, f"v_mov_b32 v48, v{gv}"); I(a, f"v_mov_b32 v49, v{gv}")
        I(a, f"v_mov_b32 v30, v{gv+1}"); I(a, f"v_mov_b32 v31, v{gv+1}")
        lab_m = a.newlabel("fm"); lab_e = a.newlabel("fe")
        I(a, "s_cmp_eq_u32 s62, 1"); I(a, f"s_cbranch_scc1 {lab_m}")
        for mir in (0, 1):
            if mir: a.label(lab_m)
            for pidx in range(4):
                def src(base, n3, idx):
                    return (base + idx//2, idx % 2)
                if not mir:
                    e0 = (b + pidx//2, pidx % 2); e1 = (b+4 + pidx//2, pidx % 2)
                    s0 = (b+8 + pidx//2, pidx % 2); s1 = (b+12 + pidx//2, pidx % 2)
                else:
                    k0 = 4 - pidx
                    k1 = 3 - pidx
                    e0 = (b + k0//2, k0 % 2); e1 = (b+4 + k1//2, k1 % 2)
                    s0 = (b+8 + k0//2, k0 % 2); s1 = (b+12 + k1//2, k1 % 2)
                def unp(dst, s):
                    if s[1]: I(a, f"v_and_b32 v{dst}, 0xffff0000, v{s[0]}")
                    else: I(a, f"v_lshlrev_b32 v{dst}, 16, v{s[0]}")
                unp(T, e0); unp(T+1, e1); unp(T+2, s0); unp(T+3, s1)
                bb = RB + 4*i + pidx
                unp(T+4, (bb, 0)); unp(T+5, (bb, 1))
                I(a, f"v_pk_mul_f32 v[{T+4}:{T+5}], v[{T+4}:{T+5}], v[30:31]")
                I(a, f"v_pk_fma_f32 v[{T+4}:{T+5}], v[{T}:{T+1}], v[48:49], v[{T+4}:{T+5}]")
                I(a, f"v_pk_fma_f32 v[{T+4}:{T+5}], v[{T+2}:{T+3}], v[46:47], v[{T+4}:{T+5}]")
                I(a, f"v_cvt_pk_bf16_f32 v{bb}, v{T+4}, v{T+5}")
            if not mir: I(a, f"s_branch {lab_e}")
        a.label(lab_e)
        I(a, f"s_mov_b32 s{S_TMP2}, {i*8*2048}")
        I(a, f"buffer_store_dwordx4 v[{RB+4*i}:{RB+4*i+3}], v{W+13}, s[16:19], s{S_TMP2} offen")

def common_srds(a):
    srd(a, S_PSRD, 6, 3584*1024*2); srd(a, 16, 22, 2048*1024*2); srd(a, 32, 20, 2048)
    I(a, "s_mov_b32 s6, s4"); I(a, "s_mov_b32 s7, s5"); add64(a, 6, Y_OFF); srd(a, 24, 6, 4*YARR)
    I(a, "s_mov_b32 s6, s4"); I(a, "s_mov_b32 s7, s5"); add64(a, 6, G_OFF); srd(a, 36, 6, 2048*8)
    I(a, f"s_mov_b32 s63, {YARR}"); I(a, f"s_mov_b32 s64, {2*YARR}"); I(a, f"s_mov_b32 s65, {3*YARR}")

def k_p2d(a, name, stamps=False, NS=5, rotA=0, rotB=0):
    g = G(BM=128, BN=64, WM=4, WN=1, NS=NS, ldq=7168, ldp=2048, nk=56, pref="p2")
    class St(Stamps):
        def __call__(self, i):
            if self.on: I(self.a, f"s_memtime s[{70+2*i}:{70+2*i+1}]")
    st = StampsAt(a, stamps, 70)
    kernel_begin(a, name)
    st(0)
    load_ptr(a, 6, 64, 2); load_ptr(a, 20, 72, 2); load_ptr(a, 22, 88); load_ptr(a, 4, 104)
    I(a, "s_cmp_ge_u32 s2, 256"); I(a, "s_cbranch_scc1 p2_end")
    lane_wave(a)
    I(a, "s_and_b32 s26, s2, 7"); I(a, "s_lshr_b32 s27, s2, 3")
    I(a, "s_lshr_b32 s28, s26, 1"); I(a, "s_and_b32 s29, s26, 1")
    I(a, "s_lshl_b32 s28, s28, 2"); I(a, "s_lshr_b32 s30, s27, 3"); I(a, "s_add_u32 s28, s28, s30")
    I(a, "s_lshl_b32 s29, s29, 3"); I(a, "s_and_b32 s30, s27, 7"); I(a, "s_add_u32 s29, s29, s30")
    I(a, f"s_mul_i32 s{S_QOFF}, s28, {128*7168}")
    I(a, f"s_mul_i32 s{S_POFF}, s29, {64*2}")
    if rotA or rotB:
        g.rot = True
        I(a, f"s_and_b32 s30, s27, 7"); I(a, f"s_mul_i32 s30, s30, {rotA}")
        I(a, f"s_lshr_b32 s31, s27, 3"); I(a, f"s_mul_i32 s31, s31, {rotB}")
        I(a, "s_add_u32 s55, s30, s31")
        I(a, f"s_lshl_b32 s30, s55, 7"); I(a, f"s_add_u32 s{S_QOFF}, s{S_QOFF}, s30")
        I(a, f"s_mul_i32 s30, s55, {64*2048}"); I(a, f"s_add_u32 s{S_POFF}, s{S_POFF}, s30")
    I(a, f"s_cmp_ge_u32 s{S_WAVE}, 4"); I(a, "s_cbranch_scc0 p2_compute")
    I(a, f"s_sub_u32 s{S_WAVE}, s{S_WAVE}, 4")
    loader_voffsets(a, g)
    I(a, "s_waitcnt lgkmcnt(0)")
    st(1)
    srd(a, S_QSRD, 4, 2048*3584*2); srd(a, S_PSRD, 6, 3584*1024*2)
    st(2)
    loader_main(a, g, first_wait_all=True, stamp=st if stamps else None)
    st(5); st(6); st(7)
    st.dump(8, 1)
    I(a, "s_endpgm")
    a.label("p2_compute")
    compute_setup(a, g)
    for nb in range(g.NB):
        for mb in range(g.MB):
            for r in range(16): I(a, f"v_mov_b32 v{acc_reg(g,nb,mb)+r}, 0")
    I(a, "s_waitcnt lgkmcnt(0)")
    st(1)
    common_srds(a)
    st(2); st(3)
    compute_loop_x(a, g, stamp=f"s_memtime s[78:79]" if stamps else None, per=3)
    st(5)
    I(a, "s_nop 7"); I(a, "s_nop 7")
    I(a, f"s_lshl_b32 s30, s28, 7"); I(a, f"s_lshl_b32 s31, s{S_WAVE}, 5"); I(a, "s_add_u32 s30, s30, s31")
    I(a, f"s_lshl_b32 s31, s29, 7")
    I(a, f"s_lshl_b32 s66, s{S_WAVE}, 12")
    final_block(a, g, 30, 31, [acc_reg(g,0,0), acc_reg(g,1,0)], 66)
    st(6)
    if stamps: I(a, "s_waitcnt vmcnt(0)")
    st(7)
    st.dump(8, 0)
    a.label("p2_end")
    I(a, "s_endpgm")
    return g

class StampsAt(Stamps):
    def __init__(self, a, on, base): self.a = a; self.on = on; self.base = base
    def __call__(self, i):
        if self.on: I(self.a, f"s_memtime s[{self.base+2*i}:{self.base+2*i+1}]")
    def dump(self, n, role):
        if not self.on: return
        a = self.a; B = self.base
        I(a, "s_waitcnt vmcnt(0) lgkmcnt(0)")
        I(a, "s_load_dwordx2 s[4:5], s[0:1], 104")
        I(a, "s_waitcnt lgkmcnt(0)")
        I(a, "s_add_u32 s4, s4, 0x4000000"); I(a, "s_addc_u32 s5, s5, 0")
        srd(a, 8, 4, 1<<20)
        I(a, f"s_lshl_b32 s44, s2, 8")
        I(a, f"s_lshl_b32 s45, s{S_WAVE}, 5")
        I(a, f"s_add_u32 s44, s44, s45")
        I(a, f"s_add_u32 s44, s44, {role*128}")
        I(a, "v_mov_b32 v2, s44")
        for i in range(1, n):
            I(a, f"s_sub_u32 s{B+2*i}, s{B+2*i}, s{B}")
            I(a, f"v_mov_b32 v1, s{B+2*i}")
            I(a, f"buffer_store_dword v1, v2, s[8:11], 0 offen offset:{i*4}")
        I(a, f"v_mov_b32 v1, s{B}")
        I(a, f"buffer_store_dword v1, v2, s[8:11], 0 offen")

def k_p2a(a, name, stamps=False, NS=4, rotA=0, rotB=0, remap=False):
    g = G(BM=128, BN=128, WM=2, WN=2, NS=NS, ldq=7168, ldp=2048, nk=28, pref="p2")
    st = StampsAt(a, stamps, 70)
    kernel_begin(a, name)
    st(0)
    load_ptr(a, 6, 64, 2); load_ptr(a, 20, 72, 2); load_ptr(a, 22, 88); load_ptr(a, 4, 104)
    I(a, "s_cmp_ge_u32 s2, 256"); I(a, "s_cbranch_scc1 p2_end")
    lane_wave(a)
    I(a, "s_and_b32 s26, s2, 7"); I(a, "s_lshr_b32 s27, s2, 3")
    if remap:
        I(a, "s_bfe_u32 s67, s26, 0x10001")
        I(a, "s_lshr_b32 s28, s26, 2"); I(a, "s_and_b32 s29, s26, 1")
    else:
        I(a, "s_and_b32 s67, s26, 1")
        I(a, "s_lshr_b32 s26, s26, 1")
        I(a, "s_lshr_b32 s28, s26, 1"); I(a, "s_and_b32 s29, s26, 1")
    I(a, "s_lshl_b32 s28, s28, 3"); I(a, "s_lshr_b32 s30, s27, 2"); I(a, "s_add_u32 s28, s28, s30")
    I(a, "s_lshl_b32 s29, s29, 2"); I(a, "s_and_b32 s30, s27, 3"); I(a, "s_add_u32 s29, s29, s30")
    I(a, f"s_mul_i32 s{S_QOFF}, s28, {128*7168}")
    I(a, f"s_mul_i32 s30, s67, {1792*2}"); I(a, f"s_add_u32 s{S_QOFF}, s{S_QOFF}, s30")
    I(a, f"s_mul_i32 s{S_POFF}, s29, {128*2}")
    I(a, f"s_mul_i32 s30, s67, {1792*2048}"); I(a, f"s_add_u32 s{S_POFF}, s{S_POFF}, s30")
    if rotA or rotB:
        g.rot = True
        I(a, f"s_and_b32 s30, s27, 3"); I(a, f"s_mul_i32 s30, s30, {rotA}")
        I(a, f"s_lshr_b32 s31, s27, 2"); I(a, f"s_mul_i32 s31, s31, {rotB}")
        I(a, "s_add_u32 s55, s30, s31")
        I(a, "s_cmp_ge_u32 s55, 28"); I(a, "s_cselect_b32 s30, 28, 0"); I(a, "s_sub_u32 s55, s55, s30")
        I(a, "s_cmp_ge_u32 s55, 28"); I(a, "s_cselect_b32 s30, 28, 0"); I(a, "s_sub_u32 s55, s55, s30")
        I(a, f"s_lshl_b32 s30, s55, 7"); I(a, f"s_add_u32 s{S_QOFF}, s{S_QOFF}, s30")
        I(a, f"s_mul_i32 s30, s55, {64*2048}"); I(a, f"s_add_u32 s{S_POFF}, s{S_POFF}, s30")
    I(a, f"s_cmp_ge_u32 s{S_WAVE}, 4"); I(a, "s_cbranch_scc0 p2_compute")
    I(a, f"s_sub_u32 s{S_WAVE}, s{S_WAVE}, 4")
    loader_voffsets(a, g)
    I(a, "s_waitcnt lgkmcnt(0)")
    st(1)
    srd(a, S_QSRD, 4, 2048*3584*2); srd(a, S_PSRD, 6, 3584*1024*2)
    st(2)
    loader_main(a, g, first_wait_all=True, stamp=st if stamps else None)
    st(5); st(6); st(7)
    st.dump(8, 1)
    I(a, "s_endpgm")
    a.label("p2_compute")
    compute_setup(a, g)
    for nb in range(g.NB):
        for mb in range(g.MB):
            for r in range(16): I(a, f"v_mov_b32 v{acc_reg(g,nb,mb)+r}, 0")
    I(a, "s_waitcnt lgkmcnt(0)")
    st(1)
    common_srds(a)
    I(a, "s_mov_b32 s6, s4"); I(a, "s_mov_b32 s7, s5"); add64(a, 6, XS_OFF); srd(a, 56, 6, 256*32768)
    I(a, "s_mov_b32 s6, s4"); I(a, "s_mov_b32 s7, s5"); add64(a, 6, FLAG_OFF); srd(a, 8, 6, 256*128)
    st(2); st(3)
    compute_loop_x(a, g, stamp=f"s_memtime s[78:79]" if stamps else None, per=2)
    st(5)
    I(a, "s_nop 7"); I(a, "s_nop 7")
    I(a, f"s_lshl_b32 s60, s2, 15"); I(a, f"s_lshl_b32 s61, s{S_WAVE}, 13"); I(a, "s_add_u32 s60, s60, s61")
    I(a, "v_lshlrev_b32 v40, 4, v1")
    I(a, "s_cmp_eq_u32 s67, 0"); I(a, "s_cbranch_scc1 p2_send1")
    for keep, lab in ((1, None), (0, "p2_send1")):
        if lab: a.label(lab)
        smb = 1 - keep
        k = 0
        for nb in range(2):
            c = acc_reg(g, nb, smb)
            for q in range(4):
                I(a, f"buffer_store_dwordx4 v[{c+4*q}:{c+4*q+3}], v40, s[56:59], s60 offen offset:{k*1024} sc1" if k < 4 else
                     f"buffer_store_dwordx4 v[{c+4*q}:{c+4*q+3}], v41, s[56:59], s60 offen offset:{(k-4)*1024} sc1")
                if k == 0: I(a, "v_add_u32 v41, 4096, v40")
                k += 1
        if keep == 1: I(a, "s_branch p2_sent")
    a.label("p2_sent")
    I(a, "s_waitcnt vmcnt(0)")
    I(a, "s_barrier")
    I(a, f"s_xor_b32 s61, s2, {2 if remap else 1}")
    I(a, f"s_cmp_eq_u32 s{S_WAVE}, 0"); I(a, "s_cbranch_scc0 p2_waitb")
    I(a, "s_lshl_b32 s62, s2, 7"); I(a, "v_mov_b32 v42, s62"); I(a, "v_mov_b32 v43, 1")
    I(a, "buffer_store_dword v43, v42, s[8:11], 0 offen sc1")
    I(a, "s_lshl_b32 s62, s61, 7"); I(a, "v_mov_b32 v42, s62")
    a.label("p2_poll")
    I(a, "buffer_load_dword v43, v42, s[8:11], 0 offen sc1")
    I(a, "s_waitcnt vmcnt(0)")
    I(a, "v_readfirstlane_b32 s62, v43")
    I(a, "s_cmp_eq_u32 s62, 1"); I(a, "s_cbranch_scc0 p2_poll")
    a.label("p2_waitb")
    I(a, "s_barrier")
    st(6)
    I(a, f"s_lshl_b32 s60, s61, 15"); I(a, f"s_lshl_b32 s62, s{S_WAVE}, 13"); I(a, "s_add_u32 s60, s60, s62")
    for k in range(8):
        I(a, f"buffer_load_dwordx4 v[{64+4*k}:{64+4*k+3}], v{40 if k < 4 else 41}, s[56:59], s60 offen offset:{(k%4)*1024} sc1")
    I(a, "s_cmp_eq_u32 s67, 0"); I(a, "s_cbranch_scc1 p2_fin0")
    for keep, lab in ((1, None), (0, "p2_fin0")):
        if lab: a.label(lab)
        I(a, "s_waitcnt vmcnt(0)")
        k = 0
        for nb in range(2):
            c = acc_reg(g, nb, keep)
            for q in range(4):
                I(a, f"v_pk_add_f32 v[{c+4*q}:{c+4*q+1}], v[{c+4*q}:{c+4*q+1}], v[{64+4*k}:{64+4*k+1}]")
                I(a, f"v_pk_add_f32 v[{c+4*q+2}:{c+4*q+3}], v[{c+4*q+2}:{c+4*q+3}], v[{64+4*k+2}:{64+4*k+3}]")
                k += 1
        if keep == 1:
            for nb in range(2):
                for r in range(16): I(a, f"v_mov_b32 v{acc_reg(g,nb,0)+r}, v{acc_reg(g,nb,1)+r}")
            I(a, "s_branch p2_fin")
    a.label("p2_fin")
    I(a, f"s_lshl_b32 s30, s28, 7"); I(a, f"s_and_b32 s31, s{S_WAVE}, 1"); I(a, "s_lshl_b32 s31, s31, 6"); I(a, "s_add_u32 s30, s30, s31")
    I(a, "s_lshl_b32 s31, s67, 5"); I(a, "s_add_u32 s30, s30, s31")
    I(a, f"s_lshl_b32 s31, s29, 8"); I(a, f"s_lshr_b32 s62, s{S_WAVE}, 1"); I(a, "s_lshl_b32 s62, s62, 7"); I(a, "s_add_u32 s31, s31, s62")
    I(a, f"s_lshl_b32 s66, s{S_WAVE}, 12")
    final_block(a, g, 30, 31, [acc_reg(g,0,0), acc_reg(g,1,0)], 66)
    if stamps: I(a, "s_waitcnt vmcnt(0)")
    st(7)
    st.dump(8, 0)
    a.label("p2_end")
    I(a, "s_endpgm")
    return g
```

```python
import sys, json
from asmgen import *
from gemm2 import *
from p1v2 import load_ptr, compute_loop_x
from p2 import StampsAt, add64, H_OFF, Y_OFF, YP, YARR, G_OFF, FLAG_OFF
XS_OFF = 40 << 20

def loader_voffsets_perm(a, g, s_kq):
    I(a, "v_lshrrev_b32 v40, 3, v1")
    I(a, "v_lshrrev_b32 v41, 4, v1")
    I(a, "v_and_b32 v42, 7, v1")
    I(a, f"v_mul_u32_u24 v43, {g.ldq}, v40")
    I(a, "v_xor_b32 v42, v42, v41")
    I(a, "v_lshl_add_u32 v43, v42, 4, v43")
    I(a, "v_xor_b32 v44, 64, v43")
    for grp in range(2):
        I(a, f"s_and_b32 s{S_TMP}, s{S_WAVE}, 1"); I(a, f"s_lshl_b32 s{S_TMP}, s{S_TMP}, 1")
        I(a, f"s_add_u32 s{S_TMP}, s{S_TMP}, {grp}"); I(a, f"s_add_u32 s{S_TMP}, s{S_TMP}, s{s_kq}"); I(a, f"s_and_b32 s{S_TMP}, s{S_TMP}, 3")
        I(a, f"s_lshl_b32 s{S_TMP}, s{S_TMP}, 5")
        I(a, f"s_lshr_b32 s{S_TMP2}, s{S_WAVE}, 1"); I(a, f"s_lshl_b32 s{S_TMP2}, s{S_TMP2}, 7"); I(a, f"s_add_u32 s{S_TMP}, s{S_TMP}, s{S_TMP2}")
        I(a, f"s_mul_i32 s{S_TMP}, s{S_TMP}, {g.ldq}")
        for j in range(4):
            i = grp*4 + j
            c = j*8*g.ldq - (i & 3)*1024
            I(a, f"v_add_u32 v{VL+i}, {c}, v{44 if i & 1 else 43}")
            I(a, f"v_add_u32 v{VL+i}, s{S_TMP}, v{VL+i}")
    I(a, f"s_mul_i32 s{S_TMP}, s{S_WAVE}, {4*g.np_*g.ldp}")
    I(a, "v_and_b32 v42, 15, v1")
    I(a, "v_lshlrev_b32 v45, 2, v41")
    I(a, "v_xor_b32 v42, v42, v45")
    I(a, f"v_mul_u32_u24 v43, {g.ldp}, v41")
    I(a, f"v_add_u32 v43, s{S_TMP}, v43")
    I(a, "v_lshl_add_u32 v43, v42, 4, v43")
    for i in range(g.np_):
        c = i*4*g.ldp - (i & 3)*1024
        I(a, f"v_add_u32 v{VL+g.nq+i}, {c}, v43")
    I(a, f"s_mul_i32 s{S_MQ}, s{S_WAVE}, {g.nq*1024}")
    I(a, f"s_mul_i32 s{S_MP}, s{S_WAVE}, {g.np_*1024}")
    I(a, f"s_add_u32 s{S_MP}, s{S_MP}, {g.QB}")
    I(a, f"s_mov_b32 s{S_STG}, 0")

YR = 64
def y_loads(a, s_row, s_colb, pref):
    I(a, f"v_lshrrev_b32 v40, 3, v1")
    I(a, f"v_and_b32 v41, 7, v1")
    I(a, f"v_add_u32 v42, s{s_row}, v40")
    I(a, f"s_lshr_b32 s{S_TMP}, s{s_colb}, 1")
    I(a, f"s_cmp_ge_u32 s{S_TMP}, 512")
    I(a, f"s_cselect_b32 s62, 1, 0")
    I(a, f"s_cbranch_scc1 {pref}_ymir")
    I(a, f"v_lshl_add_u32 v43, v41, 3, s{S_TMP}")
    I(a, f"s_branch {pref}_ygo")
    a.label(f"{pref}_ymir")
    I(a, f"s_sub_u32 s{S_TMP}, 1016, s{S_TMP}")
    I(a, f"v_lshlrev_b32 v43, 3, v41")
    I(a, f"v_sub_u32 v43, s{S_TMP}, v43")
    a.label(f"{pref}_ygo")
    for i in range(4):
        I(a, f"v_add_u32 v44, {8*i}, v42")
        I(a, f"v_sub_u32 v45, 2048, v44")
        I(a, f"v_min_u32 v45, v44, v45")
        I(a, f"v_mul_u32_u24 v45, {YP}, v45")
        I(a, f"v_add_u32 v45, v45, v43")
        b = YR + i*16
        I(a, f"buffer_load_dwordx3 v[{b}:{b+2}], v45, s[24:27], 0 offen")
        I(a, f"buffer_load_dwordx2 v[{b+4}:{b+5}], v45, s[24:27], s63 offen")
        I(a, f"buffer_load_dwordx3 v[{b+8}:{b+10}], v45, s[24:27], s64 offen")
        I(a, f"buffer_load_dwordx2 v[{b+12}:{b+13}], v45, s[24:27], s65 offen")
        I(a, f"v_lshlrev_b32 v44, 3, v44")
        I(a, f"buffer_load_dwordx2 v[{32+i*2}:{32+i*2+1}], v44, s[36:39], 0 offen")

T1 = 128
def y_precombine(a):
    for i in range(4):
        b = YR + i*16; gv = 32 + i*2
        I(a, f"v_add_u32 v44, {8*i}, v42")
        I(a, f"v_cmp_lt_u32 vcc, 1024, v44")
        I(a, f"s_nop 1")
        I(a, f"v_cndmask_b32 v45, 0, 1, vcc")
        I(a, f"v_xor_b32 v45, s62, v45")
        I(a, f"v_cmp_eq_u32 vcc, 1, v45")
        I(a, f"v_sub_f32 v46, 0, v{gv}")
        I(a, f"s_nop 0")
        I(a, f"v_cndmask_b32 v46, v46, v{gv}, vcc")
        I(a, f"v_mov_b32 v47, v46")
        I(a, f"v_mov_b32 v48, v{gv}"); I(a, f"v_mov_b32 v49, v{gv}")
        lab_m = a.newlabel("fm"); lab_e = a.newlabel("fe")
        I(a, "s_cmp_eq_u32 s62, 1"); I(a, f"s_cbranch_scc1 {lab_m}")
        for mir in (0, 1):
            if mir: a.label(lab_m)
            for pidx in range(4):
                if not mir:
                    e0 = (b + pidx//2, pidx % 2); e1 = (b+4 + pidx//2, pidx % 2)
                    s0 = (b+8 + pidx//2, pidx % 2); s1 = (b+12 + pidx//2, pidx % 2)
                else:
                    k0 = 4 - pidx; k1 = 3 - pidx
                    e0 = (b + k0//2, k0 % 2); e1 = (b+4 + k1//2, k1 % 2)
                    s0 = (b+8 + k0//2, k0 % 2); s1 = (b+12 + k1//2, k1 % 2)
                def unp(dst, s):
                    if s[1]: I(a, f"v_and_b32 v{dst}, 0xffff0000, v{s[0]}")
                    else: I(a, f"v_lshlrev_b32 v{dst}, 16, v{s[0]}")
                d = T1 + i*8 + pidx*2
                unp(50, e0); unp(51, e1); unp(52, s0); unp(53, s1)
                I(a, f"v_pk_mul_f32 v[{d}:{d+1}], v[50:51], v[48:49]")
                I(a, f"v_pk_fma_f32 v[{d}:{d+1}], v[52:53], v[46:47], v[{d}:{d+1}]")
            if not mir: I(a, f"s_branch {lab_e}")
        a.label(lab_e)

def k_p2b(a, name, stamps=False):
    g = G(BM=256, BN=128, WM=2, WN=2, NS=3, ldq=7168, ldp=2048, nk=14, pref="p2")
    st = StampsAt(a, stamps, 70)
    kernel_begin(a, name)
    st(0)
    load_ptr(a, 6, 64); load_ptr(a, 20, 72); load_ptr(a, 22, 88); load_ptr(a, 4, 104)
    I(a, "s_cmp_ge_u32 s2, 256"); I(a, "s_cbranch_scc1 p2_end")
    lane_wave(a)
    I(a, "s_and_b32 s67, s2, 3")
    I(a, "s_bfe_u32 s28, s2, 0x10002"); I(a, "s_lshl_b32 s28, s28, 2")
    I(a, "s_lshr_b32 s27, s2, 3"); I(a, "s_lshr_b32 s30, s27, 3"); I(a, "s_add_u32 s28, s28, s30")
    I(a, "s_and_b32 s29, s27, 7")
    I(a, f"s_mul_i32 s{S_QOFF}, s28, {256*7168}")
    I(a, f"s_mul_i32 s30, s67, {896*2}"); I(a, f"s_add_u32 s{S_QOFF}, s{S_QOFF}, s30")
    I(a, f"s_mul_i32 s{S_POFF}, s29, {128*2}")
    I(a, f"s_mul_i32 s30, s67, {896*2048}"); I(a, f"s_add_u32 s{S_POFF}, s{S_POFF}, s30")
    I(a, f"s_and_b32 s31, s{S_WAVE}, 1"); I(a, "s_lshl_b32 s31, s31, 7"); I(a, "s_lshl_b32 s30, s28, 8"); I(a, "s_add_u32 s30, s30, s31")
    I(a, "s_lshl_b32 s31, s67, 5"); I(a, "s_add_u32 s30, s30, s31")
    I(a, f"s_bfe_u32 s31, s{S_WAVE}, 0x10001"); I(a, "s_lshl_b32 s31, s31, 7"); I(a, "s_lshl_b32 s66, s29, 8"); I(a, "s_add_u32 s31, s31, s66")
    I(a, f"s_cmp_ge_u32 s{S_WAVE}, 4"); I(a, "s_cbranch_scc0 p2_compute")
    I(a, f"s_sub_u32 s{S_WAVE}, s{S_WAVE}, 4")
    loader_voffsets_perm(a, g, 67)
    I(a, "s_waitcnt lgkmcnt(0)")
    st(1)
    srd(a, S_PSRD, 6, 3584*1024*2)
    srd(a, S_QSRD, 4, 2048*3584*2)
    st(2)
    PER = g.PER
    stage_issue(a, g)
    st(3)
    stage_issue(a, g)
    I(a, f"s_waitcnt vmcnt({PER})")
    st(4)
    I(a, "s_barrier")
    stage_issue(a, g)
    srd(a, 16, 22, 2048*1024*2)
    I(a, "s_mov_b32 s6, s4"); I(a, "s_mov_b32 s7, s5"); add64(a, 6, Y_OFF); srd(a, 24, 6, 4*YARR)
    I(a, "s_mov_b32 s6, s4"); I(a, "s_mov_b32 s7, s5"); add64(a, 6, G_OFF); srd(a, 36, 6, 2048*8)
    I(a, f"s_mov_b32 s63, {YARR}"); I(a, f"s_mov_b32 s64, {2*YARR}"); I(a, f"s_mov_b32 s65, {3*YARR}")
    I(a, f"s_mov_b32 s{S_CNT}, {g.nk-3}")
    a.label("p2_ld_loop")
    I(a, f"s_waitcnt vmcnt({PER})"); I(a, "s_barrier"); stage_issue(a, g)
    I(a, f"s_sub_u32 s{S_CNT}, s{S_CNT}, 1"); I(a, f"s_cmp_lg_u32 s{S_CNT}, 0"); I(a, "s_cbranch_scc1 p2_ld_loop")
    y_loads(a, 30, 31, "p2")
    I(a, f"s_waitcnt vmcnt({PER+20})"); I(a, "s_barrier")
    I(a, f"s_waitcnt vmcnt(20)"); I(a, "s_barrier")
    I(a, "s_barrier")
    st(5)
    I(a, "s_waitcnt vmcnt(0)")
    y_precombine(a)
    W = 50
    I(a, f"s_lshl_b32 s66, s{S_WAVE}, 12")
    I(a, f"v_lshrrev_b32 v{W}, 3, v1")
    I(a, f"v_and_b32 v{W+2}, 7, v1")
    I(a, f"v_xor_b32 v{W+2}, v{W+2}, v{W}")
    I(a, f"v_lshlrev_b32 v{W+3}, 7, v{W}")
    I(a, f"v_lshl_add_u32 v{W+3}, v{W+2}, 4, v{W+3}")
    I(a, f"v_add_u32 v{W+12}, s66, v{W+3}")
    I(a, f"v_add_u32 v{W}, s30, v{W}")
    I(a, f"v_lshlrev_b32 v{W}, 11, v{W}")
    I(a, f"v_and_b32 v{W+2}, 7, v1")
    I(a, f"v_lshl_add_u32 v{W}, v{W+2}, 4, v{W}")
    I(a, f"v_add_u32 v{W+13}, s31, v{W}")
    st(6)
    I(a, "s_barrier"); I(a, "s_barrier")
    I(a, "s_barrier")
    for i in range(4):
        I(a, f"ds_read_b128 v[{64+4*i}:{64+4*i+3}], v{W+12} offset:{i*1024}")
    for i in range(4):
        I(a, f"s_waitcnt lgkmcnt({3-i})")
        og = 33 + 2*i
        I(a, f"v_mov_b32 v46, v{og}"); I(a, f"v_mov_b32 v47, v{og}")
        for p in range(4):
            bb = 64 + 4*i + p; d = T1 + i*8 + p*2
            I(a, f"v_lshlrev_b32 v48, 16, v{bb}"); I(a, f"v_and_b32 v49, 0xffff0000, v{bb}")
            I(a, f"v_pk_fma_f32 v[{d}:{d+1}], v[48:49], v[46:47], v[{d}:{d+1}]")
            I(a, f"v_cvt_pk_bf16_f32 v{bb}, v{d}, v{d+1}")
        I(a, f"s_mov_b32 s{S_TMP2}, {i*8*2048}")
        I(a, f"buffer_store_dwordx4 v[{64+4*i}:{64+4*i+3}], v{W+13}, s[16:19], s{S_TMP2} offen")
    if stamps: I(a, "s_waitcnt vmcnt(0)")
    st(7); st.dump(8, 1)
    I(a, "s_endpgm")
    a.label("p2_compute")
    compute_setup(a, g)
    for nb in range(g.NB):
        for mb in range(1, g.MB):
            for r in range(16): I(a, f"v_mov_b32 v{acc_reg(g,nb,mb)+r}, 0")
    I(a, "s_waitcnt lgkmcnt(0)")
    st(1)
    srd(a, 32, 20, 2048)
    I(a, "v_lshrrev_b32 v40, 5, v1"); I(a, "v_lshlrev_b32 v40, 3, v40")
    for nb in range(2):
        for q in range(4):
            r = 16 + (nb*4+q)*2
            I(a, f"buffer_load_dwordx2 v[{r}:{r+1}], v40, s[32:35], s31 offen offset:{nb*64+q*16}")
    I(a, "s_mov_b32 s6, s4"); I(a, "s_mov_b32 s7, s5"); add64(a, 6, XS_OFF); srd(a, 56, 6, 256*49152)
    I(a, "s_mov_b32 s6, s4"); I(a, "s_mov_b32 s7, s5"); add64(a, 6, FLAG_OFF); srd(a, 8, 6, 256*128)
    W = 50
    I(a, f"s_lshl_b32 s66, s{S_WAVE}, 12")
    I(a, f"v_and_b32 v{W}, 31, v1")
    I(a, f"v_lshlrev_b32 v{W+1}, 7, v{W}")
    I(a, f"v_add_u32 v{W+1}, s66, v{W+1}")
    I(a, f"v_lshrrev_b32 v{W+2}, 5, v1")
    I(a, f"v_lshl_add_u32 v{W+1}, v{W+2}, 3, v{W+1}")
    I(a, f"v_and_b32 v{W}, 7, v{W}")
    for ch in range(8):
        I(a, f"v_xor_b32 v{W+2}, {ch}, v{W}")
        I(a, f"v_lshl_add_u32 v{W+4+ch}, v{W+2}, 4, v{W+1}")
    I(a, "s_waitcnt vmcnt(0)")
    for nb in range(2):
        for q in range(4):
            r = 16 + (nb*4+q)*2; d = acc_reg(g, nb, 0) + 4*q
            I(a, f"v_lshlrev_b32 v{d}, 16, v{r}"); I(a, f"v_and_b32 v{d+1}, 0xffff0000, v{r}")
            I(a, f"v_lshlrev_b32 v{d+2}, 16, v{r+1}"); I(a, f"v_and_b32 v{d+3}, 0xffff0000, v{r+1}")
    compute_loop_x(a, g, stamp=f"s_memtime s[78:79]" if stamps else None)
    st(5)
    I(a, "s_nop 7"); I(a, "s_nop 7")
    I(a, "v_lshlrev_b32 v40, 4, v1")
    for b in range(1, 4):
        I(a, f"s_add_u32 s60, s67, {b}"); I(a, "s_and_b32 s60, s60, 3"); I(a, "s_andn2_b32 s61, s2, 3"); I(a, "s_or_b32 s60, s60, s61")
        I(a, f"s_mul_i32 s60, s60, 49152"); I(a, f"s_lshl_b32 s61, s{S_WAVE}, 12"); I(a, "s_add_u32 s60, s60, s61")
        I(a, f"s_add_u32 s60, s60, {(b-1)*16384}")
        k = 0
        for nb in range(2):
            c = acc_reg(g, nb, b)
            for half in range(2):
                t = 64 + ((b-1)*4 + k)*4
                for r in range(4):
                    I(a, f"v_cvt_pk_bf16_f32 v{t+r}, v{c+8*half+2*r}, v{c+8*half+2*r+1}")
                I(a, f"buffer_store_dwordx4 v[{t}:{t+3}], v40, s[56:59], s60 offen offset:{k*1024} sc1")
                k += 1
    st(2)
    I(a, "s_waitcnt vmcnt(0)")
    st(3)
    I(a, "s_barrier")
    I(a, f"s_cmp_eq_u32 s{S_WAVE}, 0"); I(a, "s_cbranch_scc0 p2_waitb")
    I(a, "s_lshl_b32 s62, s2, 7"); I(a, "v_mov_b32 v42, s62"); I(a, "v_mov_b32 v43, 1")
    I(a, "buffer_store_dword v43, v42, s[8:11], 0 offen sc1")
    I(a, "s_andn2_b32 s61, s2, 3"); I(a, "v_and_b32 v42, 3, v1"); I(a, "v_add_u32 v42, s61, v42"); I(a, "v_lshlrev_b32 v42, 7, v42")
    a.label("p2_poll")
    I(a, "buffer_load_dword v43, v42, s[8:11], 0 offen sc1")
    I(a, "s_waitcnt vmcnt(0)")
    I(a, "v_cmp_ne_u32 vcc, 1, v43")
    I(a, "s_nop 4")
    I(a, "s_cmp_eq_u64 vcc, 0"); I(a, "s_cbranch_scc0 p2_poll")
    a.label("p2_waitb")
    I(a, "s_barrier")
    st(6)
    I(a, f"s_mul_i32 s60, s2, 49152"); I(a, f"s_lshl_b32 s61, s{S_WAVE}, 12"); I(a, "s_add_u32 s60, s60, s61")
    for b in range(3):
        for k in range(4):
            t = 64 + (b*4 + k)*4
            I(a, f"buffer_load_dwordx4 v[{t}:{t+3}], v40, s[56:59], s60 offen offset:{k*1024} sc1")
        I(a, "s_add_u32 s60, s60, 16384")
    for b in range(3):
        I(a, f"s_waitcnt vmcnt({8-4*b})")
        k = 0
        for nb in range(2):
            c = acc_reg(g, nb, 0)
            for half in range(2):
                t = 64 + (b*4 + k)*4
                for r in range(4):
                    I(a, f"v_lshlrev_b32 v44, 16, v{t+r}"); I(a, f"v_and_b32 v45, 0xffff0000, v{t+r}")
                    I(a, f"v_pk_add_f32 v[{c+8*half+2*r}:{c+8*half+2*r+1}], v[{c+8*half+2*r}:{c+8*half+2*r+1}], v[44:45]")
                k += 1
    for nb in range(2):
        c = acc_reg(g, nb, 0)
        for q in range(4):
            t = 16 + (nb*4+q)*2
            I(a, f"v_cvt_pk_bf16_f32 v{t}, v{c+4*q}, v{c+4*q+1}")
            I(a, f"v_cvt_pk_bf16_f32 v{t+1}, v{c+4*q+2}, v{c+4*q+3}")
            I(a, f"ds_write_b64 v{54+nb*4+q}, v[{t}:{t+1}]")
    I(a, "s_waitcnt lgkmcnt(0)")
    I(a, "s_barrier")
    st(7); st.dump(8, 0)
    a.label("p2_end")
    I(a, "s_endpgm")
    return g
```

```python
import sys, json
from asmgen import *
from gemm2 import *
from p1v2 import load_ptr, compute_loop_x
from p2 import StampsAt, add64, H_OFF, Y_OFF, YP, YARR, G_OFF, FLAG_OFF
from p2b import y_loads, y_precombine, T1, YR
XS_OFF = 40 << 20

def loader_voffsets_perm2(a, g, s_kh):
    I(a, "v_lshrrev_b32 v40, 3, v1")
    I(a, "v_lshrrev_b32 v41, 4, v1")
    I(a, "v_and_b32 v42, 7, v1")
    I(a, f"v_mul_u32_u24 v43, {g.ldq}, v40")
    I(a, "v_xor_b32 v42, v42, v41")
    I(a, "v_lshl_add_u32 v43, v42, 4, v43")
    I(a, "v_xor_b32 v44, 64, v43")
    I(a, f"s_add_u32 s{S_TMP}, s{S_WAVE}, s{s_kh}"); I(a, f"s_and_b32 s{S_TMP}, s{S_TMP}, 1"); I(a, f"s_lshl_b32 s{S_TMP}, s{S_TMP}, 5")
    I(a, f"s_lshr_b32 s{S_TMP2}, s{S_WAVE}, 1"); I(a, f"s_lshl_b32 s{S_TMP2}, s{S_TMP2}, 6"); I(a, f"s_add_u32 s{S_TMP}, s{S_TMP}, s{S_TMP2}")
    I(a, f"s_mul_i32 s{S_TMP}, s{S_TMP}, {g.ldq}")
    for i in range(4):
        c = i*8*g.ldq - (i & 3)*1024
        I(a, f"v_add_u32 v{VL+i}, {c}, v{44 if i & 1 else 43}")
        I(a, f"v_add_u32 v{VL+i}, s{S_TMP}, v{VL+i}")
    I(a, f"s_mul_i32 s{S_TMP}, s{S_WAVE}, {4*g.np_*g.ldp}")
    I(a, "v_and_b32 v42, 15, v1")
    I(a, "v_lshlrev_b32 v45, 2, v41")
    I(a, "v_xor_b32 v42, v42, v45")
    I(a, f"v_mul_u32_u24 v43, {g.ldp}, v41")
    I(a, f"v_add_u32 v43, s{S_TMP}, v43")
    I(a, "v_lshl_add_u32 v43, v42, 4, v43")
    for i in range(g.np_):
        c = i*4*g.ldp - (i & 3)*1024
        I(a, f"v_add_u32 v{VL+g.nq+i}, {c}, v43")
    I(a, f"s_mul_i32 s{S_MQ}, s{S_WAVE}, {g.nq*1024}")
    I(a, f"s_mul_i32 s{S_MP}, s{S_WAVE}, {g.np_*1024}")
    I(a, f"s_add_u32 s{S_MP}, s{S_MP}, {g.QB}")
    I(a, f"s_mov_b32 s{S_STG}, 0")

def k_p2c(a, name, stamps=False, NS=4, local=False, sc="sc1"):
    g = G(BM=128, BN=128, WM=2, WN=2, NS=NS, ldq=7168, ldp=2048, nk=28, pref="p2")
    st = StampsAt(a, stamps, 70)
    kernel_begin(a, name)
    st(0)
    load_ptr(a, 6, 64); load_ptr(a, 20, 72); load_ptr(a, 22, 88); load_ptr(a, 4, 104)
    I(a, "s_cmp_ge_u32 s2, 256"); I(a, "s_cbranch_scc1 p2_end")
    lane_wave(a)
    I(a, "s_lshr_b32 s27, s2, 3")
    if not local:
        I(a, "s_bfe_u32 s67, s2, 0x10001")
        I(a, "s_bfe_u32 s28, s2, 0x10002"); I(a, "s_lshl_b32 s28, s28, 3"); I(a, "s_lshr_b32 s30, s27, 2"); I(a, "s_add_u32 s28, s28, s30")
        I(a, "s_and_b32 s29, s2, 1"); I(a, "s_lshl_b32 s29, s29, 2"); I(a, "s_and_b32 s30, s27, 3"); I(a, "s_add_u32 s29, s29, s30")
        PX = 2
    else:
        I(a, "s_lshr_b32 s67, s27, 4")
        I(a, "s_bfe_u32 s28, s2, 0x20001"); I(a, "s_lshl_b32 s28, s28, 2"); I(a, "s_bfe_u32 s30, s27, 0x20002"); I(a, "s_add_u32 s28, s28, s30")
        I(a, "s_and_b32 s29, s2, 1"); I(a, "s_lshl_b32 s29, s29, 2"); I(a, "s_and_b32 s30, s27, 3"); I(a, "s_add_u32 s29, s29, s30")
        PX = 128
    I(a, f"s_mul_i32 s{S_QOFF}, s28, {128*7168}")
    I(a, f"s_mul_i32 s30, s67, {1792*2}"); I(a, f"s_add_u32 s{S_QOFF}, s{S_QOFF}, s30")
    I(a, f"s_mul_i32 s{S_POFF}, s29, {128*2}")
    I(a, f"s_mul_i32 s30, s67, {1792*2048}"); I(a, f"s_add_u32 s{S_POFF}, s{S_POFF}, s30")
    I(a, f"s_and_b32 s31, s{S_WAVE}, 1"); I(a, "s_lshl_b32 s31, s31, 6"); I(a, "s_lshl_b32 s30, s28, 7"); I(a, "s_add_u32 s30, s30, s31")
    I(a, "s_lshl_b32 s31, s67, 5"); I(a, "s_add_u32 s30, s30, s31")
    I(a, f"s_bfe_u32 s31, s{S_WAVE}, 0x10001"); I(a, "s_lshl_b32 s31, s31, 7"); I(a, "s_lshl_b32 s66, s29, 8"); I(a, "s_add_u32 s31, s31, s66")
    I(a, f"s_cmp_ge_u32 s{S_WAVE}, 4"); I(a, "s_cbranch_scc0 p2_compute")
    I(a, f"s_sub_u32 s{S_WAVE}, s{S_WAVE}, 4")
    loader_voffsets_perm2(a, g, 67)
    I(a, "s_waitcnt lgkmcnt(0)")
    st(1)
    srd(a, S_PSRD, 6, 3584*1024*2)
    srd(a, S_QSRD, 4, 2048*3584*2)
    st(2)
    PER = g.PER
    stage_issue(a, g)
    st(3)
    stage_issue(a, g)
    I(a, f"s_waitcnt vmcnt({PER})")
    st(4)
    I(a, "s_barrier")
    for s in range(2, NS): stage_issue(a, g)
    srd(a, 16, 22, 2048*1024*2)
    I(a, "s_mov_b32 s6, s4"); I(a, "s_mov_b32 s7, s5"); add64(a, 6, Y_OFF); srd(a, 24, 6, 4*YARR)
    I(a, "s_mov_b32 s6, s4"); I(a, "s_mov_b32 s7, s5"); add64(a, 6, G_OFF); srd(a, 36, 6, 2048*8)
    I(a, f"s_mov_b32 s63, {YARR}"); I(a, f"s_mov_b32 s64, {2*YARR}"); I(a, f"s_mov_b32 s65, {3*YARR}")
    I(a, f"s_mov_b32 s{S_CNT}, {g.nk-NS}")
    a.label("p2_ld_loop")
    I(a, f"s_waitcnt vmcnt({(NS-2)*PER})"); I(a, "s_barrier"); stage_issue(a, g)
    I(a, f"s_sub_u32 s{S_CNT}, s{S_CNT}, 1"); I(a, f"s_cmp_lg_u32 s{S_CNT}, 0"); I(a, "s_cbranch_scc1 p2_ld_loop")
    y_loads(a, 30, 31, "p2")
    for t in range(g.nk - NS, g.nk):
        rem = max(min(t + NS - 1, g.nk - 1) - (t + 1), 0)
        need = t + 1 <= g.nk - 1
        if need: I(a, f"s_waitcnt vmcnt({rem*PER + 20})")
        I(a, "s_barrier")
    st(5)
    I(a, "s_waitcnt vmcnt(0)")
    y_precombine(a)
    W = 50
    I(a, f"s_lshl_b32 s66, s{S_WAVE}, 12")
    I(a, f"v_lshrrev_b32 v{W}, 3, v1")
    I(a, f"v_and_b32 v{W+2}, 7, v1")
    I(a, f"v_xor_b32 v{W+2}, v{W+2}, v{W}")
    I(a, f"v_lshlrev_b32 v{W+3}, 7, v{W}")
    I(a, f"v_lshl_add_u32 v{W+3}, v{W+2}, 4, v{W+3}")
    I(a, f"v_add_u32 v{W+12}, s66, v{W+3}")
    I(a, f"v_add_u32 v{W}, s30, v{W}")
    I(a, f"v_lshlrev_b32 v{W}, 11, v{W}")
    I(a, f"v_and_b32 v{W+2}, 7, v1")
    I(a, f"v_lshl_add_u32 v{W}, v{W+2}, 4, v{W}")
    I(a, f"v_add_u32 v{W+13}, s31, v{W}")
    st(6)
    I(a, "s_barrier"); I(a, "s_barrier")
    I(a, "s_barrier")
    for i in range(4):
        I(a, f"ds_read_b128 v[{64+4*i}:{64+4*i+3}], v{W+12} offset:{i*1024}")
    for i in range(4):
        I(a, f"s_waitcnt lgkmcnt({3-i})")
        og = 33 + 2*i
        I(a, f"v_mov_b32 v46, v{og}"); I(a, f"v_mov_b32 v47, v{og}")
        for p in range(4):
            bb = 64 + 4*i + p; d = T1 + i*8 + p*2
            I(a, f"v_lshlrev_b32 v48, 16, v{bb}"); I(a, f"v_and_b32 v49, 0xffff0000, v{bb}")
            I(a, f"v_pk_fma_f32 v[{d}:{d+1}], v[48:49], v[46:47], v[{d}:{d+1}]")
            I(a, f"v_cvt_pk_bf16_f32 v{bb}, v{d}, v{d+1}")
        I(a, f"s_mov_b32 s{S_TMP2}, {i*8*2048}")
        I(a, f"buffer_store_dwordx4 v[{64+4*i}:{64+4*i+3}], v{W+13}, s[16:19], s{S_TMP2} offen")
    if stamps: I(a, "s_waitcnt vmcnt(0)")
    st(7); st.dump(8, 1)
    I(a, "s_endpgm")
    a.label("p2_compute")
    compute_setup(a, g)
    for nb in range(g.NB):
        for r in range(16): I(a, f"v_mov_b32 v{acc_reg(g,nb,1)+r}, 0")
    I(a, "s_waitcnt lgkmcnt(0)")
    st(1)
    srd(a, 32, 20, 2048)
    I(a, "v_lshrrev_b32 v40, 5, v1"); I(a, "v_lshlrev_b32 v40, 3, v40")
    for nb in range(2):
        for q in range(4):
            r = 16 + (nb*4+q)*2
            I(a, f"buffer_load_dwordx2 v[{r}:{r+1}], v40, s[32:35], s31 offen offset:{nb*64+q*16}")
    I(a, "s_mov_b32 s6, s4"); I(a, "s_mov_b32 s7, s5"); add64(a, 6, XS_OFF); srd(a, 56, 6, 256*16384)
    I(a, "s_mov_b32 s6, s4"); I(a, "s_mov_b32 s7, s5"); add64(a, 6, FLAG_OFF); srd(a, 8, 6, 256*128)
    W = 50
    I(a, f"s_lshl_b32 s66, s{S_WAVE}, 12")
    I(a, f"v_and_b32 v{W}, 31, v1")
    I(a, f"v_lshlrev_b32 v{W+1}, 7, v{W}")
    I(a, f"v_add_u32 v{W+1}, s66, v{W+1}")
    I(a, f"v_lshrrev_b32 v{W+2}, 5, v1")
    I(a, f"v_lshl_add_u32 v{W+1}, v{W+2}, 3, v{W+1}")
    I(a, f"v_and_b32 v{W}, 7, v{W}")
    for ch in range(8):
        I(a, f"v_xor_b32 v{W+2}, {ch}, v{W}")
        I(a, f"v_lshl_add_u32 v{W+4+ch}, v{W+2}, 4, v{W+1}")
    I(a, "s_waitcnt vmcnt(0)")
    for nb in range(2):
        for q in range(4):
            r = 16 + (nb*4+q)*2; d = acc_reg(g, nb, 0) + 4*q
            I(a, f"v_lshlrev_b32 v{d}, 16, v{r}"); I(a, f"v_and_b32 v{d+1}, 0xffff0000, v{r}")
            I(a, f"v_lshlrev_b32 v{d+2}, 16, v{r+1}"); I(a, f"v_and_b32 v{d+3}, 0xffff0000, v{r+1}")
    compute_loop_x(a, g, stamp=f"s_memtime s[78:79]" if stamps else None)
    st(5)
    I(a, "s_nop 7"); I(a, "s_nop 7")
    I(a, "v_lshlrev_b32 v40, 4, v1")
    I(a, f"s_xor_b32 s61, s2, {PX}")
    I(a, f"s_lshl_b32 s60, s61, 14"); I(a, f"s_lshl_b32 s62, s{S_WAVE}, 12"); I(a, "s_add_u32 s60, s60, s62")
    k = 0
    for nb in range(2):
        c = acc_reg(g, nb, 1)
        for half in range(2):
            t = 64 + k*4
            for r in range(4):
                I(a, f"v_cvt_pk_bf16_f32 v{t+r}, v{c+8*half+2*r}, v{c+8*half+2*r+1}")
            I(a, f"buffer_store_dwordx4 v[{t}:{t+3}], v40, s[56:59], s60 offen offset:{k*1024} {sc}")
            k += 1
    st(2)
    I(a, "s_waitcnt vmcnt(0)")
    st(3)
    I(a, "s_barrier")
    I(a, f"s_cmp_eq_u32 s{S_WAVE}, 0"); I(a, "s_cbranch_scc0 p2_waitb")
    I(a, "s_lshl_b32 s62, s2, 7"); I(a, "v_mov_b32 v42, s62"); I(a, "v_mov_b32 v43, 1")
    I(a, f"buffer_store_dword v43, v42, s[8:11], 0 offen {sc}")
    I(a, "s_lshl_b32 s62, s61, 7"); I(a, "v_mov_b32 v42, s62")
    a.label("p2_poll")
    I(a, f"buffer_load_dword v43, v42, s[8:11], 0 offen sc1")
    I(a, "s_waitcnt vmcnt(0)")
    I(a, "v_readfirstlane_b32 s62, v43")
    I(a, "s_cmp_eq_u32 s62, 1"); I(a, "s_cbranch_scc0 p2_poll")
    a.label("p2_waitb")
    I(a, "s_barrier")
    st(6)
    I(a, f"s_lshl_b32 s60, s2, 14"); I(a, f"s_lshl_b32 s62, s{S_WAVE}, 12"); I(a, "s_add_u32 s60, s60, s62")
    for k in range(4):
        t = 64 + k*4
        I(a, f"buffer_load_dwordx4 v[{t}:{t+3}], v40, s[56:59], s60 offen offset:{k*1024} sc1")
    k = 0
    for nb in range(2):
        c = acc_reg(g, nb, 0)
        for half in range(2):
            t = 64 + k*4
            I(a, f"s_waitcnt vmcnt({3-k})")
            for r in range(4):
                I(a, f"v_lshlrev_b32 v44, 16, v{t+r}"); I(a, f"v_and_b32 v45, 0xffff0000, v{t+r}")
                I(a, f"v_pk_add_f32 v[{c+8*half+2*r}:{c+8*half+2*r+1}], v[{c+8*half+2*r}:{c+8*half+2*r+1}], v[44:45]")
            k += 1
    for nb in range(2):
        c = acc_reg(g, nb, 0)
        for q in range(4):
            t = 16 + (nb*4+q)*2
            I(a, f"v_cvt_pk_bf16_f32 v{t}, v{c+4*q}, v{c+4*q+1}")
            I(a, f"v_cvt_pk_bf16_f32 v{t+1}, v{c+4*q+2}, v{c+4*q+3}")
            I(a, f"ds_write_b64 v{54+nb*4+q}, v[{t}:{t+1}]")
    I(a, "s_waitcnt lgkmcnt(0)")
    I(a, "s_barrier")
    st(7); st.dump(8, 0)
    a.label("p2_end")
    I(a, "s_endpgm")
    return g
```

```python
import sys, json
from asmgen import *
from gemm2 import *
from p1v2 import load_ptr, epi_addrs_write, epi_addrs_read, wave_origin, compute_loop_x
from p2 import StampsAt, add64, FLAG_OFF
import p2c, k0, awg
PFX = "gated_mix__spectral_fnet__dense_activation_squared_relu__prompt"
HEADER = open("cdna_kernels/" + PFX + ".s.ref").read().split("; Override launch")[0]
S_PFS = 56

def k_k1(a, name, stamps=False, hsc="", astamp=False):
    g = G(BM=256, BN=128, WM=2, WN=2, NS=3, ldq=2048, ldp=7168, nk=16, pref="p1")
    st = StampsAt(a, stamps, 70)
    kernel_begin(a, name)
    st(0)
    I(a, "s_cmp_ge_u32 s2, 256"); I(a, "s_cbranch_scc1 p1_end")
    lane_wave(a)
    I(a, "s_cmp_ge_u32 s2, 224"); I(a, "s_cbranch_scc1 aw_entry")
    load_ptr(a, 4, 0); load_ptr(a, 20, 48, 4); load_ptr(a, 24, 104); load_ptr(a, 36, 64)
    I(a, "s_and_b32 s26, s2, 7"); I(a, "s_lshr_b32 s27, s2, 3")
    I(a, "s_mul_i32 s28, s27, 37"); I(a, "s_lshr_b32 s28, s28, 8")
    I(a, "s_mul_i32 s29, s28, 7"); I(a, "s_sub_u32 s27, s27, s29")
    I(a, "s_lshr_b32 s29, s26, 2"); I(a, "s_and_b32 s26, s26, 3")
    I(a, "s_lshl_b32 s29, s29, 2"); I(a, "s_add_u32 s28, s28, s29")
    I(a, "s_mul_i32 s26, s26, 7"); I(a, "s_add_u32 s29, s26, s27")
    I(a, f"s_mul_i32 s{S_QOFF}, s28, {256*2048}")
    I(a, f"s_mul_i32 s{S_POFF}, s29, {128*2}")
    I(a, f"s_mov_b32 s{S_QSRD+2}, {2048*1024*2}"); I(a, f"s_mov_b32 s{S_QSRD+3}, 0x00020000")
    I(a, f"s_mov_b32 s{S_PSRD+2}, {1024*3584*2}"); I(a, f"s_mov_b32 s{S_PSRD+3}, 0x00020000")
    I(a, f"s_cmp_ge_u32 s{S_WAVE}, 4"); I(a, "s_cbranch_scc0 p1_compute")
    I(a, f"s_sub_u32 s{S_WAVE}, s{S_WAVE}, 4")
    loader_voffsets(a, g)
    I(a, "s_waitcnt lgkmcnt(0)")
    st(1)
    I(a, f"s_mov_b32 s{S_QSRD}, s4"); I(a, f"s_and_b32 s{S_QSRD+1}, s5, 0xffff")
    I(a, f"s_mov_b32 s{S_PSRD}, s20"); I(a, f"s_and_b32 s{S_PSRD+1}, s21, 0xffff")
    st(2)
    PER = g.PER
    stage_issue(a, g)
    st(3)
    stage_issue(a, g)
    I(a, f"s_waitcnt vmcnt({PER})")
    st(4)
    I(a, "s_barrier")
    stage_issue(a, g)
    I(a, f"s_mov_b32 s{S_CNT}, {g.nk-3}")
    a.label("p1_ld_loop")
    I(a, f"s_waitcnt vmcnt({PER})"); I(a, "s_barrier"); stage_issue(a, g)
    I(a, f"s_sub_u32 s{S_CNT}, s{S_CNT}, 1"); I(a, f"s_cmp_lg_u32 s{S_CNT}, 0"); I(a, "s_cbranch_scc1 p1_ld_loop")
    I(a, "s_bfe_u32 s60, s2, 0x10001"); I(a, f"s_mul_i32 s60, s60, {1792*2048}")
    I(a, "s_and_b32 s61, s2, 1"); I(a, "s_lshl_b32 s61, s61, 10"); I(a, "s_add_u32 s60, s60, s61")
    I(a, "s_lshr_b32 s61, s2, 3"); I(a, f"s_mul_i32 s61, s61, {64*2048}"); I(a, "s_add_u32 s60, s60, s61")
    I(a, f"s_mul_i32 s61, s{S_WAVE}, {16*2048}"); I(a, "s_add_u32 s60, s60, s61")
    srd(a, S_PFS, 36, 3584*1024*2)
    I(a, "v_lshrrev_b32 v46, 3, v1"); I(a, "v_lshlrev_b32 v46, 11, v46"); I(a, "v_and_b32 v45, 7, v1"); I(a, "v_lshl_add_u32 v46, v45, 7, v46")
    I(a, f"buffer_load_dword v47, v46, s[{S_PFS}:{S_PFS+3}], s60 offen")
    I(a, f"s_add_u32 s60, s60, {8*2048}")
    I(a, f"buffer_load_dword v47, v46, s[{S_PFS}:{S_PFS+3}], s60 offen")
    I(a, f"s_waitcnt vmcnt({PER+2})"); I(a, "s_barrier")
    I(a, f"s_waitcnt vmcnt(2)"); I(a, "s_barrier")
    I(a, f"s_barrier")
    st(5)
    srd(a, 16, 24, 2048*3584*2)
    wave_origin(a, g, 28, 29, 30, 31)
    epi_addrs_read(a, g, 7168, 30, 31)
    I(a, f"s_cmp_eq_u32 s{S_WAVE}, 3"); I(a, "s_cbranch_scc0 p1_noflag")
    I(a, "s_mov_b32 s6, s24"); I(a, "s_mov_b32 s7, s25"); add64(a, 6, FLAG_OFF); srd(a, 32, 6, 256*128)
    I(a, "v_mul_u32_u24 v40, 224, v1"); I(a, "v_add_u32 v40, s2, v40"); I(a, "v_lshlrev_b32 v40, 7, v40"); I(a, "v_mov_b32 v42, 0"); I(a, "v_mov_b32 v43, 0")
    I(a, "buffer_store_dwordx2 v[42:43], v40, s[32:35], 0 offen")
    a.label("p1_noflag")
    for mb in range(g.MB):
        I(a, "s_barrier")
        for i in range(4):
            r = 64 + mb*16 + i*4
            I(a, f"ds_read_b128 v[{r}:{r+3}], v62 offset:{mb*4096 + i*1024}")
        for i in range(4):
            r = 64 + mb*16 + i*4
            I(a, f"s_mov_b32 s{S_TMP2}, {(mb*32 + i*8) * 7168}")
            I(a, f"s_waitcnt lgkmcnt({3-i})")
            I(a, f"buffer_store_dwordx4 v[{r}:{r+3}], v63, s[16:19], s{S_TMP2} offen {hsc}")
    st(6)
    if stamps: I(a, "s_waitcnt vmcnt(0)")
    st(7); st.dump(8, 1)
    I(a, "s_endpgm")
    a.label("p1_compute")
    compute_setup(a, g)
    wave_origin(a, g, 28, 29, 30, 31)
    I(a, "s_waitcnt lgkmcnt(0)")
    st(1)
    srd(a, 32, 22, 3584*2)
    I(a, "v_lshrrev_b32 v40, 5, v1")
    I(a, "v_lshlrev_b32 v40, 3, v40")
    for nb in range(g.NB):
        for q in range(4):
            r = 16 + (nb*4+q)*2
            I(a, f"buffer_load_dwordx2 v[{r}:{r+1}], v40, s[32:35], s31 offen offset:{nb*64+q*16}")
    epi_addrs_write(a, g)
    I(a, "s_waitcnt vmcnt(0)")
    st(2)
    for nb in range(g.NB):
        for q in range(4):
            r = 16 + (nb*4+q)*2
            for j in range(4):
                src = r + j//2
                for mb in range(g.MB):
                    d = acc_reg(g, nb, mb) + 4*q + j
                    if mb == 0:
                        if j % 2 == 0: I(a, f"v_lshlrev_b32 v{d}, 16, v{src}")
                        else: I(a, f"v_and_b32 v{d}, 0xffff0000, v{src}")
                    else:
                        I(a, f"v_mov_b32 v{d}, v{acc_reg(g, nb, 0) + 4*q + j}")
    st(3)
    compute_loop_x(a, g, stamp="s_memtime s[78:79]" if stamps else None)
    st(5)
    I(a, "s_nop 7"); I(a, "s_nop 7")
    k = 0
    for mb in range(g.MB):
        for nb in range(g.NB):
            c = acc_reg(g, nb, mb)
            for q in range(4):
                t = 16 + (k % 8) * 2; k += 1
                cc = c + 4*q
                for r in range(4): I(a, f"v_max_f32 v{cc+r}, 0, v{cc+r}")
                for r in (0, 2): I(a, f"v_pk_mul_f32 v[{cc+r}:{cc+r+1}], v[{cc+r}:{cc+r+1}], v[{cc+r}:{cc+r+1}]")
                I(a, f"v_cvt_pk_bf16_f32 v{t}, v{cc}, v{cc+1}")
                I(a, f"v_cvt_pk_bf16_f32 v{t+1}, v{cc+2}, v{cc+3}")
                I(a, f"ds_write_b64 v{54+nb*4+q}, v[{t}:{t+1}] offset:{mb*4096}")
        I(a, "s_waitcnt lgkmcnt(0)")
        I(a, "s_barrier")
    st(6); st(7); st.dump(8, 0)
    a.label("p1_end")
    I(a, "s_endpgm")
    a.label("aw_entry")
    sa = StampsAt(a, astamp, 70)
    if astamp: sa(0)
    awg.a_wg(a, stamps=sa if astamp else None)
    return g

def gen(stamp=0, hsc="", upto=3):
    a = Asm()
    a(HEADER.rstrip())
    a(f"; @launch kernel=k0_kernel grid=(256,1,1) block=(256,1,1) lds=0")
    a(f"; @launch kernel=k1_kernel grid=(256,1,1) block=(512,1,1) lds=163840")
    if upto >= 3: a(f"; @launch kernel=k2_kernel grid=(256,1,1) block=(512,1,1) lds=131072")
    a('.amdgcn_target "amdgcn-amd-amdhsa--gfx950"')
    a(".text")
    k0.k_k0(a, "k0_kernel")
    k_k1(a, "k1_kernel", stamps=(stamp == 1), hsc=hsc, astamp=(stamp == 3))
    p2c.k_p2c(a, "k2_kernel", stamps=(stamp == 2))
    a('.section .rodata,"a"')
    a(".p2align 6"); kernel_desc(a, "k0_kernel", 192, 96, 192)
    for n in ("k1_kernel", "k2_kernel"):
        a(".p2align 6"); kernel_desc(a, n, 256, 96, 256)
    return a.text()
if __name__ == "__main__":
    open("full.s", "w").write(gen())
    open("full_s1.s", "w").write(gen(stamp=1))
    open("full_s2.s", "w").write(gen(stamp=2))
    open("full_s3.s", "w").write(gen(stamp=3))
```

```python
import re, sys
def instrument(text, kernels):
    lines = text.split("\n")
    res = []
    cur = None
    for l in lines:
        m = re.match(r"^(\w+_kernel):", l)
        if m and m.group(1) in kernels:
            cur = kernels.index(m.group(1))
            res.append(l)
            res.append("    s_memrealtime s[96:97]")
            res.append("    s_memtime s[98:99]")
            continue
        if l.strip() == "s_endpgm" and cur is not None:
            res.append(f"    s_branch rt_end_{cur}")
        else:
            res.append(l)
    text = "\n".join(res)
    tail = []
    for k in range(len(kernels)):
        tail += [f"rt_end_{k}:",
        "    s_waitcnt vmcnt(0) lgkmcnt(0)",
        "    s_memrealtime s[90:91]",
        "    s_memtime s[92:93]",
        "    s_load_dwordx2 s[4:5], s[0:1], 96",
        "    s_waitcnt lgkmcnt(0)",
        f"    s_sub_u32 s4, s4, {k*512}",
        "    s_subb_u32 s5, s5, 0",
        "    s_mov_b32 s8, s4", "    s_and_b32 s9, s5, 0xffff", "    s_mov_b32 s10, 256", "    s_mov_b32 s11, 0x20000",
        "    s_mov_b64 exec, 1",
        "    v_mov_b32 v2, 0",
        "    v_mov_b32 v5, s90",
        f"    buffer_atomic_umax v5, v2, s[8:11], 0 offen offset:{8*k+4}",
        "    s_cmp_eq_u32 s2, 0",
        f"    s_cbranch_scc0 rt_fin_{k}",
        "    v_readfirstlane_b32 s12, v0",
        "    s_cmp_eq_u32 s12, 0",
        f"    s_cbranch_scc0 rt_fin_{k}",
        "    v_mov_b32 v4, s96",
        f"    buffer_store_dword v4, v2, s[8:11], 0 offen offset:{8*k}",
        "    s_sub_u32 s92, s92, s98",
        "    v_mov_b32 v6, s92",
        f"    buffer_store_dword v6, v2, s[8:11], 0 offen offset:{32+4*k}",
        "    s_sub_u32 s90, s90, s96",
        "    v_mov_b32 v6, s90",
        f"    buffer_store_dword v6, v2, s[8:11], 0 offen offset:{48+4*k}",
        f"rt_fin_{k}:",
        "    s_endpgm"]
    text = text.replace('.section .rodata,"a"', "\n".join(tail) + '\n.section .rodata,"a"', 1)
    text = text.replace(".amdhsa_next_free_sgpr 96", ".amdhsa_next_free_sgpr 102")
    return text
if __name__ == "__main__":
    t = open(sys.argv[1]).read()
    ks = re.findall(r"@launch kernel=(\w+)", t)
    open(sys.argv[2], "w").write(instrument(t, ks))
```

```python
from asmgen import *
from gemm2 import S_WAVE, S_TMP, S_TMP2, S_DELTA, S_CNT, S_LEFT, S_STG, S_QOFF, S_POFF, S_MQ, S_MP, S_DN, S_DP, interleave
from p1v2 import load_ptr
from p2 import add64, Y_OFF, YP, YARR
from k0 import XF_OFF, XFP, XFARR
QSRD = 8; PSRD = 12; MSRD = 16; YSRD = 20
STG = 53248; QB = 16384
RSZ = 16384
SMALL = 8*RSZ
CV = 153600
CX = CV + 1024
ACC_A = 112; ACC_B = 128
FA = 16
TB = 16

def a_regs(s):
    b = FA + 40*s
    return [b + 4*i for i in range(9)], b + 36
def a_reads(s, kk):
    A, B = a_regs(s)
    out = [f"ds_read_b128 v[{B}:{B+3}], v{3+kk}"]
    for nb in range(9):
        for h in range(2):
            out.append(f"ds_read_b64_tr_b16 v[{A[nb]+2*h}:{A[nb]+2*h+1}], v2 offset:{(16*kk+4*h)*XFP + nb*64}")
    return out
def a_mfmas(s):
    A, B = a_regs(s)
    return [f"v_mfma_f32_32x32x16_bf16 v[{ACC_A+16*nb}:{ACC_A+16*nb+15}], v[{A[nb]}:{A[nb]+3}], v[{B}:{B+3}], v[{ACC_A+16*nb}:{ACC_A+16*nb+15}]" for nb in range(9)]

BF = [[84, 88, 92, 96], [100, 104, 108, 112], [116, 120, 124, 12]]

def a_stage_issue(a):
    I(a, f"s_add_u32 m0, s{S_STG}, s{S_MQ}"); I(a, "s_nop 0")
    for i in range(4):
        I(a, f"buffer_load_dwordx4 v{2+i}, s[{QSRD}:{QSRD+3}], s{S_QOFF} offen offset:{i*1024} lds")
    I(a, f"s_add_u32 m0, s{S_STG}, s{S_MP}")
    I(a, f"s_mov_b32 s{S_TMP}, s{S_POFF}")
    for i in range(9):
        if i and i % 4 == 0:
            I(a, "s_add_u32 m0, m0, 4096"); I(a, f"s_add_u32 s{S_TMP}, s{S_TMP}, 4096"); I(a, "s_nop 0")
        I(a, f"buffer_load_dwordx4 v6, s[{PSRD}:{PSRD+3}], s{S_TMP} offen offset:{(i%4)*1024} lds")
    I(a, f"s_add_u32 s{S_QOFF}, s{S_QOFF}, 128")
    I(a, f"s_add_u32 s{S_POFF}, s{S_POFF}, {64*XFP}")
    I(a, f"s_add_u32 s{S_STG}, s{S_STG}, {STG}")
    I(a, f"s_cmp_ge_u32 s{S_STG}, {3*STG}")
    I(a, f"s_cselect_b32 s{S_STG}, 0, s{S_STG}")

def m_issue(a, h, s):
    I(a, f"s_add_u32 m0, s55, {(h*4+s)*RSZ}")
    I(a, f"s_add_u32 s56, s54, {h*128*4096 + s*128}")
    for i in range(4):
        I(a, f"buffer_load_dwordx4 v{96+i}, s[{MSRD}:{MSRD+3}], s56 offen offset:{i*1024} lds")
def m_issue_small(a, h):
    I(a, f"s_lshl_b32 s56, s{S_WAVE}, 10"); I(a, f"s_add_u32 m0, s56, {SMALL + h*4096}")
    I(a, f"s_add_u32 s56, s54, {h*128*4096 + 512}")
    I(a, f"buffer_load_dwordx4 v100, s[{MSRD}:{MSRD+3}], s56 offen lds")

def side_a(a, stage_off_s, nquads):
    I(a, f"v_add_u32 v21, s{stage_off_s}, v20")
    I(a, f"v_add_u32 v19, s{stage_off_s}, v23")
    accs = [24, 16, 17, 18]
    R = 32
    for z in range(2):
        I(a, f"ds_read_b64_tr_b16 v[{R+2*z}:{R+2*z+1}], v19 offset:{z*2*4*XFP}")
    for q in range(min(nquads, 12)):
        I(a, f"ds_read_b64_tr_b16 v[{R+4+2*q}:{R+4+2*q+1}], v21 offset:{q*4*XFP}")
    I(a, f"s_waitcnt lgkmcnt({min(nquads,12)})")
    if nquads == 16:
        for z in range(2):
            I(a, f"v_dot2_f32_bf16 v25, v{R+2*z}, v22, v25"); I(a, f"v_dot2_f32_bf16 v12, v{R+2*z+1}, v22, v12")
    else:
        lab = a.newlabel("sx")
        I(a, f"s_cmp_eq_u32 s{S_WAVE}, 0"); I(a, f"s_cbranch_scc0 {lab}")
        for z in range(2):
            I(a, f"v_dot2_f32_bf16 v25, v{R+2*z}, v22, v25"); I(a, f"v_dot2_f32_bf16 v12, v{R+2*z+1}, v22, v12")
        a.label(lab)
    for q in range(12, nquads):
        I(a, f"ds_read_b64_tr_b16 v[{R+4+2*q}:{R+4+2*q+1}], v21 offset:{q*4*XFP}")
    n = nquads
    for q in range(n):
        if q % 4 == 0: I(a, f"s_waitcnt lgkmcnt({min(max(n - 4 - q, 0), 15)})")
        I(a, f"v_dot2_f32_bf16 v{accs[(2*q) % 4]}, v{R+4+2*q}, v22, v{accs[(2*q) % 4]}")
        I(a, f"v_dot2_f32_bf16 v{accs[(2*q+1) % 4]}, v{R+4+2*q+1}, v22, v{accs[(2*q+1) % 4]}")

def side_b(a, h, s):
    accs = (28, 14) if h == 0 else (29, 15)
    R = 32
    if s < 4:
        for z in range(4):
            I(a, f"v_lshl_add_u32 v31, v13, 2, {z}")
            I(a, f"v_xor_b32 v10, v31, v27"); I(a, "v_lshl_add_u32 v10, v10, 4, v26"); I(a, f"v_add_u32 v10, {(h*4+s)*RSZ}, v10")
            I(a, f"v_lshl_add_u32 v11, v31, 4, v30")
            I(a, f"ds_read_b128 v[{R+8*z}:{R+8*z+3}], v10")
            I(a, f"ds_read_b128 v[{R+8*z+4}:{R+8*z+7}], v11 offset:{s*128}")
        for z in range(4):
            I(a, f"s_waitcnt lgkmcnt({2*(3-z)})")
            for q in range(4):
                I(a, f"v_dot2_f32_bf16 v{accs[q % 2]}, v{R+8*z+q}, v{R+8*z+4+q}, v{accs[q % 2]}")
    else:
        I(a, "v_lshrrev_b32 v10, 2, v26"); I(a, "v_lshl_add_u32 v10, v13, 4, v10"); I(a, f"v_add_u32 v10, {SMALL + h*4096}, v10")
        I(a, f"v_lshl_add_u32 v11, v13, 4, v30")
        I(a, f"ds_read_b128 v[{R}:{R+3}], v10"); I(a, f"ds_read_b128 v[{R+4}:{R+7}], v11 offset:512")
        I(a, "s_waitcnt lgkmcnt(0)")
        for q in range(4):
            I(a, f"v_dot2_f32_bf16 v{accs[q % 2]}, v{R+q}, v{R+4+q}, v{accs[q % 2]}")

def y_store_setup(a):
    I(a, "s_mov_b32 s6, s4"); I(a, "s_mov_b32 s7, s5"); add64(a, 6, Y_OFF); srd(a, YSRD, 6, 4*YARR)
    I(a, "s_lshl_b32 s56, s62, 1"); I(a, "s_add_u32 s56, s56, s64"); I(a, f"s_mul_i32 s56, s56, {YARR}")
    I(a, f"s_lshl_b32 s57, s{S_WAVE}, 14")
    I(a, "v_lshrrev_b32 v44, 5, v1"); I(a, "v_and_b32 v45, 31, v1")
    I(a, "s_lshl_b32 s58, s61, 8"); I(a, "s_add_u32 s58, s58, s63"); I(a, f"s_lshl_b32 s59, s{S_WAVE}, 6"); I(a, "s_add_u32 s58, s58, s59")
    I(a, "v_lshl_add_u32 v46, v44, 1, s58"); I(a, f"v_mul_u32_u24 v46, {YP}, v46"); I(a, "v_lshl_add_u32 v46, v45, 4, v46")
    for z in range(4):
        I(a, f"v_add_u32 v47, {2*z}, v44"); I(a, "v_xor_b32 v56, v45, v47")
        I(a, "v_lshlrev_b32 v47, 9, v47"); I(a, "v_lshl_add_u32 v47, v56, 4, v47"); I(a, f"v_add_u32 v{104+z}, s57, v47")

def y_store(a, i0, ysc):
    for i in range(i0, i0+8):
        r = 64 + (i - i0)*4
        I(a, f"ds_read_b128 v[{r}:{r+3}], v{104 + (i % 4)} offset:{(i // 4)*4096}")
    for z in range(8):
        ii = i0 + z; rr = 64 + z*4
        I(a, f"s_waitcnt lgkmcnt({7-z})")
        I(a, f"s_add_u32 s59, s56, {ii*4*YP}")
        I(a, f"buffer_store_dwordx4 v[{rr}:{rr+3}], v46, s[{YSRD}:{YSRD+3}], s59 offen {ysc}")

def a_wg(a, stamps=None, pref="aw", pre_compute=None, pre_loader=None, ysc=""):
    st = stamps or (lambda i: None)
    load_ptr(a, 24, 8, 4); load_ptr(a, 28, 24, 4); load_ptr(a, 4, 104)
    I(a, "s_and_b32 s60, s2, 7")
    I(a, "s_sub_u32 s61, s2, 224"); I(a, "s_lshr_b32 s61, s61, 3")
    I(a, "s_lshr_b32 s62, s60, 2"); I(a, "s_bfe_u32 s63, s60, 0x10001"); I(a, "s_and_b32 s64, s60, 1")
    I(a, "s_lshr_b32 s65, s60, 1"); I(a, "s_cmp_eq_u32 s65, 0"); I(a, "s_cselect_b32 s65, 1, 0"); I(a, "s_cmp_eq_u32 s61, 3"); I(a, "s_cselect_b32 s65, s65, 0")
    I(a, f"s_cmp_ge_u32 s{S_WAVE}, 4"); I(a, f"s_cbranch_scc0 {pref}_compute")
    I(a, f"s_sub_u32 s{S_WAVE}, s{S_WAVE}, 4")
    I(a, "v_lshrrev_b32 v40, 3, v1"); I(a, "v_lshrrev_b32 v41, 4, v1"); I(a, "v_and_b32 v42, 7, v1")
    I(a, f"s_mul_i32 s{S_TMP}, s{S_WAVE}, {32*8192}")
    I(a, "v_mul_u32_u24 v43, 8192, v40"); I(a, "v_xor_b32 v42, v42, v41"); I(a, f"v_add_u32 v43, s{S_TMP}, v43"); I(a, "v_lshl_add_u32 v43, v42, 4, v43"); I(a, "v_xor_b32 v44, 64, v43")
    for i in range(4):
        I(a, f"v_add_u32 v{2+i}, {i*8*8192 - i*1024}, v{44 if i & 1 else 43}")
    I(a, "v_lshlrev_b32 v6, 4, v1")
    I(a, f"s_mul_i32 s{S_TMP}, s{S_WAVE}, {32*4096}")
    I(a, "v_mul_u32_u24 v43, 4096, v40"); I(a, f"v_add_u32 v43, s{S_TMP}, v43"); I(a, "v_lshl_add_u32 v43, v42, 4, v43"); I(a, "v_xor_b32 v44, 64, v43")
    for i in range(4):
        I(a, f"v_add_u32 v{96+i}, {i*8*4096 - i*1024}, v{44 if i & 1 else 43}")
    I(a, "v_lshrrev_b32 v43, 1, v1"); I(a, "v_lshlrev_b32 v43, 12, v43"); I(a, f"v_add_u32 v43, s{S_TMP}, v43"); I(a, "v_and_b32 v44, 1, v1"); I(a, "v_lshl_add_u32 v100, v44, 4, v43")
    I(a, f"s_mul_i32 s{S_MQ}, s{S_WAVE}, 4096")
    I(a, f"s_mul_i32 s{S_MP}, s{S_WAVE}, 9216"); I(a, f"s_add_u32 s{S_MP}, s{S_MP}, {QB}")
    I(a, f"s_mul_i32 s55, s{S_WAVE}, 4096")
    I(a, f"s_mov_b32 s{S_STG}, 0")
    I(a, "s_lshl_b32 s56, s61, 8"); I(a, "s_add_u32 s56, s56, s63"); I(a, f"s_lshl_b32 s{S_QOFF}, s56, 12")
    I(a, f"s_mul_i32 s{S_POFF}, s60, {XFARR}"); I(a, f"s_mul_i32 s56, s{S_WAVE}, 9216"); I(a, f"s_add_u32 s{S_POFF}, s{S_POFF}, s56")
    I(a, "s_lshl_b32 s54, s64, 11")
    I(a, "v_bfe_u32 v40, v1, 2, 2"); I(a, f"v_mul_u32_u24 v40, {XFP}, v40")
    I(a, "v_and_b32 v41, 3, v1"); I(a, "v_lshl_add_u32 v40, v41, 3, v40"); I(a, f"v_add_u32 v40, {QB}, v40")
    I(a, "v_lshrrev_b32 v41, 4, v1")
    I(a, f"s_lshl_b32 s56, s{S_WAVE}, 7"); I(a, "v_lshl_add_u32 v20, v41, 5, v40"); I(a, "v_add_u32 v20, s56, v20")
    I(a, "v_and_b32 v41, 1, v41"); I(a, "v_lshl_add_u32 v23, v41, 5, v40"); I(a, "v_add_u32 v23, 512, v23")
    I(a, "v_lshrrev_b32 v41, 5, v1"); I(a, f"s_lshl_b32 s56, s{S_WAVE}, 2"); I(a, "v_add_u32 v41, s56, v41"); I(a, f"v_mul_u32_u24 v41, {4*XFP}, v41"); I(a, "v_add_u32 v23, v23, v41")
    I(a, "v_mov_b32 v22, 0xbf803f80")
    for r in (24, 16, 17, 18, 25, 12, 28, 14, 29, 15): I(a, f"v_mov_b32 v{r}, 0")
    I(a, f"s_lshl_b32 s56, s{S_WAVE}, 5"); I(a, "v_and_b32 v26, 31, v1"); I(a, "v_add_u32 v26, s56, v26"); I(a, "v_bfe_u32 v27, v26, 1, 3"); I(a, "v_lshlrev_b32 v26, 7, v26")
    I(a, "v_lshrrev_b32 v13, 5, v1"); I(a, f"v_mov_b32 v30, {CV}")
    I(a, "s_waitcnt lgkmcnt(0)")
    st(1)
    I(a, "s_cmp_eq_u32 s62, 1")
    I(a, "s_cselect_b32 s24, s26, s24"); I(a, "s_cselect_b32 s25, s27, s25"); I(a, "s_cselect_b32 s28, s30, s28"); I(a, "s_cselect_b32 s29, s31, s29")
    srd(a, QSRD, 24, 2048*2048*2); srd(a, MSRD, 28, 1024*1024*2)
    I(a, "s_mov_b32 s6, s4"); I(a, "s_mov_b32 s7, s5"); add64(a, 6, XF_OFF); srd(a, PSRD, 6, 8*XFARR)
    if pre_loader: pre_loader(a)
    a_stage_issue(a); a_stage_issue(a)
    I(a, "s_waitcnt vmcnt(13)"); I(a, "s_barrier")
    a_stage_issue(a)
    I(a, f"s_mov_b32 s57, 0")
    for t in range(8):
        lab = a.newlabel("ns")
        I(a, "s_cmp_eq_u32 s65, 1"); I(a, f"s_cbranch_scc0 {lab}")
        side_a(a, 57, 16)
        a.label(lab)
        I(a, f"s_add_u32 s57, s57, {STG}"); I(a, f"s_cmp_ge_u32 s57, {3*STG}"); I(a, "s_cselect_b32 s57, 0, s57")
        rem = 13 if t + 2 <= 8 else 0
        I(a, f"s_waitcnt vmcnt({rem})"); I(a, "s_barrier")
        if t + 3 <= 8: a_stage_issue(a)
    m_issue(a, 0, 0); m_issue(a, 0, 1)
    lab = a.newlabel("ns")
    I(a, "s_cmp_eq_u32 s65, 1"); I(a, f"s_cbranch_scc0 {lab}")
    side_a(a, 57, 4)
    I(a, "v_add_f32 v24, v24, v16"); I(a, "v_add_f32 v17, v17, v18"); I(a, "v_add_f32 v24, v24, v17"); I(a, "v_add_f32 v25, v25, v12")
    I(a, "v_cvt_pk_bf16_f32 v31, v24, v24"); I(a, f"s_lshl_b32 s56, s{S_WAVE}, 7"); I(a, "v_lshlrev_b32 v40, 1, v1"); I(a, "v_add_u32 v40, s56, v40"); I(a, f"v_add_u32 v40, {CV}, v40")
    I(a, f"s_lshl_b32 s56, s{S_WAVE}, 8"); I(a, "v_lshlrev_b32 v41, 2, v1"); I(a, "v_add_u32 v41, s56, v41"); I(a, f"v_add_u32 v41, {CX}, v41")
    a.label(lab)
    I(a, "s_barrier")
    m_issue(a, 0, 2); m_issue(a, 0, 3)
    lab = a.newlabel("ns")
    I(a, "s_cmp_eq_u32 s65, 1"); I(a, f"s_cbranch_scc0 {lab}")
    I(a, f"ds_write_b16 v40, v31"); I(a, f"ds_write_b32 v41, v25"); I(a, "s_waitcnt lgkmcnt(0)")
    a.label(lab)
    I(a, "s_waitcnt vmcnt(8)"); I(a, "s_barrier")
    m_issue_small(a, 0); m_issue(a, 1, 0); m_issue(a, 1, 1)
    lab = a.newlabel("ns")
    I(a, "s_cmp_eq_u32 s65, 1"); I(a, f"s_cbranch_scc0 {lab}")
    lab0 = a.newlabel("ns")
    I(a, f"s_cmp_eq_u32 s{S_WAVE}, 0"); I(a, f"s_cbranch_scc0 {lab0}")
    I(a, "v_and_b32 v40, 31, v1"); I(a, "v_lshlrev_b32 v41, 2, v40"); I(a, f"v_add_u32 v41, {CX}, v41")
    for z in range(8): I(a, f"ds_read_b32 v{32+z}, v41 offset:{z*128}")
    I(a, "s_waitcnt lgkmcnt(0)")
    for z in range(1, 8): I(a, f"v_add_f32 v32, v32, v{32+z}")
    I(a, "v_cvt_pk_bf16_f32 v32, v32, v32"); I(a, "v_lshlrev_b32 v41, 1, v40"); I(a, f"v_add_u32 v41, {CV+512}, v41")
    I(a, "ds_write_b16 v41, v32"); I(a, "s_waitcnt lgkmcnt(0)")
    a.label(lab0)
    side_b(a, 0, 0); side_b(a, 0, 1)
    a.label(lab)
    I(a, "s_waitcnt vmcnt(9)"); I(a, "s_barrier")
    m_issue_small(a, 1); m_issue(a, 1, 2); m_issue(a, 1, 3)
    lab = a.newlabel("ns")
    I(a, "s_cmp_eq_u32 s65, 1"); I(a, f"s_cbranch_scc0 {lab}")
    side_b(a, 0, 2); side_b(a, 0, 3)
    a.label(lab)
    I(a, "s_waitcnt vmcnt(9)"); I(a, "s_barrier")
    lab = a.newlabel("ns")
    I(a, "s_cmp_eq_u32 s65, 1"); I(a, f"s_cbranch_scc0 {lab}")
    side_b(a, 0, 4); side_b(a, 1, 0); side_b(a, 1, 1)
    a.label(lab)
    I(a, "s_waitcnt vmcnt(0)"); I(a, "s_barrier")
    lab = a.newlabel("ns")
    I(a, "s_cmp_eq_u32 s65, 1"); I(a, f"s_cbranch_scc0 {lab}")
    side_b(a, 1, 2); side_b(a, 1, 3); side_b(a, 1, 4)
    I(a, "v_add_f32 v28, v28, v14"); I(a, "v_add_f32 v29, v29, v15")
    I(a, "v_mov_b32 v32, v28"); I(a, "v_mov_b32 v33, v29"); I(a, "s_nop 1")
    I(a, "v_permlane32_swap_b32 v32, v28"); I(a, "v_permlane32_swap_b32 v33, v29"); I(a, "s_nop 1")
    I(a, "v_add_f32 v28, v28, v32"); I(a, "v_add_f32 v29, v29, v33")
    I(a, "s_mov_b32 s6, s4"); I(a, "s_mov_b32 s7, s5"); add64(a, 6, Y_OFF); srd(a, YSRD, 6, 4*YARR)
    I(a, f"s_mul_i32 s56, s64, {YARR}"); I(a, f"s_add_u32 s56, s56, {1024*YP}")
    I(a, "v_cvt_pk_bf16_f32 v31, v28, v28"); I(a, "v_cvt_pk_bf16_f32 v12, v29, v29")
    I(a, f"s_lshl_b32 s57, s{S_WAVE}, 6"); I(a, "v_and_b32 v40, 31, v1"); I(a, "v_lshlrev_b32 v40, 1, v40"); I(a, "v_add_u32 v40, s57, v40")
    I(a, "v_cmp_gt_u32 vcc, 32, v1"); I(a, "v_mov_b32 v42, 0x7ffffff0"); I(a, "s_nop 0"); I(a, "v_cndmask_b32 v40, v42, v40, vcc")
    I(a, f"buffer_store_short v31, v40, s[{YSRD}:{YSRD+3}], s56 offen {ysc}")
    I(a, f"buffer_store_short v12, v40, s[{YSRD}:{YSRD+3}], s56 offen offset:256 {ysc}")
    I(a, "v_mov_b32 v32, 0")
    I(a, f"s_add_u32 s57, s56, {2*YARR}")
    I(a, f"buffer_store_short v32, v40, s[{YSRD}:{YSRD+3}], s57 offen {ysc}")
    I(a, f"buffer_store_short v32, v40, s[{YSRD}:{YSRD+3}], s57 offen offset:256 {ysc}")
    I(a, f"v_mov_b32 v41, {CV+544}"); I(a, "ds_read_u16 v33, v41"); I(a, "v_mov_b32 v40, 512")
    I(a, "v_cmp_eq_u32 vcc, 0, v1"); I(a, "s_nop 1"); I(a, "v_cndmask_b32 v40, v42, v40, vcc")
    I(a, "s_waitcnt lgkmcnt(0)")
    lab3 = a.newlabel("ns")
    I(a, f"s_cmp_eq_u32 s{S_WAVE}, 0"); I(a, f"s_cbranch_scc0 {lab3}")
    I(a, f"buffer_store_short v33, v40, s[{YSRD}:{YSRD+3}], s56 offen {ysc}")
    I(a, f"buffer_store_short v32, v40, s[{YSRD}:{YSRD+3}], s57 offen {ysc}")
    a.label(lab3)
    a.label(lab)
    y_store_setup(a)
    I(a, "s_barrier")
    y_store(a, 8, ysc)
    st(7)
    if stamps: stamps.dump(8, 1)
    I(a, "s_endpgm")
    a.label(f"{pref}_compute")
    I(a, "v_bfe_u32 v40, v1, 2, 2"); I(a, "v_lshrrev_b32 v41, 5, v1"); I(a, "v_lshl_add_u32 v41, v41, 3, v40")
    I(a, f"v_mul_u32_u24 v41, {XFP}, v41"); I(a, f"v_add_u32 v41, {QB}, v41")
    I(a, "v_bfe_u32 v42, v1, 4, 1"); I(a, "v_lshl_add_u32 v41, v42, 5, v41")
    I(a, "v_and_b32 v42, 3, v1"); I(a, "v_lshl_add_u32 v2, v42, 3, v41")
    I(a, "v_and_b32 v40, 31, v1"); I(a, f"s_lshl_b32 s{S_DELTA}, s{S_WAVE}, 12"); I(a, "v_lshlrev_b32 v43, 7, v40"); I(a, f"v_add_u32 v43, s{S_DELTA}, v43")
    I(a, "v_lshrrev_b32 v41, 5, v1"); I(a, "v_bfe_u32 v42, v1, 1, 3"); I(a, "v_xor_b32 v41, v41, v42")
    for kk in range(4):
        I(a, f"v_xor_b32 v44, {2*kk}, v41"); I(a, f"v_lshl_add_u32 v{3+kk}, v44, 4, v43")
    I(a, "v_lshlrev_b32 v43, 7, v40")
    for kk in range(4):
        I(a, f"v_xor_b32 v44, {2*kk}, v41"); I(a, f"v_lshl_add_u32 v{8+kk}, v44, 4, v43")
    I(a, "v_lshlrev_b32 v43, 5, v40"); I(a, "v_lshrrev_b32 v44, 5, v1"); I(a, "v_lshl_add_u32 v7, v44, 4, v43"); I(a, f"v_add_u32 v7, {SMALL}, v7")
    if pre_compute: pre_compute(a)
    for r in range(144): I(a, f"v_mov_b32 v{ACC_A+r}, 0")
    I(a, f"s_mov_b32 s{S_DN}, {(-2*STG) & 0xffffffff}"); I(a, f"s_mov_b32 s{S_DP}, {STG}")
    I(a, "s_waitcnt lgkmcnt(0)")
    st(1)
    I(a, "s_barrier")
    st(4)
    for r in a_reads(0, 0): I(a, r)
    I(a, f"s_mov_b32 s{S_CNT}, 8"); I(a, f"s_mov_b32 s{S_LEFT}, 0")
    a(".p2align 6")
    a.label(f"{pref}_aloop")
    for kk in range(3):
        I(a, "s_waitcnt lgkmcnt(0)")
        interleave(a, a_mfmas(kk & 1), a_reads((kk+1) & 1, kk+1), 3)
    I(a, "s_waitcnt lgkmcnt(0)"); I(a, "s_barrier")
    mf = a_mfmas(1)
    I(a, mf[0])
    I(a, f"s_add_u32 s{S_LEFT}, s{S_LEFT}, {STG}"); I(a, f"s_cmp_ge_u32 s{S_LEFT}, {3*STG}")
    I(a, f"s_cselect_b32 s{S_DELTA}, s{S_DN}, s{S_DP}"); I(a, f"s_cselect_b32 s{S_LEFT}, 0, s{S_LEFT}")
    for i in range(2, 7): I(a, f"v_add_u32 v{i}, s{S_DELTA}, v{i}")
    interleave(a, mf[1:], a_reads(0, 0) + [f"s_sub_u32 s{S_CNT}, s{S_CNT}, 1", f"s_cmp_lg_u32 s{S_CNT}, 0"], 3)
    I(a, f"s_cbranch_scc1 {pref}_aloop")
    I(a, "s_waitcnt lgkmcnt(0)")
    for m in a_mfmas(0): I(a, m)
    I(a, "s_barrier")
    st(2)
    I(a, "s_nop 7"); I(a, "s_nop 3")
    I(a, f"v_cvt_pk_bf16_f32 v2, v{ACC_A+128+8}, v{ACC_A+128+8}")
    for kap in range(17):
        nb, k2 = kap // 2, kap % 2
        c = ACC_A + 16*nb + 8*k2; t = TB + 4*kap
        for z in range(4): I(a, f"v_cvt_pk_bf16_f32 v{t+z}, v{c+2*z}, v{c+2*z+1}")
        if kap > 0:
            tp = TB + 4*(kap-1)
            I(a, f"v_permlane32_swap_b32 v{tp}, v{tp+2}"); I(a, f"v_permlane32_swap_b32 v{tp+1}, v{tp+3}")
    I(a, "s_nop 1")
    tp = TB + 4*16
    I(a, f"v_permlane32_swap_b32 v{tp}, v{tp+2}"); I(a, f"v_permlane32_swap_b32 v{tp+1}, v{tp+3}")
    I(a, "s_barrier")
    st(3)
    subs = [(h, kap) for h in range(2) for kap in range(17)]
    cur_base = [0]
    def rd(idx):
        h, kap = subs[idx]; s, kk = kap // 4, kap % 4
        F = BF[idx % 3]
        out = []
        if kap == 16:
            for nb in range(4): out.append(f"ds_read_b128 v[{F[nb]}:{F[nb]+3}], v7 offset:{h*4096 + nb*1024}")
            return out
        slot = h*4 + s
        base = (slot // 3)*3
        if base != cur_base[0]:
            d = (base - cur_base[0])*RSZ
            for i in range(8, 12): out.append(f"v_add_u32 v{i}, {d}, v{i}")
            cur_base[0] = base
        for nb in range(4): out.append(f"ds_read_b128 v[{F[nb]}:{F[nb]+3}], v{8+kk} offset:{(slot-base)*RSZ + nb*4096}")
        return out
    def need_barrier(idx):
        h, kap = subs[idx]
        return (h, kap) in ((0, 8), (0, 16), (1, 8))
    I(a, "v_and_b32 v4, 31, v1"); I(a, f"s_lshl_b32 s57, s{S_WAVE}, 14"); I(a, "v_lshlrev_b32 v3, 9, v4"); I(a, "v_add_u32 v3, s57, v3")
    I(a, "v_lshrrev_b32 v5, 5, v1"); I(a, "v_lshl_add_u32 v3, v5, 3, v3"); I(a, "v_and_b32 v4, 7, v4"); I(a, "v_lshl_add_u32 v3, v4, 4, v3")
    def epi_fill(h):
        out = []
        for nb in range(4):
            for q in range(4):
                c = ACC_B + 16*(4*h+nb) + 4*q; ch = (4*h+nb)*4 + q
                out += [f"v_cvt_pk_bf16_f32 v4, v{c}, v{c+1}", f"v_cvt_pk_bf16_f32 v5, v{c+2}, v{c+3}", f"v_xor_b32 v6, {(ch & 7) << 4}, v3",
                        f"ds_write_b64 v6, v[4:5] offset:{(ch >> 3)*128}"]
        return out
    pend = epi_fill(0)
    q = []
    def emit(ins_list, tag):
        for ins in ins_list:
            I(a, ins)
            if ins.startswith("ds_"): q.append(tag if ins.startswith("ds_read") else "w")
    emit(rd(0), 0); emit(rd(1), 1)
    for idx, (h, kap) in enumerate(subs):
        nxt = idx + 2
        last = max(i for i, t in enumerate(q) if t == idx)
        n_after = len(q) - 1 - last
        I(a, f"s_waitcnt lgkmcnt({min(n_after, 15)})")
        del q[:last+1]
        if nxt < len(subs) and need_barrier(nxt): I(a, "s_barrier")
        F = BF[idx % 3]
        mf = []
        for nb in range(4):
            c = ACC_B + 16*(4*h + nb)
            src = "0" if kap == 0 else f"v[{c}:{c+15}]"
            mf.append(f"v_mfma_f32_32x32x16_bf16 v[{c}:{c+15}], v[{F[nb]}:{F[nb]+3}], v[{TB+4*kap}:{TB+4*kap+3}], {src}")
        fill = rd(nxt) if nxt < len(subs) else []
        per = 2
        if h == 1 and kap >= 8:
            take = 8 if kap < 16 else len(pend)
            fill = fill + pend[:take]; pend = pend[take:]; per = 4
        fl = list(fill)
        for m in mf:
            I(a, m)
            emit(fl[:per], nxt); fl = fl[per:]
        emit(fl, nxt)
    assert not pend
    I(a, "s_nop 7"); I(a, "s_nop 3")
    st(5)
    for ins in epi_fill(1): I(a, ins)
    y_store_setup(a)
    I(a, "v_and_b32 v40, 31, v1"); I(a, f"s_lshl_b32 s{S_DELTA}, s{S_WAVE}, 5"); I(a, f"v_add_u32 v41, s{S_DELTA}, v40")
    I(a, "s_lshl_b32 s57, s61, 8"); I(a, "s_add_u32 s57, s57, s63")
    I(a, "v_lshlrev_b32 v41, 1, v41"); I(a, "v_add_u32 v41, s57, v41"); I(a, f"v_mul_u32_u24 v41, {YP}, v41"); I(a, "v_add_u32 v41, 512, v41")
    I(a, "v_cmp_gt_u32 vcc, 32, v1"); I(a, "v_mov_b32 v42, 0x7ffffff0"); I(a, "s_nop 0"); I(a, "v_cndmask_b32 v41, v42, v41, vcc")
    I(a, f"buffer_store_short v2, v41, s[{YSRD}:{YSRD+3}], s56 offen {ysc}")
    I(a, "s_waitcnt lgkmcnt(0)"); I(a, "s_barrier")
    y_store(a, 0, ysc)
    st(6)
    if stamps: I(a, "s_waitcnt vmcnt(0)")
    st(7)
    if stamps: stamps.dump(8, 0)
    I(a, "s_endpgm")
```

```python
from asmgen import *
from gemm2 import (G, S_QSRD, S_PSRD, S_QOFF, S_POFF, S_STG, S_CNT, S_WAVE, S_TMP, S_TMP2, S_DELTA, S_LEFT, S_MQ, S_MP, S_DN, S_DP, VL,
                   lane_wave, stage_issue, interleave)
import math
V_QA = 2; V_PA = 4; V_F = 32; V_ACC = 128

def loader_voffsets16(a, g, s_perm=None, nblk=None):
    I(a, "v_lshrrev_b32 v40, 3, v1"); I(a, "v_lshrrev_b32 v41, 4, v1"); I(a, "v_and_b32 v42, 7, v1")
    I(a, f"v_mul_u32_u24 v43, {g.ldq}, v40"); I(a, "v_xor_b32 v42, v42, v41"); I(a, "v_lshl_add_u32 v43, v42, 4, v43"); I(a, "v_xor_b32 v44, 64, v43")
    ngrp = g.nq // 4
    for grp in range(ngrp):
        I(a, f"s_mul_i32 s{S_TMP}, s{S_WAVE}, {ngrp}"); I(a, f"s_add_u32 s{S_TMP}, s{S_TMP}, {grp}")
        if s_perm is not None:
            lg = int(math.log2(nblk))
            I(a, f"s_lshr_b32 s{S_TMP2}, s{S_TMP}, {lg}"); I(a, f"s_lshl_b32 s{S_TMP2}, s{S_TMP2}, {lg}")
            I(a, f"s_add_u32 s{S_TMP}, s{S_TMP}, s{s_perm}"); I(a, f"s_and_b32 s{S_TMP}, s{S_TMP}, {nblk-1}"); I(a, f"s_add_u32 s{S_TMP}, s{S_TMP}, s{S_TMP2}")
        I(a, f"s_mul_i32 s{S_TMP}, s{S_TMP}, {32*g.ldq}")
        for j in range(4):
            i = grp*4 + j
            c = j*8*g.ldq - (i & 3)*1024
            I(a, f"v_add_u32 v{VL+i}, {c}, v{44 if i & 1 else 43}")
            I(a, f"v_add_u32 v{VL+i}, s{S_TMP}, v{VL+i}")
    I(a, f"s_mul_i32 s{S_TMP}, s{S_WAVE}, {4*g.np_*g.ldp}")
    I(a, "v_and_b32 v42, 15, v1"); I(a, "v_lshlrev_b32 v45, 2, v41"); I(a, "v_xor_b32 v42, v42, v45")
    I(a, f"v_mul_u32_u24 v43, {g.ldp}, v41"); I(a, f"v_add_u32 v43, s{S_TMP}, v43"); I(a, "v_lshl_add_u32 v43, v42, 4, v43"); I(a, "v_xor_b32 v44, 32, v43")
    assert g.np_ == 4
    for i in range(g.np_):
        c = i*4*g.ldp - (i & 3)*1024
        I(a, f"v_add_u32 v{VL+g.nq+i}, {c}, v{44 if i & 2 else 43}")
    I(a, f"s_mul_i32 s{S_MQ}, s{S_WAVE}, {g.nq*1024}")
    I(a, f"s_mul_i32 s{S_MP}, s{S_WAVE}, {g.np_*1024}"); I(a, f"s_add_u32 s{S_MP}, s{S_MP}, {g.QB}")
    I(a, f"s_mov_b32 s{S_STG}, 0")

def nblk16(g): return g.wn // 16, g.wm // 16
def acc16(g, nb, mb):
    NB, MB = nblk16(g)
    return V_ACC + (nb*MB + mb)*4
def fr16(g, s):
    NB, MB = nblk16(g)
    base = V_F + s*(NB+MB)*4
    return [base + 4*i for i in range(NB)], [base + 4*NB + 4*i for i in range(MB)]

def compute_setup16(a, g):
    lw = int(math.log2(g.WM))
    I(a, f"s_and_b32 s{S_TMP}, s{S_WAVE}, {g.WM-1}"); I(a, f"s_lshr_b32 s{S_TMP2}, s{S_WAVE}, {lw}")
    I(a, "v_and_b32 v8, 15, v1"); I(a, f"s_mul_i32 s{S_DELTA}, s{S_TMP}, {g.wm*128}"); I(a, "v_lshlrev_b32 v8, 7, v8"); I(a, f"v_add_u32 v8, s{S_DELTA}, v8")
    I(a, "v_lshrrev_b32 v9, 4, v1"); I(a, "v_bfe_u32 v10, v1, 1, 3"); I(a, "v_xor_b32 v9, v9, v10")
    for ks in range(2):
        I(a, f"v_xor_b32 v11, {4*ks}, v9"); I(a, f"v_lshl_add_u32 v{V_QA+ks}, v11, 4, v8")
    I(a, "v_bfe_u32 v8, v1, 2, 2")
    I(a, "v_lshrrev_b32 v9, 4, v1")
    I(a, "v_lshl_add_u32 v10, v9, 3, v8")
    I(a, f"v_lshlrev_b32 v10, 8, v10"); I(a, f"v_add_u32 v10, {g.QB}, v10")
    I(a, "v_and_b32 v11, 1, v1"); I(a, "v_lshl_add_u32 v10, v11, 3, v10")
    I(a, "v_bfe_u32 v11, v1, 1, 1")
    I(a, f"s_mul_i32 s{S_DELTA}, s{S_TMP2}, {g.wn//8}"); I(a, f"v_add_u32 v11, s{S_DELTA}, v11")
    I(a, "v_lshlrev_b32 v8, 2, v8")
    I(a, "v_and_b32 v9, 1, v9"); I(a, "v_lshlrev_b32 v9, 1, v9"); I(a, "v_xor_b32 v8, v8, v9")
    NB, MB = nblk16(g)
    for nb in range(NB):
        I(a, f"v_add_u32 v12, {2*nb}, v11"); I(a, "v_xor_b32 v12, v12, v8"); I(a, f"v_lshl_add_u32 v{V_PA+nb}, v12, 4, v10")
    I(a, f"s_mov_b32 s{S_DN}, {(-(g.NS-1)*g.STAGE) & 0xffffffff}"); I(a, f"s_mov_b32 s{S_DP}, {g.STAGE}")

def reads16(g, s, ks):
    A, B = fr16(g, s); NB, MB = nblk16(g)
    ar = lambda nb: [f"ds_read_b64_tr_b16 v[{A[nb]+2*h}:{A[nb]+2*h+1}], v{V_PA+nb} offset:{(32*ks+4*h)*256}" for h in range(2)]
    br = lambda mb: [f"ds_read_b128 v[{B[mb]}:{B[mb]+3}], v{V_QA+ks} offset:{mb*2048}"]
    out = ar(0)
    for mb in range(MB): out += br(mb)
    for nb in range(1, NB): out += ar(nb)
    return out
def mfma16(g, s):
    A, B = fr16(g, s); NB, MB = nblk16(g)
    return [f"v_mfma_f32_16x16x32_bf16 v[{acc16(g,nb,mb)}:{acc16(g,nb,mb)+3}], v[{A[nb]}:{A[nb]+3}], v[{B[mb]}:{B[mb]+3}], v[{acc16(g,nb,mb)}:{acc16(g,nb,mb)+3}]" for nb in range(NB) for mb in range(MB)]

def compute_loop16(a, g, stamp=None, hook=None):
    p = g.pref; NB, MB = nblk16(g)
    naddr = 2 + NB
    I(a, "s_barrier")
    if stamp: I(a, stamp); I(a, "s_waitcnt lgkmcnt(0)")
    for r in reads16(g, 0, 0): I(a, r)
    I(a, f"s_mov_b32 s{S_CNT}, {g.nk}"); I(a, f"s_mov_b32 s{S_LEFT}, 0")
    a(".p2align 6")
    a.label(f"{p}_c_loop")
    I(a, "s_waitcnt lgkmcnt(0)")
    interleave(a, mfma16(g, 0), reads16(g, 1, 1), 1)
    I(a, "s_waitcnt lgkmcnt(0)"); I(a, "s_barrier")
    mf = mfma16(g, 1)
    I(a, mf[0])
    I(a, f"s_add_u32 s{S_LEFT}, s{S_LEFT}, {g.STAGE}"); I(a, f"s_cmp_ge_u32 s{S_LEFT}, {g.LDS}")
    I(a, mf[1])
    I(a, f"s_cselect_b32 s{S_DELTA}, s{S_DN}, s{S_DP}"); I(a, f"s_cselect_b32 s{S_LEFT}, 0, s{S_LEFT}")
    vupd = [f"v_add_u32 v{V_QA+i}, s{S_DELTA}, v{V_QA+i}" for i in range(naddr)]
    fill = vupd + (hook or []) + reads16(g, 0, 0) + [f"s_sub_u32 s{S_CNT}, s{S_CNT}, 1", f"s_cmp_lg_u32 s{S_CNT}, 0"]
    interleave(a, mf[2:], fill, 1)
    I(a, f"s_cbranch_scc1 {p}_c_loop")
    I(a, "s_waitcnt lgkmcnt(0)")
```

```python
from asmgen import *
from gemm2 import *
import gemm3
from gemm3 import acc16, loader_voffsets16, compute_setup16, compute_loop16
from p1v2 import load_ptr
from p2 import StampsAt, add64, Y_OFF, YP, YARR, G_OFF, FLAG_OFF
from p2b import y_loads, y_precombine, T1
XS_OFF = 40 << 20

def k_k2(a, name, stamps=False, NS=4, trace=False):
    g = G(BM=128, BN=128, WM=2, WN=2, NS=NS, ldq=7168, ldp=2048, nk=28, pref="p2")
    st = StampsAt(a, stamps, 70)
    kernel_begin(a, name)
    st(0)
    I(a, "s_cmp_ge_u32 s2, 256"); I(a, "s_cbranch_scc1 p2_end")
    load_ptr(a, 6, 64); load_ptr(a, 20, 72); load_ptr(a, 22, 88); load_ptr(a, 4, 104)
    lane_wave(a)
    I(a, "s_lshr_b32 s27, s2, 3")
    I(a, "s_bfe_u32 s67, s2, 0x10001")
    I(a, "s_bfe_u32 s28, s2, 0x10002"); I(a, "s_lshl_b32 s28, s28, 3"); I(a, "s_lshr_b32 s30, s27, 2"); I(a, "s_add_u32 s28, s28, s30")
    I(a, "s_and_b32 s29, s2, 1"); I(a, "s_lshl_b32 s29, s29, 2"); I(a, "s_and_b32 s30, s27, 3"); I(a, "s_add_u32 s29, s29, s30")
    PX = 2
    I(a, f"s_mul_i32 s{S_QOFF}, s28, {128*7168}")
    I(a, f"s_mul_i32 s30, s67, {1792*2}"); I(a, f"s_add_u32 s{S_QOFF}, s{S_QOFF}, s30")
    I(a, f"s_mul_i32 s{S_POFF}, s29, {128*2}")
    I(a, f"s_mul_i32 s30, s67, {1792*2048}"); I(a, f"s_add_u32 s{S_POFF}, s{S_POFF}, s30")
    I(a, f"s_and_b32 s31, s{S_WAVE}, 1"); I(a, "s_lshl_b32 s31, s31, 6"); I(a, "s_lshl_b32 s30, s28, 7"); I(a, "s_add_u32 s30, s30, s31")
    I(a, "s_lshl_b32 s31, s67, 5"); I(a, "s_add_u32 s30, s30, s31")
    I(a, f"s_bfe_u32 s31, s{S_WAVE}, 0x10001"); I(a, "s_lshl_b32 s31, s31, 7"); I(a, "s_lshl_b32 s66, s29, 8"); I(a, "s_add_u32 s31, s31, s66")
    I(a, f"s_cmp_ge_u32 s{S_WAVE}, 4"); I(a, "s_cbranch_scc0 p2_compute")
    I(a, f"s_sub_u32 s{S_WAVE}, s{S_WAVE}, 4")
    loader_voffsets16(a, g, s_perm=67, nblk=2)
    I(a, "s_waitcnt lgkmcnt(0)")
    st(1)
    srd(a, S_PSRD, 6, 3584*1024*2); srd(a, S_QSRD, 4, 2048*3584*2)
    st(2)
    PER = g.PER
    stage_issue(a, g)
    st(3)
    stage_issue(a, g)
    I(a, f"s_waitcnt vmcnt({PER})")
    st(4)
    I(a, "s_barrier")
    for s in range(2, NS): stage_issue(a, g)
    srd(a, 16, 22, 2048*1024*2)
    I(a, "s_mov_b32 s6, s4"); I(a, "s_mov_b32 s7, s5"); add64(a, 6, Y_OFF); srd(a, 24, 6, 4*YARR)
    I(a, "s_mov_b32 s6, s4"); I(a, "s_mov_b32 s7, s5"); add64(a, 6, G_OFF); srd(a, 36, 6, 2048*8)
    I(a, f"s_mov_b32 s63, {YARR}"); I(a, f"s_mov_b32 s64, {2*YARR}"); I(a, f"s_mov_b32 s65, {3*YARR}")
    X = 0
    if trace:
        X = 1
        I(a, "s_add_u32 s60, s4, 0x6400000"); I(a, "s_addc_u32 s61, s5, 0"); srd(a, 56, 60, 1<<22)
        I(a, "s_lshl_b32 s62, s2, 12"); I(a, f"s_lshl_b32 s68, s{S_WAVE}, 10"); I(a, "s_add_u32 s68, s68, s62"); I(a, "v_mov_b32 v30, 0")
    def tr():
        if not trace: return
        I(a, "s_memrealtime s[90:91]"); I(a, "s_memtime s[92:93]"); I(a, "s_waitcnt lgkmcnt(0)")
        I(a, "v_mov_b32 v28, s90"); I(a, "v_mov_b32 v29, s92")
        I(a, "buffer_store_dwordx2 v[28:29], v30, s[56:59], s68 offen"); I(a, "s_add_u32 s68, s68, 8")
    I(a, f"s_mov_b32 s{S_CNT}, {g.nk-NS}")
    if trace:
        I(a, f"s_waitcnt vmcnt({(NS-2)*PER})"); I(a, "s_barrier"); tr(); stage_issue(a, g)
        I(a, f"s_waitcnt vmcnt({(NS-3)*PER + PER+1})"); I(a, "s_barrier"); tr(); stage_issue(a, g)
        I(a, f"s_mov_b32 s{S_CNT}, {g.nk-NS-2}")
    a.label("p2_ld_loop")
    I(a, f"s_waitcnt vmcnt({(NS-2)*(PER+X)})"); I(a, "s_barrier"); tr(); stage_issue(a, g)
    I(a, f"s_sub_u32 s{S_CNT}, s{S_CNT}, 1"); I(a, f"s_cmp_lg_u32 s{S_CNT}, 0"); I(a, "s_cbranch_scc1 p2_ld_loop")
    y_loads(a, 30, 31, "p2")
    for t in range(g.nk - NS, g.nk):
        rem = max(min(t + NS - 1, g.nk - 1) - (t + 1), 0)
        if t + 1 <= g.nk - 1: I(a, f"s_waitcnt vmcnt({rem*(PER+X) + 20})")
        I(a, "s_barrier")
    st(5)
    I(a, "s_waitcnt vmcnt(0)")
    y_precombine(a)
    W = 50
    I(a, f"s_lshl_b32 s66, s{S_WAVE}, 12")
    I(a, f"v_lshrrev_b32 v{W}, 3, v1"); I(a, f"v_and_b32 v{W+2}, 7, v1"); I(a, f"v_xor_b32 v{W+2}, v{W+2}, v{W}")
    I(a, f"v_lshlrev_b32 v{W+3}, 7, v{W}"); I(a, f"v_lshl_add_u32 v{W+3}, v{W+2}, 4, v{W+3}"); I(a, f"v_add_u32 v{W+12}, s66, v{W+3}")
    I(a, f"v_add_u32 v{W}, s30, v{W}"); I(a, f"v_lshlrev_b32 v{W}, 11, v{W}"); I(a, f"v_and_b32 v{W+2}, 7, v1")
    I(a, f"v_lshl_add_u32 v{W}, v{W+2}, 4, v{W}"); I(a, f"v_add_u32 v{W+13}, s31, v{W}")
    st(6)
    I(a, "s_barrier"); I(a, "s_barrier"); I(a, "s_barrier")
    for i in range(4):
        I(a, f"ds_read_b128 v[{64+4*i}:{64+4*i+3}], v{W+12} offset:{i*1024}")
    for i in range(4):
        I(a, f"s_waitcnt lgkmcnt({3-i})")
        og = 33 + 2*i
        I(a, f"v_mov_b32 v46, v{og}"); I(a, f"v_mov_b32 v47, v{og}")
        for p in range(4):
            bb = 64 + 4*i + p; d = T1 + i*8 + p*2
            I(a, f"v_lshlrev_b32 v48, 16, v{bb}"); I(a, f"v_and_b32 v49, 0xffff0000, v{bb}")
            I(a, f"v_pk_fma_f32 v[{d}:{d+1}], v[48:49], v[46:47], v[{d}:{d+1}]")
            I(a, f"v_cvt_pk_bf16_f32 v{bb}, v{d}, v{d+1}")
        I(a, f"s_mov_b32 s{S_TMP2}, {i*8*2048}")
        I(a, f"buffer_store_dwordx4 v[{64+4*i}:{64+4*i+3}], v{W+13}, s[16:19], s{S_TMP2} offen")
    if stamps: I(a, "s_waitcnt vmcnt(0)")
    st(7); st.dump(8, 1)
    I(a, "s_endpgm")
    a.label("p2_compute")
    compute_setup16(a, g)
    for nb in range(4):
        for mb in (2, 3):
            for r in range(4): I(a, f"v_mov_b32 v{acc16(g,nb,mb)+r}, 0")
    I(a, "s_waitcnt lgkmcnt(0)")
    st(1)
    srd(a, 32, 20, 2048)
    I(a, "v_lshrrev_b32 v8, 4, v1"); I(a, "v_lshlrev_b32 v8, 3, v8")
    for nb in range(4):
        I(a, f"buffer_load_dwordx2 v[{10+2*nb}:{10+2*nb+1}], v8, s[32:35], s31 offen offset:{nb*32}")
    I(a, "s_mov_b32 s6, s4"); I(a, "s_mov_b32 s7, s5"); add64(a, 6, XS_OFF); srd(a, 56, 6, 256*16384)
    I(a, "s_mov_b32 s6, s4"); I(a, "s_mov_b32 s7, s5"); add64(a, 6, FLAG_OFF); srd(a, 8, 6, 256*128)
    I(a, f"s_lshl_b32 s66, s{S_WAVE}, 12")
    I(a, "v_and_b32 v18, 15, v1"); I(a, "v_lshlrev_b32 v19, 7, v18"); I(a, f"v_add_u32 v19, s66, v19")
    I(a, "v_bfe_u32 v24, v1, 4, 1"); I(a, "v_lshl_add_u32 v19, v24, 3, v19")
    I(a, "v_and_b32 v18, 7, v18"); I(a, "v_lshrrev_b32 v24, 5, v1")
    for nb in range(4):
        I(a, f"v_add_u32 v25, {2*nb}, v24"); I(a, "v_xor_b32 v25, v25, v18"); I(a, f"v_lshl_add_u32 v{20+nb}, v25, 4, v19")
    I(a, "s_waitcnt vmcnt(0)")
    for nb in range(4):
        for j in range(4):
            src = 10 + 2*nb + j//2
            for mb in (0, 1):
                d = acc16(g, nb, mb) + j
                if j % 2 == 0: I(a, f"v_lshlrev_b32 v{d}, 16, v{src}")
                else: I(a, f"v_and_b32 v{d}, 0xffff0000, v{src}")
    compute_loop16(a, g, stamp=f"s_memtime s[78:79]" if stamps else None)
    st(5)
    I(a, "s_nop 7"); I(a, "s_nop 7")
    I(a, "v_lshlrev_b32 v8, 4, v1")
    I(a, f"s_xor_b32 s61, s2, {PX}")
    I(a, f"s_lshl_b32 s60, s61, 14"); I(a, f"s_lshl_b32 s62, s{S_WAVE}, 12"); I(a, "s_add_u32 s60, s60, s62")
    for nb in range(4):
        t = 32 + nb*4
        for z, mb in enumerate((2, 3)):
            c = acc16(g, nb, mb)
            I(a, f"v_cvt_pk_bf16_f32 v{t+2*z}, v{c}, v{c+1}"); I(a, f"v_cvt_pk_bf16_f32 v{t+2*z+1}, v{c+2}, v{c+3}")
        I(a, f"buffer_store_dwordx4 v[{t}:{t+3}], v8, s[56:59], s60 offen offset:{nb*1024} sc1")
    st(2)
    I(a, "s_waitcnt vmcnt(0)")
    st(3)
    I(a, "s_barrier")
    I(a, f"s_cmp_eq_u32 s{S_WAVE}, 0"); I(a, "s_cbranch_scc0 p2_waitb")
    I(a, "s_lshl_b32 s62, s2, 7"); I(a, "v_mov_b32 v12, s62"); I(a, "v_mov_b32 v13, 1")
    I(a, f"buffer_store_dword v13, v12, s[8:11], 0 offen sc1")
    I(a, "s_lshl_b32 s62, s61, 7"); I(a, "v_mov_b32 v12, s62")
    I(a, "s_mov_b32 s69, 0x20000")
    a.label("p2_poll")
    I(a, f"buffer_load_dword v13, v12, s[8:11], 0 offen sc1")
    I(a, "s_waitcnt vmcnt(0)")
    I(a, "v_readfirstlane_b32 s62, v13")
    I(a, "s_sub_u32 s69, s69, 1"); I(a, "s_cbranch_scc1 p2_waitb")
    I(a, "s_cmp_eq_u32 s62, 1"); I(a, "s_cbranch_scc0 p2_poll")
    a.label("p2_waitb")
    I(a, "s_barrier")
    st(6)
    I(a, f"s_lshl_b32 s60, s2, 14"); I(a, f"s_lshl_b32 s62, s{S_WAVE}, 12"); I(a, "s_add_u32 s60, s60, s62")
    for nb in range(4):
        t = 32 + nb*4
        I(a, f"buffer_load_dwordx4 v[{t}:{t+3}], v8, s[56:59], s60 offen offset:{nb*1024} sc1")
    for nb in range(4):
        t = 32 + nb*4
        I(a, f"s_waitcnt vmcnt({3-nb})")
        for z, mb in enumerate((0, 1)):
            c = acc16(g, nb, mb)
            for hh in range(2):
                I(a, f"v_lshlrev_b32 v10, 16, v{t+2*z+hh}"); I(a, f"v_and_b32 v11, 0xffff0000, v{t+2*z+hh}")
                I(a, f"v_pk_add_f32 v[{c+2*hh}:{c+2*hh+1}], v[{c+2*hh}:{c+2*hh+1}], v[10:11]")
            tt = 48 + (nb*2+z)*2
            I(a, f"v_cvt_pk_bf16_f32 v{tt}, v{c}, v{c+1}"); I(a, f"v_cvt_pk_bf16_f32 v{tt+1}, v{c+2}, v{c+3}")
            I(a, f"ds_write_b64 v{20+nb}, v[{tt}:{tt+1}] offset:{mb*2048}")
    I(a, "s_waitcnt lgkmcnt(0)")
    I(a, "s_barrier")
    st(7); st.dump(8, 0)
    a.label("p2_end")
    I(a, "s_endpgm")
    return g
```

```python
import re, sys
def instrument(text, kernels):
    lines = text.split("\n")
    out = []
    cur = None
    for l in lines:
        m = re.match(r"^(\w+_kernel):", l)
        out.append(l)
        if m and m.group(1) in kernels:
            cur = kernels.index(m.group(1))
            out.append("    s_memrealtime s[96:97]")
            out.append("    s_memtime s[98:99]")
            out.append("    v_mov_b32 v255, v0") if False else None
            continue
    res = []
    cur = None
    n = 0
    for l in out:
        if l is None: continue
        m = re.match(r"^(\w+_kernel):", l)
        if m and m.group(1) in kernels: cur = kernels.index(m.group(1))
        if l.strip() == "s_endpgm" and cur is not None:
            n += 1
            res.append(f"    s_branch rt_end_{cur}")
        else:
            res.append(l)
        if l.startswith(".section .rodata"):
            pass
    text = "\n".join(res)
    tail = []
    for k in range(len(kernels)):
        tail.append(f"rt_end_{k}:")
        tail.append("    s_waitcnt vmcnt(0) lgkmcnt(0)")
        tail.append("    s_memrealtime s[90:91]")
        tail.append("    s_memtime s[92:93]")
        tail.append("    s_load_dwordx2 s[4:5], s[0:1], 104")
        tail.append("    s_waitcnt lgkmcnt(0)")
        tail.append(f"    s_add_u32 s4, s4, {(96<<20) + k*(1<<20)}")
        tail.append("    s_addc_u32 s5, s5, 0")
        tail.append("    s_mov_b32 s8, s4"); tail.append("    s_and_b32 s9, s5, 0xffff"); tail.append("    s_mov_b32 s10, 0x100000"); tail.append("    s_mov_b32 s11, 0x20000")
        tail.append("    s_mov_b64 exec, -1")
        tail.append("    v_lshrrev_b32 v2, 6, v0")
        tail.append("    v_lshlrev_b32 v2, 4, v2")
        tail.append("    s_lshl_b32 s12, s2, 8")
        tail.append("    v_add_u32 v2, s12, v2")
        tail.append("    s_sub_u32 s92, s92, s98")
        tail.append("    v_mov_b32 v4, s96"); tail.append("    v_mov_b32 v5, s90"); tail.append("    v_mov_b32 v6, s92"); tail.append("    v_mov_b32 v7, s2")
        tail.append("    buffer_store_dwordx4 v[4:7], v2, s[8:11], 0 offen")
        tail.append("    s_endpgm")
    text = text.replace('.section .rodata,"a"', "\n".join(tail) + '\n.section .rodata,"a"', 1)
    text = text.replace(".amdhsa_next_free_sgpr 96", ".amdhsa_next_free_sgpr 102")
    return text
if __name__ == "__main__":
    t = open(sys.argv[1]).read()
    ks = re.findall(r"@launch kernel=(\w+)", t)
    open(sys.argv[2], "w").write(instrument(t, ks))
```

```python
import sys, json
from asmgen import *
from gemm2 import *
from p1v2 import load_ptr, epi_addrs_write, epi_addrs_read, wave_origin, compute_loop_x
from p2 import StampsAt, add64, FLAG_OFF
import p2c, k0, awg2 as awg, k2m, gemm3
PFX = "gated_mix__spectral_fnet__dense_activation_squared_relu__prompt"
HEADER = open("cdna_kernels/" + PFX + ".s.ref").read().split("; Override launch")[0]
S_PFS = 56

def k_k1(a, name, stamps=False, hsc="", astamp=False, mf=16):
    g = G(BM=256, BN=128, WM=2, WN=2, NS=3, ldq=2048, ldp=7168, nk=16, pref="p1")
    st = StampsAt(a, stamps, 70)
    kernel_begin(a, name)
    st(0)
    I(a, "s_cmp_ge_u32 s2, 256"); I(a, "s_cbranch_scc1 p1_end")
    lane_wave(a)
    I(a, "s_cmp_ge_u32 s2, 224"); I(a, "s_cbranch_scc1 aw_entry")
    load_ptr(a, 4, 0); load_ptr(a, 20, 48, 4); load_ptr(a, 24, 104); load_ptr(a, 36, 64)
    I(a, "s_and_b32 s26, s2, 7"); I(a, "s_lshr_b32 s27, s2, 3")
    I(a, "s_mul_i32 s28, s27, 37"); I(a, "s_lshr_b32 s28, s28, 8")
    I(a, "s_mul_i32 s29, s28, 7"); I(a, "s_sub_u32 s27, s27, s29")
    I(a, "s_lshr_b32 s29, s26, 2"); I(a, "s_and_b32 s26, s26, 3")
    I(a, "s_lshl_b32 s29, s29, 2"); I(a, "s_add_u32 s28, s28, s29")
    I(a, "s_mul_i32 s26, s26, 7"); I(a, "s_add_u32 s29, s26, s27")
    I(a, f"s_mul_i32 s{S_QOFF}, s28, {256*2048}")
    I(a, f"s_mul_i32 s{S_POFF}, s29, {128*2}")
    I(a, f"s_mov_b32 s{S_QSRD+2}, {2048*1024*2}"); I(a, f"s_mov_b32 s{S_QSRD+3}, 0x00020000")
    I(a, f"s_mov_b32 s{S_PSRD+2}, {1024*3584*2}"); I(a, f"s_mov_b32 s{S_PSRD+3}, 0x00020000")
    I(a, f"s_cmp_ge_u32 s{S_WAVE}, 4"); I(a, "s_cbranch_scc0 p1_compute")
    I(a, f"s_sub_u32 s{S_WAVE}, s{S_WAVE}, 4")
    (gemm3.loader_voffsets16 if mf == 16 else loader_voffsets)(a, g)
    I(a, "s_waitcnt lgkmcnt(0)")
    st(1)
    I(a, f"s_mov_b32 s{S_QSRD}, s4"); I(a, f"s_and_b32 s{S_QSRD+1}, s5, 0xffff")
    I(a, f"s_mov_b32 s{S_PSRD}, s20"); I(a, f"s_and_b32 s{S_PSRD+1}, s21, 0xffff")
    st(2)
    PER = g.PER
    stage_issue(a, g)
    st(3)
    stage_issue(a, g)
    I(a, f"s_waitcnt vmcnt({PER})")
    st(4)
    I(a, "s_barrier")
    stage_issue(a, g)
    I(a, f"s_mov_b32 s{S_CNT}, {g.nk-3}")
    a.label("p1_ld_loop")
    I(a, f"s_waitcnt vmcnt({PER})"); I(a, "s_barrier"); stage_issue(a, g)
    I(a, f"s_sub_u32 s{S_CNT}, s{S_CNT}, 1"); I(a, f"s_cmp_lg_u32 s{S_CNT}, 0"); I(a, "s_cbranch_scc1 p1_ld_loop")
    I(a, "s_bfe_u32 s60, s2, 0x10001"); I(a, f"s_mul_i32 s60, s60, {1792*2048}")
    I(a, "s_and_b32 s61, s2, 1"); I(a, "s_lshl_b32 s61, s61, 10"); I(a, "s_add_u32 s60, s60, s61")
    I(a, "s_lshr_b32 s61, s2, 3"); I(a, f"s_mul_i32 s61, s61, {64*2048}"); I(a, "s_add_u32 s60, s60, s61")
    I(a, f"s_mul_i32 s61, s{S_WAVE}, {16*2048}"); I(a, "s_add_u32 s60, s60, s61")
    srd(a, S_PFS, 36, 3584*1024*2)
    I(a, "v_lshrrev_b32 v46, 3, v1"); I(a, "v_lshlrev_b32 v46, 11, v46"); I(a, "v_and_b32 v45, 7, v1"); I(a, "v_lshl_add_u32 v46, v45, 7, v46")
    I(a, f"buffer_load_dword v47, v46, s[{S_PFS}:{S_PFS+3}], s60 offen")
    I(a, f"s_add_u32 s60, s60, {8*2048}")
    I(a, f"buffer_load_dword v47, v46, s[{S_PFS}:{S_PFS+3}], s60 offen")
    I(a, f"s_waitcnt vmcnt({PER+2})"); I(a, "s_barrier")
    I(a, f"s_waitcnt vmcnt(2)"); I(a, "s_barrier")
    I(a, f"s_barrier")
    st(5)
    srd(a, 16, 24, 2048*3584*2)
    wave_origin(a, g, 28, 29, 30, 31)
    epi_addrs_read(a, g, 7168, 30, 31)
    I(a, f"s_cmp_eq_u32 s{S_WAVE}, 3"); I(a, "s_cbranch_scc0 p1_noflag")
    I(a, "s_mov_b32 s6, s24"); I(a, "s_mov_b32 s7, s25"); add64(a, 6, FLAG_OFF); srd(a, 32, 6, 256*128)
    I(a, "v_mul_u32_u24 v40, 224, v1"); I(a, "v_add_u32 v40, s2, v40"); I(a, "v_lshlrev_b32 v40, 7, v40"); I(a, "v_mov_b32 v42, 0"); I(a, "v_mov_b32 v43, 0")
    I(a, "buffer_store_dwordx2 v[42:43], v40, s[32:35], 0 offen")
    a.label("p1_noflag")
    for mb in range(g.MB):
        I(a, "s_barrier")
        for i in range(4):
            r = 64 + mb*16 + i*4
            I(a, f"ds_read_b128 v[{r}:{r+3}], v62 offset:{mb*4096 + i*1024}")
        for i in range(4):
            r = 64 + mb*16 + i*4
            I(a, f"s_mov_b32 s{S_TMP2}, {(mb*32 + i*8) * 7168}")
            I(a, f"s_waitcnt lgkmcnt({3-i})")
            I(a, f"buffer_store_dwordx4 v[{r}:{r+3}], v63, s[16:19], s{S_TMP2} offen {hsc}")
    st(6)
    if stamps: I(a, "s_waitcnt vmcnt(0)")
    st(7); st.dump(8, 1)
    I(a, "s_endpgm")
    a.label("p1_compute")
    wave_origin(a, g, 28, 29, 30, 31)
    gemm3.compute_setup16(a, g)
    I(a, "s_waitcnt lgkmcnt(0)")
    st(1)
    srd(a, 32, 22, 3584*2)
    I(a, "v_lshrrev_b32 v8, 4, v1"); I(a, "v_lshlrev_b32 v8, 3, v8")
    for nb in range(4):
        I(a, f"buffer_load_dwordx2 v[{10+2*nb}:{10+2*nb+1}], v8, s[32:35], s31 offen offset:{nb*32}")
    I(a, f"s_mul_i32 s{S_TMP}, s{S_WAVE}, {g.wm*128}")
    I(a, "v_and_b32 v18, 15, v1"); I(a, "v_lshlrev_b32 v19, 7, v18"); I(a, f"v_add_u32 v19, s{S_TMP}, v19")
    I(a, "v_bfe_u32 v24, v1, 4, 1"); I(a, "v_lshl_add_u32 v19, v24, 3, v19")
    I(a, "v_and_b32 v18, 7, v18"); I(a, "v_lshrrev_b32 v24, 5, v1")
    for nb in range(4):
        I(a, f"v_add_u32 v25, {2*nb}, v24"); I(a, "v_xor_b32 v25, v25, v18"); I(a, f"v_lshl_add_u32 v{20+nb}, v25, 4, v19")
    I(a, "s_waitcnt vmcnt(0)")
    st(2)
    for nb in range(4):
        for j in range(4):
            src = 10 + 2*nb + j//2
            for mb in range(8):
                d = gemm3.acc16(g, nb, mb) + j
                if mb == 0:
                    if j % 2 == 0: I(a, f"v_lshlrev_b32 v{d}, 16, v{src}")
                    else: I(a, f"v_and_b32 v{d}, 0xffff0000, v{src}")
                else: I(a, f"v_mov_b32 v{d}, v{gemm3.acc16(g, nb, 0) + j}")
    st(3)
    gemm3.compute_loop16(a, g, stamp="s_memtime s[78:79]" if stamps else None)
    st(5)
    I(a, "s_nop 7"); I(a, "s_nop 7")
    k = 0
    for mb2 in range(4):
        for mb in (2*mb2, 2*mb2+1):
            for nb in range(4):
                cc = gemm3.acc16(g, nb, mb); t = 8 + (k % 4) * 2; k += 1
                for r in range(4): I(a, f"v_max_f32 v{cc+r}, 0, v{cc+r}")
                for r in (0, 2): I(a, f"v_pk_mul_f32 v[{cc+r}:{cc+r+1}], v[{cc+r}:{cc+r+1}], v[{cc+r}:{cc+r+1}]")
                I(a, f"v_cvt_pk_bf16_f32 v{t}, v{cc}, v{cc+1}"); I(a, f"v_cvt_pk_bf16_f32 v{t+1}, v{cc+2}, v{cc+3}")
                I(a, f"ds_write_b64 v{20+nb}, v[{t}:{t+1}] offset:{mb*2048}")
        I(a, "s_waitcnt lgkmcnt(0)"); I(a, "s_barrier")
    st(6); st(7); st.dump(8, 0)
    a.label("p1_end")
    I(a, "s_endpgm")
    a.label("aw_entry")
    sa = StampsAt(a, astamp, 70)
    if astamp: sa(0)
    awg.a_wg(a, stamps=sa if astamp else None)
    return g

def gen(stamp=0, hsc="", upto=3, trace=False):
    a = Asm()
    a(HEADER.rstrip())
    a(f"; @launch kernel=k0_kernel grid=(256,1,1) block=(256,1,1) lds=0")
    a(f"; @launch kernel=k1_kernel grid=(256,1,1) block=(512,1,1) lds=163840")
    if upto >= 3: a(f"; @launch kernel=k2_kernel grid=(256,1,1) block=(512,1,1) lds=131072")
    a('.amdgcn_target "amdgcn-amd-amdhsa--gfx950"')
    a(".text")
    k0.k_k0(a, "k0_kernel")
    k_k1(a, "k1_kernel", stamps=(stamp == 1), hsc=hsc, astamp=(stamp == 3))
    k2m.k_k2(a, "k2_kernel", stamps=(stamp == 2), trace=trace)
    a('.section .rodata,"a"')
    a(".p2align 6"); kernel_desc(a, "k0_kernel", 192, 96, 192)
    for n in ("k1_kernel", "k2_kernel"):
        a(".p2align 6"); kernel_desc(a, n, 256, 96, 256)
    return a.text()
if __name__ == "__main__":
    import rtstamp
    open("full.s", "w").write(gen())
    open("full_s1.s", "w").write(gen(stamp=1))
    open("full_s2.s", "w").write(gen(stamp=2))
    open("full_s3.s", "w").write(gen(stamp=3))
    open("full_rt.s", "w").write(rtstamp.instrument(gen(trace=True), ["k0_kernel", "k1_kernel", "k2_kernel"]))
```

```python
from asmgen import *
from gemm2 import S_WAVE, S_TMP, S_TMP2, S_DELTA, S_CNT, S_LEFT, S_STG, S_QOFF, S_POFF, S_MQ, S_MP, S_DN, S_DP, interleave
from p1v2 import load_ptr
from p2 import add64, Y_OFF, YP, YARR
from k0 import XF_OFF, XFP, XFARR
FOLDF_OFF = 34 << 20
QSRD = 8; PSRD = 12; MSRD = 16; YSRD = 20
STG = 53248; QB = 16384
RSZ = 16384
SMALL = 8*RSZ
CV = 153600
CX = CV + 1024
ACC_A = 112; ACC_B = 128
FA = 16
TB = 16

def a_regs(s):
    b = FA + 40*s
    return [b + 4*i for i in range(9)], b + 36
def a_reads(s, kk):
    A, B = a_regs(s)
    out = [f"ds_read_b128 v[{B}:{B+3}], v{3+kk}"]
    for nb in range(9):
        for h in range(2):
            out.append(f"ds_read_b64_tr_b16 v[{A[nb]+2*h}:{A[nb]+2*h+1}], v2 offset:{(16*kk+4*h)*XFP + nb*64}")
    return out
def a_mfmas(s):
    A, B = a_regs(s)
    return [f"v_mfma_f32_32x32x16_bf16 v[{ACC_A+16*nb}:{ACC_A+16*nb+15}], v[{A[nb]}:{A[nb]+3}], v[{B}:{B+3}], v[{ACC_A+16*nb}:{ACC_A+16*nb+15}]" for nb in range(9)]

BF = [[84, 88, 92, 96], [100, 104, 108, 112], [116, 120, 124, 12]]

def a_issue_q(a, s_stg):
    I(a, f"s_add_u32 m0, s{s_stg}, s{S_MQ}"); I(a, "s_nop 0")
    for i in range(4):
        I(a, f"buffer_load_dwordx4 v{2+i}, s[{QSRD}:{QSRD+3}], s{S_QOFF} offen offset:{i*1024} lds")
    I(a, f"s_add_u32 s{S_QOFF}, s{S_QOFF}, 128")
def a_issue_p(a):
    I(a, f"s_add_u32 m0, s{S_STG}, s{S_MP}")
    I(a, f"s_mov_b32 s{S_TMP}, s{S_POFF}")
    for i in range(9):
        if i and i % 4 == 0:
            I(a, "s_add_u32 m0, m0, 4096"); I(a, f"s_add_u32 s{S_TMP}, s{S_TMP}, 4096"); I(a, "s_nop 0")
        I(a, f"buffer_load_dwordx4 v6, s[{PSRD}:{PSRD+3}], s{S_TMP} offen offset:{(i%4)*1024} lds")
    I(a, f"s_add_u32 s{S_POFF}, s{S_POFF}, {64*XFP}")
    I(a, f"s_add_u32 s{S_STG}, s{S_STG}, {STG}")
    I(a, f"s_cmp_ge_u32 s{S_STG}, {3*STG}")
    I(a, f"s_cselect_b32 s{S_STG}, 0, s{S_STG}")
def a_stage_issue(a):
    a_issue_q(a, S_STG); a_issue_p(a)

def m_issue(a, h, s):
    I(a, f"s_add_u32 m0, s55, {(h*4+s)*RSZ}")
    I(a, f"s_add_u32 s56, s54, {h*128*4096 + s*128}")
    for i in range(4):
        I(a, f"buffer_load_dwordx4 v{96+i}, s[{MSRD}:{MSRD+3}], s56 offen offset:{i*1024} lds")
def m_issue_small(a, h):
    I(a, f"s_lshl_b32 s56, s{S_WAVE}, 10"); I(a, f"s_add_u32 m0, s56, {SMALL + h*4096}")
    I(a, f"s_add_u32 s56, s54, {h*128*4096 + 512}")
    I(a, f"buffer_load_dwordx4 v100, s[{MSRD}:{MSRD+3}], s56 offen lds")

def side_a(a, stage_off_s, nquads):
    I(a, f"v_add_u32 v21, s{stage_off_s}, v20")
    I(a, f"v_add_u32 v19, s{stage_off_s}, v23")
    accs = [24, 16, 17, 18]
    R = 32
    for z in range(2):
        I(a, f"ds_read_b64_tr_b16 v[{R+2*z}:{R+2*z+1}], v19 offset:{z*2*4*XFP}")
    for q in range(min(nquads, 12)):
        I(a, f"ds_read_b64_tr_b16 v[{R+4+2*q}:{R+4+2*q+1}], v21 offset:{q*4*XFP}")
    I(a, f"s_waitcnt lgkmcnt({min(nquads,12)})")
    if nquads == 16:
        for z in range(2):
            I(a, f"v_dot2_f32_bf16 v25, v{R+2*z}, v22, v25"); I(a, f"v_dot2_f32_bf16 v12, v{R+2*z+1}, v22, v12")
    else:
        lab = a.newlabel("sx")
        I(a, f"s_cmp_eq_u32 s{S_WAVE}, 0"); I(a, f"s_cbranch_scc0 {lab}")
        for z in range(2):
            I(a, f"v_dot2_f32_bf16 v25, v{R+2*z}, v22, v25"); I(a, f"v_dot2_f32_bf16 v12, v{R+2*z+1}, v22, v12")
        a.label(lab)
    for q in range(12, nquads):
        I(a, f"ds_read_b64_tr_b16 v[{R+4+2*q}:{R+4+2*q+1}], v21 offset:{q*4*XFP}")
    n = nquads
    for q in range(n):
        if q % 4 == 0: I(a, f"s_waitcnt lgkmcnt({min(max(n - 4 - q, 0), 15)})")
        I(a, f"v_dot2_f32_bf16 v{accs[(2*q) % 4]}, v{R+4+2*q}, v22, v{accs[(2*q) % 4]}")
        I(a, f"v_dot2_f32_bf16 v{accs[(2*q+1) % 4]}, v{R+4+2*q+1}, v22, v{accs[(2*q+1) % 4]}")

def side_b(a, h, s):
    accs = (28, 14) if h == 0 else (29, 15)
    R = 32
    if s < 4:
        for z in range(4):
            I(a, f"v_lshl_add_u32 v31, v13, 2, {z}")
            I(a, f"v_xor_b32 v10, v31, v27"); I(a, "v_lshl_add_u32 v10, v10, 4, v26"); I(a, f"v_add_u32 v10, {(h*4+s)*RSZ}, v10")
            I(a, f"v_lshl_add_u32 v11, v31, 4, v30")
            I(a, f"ds_read_b128 v[{R+8*z}:{R+8*z+3}], v10")
            I(a, f"ds_read_b128 v[{R+8*z+4}:{R+8*z+7}], v11 offset:{s*128}")
        for z in range(4):
            I(a, f"s_waitcnt lgkmcnt({2*(3-z)})")
            for q in range(4):
                I(a, f"v_dot2_f32_bf16 v{accs[q % 2]}, v{R+8*z+q}, v{R+8*z+4+q}, v{accs[q % 2]}")
    else:
        I(a, "v_lshrrev_b32 v10, 2, v26"); I(a, "v_lshl_add_u32 v10, v13, 4, v10"); I(a, f"v_add_u32 v10, {SMALL + h*4096}, v10")
        I(a, f"v_lshl_add_u32 v11, v13, 4, v30")
        I(a, f"ds_read_b128 v[{R}:{R+3}], v10"); I(a, f"ds_read_b128 v[{R+4}:{R+7}], v11 offset:512")
        I(a, "s_waitcnt lgkmcnt(0)")
        for q in range(4):
            I(a, f"v_dot2_f32_bf16 v{accs[q % 2]}, v{R+q}, v{R+4+q}, v{accs[q % 2]}")

def y_store_setup(a):
    I(a, "s_mov_b32 s6, s4"); I(a, "s_mov_b32 s7, s5"); add64(a, 6, Y_OFF); srd(a, YSRD, 6, 4*YARR)
    I(a, "s_lshl_b32 s56, s62, 1"); I(a, "s_add_u32 s56, s56, s64"); I(a, f"s_mul_i32 s56, s56, {YARR}")
    I(a, f"s_lshl_b32 s57, s{S_WAVE}, 14")
    I(a, "v_lshrrev_b32 v44, 5, v1"); I(a, "v_and_b32 v45, 31, v1")
    I(a, "s_lshl_b32 s58, s61, 8"); I(a, "s_add_u32 s58, s58, s63"); I(a, f"s_lshl_b32 s59, s{S_WAVE}, 6"); I(a, "s_add_u32 s58, s58, s59")
    I(a, "v_lshl_add_u32 v46, v44, 1, s58"); I(a, f"v_mul_u32_u24 v46, {YP}, v46"); I(a, "v_lshl_add_u32 v46, v45, 4, v46")
    for z in range(4):
        I(a, f"v_add_u32 v47, {2*z}, v44"); I(a, "v_xor_b32 v56, v45, v47")
        I(a, "v_lshlrev_b32 v47, 9, v47"); I(a, "v_lshl_add_u32 v47, v56, 4, v47"); I(a, f"v_add_u32 v{104+z}, s57, v47")

def y_store(a, i0, ysc):
    for i in range(i0, i0+8):
        r = 64 + (i - i0)*4
        I(a, f"ds_read_b128 v[{r}:{r+3}], v{104 + (i % 4)} offset:{(i // 4)*4096}")
    for z in range(8):
        ii = i0 + z; rr = 64 + z*4
        I(a, f"s_waitcnt lgkmcnt({7-z})")
        I(a, f"s_add_u32 s59, s56, {ii*4*YP}")
        I(a, f"buffer_store_dwordx4 v[{rr}:{rr+3}], v46, s[{YSRD}:{YSRD+3}], s59 offen {ysc}")

def a_wg(a, stamps=None, pref="aw", pre_compute=None, pre_loader=None, ysc=""):
    st = stamps or (lambda i: None)
    load_ptr(a, 24, 8, 4); load_ptr(a, 28, 24, 4); load_ptr(a, 4, 104); load_ptr(a, 36, 96)
    I(a, "s_and_b32 s60, s2, 7")
    I(a, "s_sub_u32 s61, s2, 224"); I(a, "s_lshr_b32 s61, s61, 3")
    I(a, "s_lshr_b32 s62, s60, 2"); I(a, "s_bfe_u32 s63, s60, 0x10001"); I(a, "s_and_b32 s64, s60, 1")
    I(a, "s_lshr_b32 s65, s60, 1"); I(a, "s_cmp_eq_u32 s65, 0"); I(a, "s_cselect_b32 s65, 1, 0"); I(a, "s_cmp_eq_u32 s61, 3"); I(a, "s_cselect_b32 s65, s65, 0")
    I(a, f"s_cmp_ge_u32 s{S_WAVE}, 4"); I(a, f"s_cbranch_scc0 {pref}_compute")
    I(a, f"s_sub_u32 s{S_WAVE}, s{S_WAVE}, 4")
    I(a, "v_lshrrev_b32 v40, 3, v1"); I(a, "v_lshrrev_b32 v41, 4, v1"); I(a, "v_and_b32 v42, 7, v1")
    I(a, f"s_mul_i32 s{S_TMP}, s{S_WAVE}, {32*8192}")
    I(a, "v_mul_u32_u24 v43, 8192, v40"); I(a, "v_xor_b32 v42, v42, v41"); I(a, f"v_add_u32 v43, s{S_TMP}, v43"); I(a, "v_lshl_add_u32 v43, v42, 4, v43"); I(a, "v_xor_b32 v44, 64, v43")
    for i in range(4):
        I(a, f"v_add_u32 v{2+i}, {i*8*8192 - i*1024}, v{44 if i & 1 else 43}")
    I(a, "v_lshlrev_b32 v6, 4, v1")
    I(a, f"s_mul_i32 s{S_TMP}, s{S_WAVE}, {32*4096}")
    I(a, "v_mul_u32_u24 v43, 4096, v40"); I(a, f"v_add_u32 v43, s{S_TMP}, v43"); I(a, "v_lshl_add_u32 v43, v42, 4, v43"); I(a, "v_xor_b32 v44, 64, v43")
    for i in range(4):
        I(a, f"v_add_u32 v{96+i}, {i*8*4096 - i*1024}, v{44 if i & 1 else 43}")
    I(a, "v_lshrrev_b32 v43, 1, v1"); I(a, "v_lshlrev_b32 v43, 12, v43"); I(a, f"v_add_u32 v43, s{S_TMP}, v43"); I(a, "v_and_b32 v44, 1, v1"); I(a, "v_lshl_add_u32 v100, v44, 4, v43")
    I(a, f"s_mul_i32 s{S_MQ}, s{S_WAVE}, 4096")
    I(a, f"s_mul_i32 s{S_MP}, s{S_WAVE}, 9216"); I(a, f"s_add_u32 s{S_MP}, s{S_MP}, {QB}")
    I(a, f"s_mul_i32 s55, s{S_WAVE}, 4096")
    I(a, f"s_mov_b32 s{S_STG}, 0")
    I(a, "s_lshl_b32 s56, s61, 8"); I(a, "s_add_u32 s56, s56, s63"); I(a, f"s_lshl_b32 s{S_QOFF}, s56, 12")
    I(a, f"s_mul_i32 s{S_POFF}, s60, {XFARR}"); I(a, f"s_mul_i32 s56, s{S_WAVE}, 9216"); I(a, f"s_add_u32 s{S_POFF}, s{S_POFF}, s56")
    I(a, "s_lshl_b32 s54, s64, 11")
    I(a, "v_bfe_u32 v40, v1, 2, 2"); I(a, f"v_mul_u32_u24 v40, {XFP}, v40")
    I(a, "v_and_b32 v41, 3, v1"); I(a, "v_lshl_add_u32 v40, v41, 3, v40"); I(a, f"v_add_u32 v40, {QB}, v40")
    I(a, "v_lshrrev_b32 v41, 4, v1")
    I(a, f"s_lshl_b32 s56, s{S_WAVE}, 7"); I(a, "v_lshl_add_u32 v20, v41, 5, v40"); I(a, "v_add_u32 v20, s56, v20")
    I(a, "v_and_b32 v41, 1, v41"); I(a, "v_lshl_add_u32 v23, v41, 5, v40"); I(a, "v_add_u32 v23, 512, v23")
    I(a, "v_lshrrev_b32 v41, 5, v1"); I(a, f"s_lshl_b32 s56, s{S_WAVE}, 2"); I(a, "v_add_u32 v41, s56, v41"); I(a, f"v_mul_u32_u24 v41, {4*XFP}, v41"); I(a, "v_add_u32 v23, v23, v41")
    I(a, "v_mov_b32 v22, 0xbf803f80")
    for r in (24, 16, 17, 18, 25, 12, 28, 14, 29, 15): I(a, f"v_mov_b32 v{r}, 0")
    I(a, f"s_lshl_b32 s56, s{S_WAVE}, 5"); I(a, "v_and_b32 v26, 31, v1"); I(a, "v_add_u32 v26, s56, v26"); I(a, "v_bfe_u32 v27, v26, 1, 3"); I(a, "v_lshlrev_b32 v26, 7, v26")
    I(a, "v_lshrrev_b32 v13, 5, v1"); I(a, f"v_mov_b32 v30, {CV}")
    I(a, "s_waitcnt lgkmcnt(0)")
    st(1)
    I(a, "s_cmp_eq_u32 s62, 1")
    I(a, "s_cselect_b32 s24, s26, s24"); I(a, "s_cselect_b32 s25, s27, s25"); I(a, "s_cselect_b32 s28, s30, s28"); I(a, "s_cselect_b32 s29, s31, s29")
    srd(a, QSRD, 24, 2048*2048*2); srd(a, MSRD, 28, 1024*1024*2)
    I(a, "s_mov_b32 s6, s4"); I(a, "s_mov_b32 s7, s5"); add64(a, 6, XF_OFF); srd(a, PSRD, 6, 8*XFARR)
    srd(a, 88, 36, 256)
    I(a, "s_mov_b32 s6, s4"); I(a, "s_mov_b32 s7, s5"); add64(a, 6, FOLDF_OFF); srd(a, 92, 6, 528*8)
    lab = a.newlabel("nn")
    I(a, "s_cmp_eq_u32 s2, 224"); I(a, f"s_cbranch_scc0 {lab}"); I(a, f"s_cmp_eq_u32 s{S_WAVE}, 0"); I(a, f"s_cbranch_scc0 {lab}")
    I(a, "s_memrealtime s[66:67]"); I(a, "s_waitcnt lgkmcnt(0)"); I(a, "s_or_b32 s66, s66, 1")
    I(a, "v_mov_b32 v40, 0"); I(a, "v_mov_b32 v41, s66")
    I(a, "buffer_store_dword v41, v40, s[88:91], 0 offen sc1")
    a.label(lab)
    for s_ in range(3):
        I(a, f"s_mov_b32 s58, {s_*STG}"); a_issue_q(a, 58)
    def pf_block():
        I(a, "v_and_b32 v40, 31, v1"); I(a, f"s_lshl_b32 s58, s{S_WAVE}, 5"); I(a, "v_add_u32 v40, s58, v40"); I(a, "v_lshlrev_b32 v40, 13, v40")
        I(a, "v_lshrrev_b32 v41, 5, v1"); I(a, "v_lshl_add_u32 v40, v41, 7, v40")
        for i in range(3):
            I(a, f"buffer_load_dword v101, v40, s[{QSRD}:{QSRD+3}], s{S_QOFF} offen offset:{i*256}")
        I(a, "v_and_b32 v40, 15, v1"); I(a, f"s_lshl_b32 s58, s{S_WAVE}, 4"); I(a, "s_lshl_b32 s59, s61, 6"); I(a, "s_add_u32 s58, s58, s59"); I(a, "v_add_u32 v40, s58, v40")
        I(a, "v_lshlrev_b32 v40, 12, v40"); I(a, "v_lshrrev_b32 v41, 4, v1"); I(a, "v_lshl_add_u32 v41, v41, 7, v40")
        I(a, f"buffer_load_dword v101, v41, s[{MSRD}:{MSRD+3}], s54 offen")
        I(a, f"buffer_load_dword v101, v40, s[{MSRD}:{MSRD+3}], s54 offen offset:512")
    labw = a.newlabel("pw")
    I(a, f"s_cmp_eq_u32 s{S_WAVE}, 0"); I(a, f"s_cbranch_scc0 {labw}")
    I(a, "v_mov_b32 v40, 0")
    lab = a.newlabel("np"); labx = a.newlabel("npx")
    I(a, "s_mov_b32 s59, 0x20000")
    a.label(lab)
    I(a, "buffer_load_dword v41, v40, s[88:91], 0 offen sc1"); I(a, "s_waitcnt vmcnt(0)")
    I(a, "v_readfirstlane_b32 s66, v41")
    I(a, "s_sub_u32 s59, s59, 1"); I(a, f"s_cbranch_scc1 {labx}")
    I(a, "s_cmp_lg_u32 s66, 0"); I(a, f"s_cbranch_scc1 {labx}")
    I(a, "s_sleep 4"); I(a, f"s_branch {lab}")
    a.label(labx)
    I(a, "v_lshlrev_b32 v40, 3, v1")
    lab = a.newlabel("fp"); labx = a.newlabel("fpx")
    I(a, "s_mov_b32 s59, 0x8000")
    a.label(lab)
    for i in range(9):
        I(a, f"s_mov_b32 s58, {i*512}")
        I(a, f"buffer_load_dword v{44+i}, v40, s[92:95], s58 offen sc1")
    I(a, "s_waitcnt vmcnt(0)")
    I(a, "v_cmp_gt_u32 vcc, 16, v1"); I(a, "v_mov_b32 v43, s66"); I(a, "s_nop 0"); I(a, "v_cndmask_b32 v52, v43, v52, vcc")
    for i in range(9):
        I(a, f"v_xor_b32 v{44+i}, s66, v{44+i}")
    for i in range(1, 9): I(a, f"v_or_b32 v44, v44, v{44+i}")
    I(a, "v_cmp_ne_u32 vcc, 0, v44"); I(a, "s_sub_u32 s59, s59, 1"); I(a, f"s_cbranch_scc1 {labx}"); I(a, "s_nop 3"); I(a, "s_cmp_eq_u64 vcc, 0"); I(a, f"s_cbranch_scc1 {labx}")
    I(a, "s_sleep 2"); I(a, f"s_branch {lab}")
    a.label(labx)
    I(a, "buffer_inv sc1"); I(a, "s_waitcnt vmcnt(0)")
    a.label(labw)
    I(a, "s_waitcnt vmcnt(0)")
    I(a, "s_barrier")
    st(2)
    a_issue_p(a); a_issue_p(a)
    I(a, "s_waitcnt vmcnt(9)"); I(a, "s_barrier")
    I(a, f"s_mov_b32 s57, 0")
    def side(nq):
        lab = a.newlabel("ns")
        I(a, "s_cmp_eq_u32 s65, 1"); I(a, f"s_cbranch_scc0 {lab}")
        side_a(a, 57, nq)
        a.label(lab)
        I(a, f"s_add_u32 s57, s57, {STG}"); I(a, f"s_cmp_ge_u32 s57, {3*STG}"); I(a, "s_cselect_b32 s57, 0, s57")
    a_issue_p(a)
    pf_block()
    for t in range(8):
        side(16)
        rem = ((9 + 5) if t == 0 else 13) if t + 2 <= 8 else 0
        I(a, f"s_waitcnt vmcnt({rem})"); I(a, "s_barrier")
        if t + 3 <= 8: a_stage_issue(a)
    m_issue(a, 0, 0); m_issue(a, 0, 1)
    lab = a.newlabel("ns")
    I(a, "s_cmp_eq_u32 s65, 1"); I(a, f"s_cbranch_scc0 {lab}")
    side_a(a, 57, 4)
    I(a, "v_add_f32 v24, v24, v16"); I(a, "v_add_f32 v17, v17, v18"); I(a, "v_add_f32 v24, v24, v17"); I(a, "v_add_f32 v25, v25, v12")
    I(a, "v_cvt_pk_bf16_f32 v31, v24, v24"); I(a, f"s_lshl_b32 s56, s{S_WAVE}, 7"); I(a, "v_lshlrev_b32 v40, 1, v1"); I(a, "v_add_u32 v40, s56, v40"); I(a, f"v_add_u32 v40, {CV}, v40")
    I(a, f"s_lshl_b32 s56, s{S_WAVE}, 8"); I(a, "v_lshlrev_b32 v41, 2, v1"); I(a, "v_add_u32 v41, s56, v41"); I(a, f"v_add_u32 v41, {CX}, v41")
    a.label(lab)
    I(a, "s_barrier")
    m_issue(a, 0, 2); m_issue(a, 0, 3)
    lab = a.newlabel("ns")
    I(a, "s_cmp_eq_u32 s65, 1"); I(a, f"s_cbranch_scc0 {lab}")
    I(a, f"ds_write_b16 v40, v31"); I(a, f"ds_write_b32 v41, v25"); I(a, "s_waitcnt lgkmcnt(0)")
    a.label(lab)
    I(a, "s_waitcnt vmcnt(8)"); I(a, "s_barrier")
    m_issue_small(a, 0); m_issue(a, 1, 0); m_issue(a, 1, 1)
    lab = a.newlabel("ns")
    I(a, "s_cmp_eq_u32 s65, 1"); I(a, f"s_cbranch_scc0 {lab}")
    lab0 = a.newlabel("ns")
    I(a, f"s_cmp_eq_u32 s{S_WAVE}, 0"); I(a, f"s_cbranch_scc0 {lab0}")
    I(a, "v_and_b32 v40, 31, v1"); I(a, "v_lshlrev_b32 v41, 2, v40"); I(a, f"v_add_u32 v41, {CX}, v41")
    for z in range(8): I(a, f"ds_read_b32 v{32+z}, v41 offset:{z*128}")
    I(a, "s_waitcnt lgkmcnt(0)")
    for z in range(1, 8): I(a, f"v_add_f32 v32, v32, v{32+z}")
    I(a, "v_cvt_pk_bf16_f32 v32, v32, v32"); I(a, "v_lshlrev_b32 v41, 1, v40"); I(a, f"v_add_u32 v41, {CV+512}, v41")
    I(a, "ds_write_b16 v41, v32"); I(a, "s_waitcnt lgkmcnt(0)")
    a.label(lab0)
    side_b(a, 0, 0); side_b(a, 0, 1)
    a.label(lab)
    I(a, "s_waitcnt vmcnt(9)"); I(a, "s_barrier")
    m_issue_small(a, 1); m_issue(a, 1, 2); m_issue(a, 1, 3)
    lab = a.newlabel("ns")
    I(a, "s_cmp_eq_u32 s65, 1"); I(a, f"s_cbranch_scc0 {lab}")
    side_b(a, 0, 2); side_b(a, 0, 3)
    a.label(lab)
    I(a, "s_waitcnt vmcnt(9)"); I(a, "s_barrier")
    lab = a.newlabel("ns")
    I(a, "s_cmp_eq_u32 s65, 1"); I(a, f"s_cbranch_scc0 {lab}")
    side_b(a, 0, 4); side_b(a, 1, 0); side_b(a, 1, 1)
    a.label(lab)
    I(a, "s_waitcnt vmcnt(0)"); I(a, "s_barrier")
    lab = a.newlabel("ns")
    I(a, "s_cmp_eq_u32 s65, 1"); I(a, f"s_cbranch_scc0 {lab}")
    side_b(a, 1, 2); side_b(a, 1, 3); side_b(a, 1, 4)
    I(a, "v_add_f32 v28, v28, v14"); I(a, "v_add_f32 v29, v29, v15")
    I(a, "v_mov_b32 v32, v28"); I(a, "v_mov_b32 v33, v29"); I(a, "s_nop 1")
    I(a, "v_permlane32_swap_b32 v32, v28"); I(a, "v_permlane32_swap_b32 v33, v29"); I(a, "s_nop 1")
    I(a, "v_add_f32 v28, v28, v32"); I(a, "v_add_f32 v29, v29, v33")
    I(a, "s_mov_b32 s6, s4"); I(a, "s_mov_b32 s7, s5"); add64(a, 6, Y_OFF); srd(a, YSRD, 6, 4*YARR)
    I(a, f"s_mul_i32 s56, s64, {YARR}"); I(a, f"s_add_u32 s56, s56, {1024*YP}")
    I(a, "v_cvt_pk_bf16_f32 v31, v28, v28"); I(a, "v_cvt_pk_bf16_f32 v12, v29, v29")
    I(a, f"s_lshl_b32 s57, s{S_WAVE}, 6"); I(a, "v_and_b32 v40, 31, v1"); I(a, "v_lshlrev_b32 v40, 1, v40"); I(a, "v_add_u32 v40, s57, v40")
    I(a, "v_cmp_gt_u32 vcc, 32, v1"); I(a, "v_mov_b32 v42, 0x7ffffff0"); I(a, "s_nop 0"); I(a, "v_cndmask_b32 v40, v42, v40, vcc")
    I(a, f"buffer_store_short v31, v40, s[{YSRD}:{YSRD+3}], s56 offen {ysc}")
    I(a, f"buffer_store_short v12, v40, s[{YSRD}:{YSRD+3}], s56 offen offset:256 {ysc}")
    I(a, "v_mov_b32 v32, 0")
    I(a, f"s_add_u32 s57, s56, {2*YARR}")
    I(a, f"buffer_store_short v32, v40, s[{YSRD}:{YSRD+3}], s57 offen {ysc}")
    I(a, f"buffer_store_short v32, v40, s[{YSRD}:{YSRD+3}], s57 offen offset:256 {ysc}")
    I(a, f"v_mov_b32 v41, {CV+544}"); I(a, "ds_read_u16 v33, v41"); I(a, "v_mov_b32 v40, 512")
    I(a, "v_cmp_eq_u32 vcc, 0, v1"); I(a, "s_nop 1"); I(a, "v_cndmask_b32 v40, v42, v40, vcc")
    I(a, "s_waitcnt lgkmcnt(0)")
    lab3 = a.newlabel("ns")
    I(a, f"s_cmp_eq_u32 s{S_WAVE}, 0"); I(a, f"s_cbranch_scc0 {lab3}")
    I(a, f"buffer_store_short v33, v40, s[{YSRD}:{YSRD+3}], s56 offen {ysc}")
    I(a, f"buffer_store_short v32, v40, s[{YSRD}:{YSRD+3}], s57 offen {ysc}")
    a.label(lab3)
    a.label(lab)
    y_store_setup(a)
    I(a, "s_barrier")
    y_store(a, 8, ysc)
    st(7)
    if stamps: stamps.dump(8, 1)
    I(a, "s_endpgm")
    a.label(f"{pref}_compute")
    I(a, "v_bfe_u32 v40, v1, 2, 2"); I(a, "v_lshrrev_b32 v41, 5, v1"); I(a, "v_lshl_add_u32 v41, v41, 3, v40")
    I(a, f"v_mul_u32_u24 v41, {XFP}, v41"); I(a, f"v_add_u32 v41, {QB}, v41")
    I(a, "v_bfe_u32 v42, v1, 4, 1"); I(a, "v_lshl_add_u32 v41, v42, 5, v41")
    I(a, "v_and_b32 v42, 3, v1"); I(a, "v_lshl_add_u32 v2, v42, 3, v41")
    I(a, "v_and_b32 v40, 31, v1"); I(a, f"s_lshl_b32 s{S_DELTA}, s{S_WAVE}, 12"); I(a, "v_lshlrev_b32 v43, 7, v40"); I(a, f"v_add_u32 v43, s{S_DELTA}, v43")
    I(a, "v_lshrrev_b32 v41, 5, v1"); I(a, "v_bfe_u32 v42, v1, 1, 3"); I(a, "v_xor_b32 v41, v41, v42")
    for kk in range(4):
        I(a, f"v_xor_b32 v44, {2*kk}, v41"); I(a, f"v_lshl_add_u32 v{3+kk}, v44, 4, v43")
    I(a, "v_lshlrev_b32 v43, 7, v40")
    for kk in range(4):
        I(a, f"v_xor_b32 v44, {2*kk}, v41"); I(a, f"v_lshl_add_u32 v{8+kk}, v44, 4, v43")
    I(a, "v_lshlrev_b32 v43, 5, v40"); I(a, "v_lshrrev_b32 v44, 5, v1"); I(a, "v_lshl_add_u32 v7, v44, 4, v43"); I(a, f"v_add_u32 v7, {SMALL}, v7")
    if pre_compute: pre_compute(a)
    for r in range(144): I(a, f"v_mov_b32 v{ACC_A+r}, 0")
    I(a, f"s_mov_b32 s{S_DN}, {(-2*STG) & 0xffffffff}"); I(a, f"s_mov_b32 s{S_DP}, {STG}")
    I(a, "s_waitcnt lgkmcnt(0)")
    st(1)
    I(a, "s_barrier")
    I(a, "s_barrier")
    st(4)
    for r in a_reads(0, 0): I(a, r)
    I(a, f"s_mov_b32 s{S_CNT}, 8"); I(a, f"s_mov_b32 s{S_LEFT}, 0")
    a(".p2align 6")
    a.label(f"{pref}_aloop")
    for kk in range(3):
        I(a, "s_waitcnt lgkmcnt(0)")
        interleave(a, a_mfmas(kk & 1), a_reads((kk+1) & 1, kk+1), 3)
    I(a, "s_waitcnt lgkmcnt(0)"); I(a, "s_barrier")
    mf = a_mfmas(1)
    I(a, mf[0])
    I(a, f"s_add_u32 s{S_LEFT}, s{S_LEFT}, {STG}"); I(a, f"s_cmp_ge_u32 s{S_LEFT}, {3*STG}")
    I(a, f"s_cselect_b32 s{S_DELTA}, s{S_DN}, s{S_DP}"); I(a, f"s_cselect_b32 s{S_LEFT}, 0, s{S_LEFT}")
    for i in range(2, 7): I(a, f"v_add_u32 v{i}, s{S_DELTA}, v{i}")
    interleave(a, mf[1:], a_reads(0, 0) + [f"s_sub_u32 s{S_CNT}, s{S_CNT}, 1", f"s_cmp_lg_u32 s{S_CNT}, 0"], 3)
    I(a, f"s_cbranch_scc1 {pref}_aloop")
    I(a, "s_waitcnt lgkmcnt(0)")
    for m in a_mfmas(0): I(a, m)
    I(a, "s_barrier")
    st(2)
    I(a, "s_nop 7"); I(a, "s_nop 3")
    I(a, f"v_cvt_pk_bf16_f32 v2, v{ACC_A+128+8}, v{ACC_A+128+8}")
    for kap in range(17):
        nb, k2 = kap // 2, kap % 2
        c = ACC_A + 16*nb + 8*k2; t = TB + 4*kap
        for z in range(4): I(a, f"v_cvt_pk_bf16_f32 v{t+z}, v{c+2*z}, v{c+2*z+1}")
        if kap > 0:
            tp = TB + 4*(kap-1)
            I(a, f"v_permlane32_swap_b32 v{tp}, v{tp+2}"); I(a, f"v_permlane32_swap_b32 v{tp+1}, v{tp+3}")
    I(a, "s_nop 1")
    tp = TB + 4*16
    I(a, f"v_permlane32_swap_b32 v{tp}, v{tp+2}"); I(a, f"v_permlane32_swap_b32 v{tp+1}, v{tp+3}")
    I(a, "s_barrier")
    st(3)
    subs = [(h, kap) for h in range(2) for kap in range(17)]
    cur_base = [0]
    def rd(idx):
        h, kap = subs[idx]; s, kk = kap // 4, kap % 4
        F = BF[idx % 3]
        out = []
        if kap == 16:
            for nb in range(4): out.append(f"ds_read_b128 v[{F[nb]}:{F[nb]+3}], v7 offset:{h*4096 + nb*1024}")
            return out
        slot = h*4 + s
        base = (slot // 3)*3
        if base != cur_base[0]:
            d = (base - cur_base[0])*RSZ
            for i in range(8, 12): out.append(f"v_add_u32 v{i}, {d}, v{i}")
            cur_base[0] = base
        for nb in range(4): out.append(f"ds_read_b128 v[{F[nb]}:{F[nb]+3}], v{8+kk} offset:{(slot-base)*RSZ + nb*4096}")
        return out
    def need_barrier(idx):
        h, kap = subs[idx]
        return (h, kap) in ((0, 8), (0, 16), (1, 8))
    I(a, "v_and_b32 v4, 31, v1"); I(a, f"s_lshl_b32 s57, s{S_WAVE}, 14"); I(a, "v_lshlrev_b32 v3, 9, v4"); I(a, "v_add_u32 v3, s57, v3")
    I(a, "v_lshrrev_b32 v5, 5, v1"); I(a, "v_lshl_add_u32 v3, v5, 3, v3"); I(a, "v_and_b32 v4, 7, v4"); I(a, "v_lshl_add_u32 v3, v4, 4, v3")
    def epi_fill(h):
        out = []
        for nb in range(4):
            for q in range(4):
                c = ACC_B + 16*(4*h+nb) + 4*q; ch = (4*h+nb)*4 + q
                out += [f"v_cvt_pk_bf16_f32 v4, v{c}, v{c+1}", f"v_cvt_pk_bf16_f32 v5, v{c+2}, v{c+3}", f"v_xor_b32 v6, {(ch & 7) << 4}, v3",
                        f"ds_write_b64 v6, v[4:5] offset:{(ch >> 3)*128}"]
        return out
    pend = epi_fill(0)
    q = []
    def emit(ins_list, tag):
        for ins in ins_list:
            I(a, ins)
            if ins.startswith("ds_"): q.append(tag if ins.startswith("ds_read") else "w")
    emit(rd(0), 0); emit(rd(1), 1)
    for idx, (h, kap) in enumerate(subs):
        nxt = idx + 2
        last = max(i for i, t in enumerate(q) if t == idx)
        n_after = len(q) - 1 - last
        I(a, f"s_waitcnt lgkmcnt({min(n_after, 15)})")
        del q[:last+1]
        if nxt < len(subs) and need_barrier(nxt): I(a, "s_barrier")
        F = BF[idx % 3]
        mf = []
        for nb in range(4):
            c = ACC_B + 16*(4*h + nb)
            src = "0" if kap == 0 else f"v[{c}:{c+15}]"
            mf.append(f"v_mfma_f32_32x32x16_bf16 v[{c}:{c+15}], v[{F[nb]}:{F[nb]+3}], v[{TB+4*kap}:{TB+4*kap+3}], {src}")
        fill = rd(nxt) if nxt < len(subs) else []
        per = 2
        if h == 1 and kap >= 8:
            take = 8 if kap < 16 else len(pend)
            fill = fill + pend[:take]; pend = pend[take:]; per = 4
        fl = list(fill)
        for m in mf:
            I(a, m)
            emit(fl[:per], nxt); fl = fl[per:]
        emit(fl, nxt)
    assert not pend
    I(a, "s_nop 7"); I(a, "s_nop 3")
    st(5)
    for ins in epi_fill(1): I(a, ins)
    y_store_setup(a)
    I(a, "v_and_b32 v40, 31, v1"); I(a, f"s_lshl_b32 s{S_DELTA}, s{S_WAVE}, 5"); I(a, f"v_add_u32 v41, s{S_DELTA}, v40")
    I(a, "s_lshl_b32 s57, s61, 8"); I(a, "s_add_u32 s57, s57, s63")
    I(a, "v_lshlrev_b32 v41, 1, v41"); I(a, "v_add_u32 v41, s57, v41"); I(a, f"v_mul_u32_u24 v41, {YP}, v41"); I(a, "v_add_u32 v41, 512, v41")
    I(a, "v_cmp_gt_u32 vcc, 32, v1"); I(a, "v_mov_b32 v42, 0x7ffffff0"); I(a, "s_nop 0"); I(a, "v_cndmask_b32 v41, v42, v41, vcc")
    I(a, f"buffer_store_short v2, v41, s[{YSRD}:{YSRD+3}], s56 offen {ysc}")
    I(a, "s_waitcnt lgkmcnt(0)"); I(a, "s_barrier")
    y_store(a, 0, ysc)
    st(6)
    if stamps: I(a, "s_waitcnt vmcnt(0)")
    st(7)
    if stamps: stamps.dump(8, 0)
    I(a, "s_endpgm")
```

```python
from asmgen import *
from k0 import XFP, XFARR

def wave_sums(a, regs, sdst0):
    steps = ["row_shr:1 row_mask:0xf bank_mask:0xf bound_ctrl:0", "row_shr:2 row_mask:0xf bank_mask:0xf bound_ctrl:0",
             "row_shr:4 row_mask:0xf bank_mask:0xf bound_ctrl:0", "row_shr:8 row_mask:0xf bank_mask:0xf bound_ctrl:0",
             "row_bcast:15 row_mask:0xa bank_mask:0xf", "row_bcast:31 row_mask:0xc bank_mask:0xf"]
    assert len(regs) >= 3
    for s in steps:
        for r in regs: I(a, f"v_add_f32_dpp v{r}, v{r}, v{r} {s}")
    I(a, "s_nop 0")
    for i, r in enumerate(regs): I(a, f"v_readlane_b32 s{sdst0+i}, v{r}, 63")

def fold_pre(a, s_sp):
    I(a, f"s_lshl_b32 s50, s{s_sp}, 11")
    I(a, f"s_sub_u32 s51, 2048, s{s_sp}"); I(a, "s_lshl_b32 s51, s51, 11")
    I(a, f"s_sub_u32 s52, 1024, s{s_sp}"); I(a, "s_lshl_b32 s52, s52, 11")
    I(a, f"s_add_u32 s53, 1024, s{s_sp}"); I(a, "s_lshl_b32 s53, s53, 11")
    I(a, f"s_cmp_eq_u32 s{s_sp}, 0"); I(a, "s_cselect_b32 s53, 0x400000, s53")
    I(a, f"s_cmp_eq_u32 s{s_sp}, 512"); I(a, "s_cselect_b32 s52, 0x400000, s52"); I(a, "s_cselect_b32 s53, 0x400000, s53")
    I(a, "v_lshlrev_b32 v6, 4, v1")

def fold_loads(a, x_srd, gw_srd, s_lds):
    for r in range(4):
        I(a, f"s_add_u32 m0, s{s_lds}, {r*2048}"); I(a, "s_nop 0")
        I(a, f"buffer_load_dwordx4 v6, s[{x_srd}:{x_srd+3}], s{50+r} offen lds")
        I(a, f"buffer_load_dwordx4 v6, s[{x_srd}:{x_srd+3}], s{50+r} offen offset:1024 lds")
    I(a, f"s_add_u32 m0, s{s_lds}, {4*2048}"); I(a, "s_nop 0")
    I(a, f"buffer_load_dwordx4 v6, s[{gw_srd}:{gw_srd+3}], 0 offen lds")
    I(a, f"buffer_load_dwordx4 v6, s[{gw_srd}:{gw_srd+3}], 0 offen offset:1024 lds")

def fold_lds_reads(a, s_lds, st=None, nyounger=0):
    LD = 16; GW = 64
    I(a, "v_lshlrev_b32 v2, 3, v1")
    I(a, f"v_add_u32 v3, s{s_lds}, v2")
    I(a, f"v_sub_u32 v4, s{s_lds}, v2")
    I(a, f"s_waitcnt vmcnt({nyounger})")
    if st: st(2)
    for r in range(5):
        b = (LD + 12*r) if r < 4 else GW
        o = r*2048
        I(a, f"ds_read_b64 v[{b}:{b+1}], v3 offset:{o}")
        I(a, f"ds_read_b64 v[{b+2}:{b+3}], v3 offset:{o+1024}")
        I(a, f"ds_read_b64 v[{b+4}:{b+5}], v4 offset:{o+2040}")
        I(a, f"ds_read_b32 v{b+6}, v4 offset:{o+2048}")
        I(a, f"ds_read_b64 v[{b+8}:{b+9}], v4 offset:{o+1016}")
        I(a, f"ds_read_b32 v{b+10}, v4 offset:{o+1024}")

def fold_compute(a, s_sp, xf_srd, g_srd, sc="sc1", st=None, after_reads=None):
    LD = 16; GW = 64; U = 80; GU = 152
    I(a, "v_cmp_eq_u32 s[54:55], 0, v1"); I(a, "v_cmp_eq_u32 s[56:57], 63, v1")
    def unpack(src, dst):
        lo = lambda d, s: I(a, f"v_lshlrev_b32 v{d}, 16, v{s}")
        hi = lambda d, s: I(a, f"v_and_b32 v{d}, 0xffff0000, v{s}")
        lo(dst+0, src); hi(dst+1, src); lo(dst+2, src+1); hi(dst+3, src+1)
        lo(dst+4, src+2); hi(dst+5, src+2); lo(dst+6, src+3); hi(dst+7, src+3)
        lo(dst+8, src+6); hi(dst+9, src+5); lo(dst+10, src+5); hi(dst+11, src+4)
        lo(dst+12, src+10); hi(dst+13, src+9); lo(dst+14, src+9); hi(dst+15, src+8)
        lo(dst+16, src+8); lo(dst+17, src+4)
    I(a, "s_waitcnt lgkmcnt(0)")
    if after_reads: after_reads()
    unpack(GW, GU)
    I(a, f"v_cndmask_b32 v{GU+16}, 0, v{GU+16}, s[56:57]"); I(a, f"v_cndmask_b32 v{GU+17}, 0, v{GU+17}, s[56:57]")
    I(a, f"v_cndmask_b32 v{GU+8}, v{GU+8}, 0, s[54:55]")
    for r in range(4):
        unpack(LD + 12*r, U + 18*r)
        I(a, f"v_cndmask_b32 v{U+18*r+8}, v{U+18*r+8}, 0, s[54:55]"); I(a, f"v_cndmask_b32 v{U+18*r+4}, v{U+18*r+4}, 0, s[54:55]")
    for r in range(4):
        I(a, f"v_pk_mul_f32 v[{8+2*r}:{9+2*r}], v[{U+18*r}:{U+18*r+1}], v[{GU}:{GU+1}]")
    for e in range(2, 18, 2):
        for r in range(4):
            I(a, f"v_pk_fma_f32 v[{8+2*r}:{9+2*r}], v[{U+18*r+e}:{U+18*r+e+1}], v[{GU+e}:{GU+e+1}], v[{8+2*r}:{9+2*r}]")
    for r in range(4): I(a, f"v_add_f32 v{8+2*r}, v{8+2*r}, v{9+2*r}")
    def pk(d, x, y, neg=False):
        n = " neg_lo:[0,1] neg_hi:[0,1]" if neg else ""
        I(a, f"v_pk_add_f32 v[{d}:{d+1}], v[{x}:{x+1}], v[{y}:{y+1}]{n}")
    T = 172
    for e in range(0, 18, 2):
        R = [U + 18*r + e for r in range(4)]
        pk(T, R[0], R[1]); pk(T+2, R[0], R[1], True); pk(T+4, R[2], R[3]); pk(T+6, R[2], R[3], True)
        pk(R[0], T, T+4); pk(R[1], T, T+4, True); pk(R[2], T+2, T+6, True); pk(R[3], T+2, T+6)
    O = 16
    for X in range(4):
        b = U + 18*X; typ = X >> 1; ps = X & 1
        c0 = typ*4 + ps*2; c1 = c0 + 1
        for j in (0, 2):
            if typ == 0:
                pk(T, b+j, b+8+j); pk(T+2, b+12+j, b+4+j); pk(O+c0*6+j, T, T+2); pk(O+c1*6+j, T, T+2, True)
            else:
                pk(T, b+j, b+8+j, True); pk(T+2, b+12+j, b+4+j, True); pk(O+c0*6+j, T, T+2, True); pk(O+c1*6+j, T, T+2)
        if typ == 0:
            I(a, f"v_add_f32 v{O+c0*6+4}, v{b+16}, v{b+17}"); I(a, f"v_mov_b32 v{O+c1*6+4}, 0")
        else:
            I(a, f"v_mov_b32 v{O+c0*6+4}, 0"); I(a, f"v_sub_f32 v{O+c1*6+4}, v{b+16}, v{b+17}")
            I(a, f"v_cndmask_b32 v{O+c0*6}, v{O+c0*6}, 0, s[54:55]"); I(a, f"v_cndmask_b32 v{O+c1*6}, v{O+c1*6}, 0, s[54:55]")
    lab = a.newlabel("fm")
    I(a, f"s_and_b32 s58, s{s_sp}, 511"); I(a, "s_cmp_eq_u32 s58, 0"); I(a, f"s_cbranch_scc0 {lab}")
    I(a, f"s_cmp_eq_u32 s{s_sp}, 512"); I(a, "s_cselect_b32 s58, 0, 1.0"); I(a, "s_mov_b32 s59, 0"); I(a, "s_cselect_b32 s60, 1.0, 0")
    for c, sm in ((2, 58), (3, 58), (4, 59), (5, 59), (6, 60), (7, 60)):
        for j in range(5): I(a, f"v_mul_f32 v{O+c*6+j}, s{sm}, v{O+c*6+j}")
    a.label(lab)
    for c, rv in ((0, 9), (2, 11)):
        I(a, f"v_sub_f32 v{rv}, v{O+c*6}, v{O+c*6+1}"); I(a, f"v_add_f32 v{rv}, v{rv}, v{O+c*6+2}"); I(a, f"v_sub_f32 v{rv}, v{rv}, v{O+c*6+3}")
        I(a, f"v_cndmask_b32 v13, 0, v{O+c*6+4}, s[56:57]"); I(a, f"v_add_f32 v{rv}, v{rv}, v13")
    if st: st(3)
    I(a, f"s_mul_i32 s67, s{s_sp}, {XFP}")
    for c in range(8):
        t = T + (c % 4)*2
        I(a, f"v_cvt_pk_bf16_f32 v{t}, v{O+c*6}, v{O+c*6+1}"); I(a, f"v_cvt_pk_bf16_f32 v{t+1}, v{O+c*6+2}, v{O+c*6+3}")
        I(a, f"s_add_u32 s68, s67, {c*XFARR}")
        I(a, f"buffer_store_dwordx2 v[{t}:{t+1}], v2, s[{xf_srd}:{xf_srd+3}], s68 offen {sc}")
    if st: st(4)
    wave_sums(a, [8, 10, 12, 14, 9, 11], 61)
    I(a, "v_lshrrev_b32 v6, 2, v1"); I(a, "v_and_b32 v7, 3, v1")
    I(a, f"v_mul_u32_u24 v13, {XFARR >> 4}, v6"); I(a, "v_lshlrev_b32 v13, 4, v13"); I(a, "v_lshl_add_u32 v13, v7, 4, v13"); I(a, "v_add_u32 v13, 512, v13")
    I(a, "v_cmp_gt_u32 vcc, 32, v1"); I(a, "v_mov_b32 v15, 0x7ffffff0"); I(a, "v_mov_b32 v176, 0"); I(a, "v_cndmask_b32 v13, v15, v13, vcc")
    for c in (0, 2, 5, 7):
        I(a, f"v_readlane_b32 s68, v{O+c*6+4}, 63"); I(a, "s_nop 3"); I(a, f"v_writelane_b32 v176, s68, {c*4}")
    I(a, f"v_writelane_b32 v176, s65, 2"); I(a, f"v_writelane_b32 v176, s66, {2*4+2}")
    I(a, "v_mov_b32 v177, 0"); I(a, "v_mov_b32 v178, 0"); I(a, "v_mov_b32 v179, 0")
    I(a, "v_cvt_pk_bf16_f32 v176, v176, 0")
    I(a, f"buffer_store_dwordx4 v[176:179], v13, s[{xf_srd}:{xf_srd+3}], s67 offen {sc}")
    I(a, "v_mov_b32 v8, s61")
    I(a, f"v_writelane_b32 v8, s62, 1"); I(a, f"v_writelane_b32 v8, s63, 2"); I(a, f"v_writelane_b32 v8, s64, 3")
    I(a, "v_mov_b32 v12, s50")
    I(a, f"v_writelane_b32 v12, s51, 1"); I(a, f"v_writelane_b32 v12, s52, 2"); I(a, f"v_writelane_b32 v12, s53, 3")
    I(a, "v_mul_f32 v9, 0xbfb8aa3b, v8"); I(a, "v_exp_f32 v9, v9"); I(a, "v_lshrrev_b32 v12, 8, v12"); I(a, "v_add_f32 v9, 1.0, v9"); I(a, "v_rcp_f32 v10, v9")
    I(a, "v_cmp_gt_u32 vcc, 4, v1"); I(a, "v_mov_b32 v9, 0x7ffffff0"); I(a, "v_sub_f32 v11, 1.0, v10"); I(a, "v_cndmask_b32 v12, v9, v12, vcc")
    I(a, f"buffer_store_dwordx2 v[10:11], v12, s[{g_srd}:{g_srd+3}], 0 offen")

def fold_zero(a, s_sp, xf_srd, sc="sc1"):
    I(a, "v_lshlrev_b32 v2, 4, v1"); I(a, "v_cmp_gt_u32 vcc, 36, v1"); I(a, "v_mov_b32 v3, 0x7ffffff0"); I(a, "v_mov_b32 v4, 0"); I(a, "v_cndmask_b32 v2, v3, v2, vcc")
    for r in range(5, 8): I(a, f"v_mov_b32 v{r}, 0")
    I(a, f"s_mul_i32 s58, s{s_sp}, {XFP}")
    for c in range(8):
        I(a, f"s_add_u32 s59, s58, {c*XFARR}")
        I(a, f"buffer_store_dwordx4 v[4:7], v2, s[{xf_srd}:{xf_srd+3}], s59 offen {sc}")
```

```python
from asmgen import *
from gemm2 import *
import gemm3
from gemm3 import acc16, fr16, reads16, mfma16, nblk16, V_QA as QA16
from p1v2 import load_ptr, epi_addrs_read, wave_origin
from p2 import StampsAt, add64, FLAG_OFF, G_OFF
from k0 import XF_OFF, XFP, XFARR
import fold2, awg3
FOLDF_OFF = 34 << 20
S_PFS = 56; S_PFOFF = 60; S_PFSTEP = 61; V_PF = 30

def compute_loop16p(a, g, bias_base, hook_label=None, hook_cnt=None, stamp=None):
    p = g.pref; NB, MB = nblk16(g); naddr = 2 + NB
    I(a, "s_barrier")
    if stamp: I(a, stamp); I(a, "s_waitcnt lgkmcnt(0)")
    for r in reads16(g, 0, 0): I(a, r)
    I(a, f"s_mov_b32 s{S_CNT}, {g.nk}"); I(a, f"s_mov_b32 s{S_LEFT}, 0")
    A, B = fr16(g, 0)
    first = [f"v_mfma_f32_16x16x32_bf16 v[{acc16(g,nb,mb)}:{acc16(g,nb,mb)+3}], v[{A[nb]}:{A[nb]+3}], v[{B[mb]}:{B[mb]+3}], v[{bias_base+4*nb}:{bias_base+4*nb+3}]" for nb in range(NB) for mb in range(MB)]
    I(a, "s_waitcnt lgkmcnt(0)")
    interleave(a, first, reads16(g, 1, 1), 1)
    if hook_label:
        I(a, f"s_branch {hook_label}")
    else:
        I(a, f"s_branch {p}_c_mid")
    a(".p2align 6")
    a.label(f"{p}_c_loop")
    I(a, "s_waitcnt lgkmcnt(0)")
    interleave(a, mfma16(g, 0), reads16(g, 1, 1), 1)
    a.label(f"{p}_c_mid")
    I(a, "s_waitcnt lgkmcnt(0)"); I(a, "s_barrier")
    mf = mfma16(g, 1)
    I(a, mf[0])
    I(a, f"s_add_u32 s{S_LEFT}, s{S_LEFT}, {g.STAGE}"); I(a, f"s_cmp_ge_u32 s{S_LEFT}, {g.LDS}")
    I(a, mf[1])
    I(a, f"s_cselect_b32 s{S_DELTA}, s{S_DN}, s{S_DP}"); I(a, f"s_cselect_b32 s{S_LEFT}, 0, s{S_LEFT}")
    vupd = [f"v_add_u32 v{QA16+i}, s{S_DELTA}, v{QA16+i}" for i in range(naddr)]
    fill = vupd + reads16(g, 0, 0) + [f"s_sub_u32 s{S_CNT}, s{S_CNT}, 1", f"s_cmp_lg_u32 s{S_CNT}, 0"]
    interleave(a, mf[2:], fill, 1)
    I(a, f"s_cbranch_scc1 {p}_c_loop")
    I(a, "s_waitcnt lgkmcnt(0)")

def k_k1(a, name, stamps=False, hsc="", astamp=False, npf0=3, w3pf=False, steppf=True, trace=False, pf_after=True, fstamp=False):
    g = G(BM=256, BN=128, WM=2, WN=2, NS=3, ldq=2048, ldp=7168, nk=16, pref="p1")
    st = StampsAt(a, stamps, 70)
    kernel_begin(a, name)
    st(0)
    I(a, "s_cmp_ge_u32 s2, 256"); I(a, "s_cbranch_scc1 p1_end")
    lane_wave(a)
    I(a, "s_cmp_ge_u32 s2, 224"); I(a, "s_cbranch_scc1 aw_entry")
    load_ptr(a, 4, 0); load_ptr(a, 20, 48, 4); load_ptr(a, 24, 104); load_ptr(a, 36, 64); load_ptr(a, 38, 80); load_ptr(a, 62, 96)
    I(a, "s_and_b32 s26, s2, 7"); I(a, "s_lshr_b32 s27, s2, 3")
    I(a, "s_mul_i32 s28, s27, 37"); I(a, "s_lshr_b32 s28, s28, 8")
    I(a, "s_mul_i32 s29, s28, 7"); I(a, "s_sub_u32 s27, s27, s29")
    I(a, "s_lshr_b32 s29, s26, 2"); I(a, "s_and_b32 s26, s26, 3")
    I(a, "s_lshl_b32 s29, s29, 2"); I(a, "s_add_u32 s28, s28, s29")
    I(a, "s_mul_i32 s26, s26, 7"); I(a, "s_add_u32 s29, s26, s27")
    I(a, f"s_mul_i32 s{S_QOFF}, s28, {256*2048}")
    I(a, f"s_mul_i32 s{S_POFF}, s29, {128*2}")
    I(a, f"s_mov_b32 s{S_QSRD+2}, {2048*1024*2}"); I(a, f"s_mov_b32 s{S_QSRD+3}, 0x00020000")
    I(a, f"s_mov_b32 s{S_PSRD+2}, {1024*3584*2}"); I(a, f"s_mov_b32 s{S_PSRD+3}, 0x00020000")
    I(a, f"s_cmp_ge_u32 s{S_WAVE}, 4"); I(a, "s_cbranch_scc0 p1_compute")
    I(a, f"s_sub_u32 s{S_WAVE}, s{S_WAVE}, 4")
    gemm3.loader_voffsets16(a, g)
    I(a, f"s_cmp_eq_u32 s{S_WAVE}, 0"); I(a, f"s_cselect_b32 s{S_TMP}, 16, 0")
    I(a, f"s_mul_i32 s{S_DELTA}, s2, 16"); I(a, f"v_add_u32 v{V_PF}, s{S_DELTA}, v1"); I(a, f"v_lshlrev_b32 v{V_PF}, 7, v{V_PF}")
    I(a, f"v_cmp_gt_u32 vcc, s{S_TMP}, v1"); I(a, f"v_mov_b32 v46, 0x7ffffff0"); I(a, "s_nop 0"); I(a, f"v_cndmask_b32 v{V_PF}, v46, v{V_PF}, vcc")
    I(a, "s_waitcnt lgkmcnt(0)")
    st(1)
    I(a, f"s_mov_b32 s{S_QSRD}, s4"); I(a, f"s_and_b32 s{S_QSRD+1}, s5, 0xffff")
    I(a, f"s_mov_b32 s{S_PSRD}, s20"); I(a, f"s_and_b32 s{S_PSRD+1}, s21, 0xffff")
    I(a, f"s_mov_b32 s{S_PFOFF}, {64*7168}")
    X = 1 if steppf else 0
    def pf():
        if not steppf: return
        I(a, f"buffer_load_dword v47, v{V_PF}, s[{S_PSRD}:{S_PSRD+3}], s{S_PFOFF} offen")
        I(a, f"s_add_u32 s{S_PFOFF}, s{S_PFOFF}, {64*7168}")
    if trace:
        I(a, "s_add_u32 s64, s24, 0x6400000"); I(a, "s_addc_u32 s65, s25, 0"); srd(a, 84, 64, 1<<22)
        I(a, "s_lshl_b32 s62, s2, 12"); I(a, f"s_lshl_b32 s68, s{S_WAVE}, 10"); I(a, "s_add_u32 s68, s68, s62"); I(a, "v_mov_b32 v31, 0")
    def tr():
        if not trace: return
        I(a, "s_memrealtime s[90:91]"); I(a, "s_memtime s[92:93]"); I(a, "s_waitcnt lgkmcnt(0)")
        I(a, "v_mov_b32 v28, s90"); I(a, "v_mov_b32 v29, s92")
        I(a, "buffer_store_dwordx2 v[28:29], v31, s[84:87], s68 offen"); I(a, "s_add_u32 s68, s68, 8")
    if trace: X += 1
    st(2)
    PER = g.PER
    if not pf_after:
        for i in range(npf0): pf()
    stage_issue(a, g)
    st(3)
    stage_issue(a, g)
    npa = (npf0 if (pf_after and steppf) else 0)
    if pf_after:
        for i in range(npf0): pf()
    I(a, f"s_waitcnt vmcnt({PER+npa})")
    st(4)
    I(a, "s_barrier"); tr()
    stage_issue(a, g); pf()
    I(a, f"s_waitcnt vmcnt({npa + PER + X})"); I(a, "s_barrier"); tr(); stage_issue(a, g); pf()
    I(a, f"s_mov_b32 s{S_CNT}, {g.nk-3-1}")
    a.label("p1_ld_loop")
    I(a, f"s_waitcnt vmcnt({PER + X + (1 if steppf else 0)})"); I(a, "s_barrier"); tr(); stage_issue(a, g); pf()
    I(a, f"s_sub_u32 s{S_CNT}, s{S_CNT}, 1"); I(a, f"s_cmp_lg_u32 s{S_CNT}, 0"); I(a, "s_cbranch_scc1 p1_ld_loop")
    I(a, "s_bfe_u32 s60, s2, 0x10001"); I(a, f"s_mul_i32 s60, s60, {1792*2048}")
    I(a, "s_and_b32 s61, s2, 1"); I(a, "s_lshl_b32 s61, s61, 10"); I(a, "s_add_u32 s60, s60, s61")
    I(a, "s_lshr_b32 s61, s2, 3"); I(a, f"s_mul_i32 s61, s61, {64*2048}"); I(a, "s_add_u32 s60, s60, s61")
    I(a, f"s_mul_i32 s61, s{S_WAVE}, {16*2048}"); I(a, "s_add_u32 s60, s60, s61")
    srd(a, S_PFS, 36, 3584*1024*2)
    I(a, "v_lshrrev_b32 v46, 3, v1"); I(a, "v_lshlrev_b32 v46, 11, v46"); I(a, "v_and_b32 v45, 7, v1"); I(a, "v_lshl_add_u32 v46, v45, 7, v46")
    I(a, f"buffer_load_dword v47, v46, s[{S_PFS}:{S_PFS+3}], s60 offen")
    I(a, f"s_add_u32 s60, s60, {8*2048}")
    I(a, f"buffer_load_dword v47, v46, s[{S_PFS}:{S_PFS+3}], s60 offen")
    I(a, f"s_waitcnt vmcnt({PER + X + (1 if steppf else 0) + 2})"); I(a, "s_barrier")
    I(a, f"s_waitcnt vmcnt({(1 if steppf else 0) + 2})"); I(a, "s_barrier")
    I(a, f"s_barrier")
    st(5)
    srd(a, 16, 24, 2048*3584*2)
    wave_origin(a, g, 28, 29, 30, 31)
    epi_addrs_read(a, g, 7168, 30, 31)
    I(a, f"s_cmp_eq_u32 s{S_WAVE}, 3"); I(a, "s_cbranch_scc0 p1_noflag")
    I(a, "s_mov_b32 s6, s24"); I(a, "s_mov_b32 s7, s25"); add64(a, 6, FLAG_OFF); srd(a, 32, 6, 256*128)
    I(a, "v_mul_u32_u24 v40, 224, v1"); I(a, "v_add_u32 v40, s2, v40"); I(a, "v_lshlrev_b32 v40, 7, v40"); I(a, "v_mov_b32 v42, 0"); I(a, "v_mov_b32 v43, 0")
    I(a, "buffer_store_dwordx2 v[42:43], v40, s[32:35], 0 offen")
    a.label("p1_noflag")
    for mb in range(4):
        I(a, "s_barrier")
        for i in range(4):
            r = 64 + mb*16 + i*4
            I(a, f"ds_read_b128 v[{r}:{r+3}], v62 offset:{mb*4096 + i*1024}")
        for i in range(4):
            r = 64 + mb*16 + i*4
            I(a, f"s_mov_b32 s{S_TMP2}, {(mb*32 + i*8) * 7168}")
            I(a, f"s_waitcnt lgkmcnt({3-i})")
            I(a, f"buffer_store_dwordx4 v[{r}:{r+3}], v63, s[16:19], s{S_TMP2} offen {hsc}")
    st(6)
    if stamps: I(a, "s_waitcnt vmcnt(0)")
    st(7); st.dump(8, 1)
    I(a, "s_endpgm")
    a.label("p1_compute")
    I(a, "s_setprio 3")
    I(a, f"s_lshl_b32 s69, s2, 2"); I(a, f"s_add_u32 s69, s69, s{S_WAVE}")
    fold2.fold_pre(a, 69)
    I(a, f"s_mul_i32 s68, s{S_WAVE}, 10240"); I(a, f"s_add_u32 s68, s68, {2*g.STAGE}")
    I(a, "s_mov_b32 s14, 2048"); I(a, "s_mov_b32 s15, 0x00020000")
    wave_origin(a, g, 28, 29, 30, 31)
    I(a, "v_lshrrev_b32 v8, 4, v1"); I(a, "v_lshlrev_b32 v8, 3, v8")
    I(a, "s_waitcnt lgkmcnt(0)")
    st(1)
    I(a, f"s_mov_b32 s{S_QSRD}, s4"); I(a, f"s_and_b32 s{S_QSRD+1}, s5, 0xffff")
    I(a, "s_mov_b32 s12, s38"); I(a, "s_and_b32 s13, s39, 0xffff")
    I(a, "s_cmp_gt_u32 s69, 512"); I(a, "s_cbranch_scc1 p1_skipload")
    fold2.fold_loads(a, S_QSRD, 12, 68)
    a.label("p1_skipload")
    if fstamp == 2: st(2)
    srd(a, 32, 22, 3584*2)
    I(a, "s_mov_b32 s6, s24"); I(a, "s_mov_b32 s7, s25"); add64(a, 6, XF_OFF); srd(a, 16, 6, 8*XFARR)
    I(a, "s_mov_b32 s6, s24"); I(a, "s_mov_b32 s7, s25"); add64(a, 6, G_OFF); srd(a, 40, 6, 2048*8)
    I(a, "s_mov_b32 s6, s24"); I(a, "s_mov_b32 s7, s25"); add64(a, 6, FOLDF_OFF); srd(a, 92, 6, 528*8)
    srd(a, 88, 62, 256)
    I(a, "s_cmp_gt_u32 s69, 527"); I(a, "s_cbranch_scc1 p1_nofold")
    I(a, "s_cmp_gt_u32 s69, 512"); I(a, "s_cbranch_scc1 p1_zero")
    for nb in range(4):
        I(a, f"buffer_load_dwordx2 v[{184+2*nb}:{184+2*nb+1}], v8, s[32:35], s31 offen offset:{nb*32}")
    if fstamp == 2: st(3)
    fold2.fold_lds_reads(a, 68, (st if fstamp == 1 else ((lambda i: st(4)) if fstamp == 2 else None)), nyounger=4)
    I(a, "v_mov_b32 v192, 0")
    fold2.fold_compute(a, 69, 16, 40, st=st if fstamp == 1 else None)
    if fstamp:
        st(5); I(a, 's_waitcnt vmcnt(0)'); st(6)
    I(a, "buffer_load_dword v26, v192, s[88:91], 0 offen sc1")
    I(a, "s_waitcnt vmcnt(11)")
    I(a, "s_branch p1_folded")
    a.label("p1_zero")
    for nb in range(4):
        I(a, f"buffer_load_dwordx2 v[{184+2*nb}:{184+2*nb+1}], v8, s[32:35], s31 offen offset:{nb*32}")
    fold2.fold_zero(a, 69, 16)
    I(a, "v_mov_b32 v192, 0")
    I(a, "buffer_load_dword v26, v192, s[88:91], 0 offen sc1")
    I(a, "s_waitcnt vmcnt(9)")
    I(a, "s_branch p1_folded")
    a.label("p1_nofold")
    for nb in range(4):
        I(a, f"buffer_load_dwordx2 v[{184+2*nb}:{184+2*nb+1}], v8, s[32:35], s31 offen offset:{nb*32}")
    I(a, f"s_cmp_eq_u32 s{S_WAVE}, {3 if w3pf else 99}"); I(a, "s_cbranch_scc0 p1_nopf")
    load_ptr(a, 52, 8, 4); load_ptr(a, 64, 24, 4)
    I(a, "s_lshl_b32 s58, s2, 6"); I(a, "v_add_u32 v4, s58, v1")
    I(a, f"s_mov_b32 s59, {(1<<32)//9+1}"); I(a, "v_mul_hi_u32 v5, v4, s59"); I(a, "v_mul_u32_u24 v6, 9, v5"); I(a, "v_sub_u32 v6, v4, v6")
    I(a, "v_lshlrev_b32 v7, 12, v5"); I(a, "v_lshl_add_u32 v7, v6, 7, v7")
    I(a, "v_cmp_ge_u32 vcc, 1024, v5"); I(a, "v_mov_b32 v9, 0x7ffffff0"); I(a, "s_waitcnt lgkmcnt(0)"); I(a, "v_cndmask_b32 v7, v9, v7, vcc")
    srd(a, 12, 52, 2048*2048*2); srd(a, 16, 54, 2048*2048*2)
    I(a, "buffer_load_dword v25, v7, s[12:15], 0 offen"); I(a, "buffer_load_dword v25, v7, s[16:19], 0 offen")
    I(a, f"s_mov_b32 s59, {(1<<32)//5+1}"); I(a, "v_mul_hi_u32 v5, v4, s59"); I(a, "v_mul_u32_u24 v6, 5, v5"); I(a, "v_sub_u32 v6, v4, v6")
    I(a, "v_lshlrev_b32 v7, 11, v5"); I(a, "v_lshl_add_u32 v7, v6, 7, v7")
    I(a, "v_cmp_ge_u32 vcc, 512, v5"); I(a, "v_mov_b32 v9, 0x7ffffff0"); I(a, "s_nop 0"); I(a, "v_cndmask_b32 v7, v9, v7, vcc")
    srd(a, 12, 64, 1024*1024*2); srd(a, 16, 66, 1024*1024*2)
    I(a, "buffer_load_dword v25, v7, s[12:15], 0 offen"); I(a, "buffer_load_dword v25, v7, s[16:19], 0 offen")
    I(a, "s_waitcnt vmcnt(4)")
    I(a, "s_branch p1_folded")
    a.label("p1_nopf")
    I(a, "s_waitcnt vmcnt(0)")
    a.label("p1_folded")
    if fstamp:
        st(7); st0 = st; st = (lambda i: None)
    st(2)
    for nb in range(4):
        for j in range(4):
            src = 184 + 2*nb + j//2; d = 8 + 4*nb + j
            if j % 2 == 0: I(a, f"v_lshlrev_b32 v{d}, 16, v{src}")
            else: I(a, f"v_and_b32 v{d}, 0xffff0000, v{src}")
    setup16_noclobber(a, g)
    st(3)
    compute_loop16p(a, g, 8, hook_label="p1_hook", hook_cnt=g.nk, stamp="s_memtime s[78:79]" if (stamps and not fstamp) else None)
    st(5)
    I(a, f"s_mul_i32 s{S_TMP}, s{S_WAVE}, {g.wm*128}")
    I(a, "v_and_b32 v18, 15, v1"); I(a, "v_lshlrev_b32 v19, 7, v18"); I(a, f"v_add_u32 v19, s{S_TMP}, v19")
    I(a, "v_bfe_u32 v24, v1, 4, 1"); I(a, "v_lshl_add_u32 v19, v24, 3, v19")
    I(a, "v_and_b32 v18, 7, v18"); I(a, "v_lshrrev_b32 v24, 5, v1")
    for nb in range(4):
        I(a, f"v_add_u32 v25, {2*nb}, v24"); I(a, "v_xor_b32 v25, v25, v18"); I(a, f"v_lshl_add_u32 v{20+nb}, v25, 4, v19")
    k = 0
    for mb2 in range(4):
        for mb in (2*mb2, 2*mb2+1):
            for nb in range(4):
                cc = acc16(g, nb, mb); t = 8 + (k % 4) * 2; k += 1
                for r in range(4): I(a, f"v_max_f32 v{cc+r}, 0, v{cc+r}")
                for r in (0, 2): I(a, f"v_pk_mul_f32 v[{cc+r}:{cc+r+1}], v[{cc+r}:{cc+r+1}], v[{cc+r}:{cc+r+1}]")
                I(a, f"v_cvt_pk_bf16_f32 v{t}, v{cc}, v{cc+1}"); I(a, f"v_cvt_pk_bf16_f32 v{t+1}, v{cc+2}, v{cc+3}")
                I(a, f"ds_write_b64 v{20+nb}, v[{t}:{t+1}] offset:{mb*2048}")
        I(a, "s_waitcnt lgkmcnt(0)"); I(a, "s_barrier")
    st(6); st(7)
    if fstamp: st0.dump(8, 0)
    else: st.dump(8, 0)
    a.label("p1_end")
    I(a, "s_endpgm")
    a.label("p1_hook")
    I(a, "s_cmp_gt_u32 s69, 527"); I(a, "s_cbranch_scc1 p1_c_mid")
    I(a, "s_waitcnt vmcnt(0)")
    I(a, "s_mov_b32 s59, 0x20000")
    a.label("p1_hook_poll")
    I(a, "v_readfirstlane_b32 s58, v26")
    I(a, "s_sub_u32 s59, s59, 1"); I(a, "s_cbranch_scc1 p1_hook_go")
    I(a, "s_cmp_lg_u32 s58, 0"); I(a, "s_cbranch_scc1 p1_hook_go")
    I(a, "v_mov_b32 v27, 0")
    I(a, "buffer_load_dword v26, v27, s[88:91], 0 offen sc1"); I(a, "s_waitcnt vmcnt(0)")
    I(a, "s_branch p1_hook_poll")
    a.label("p1_hook_go")
    I(a, "s_lshl_b32 s58, s69, 3"); I(a, "v_mov_b32 v27, s58")
    I(a, "buffer_store_dword v26, v27, s[92:95], 0 offen sc1")
    I(a, "s_branch p1_c_mid")
    a.label("aw_entry")
    sa = StampsAt(a, astamp, 70)
    if astamp: sa(0)
    awg3.a_wg(a, stamps=sa if astamp else None)
    return g

def setup16_noclobber(a, g):
    import math
    lw = int(math.log2(g.WM)); V_QA = gemm3.V_QA; V_PA = gemm3.V_PA
    I(a, f"s_and_b32 s{S_TMP}, s{S_WAVE}, {g.WM-1}"); I(a, f"s_lshr_b32 s{S_TMP2}, s{S_WAVE}, {lw}")
    I(a, "v_and_b32 v27, 15, v1"); I(a, f"s_mul_i32 s{S_DELTA}, s{S_TMP}, {g.wm*128}"); I(a, "v_lshlrev_b32 v27, 7, v27"); I(a, f"v_add_u32 v27, s{S_DELTA}, v27")
    I(a, "v_lshrrev_b32 v28, 4, v1"); I(a, "v_bfe_u32 v29, v1, 1, 3"); I(a, "v_xor_b32 v28, v28, v29")
    for ks in range(2):
        I(a, f"v_xor_b32 v30, {4*ks}, v28"); I(a, f"v_lshl_add_u32 v{V_QA+ks}, v30, 4, v27")
    I(a, "v_bfe_u32 v27, v1, 2, 2"); I(a, "v_lshrrev_b32 v28, 4, v1"); I(a, "v_lshl_add_u32 v29, v28, 3, v27")
    I(a, f"v_lshlrev_b32 v29, 8, v29"); I(a, f"v_add_u32 v29, {g.QB}, v29")
    I(a, "v_and_b32 v30, 1, v1"); I(a, "v_lshl_add_u32 v29, v30, 3, v29")
    I(a, "v_bfe_u32 v30, v1, 1, 1")
    I(a, f"s_mul_i32 s{S_DELTA}, s{S_TMP2}, {g.wn//8}"); I(a, f"v_add_u32 v30, s{S_DELTA}, v30")
    I(a, "v_lshlrev_b32 v27, 2, v27"); I(a, "v_and_b32 v28, 1, v28"); I(a, "v_lshlrev_b32 v28, 1, v28"); I(a, "v_xor_b32 v27, v27, v28")
    NB, MB = nblk16(g)
    for nb in range(NB):
        I(a, f"v_add_u32 v31, {2*nb}, v30"); I(a, "v_xor_b32 v31, v31, v27"); I(a, f"v_lshl_add_u32 v{V_PA+nb}, v31, 4, v29")
    I(a, f"s_mov_b32 s{S_DN}, {(-(g.NS-1)*g.STAGE) & 0xffffffff}"); I(a, f"s_mov_b32 s{S_DP}, {g.STAGE}")
```

```python
import sys, json
from asmgen import *
from gemm2 import *
from p1v2 import Stamps, load_ptr, compute_loop_x
H_OFF = 0
Y_OFF = 16 << 20
YP = 640
YARR = 1032 * YP
G_OFF = 20 << 20
XS_OFF = 24 << 20
FLAG_OFF = 33 << 20

def add64(a, sreg, off):
    if off:
        I(a, f"s_add_u32 s{sreg}, s{sreg}, {off}")
        I(a, f"s_addc_u32 s{sreg+1}, s{sreg+1}, 0")

def final_block(a, g, s_row, s_colb, mb_regs, lds_base_s, y_pre=False):
    W = 50
    I(a, f"v_lshrrev_b32 v40, 3, v1")
    I(a, f"v_and_b32 v41, 7, v1")
    I(a, f"v_add_u32 v42, s{s_row}, v40")
    I(a, f"s_lshr_b32 s{S_TMP}, s{s_colb}, 1")
    I(a, f"s_cmp_ge_u32 s{S_TMP}, 512")
    I(a, f"s_cselect_b32 s62, 1, 0")
    I(a, f"s_cbranch_scc1 {g.pref}_ymir")
    I(a, f"v_lshl_add_u32 v43, v41, 3, s{S_TMP}")
    I(a, f"s_branch {g.pref}_ygo")
    a.label(f"{g.pref}_ymir")
    I(a, f"s_sub_u32 s{S_TMP}, 1016, s{S_TMP}")
    I(a, f"v_lshlrev_b32 v43, 3, v41")
    I(a, f"v_sub_u32 v43, s{S_TMP}, v43")
    a.label(f"{g.pref}_ygo")
    for i in range(4):
        I(a, f"v_add_u32 v44, {8*i}, v42")
        I(a, f"v_sub_u32 v45, 2048, v44")
        I(a, f"v_min_u32 v45, v44, v45")
        I(a, f"v_mul_u32_u24 v45, {YP}, v45")
        I(a, f"v_add_u32 v45, v45, v43")
        b = 64 + i*16
        I(a, f"buffer_load_dwordx3 v[{b}:{b+2}], v45, s[24:27], 0 offen")
        I(a, f"buffer_load_dwordx2 v[{b+4}:{b+5}], v45, s[24:27], s63 offen")
        I(a, f"buffer_load_dwordx3 v[{b+8}:{b+10}], v45, s[24:27], s64 offen")
        I(a, f"buffer_load_dwordx2 v[{b+12}:{b+13}], v45, s[24:27], s65 offen")
        I(a, f"v_lshlrev_b32 v44, 3, v44")
        I(a, f"buffer_load_dwordx2 v[{32+i*2}:{32+i*2+1}], v44, s[36:39], 0 offen")
    I(a, f"v_lshrrev_b32 v40, 5, v1")
    I(a, f"v_lshlrev_b32 v40, 3, v40")
    for nb in range(2):
        for q in range(4):
            r = 16 + (nb*4+q)*2
            I(a, f"buffer_load_dwordx2 v[{r}:{r+1}], v40, s[32:35], s{s_colb} offen offset:{nb*64+q*16}")
    I(a, f"v_and_b32 v{W}, 31, v1")
    I(a, f"v_lshlrev_b32 v{W+1}, 7, v{W}")
    I(a, f"v_add_u32 v{W+1}, s{lds_base_s}, v{W+1}")
    I(a, f"v_lshrrev_b32 v{W+2}, 5, v1")
    I(a, f"v_lshl_add_u32 v{W+1}, v{W+2}, 3, v{W+1}")
    I(a, f"v_and_b32 v{W}, 7, v{W}")
    for ch in range(8):
        I(a, f"v_xor_b32 v{W+2}, {ch}, v{W}")
        I(a, f"v_lshl_add_u32 v{W+4+ch}, v{W+2}, 4, v{W+1}")
    I(a, f"v_lshrrev_b32 v{W}, 3, v1")
    I(a, f"v_and_b32 v{W+2}, 7, v1")
    I(a, f"v_xor_b32 v{W+2}, v{W+2}, v{W}")
    I(a, f"v_lshlrev_b32 v{W+3}, 7, v{W}")
    I(a, f"v_lshl_add_u32 v{W+3}, v{W+2}, 4, v{W+3}")
    I(a, f"v_add_u32 v{W+12}, s{lds_base_s}, v{W+3}")
    I(a, f"v_add_u32 v{W}, s{s_row}, v{W}")
    I(a, f"v_lshlrev_b32 v{W}, 11, v{W}")
    I(a, f"v_and_b32 v{W+2}, 7, v1")
    I(a, f"v_lshl_add_u32 v{W}, v{W+2}, 4, v{W}")
    I(a, f"v_add_u32 v{W+13}, s{s_colb}, v{W}")
    I(a, "s_waitcnt vmcnt(0)")
    for nb in range(2):
        c = mb_regs[nb]
        for q in range(4):
            r = 16 + (nb*4+q)*2; cc = c + 4*q
            I(a, f"v_lshlrev_b32 v44, 16, v{r}"); I(a, f"v_and_b32 v45, 0xffff0000, v{r}")
            I(a, f"v_lshlrev_b32 v46, 16, v{r+1}"); I(a, f"v_and_b32 v47, 0xffff0000, v{r+1}")
            I(a, f"v_pk_add_f32 v[{cc}:{cc+1}], v[{cc}:{cc+1}], v[44:45]")
            I(a, f"v_pk_add_f32 v[{cc+2}:{cc+3}], v[{cc+2}:{cc+3}], v[46:47]")
            I(a, f"v_cvt_pk_bf16_f32 v{r}, v{cc}, v{cc+1}")
            I(a, f"v_cvt_pk_bf16_f32 v{r+1}, v{cc+2}, v{cc+3}")
            I(a, f"ds_write_b64 v{W+4+nb*4+q}, v[{r}:{r+1}]")
    I(a, "s_waitcnt lgkmcnt(0)")
    RB = mb_regs[0]
    for i in range(4):
        I(a, f"ds_read_b128 v[{RB+4*i}:{RB+4*i+3}], v{W+12} offset:{i*1024}")
    I(a, "s_waitcnt lgkmcnt(0)")
    T = mb_regs[1]
    for i in range(4):
        b = 64 + i*16; gv = 32 + i*2
        I(a, f"v_add_u32 v44, {8*i}, v42")
        I(a, f"v_cmp_lt_u32 vcc, 1024, v44")
        I(a, f"s_nop 1")
        I(a, f"v_cndmask_b32 v45, 0, 1, vcc")
        I(a, f"v_xor_b32 v45, s62, v45")
        I(a, f"v_cmp_eq_u32 vcc, 1, v45")
        I(a, f"v_sub_f32 v46, 0, v{gv}")
        I(a, f"s_nop 0")
        I(a, f"v_cndmask_b32 v46, v46, v{gv}, vcc")
        I(a, f"v_mov_b32 v47, v46")
        I(a, f"v_mov_b32 v48, v{gv}"); I(a, f"v_mov_b32 v49, v{gv}")
        I(a, f"v_mov_b32 v30, v{gv+1}"); I(a, f"v_mov_b32 v31, v{gv+1}")
        lab_m = a.newlabel("fm"); lab_e = a.newlabel("fe")
        I(a, "s_cmp_eq_u32 s62, 1"); I(a, f"s_cbranch_scc1 {lab_m}")
        for mir in (0, 1):
            if mir: a.label(lab_m)
            for pidx in range(4):
                def src(base, n3, idx):
                    return (base + idx//2, idx % 2)
                if not mir:
                    e0 = (b + pidx//2, pidx % 2); e1 = (b+4 + pidx//2, pidx % 2)
                    s0 = (b+8 + pidx//2, pidx % 2); s1 = (b+12 + pidx//2, pidx % 2)
                else:
                    k0 = 4 - pidx
                    k1 = 3 - pidx
                    e0 = (b + k0//2, k0 % 2); e1 = (b+4 + k1//2, k1 % 2)
                    s0 = (b+8 + k0//2, k0 % 2); s1 = (b+12 + k1//2, k1 % 2)
                def unp(dst, s):
                    if s[1]: I(a, f"v_and_b32 v{dst}, 0xffff0000, v{s[0]}")
                    else: I(a, f"v_lshlrev_b32 v{dst}, 16, v{s[0]}")
                unp(T, e0); unp(T+1, e1); unp(T+2, s0); unp(T+3, s1)
                bb = RB + 4*i + pidx
                unp(T+4, (bb, 0)); unp(T+5, (bb, 1))
                I(a, f"v_pk_mul_f32 v[{T+4}:{T+5}], v[{T+4}:{T+5}], v[30:31]")
                I(a, f"v_pk_fma_f32 v[{T+4}:{T+5}], v[{T}:{T+1}], v[48:49], v[{T+4}:{T+5}]")
                I(a, f"v_pk_fma_f32 v[{T+4}:{T+5}], v[{T+2}:{T+3}], v[46:47], v[{T+4}:{T+5}]")
                I(a, f"v_cvt_pk_bf16_f32 v{bb}, v{T+4}, v{T+5}")
            if not mir: I(a, f"s_branch {lab_e}")
        a.label(lab_e)
        I(a, f"s_mov_b32 s{S_TMP2}, {i*8*2048}")
        I(a, f"buffer_store_dwordx4 v[{RB+4*i}:{RB+4*i+3}], v{W+13}, s[16:19], s{S_TMP2} offen")

def common_srds(a):
    srd(a, S_PSRD, 6, 3584*1024*2); srd(a, 16, 22, 2048*1024*2); srd(a, 32, 20, 2048)
    I(a, "s_mov_b32 s6, s4"); I(a, "s_mov_b32 s7, s5"); add64(a, 6, Y_OFF); srd(a, 24, 6, 4*YARR)
    I(a, "s_mov_b32 s6, s4"); I(a, "s_mov_b32 s7, s5"); add64(a, 6, G_OFF); srd(a, 36, 6, 2048*8)
    I(a, f"s_mov_b32 s63, {YARR}"); I(a, f"s_mov_b32 s64, {2*YARR}"); I(a, f"s_mov_b32 s65, {3*YARR}")

def k_p2d(a, name, stamps=False, NS=5, rotA=0, rotB=0):
    g = G(BM=128, BN=64, WM=4, WN=1, NS=NS, ldq=7168, ldp=2048, nk=56, pref="p2")
    class St(Stamps):
        def __call__(self, i):
            if self.on: I(self.a, f"s_memtime s[{70+2*i}:{70+2*i+1}]")
    st = StampsAt(a, stamps, 70)
    kernel_begin(a, name)
    st(0)
    load_ptr(a, 6, 64, 2); load_ptr(a, 20, 72, 2); load_ptr(a, 22, 88); load_ptr(a, 4, 104)
    I(a, "s_cmp_ge_u32 s2, 256"); I(a, "s_cbranch_scc1 p2_end")
    lane_wave(a)
    I(a, "s_and_b32 s26, s2, 7"); I(a, "s_lshr_b32 s27, s2, 3")
    I(a, "s_lshr_b32 s28, s26, 1"); I(a, "s_and_b32 s29, s26, 1")
    I(a, "s_lshl_b32 s28, s28, 2"); I(a, "s_lshr_b32 s30, s27, 3"); I(a, "s_add_u32 s28, s28, s30")
    I(a, "s_lshl_b32 s29, s29, 3"); I(a, "s_and_b32 s30, s27, 7"); I(a, "s_add_u32 s29, s29, s30")
    I(a, f"s_mul_i32 s{S_QOFF}, s28, {128*7168}")
    I(a, f"s_mul_i32 s{S_POFF}, s29, {64*2}")
    if rotA or rotB:
        g.rot = True
        I(a, f"s_and_b32 s30, s27, 7"); I(a, f"s_mul_i32 s30, s30, {rotA}")
        I(a, f"s_lshr_b32 s31, s27, 3"); I(a, f"s_mul_i32 s31, s31, {rotB}")
        I(a, "s_add_u32 s55, s30, s31")
        I(a, f"s_lshl_b32 s30, s55, 7"); I(a, f"s_add_u32 s{S_QOFF}, s{S_QOFF}, s30")
        I(a, f"s_mul_i32 s30, s55, {64*2048}"); I(a, f"s_add_u32 s{S_POFF}, s{S_POFF}, s30")
    I(a, f"s_cmp_ge_u32 s{S_WAVE}, 4"); I(a, "s_cbranch_scc0 p2_compute")
    I(a, f"s_sub_u32 s{S_WAVE}, s{S_WAVE}, 4")
    loader_voffsets(a, g)
    I(a, "s_waitcnt lgkmcnt(0)")
    st(1)
    srd(a, S_QSRD, 4, 2048*3584*2); srd(a, S_PSRD, 6, 3584*1024*2)
    st(2)
    loader_main(a, g, first_wait_all=True, stamp=st if stamps else None)
    st(5); st(6); st(7)
    st.dump(8, 1)
    I(a, "s_endpgm")
    a.label("p2_compute")
    compute_setup(a, g)
    for nb in range(g.NB):
        for mb in range(g.MB):
            for r in range(16): I(a, f"v_mov_b32 v{acc_reg(g,nb,mb)+r}, 0")
    I(a, "s_waitcnt lgkmcnt(0)")
    st(1)
    common_srds(a)
    st(2); st(3)
    compute_loop_x(a, g, stamp=f"s_memtime s[78:79]" if stamps else None, per=3)
    st(5)
    I(a, "s_nop 7"); I(a, "s_nop 7")
    I(a, f"s_lshl_b32 s30, s28, 7"); I(a, f"s_lshl_b32 s31, s{S_WAVE}, 5"); I(a, "s_add_u32 s30, s30, s31")
    I(a, f"s_lshl_b32 s31, s29, 7")
    I(a, f"s_lshl_b32 s66, s{S_WAVE}, 12")
    final_block(a, g, 30, 31, [acc_reg(g,0,0), acc_reg(g,1,0)], 66)
    st(6)
    if stamps: I(a, "s_waitcnt vmcnt(0)")
    st(7)
    st.dump(8, 0)
    a.label("p2_end")
    I(a, "s_endpgm")
    return g

import os
RT = bool(os.environ.get("RTSTAMP"))
class StampsAt(Stamps):
    def __init__(self, a, on, base): self.a = a; self.on = on; self.base = base
    def __call__(self, i):
        if self.on: I(self.a, f"{'s_memrealtime' if RT else 's_memtime'} s[{self.base+2*i}:{self.base+2*i+1}]")
    def dump(self, n, role):
        if not self.on: return
        a = self.a; B = self.base
        I(a, "s_waitcnt vmcnt(0) lgkmcnt(0)")
        I(a, "s_load_dwordx2 s[4:5], s[0:1], 104")
        I(a, "s_waitcnt lgkmcnt(0)")
        I(a, "s_add_u32 s4, s4, 0x4000000"); I(a, "s_addc_u32 s5, s5, 0")
        srd(a, 8, 4, 1<<20)
        I(a, f"s_lshl_b32 s44, s2, 8")
        I(a, f"s_lshl_b32 s45, s{S_WAVE}, 5")
        I(a, f"s_add_u32 s44, s44, s45")
        I(a, f"s_add_u32 s44, s44, {role*128}")
        I(a, "v_mov_b32 v2, s44")
        for i in range(1, n):
            if not RT: I(a, f"s_sub_u32 s{B+2*i}, s{B+2*i}, s{B}")
            I(a, f"v_mov_b32 v1, s{B+2*i}")
            I(a, f"buffer_store_dword v1, v2, s[8:11], 0 offen offset:{i*4}")
        I(a, f"v_mov_b32 v1, s{B}")
        I(a, f"buffer_store_dword v1, v2, s[8:11], 0 offen")

def k_p2a(a, name, stamps=False, NS=4, rotA=0, rotB=0, remap=False):
    g = G(BM=128, BN=128, WM=2, WN=2, NS=NS, ldq=7168, ldp=2048, nk=28, pref="p2")
    st = StampsAt(a, stamps, 70)
    kernel_begin(a, name)
    st(0)
    load_ptr(a, 6, 64, 2); load_ptr(a, 20, 72, 2); load_ptr(a, 22, 88); load_ptr(a, 4, 104)
    I(a, "s_cmp_ge_u32 s2, 256"); I(a, "s_cbranch_scc1 p2_end")
    lane_wave(a)
    I(a, "s_and_b32 s26, s2, 7"); I(a, "s_lshr_b32 s27, s2, 3")
    if remap:
        I(a, "s_bfe_u32 s67, s26, 0x10001")
        I(a, "s_lshr_b32 s28, s26, 2"); I(a, "s_and_b32 s29, s26, 1")
    else:
        I(a, "s_and_b32 s67, s26, 1")
        I(a, "s_lshr_b32 s26, s26, 1")
        I(a, "s_lshr_b32 s28, s26, 1"); I(a, "s_and_b32 s29, s26, 1")
    I(a, "s_lshl_b32 s28, s28, 3"); I(a, "s_lshr_b32 s30, s27, 2"); I(a, "s_add_u32 s28, s28, s30")
    I(a, "s_lshl_b32 s29, s29, 2"); I(a, "s_and_b32 s30, s27, 3"); I(a, "s_add_u32 s29, s29, s30")
    I(a, f"s_mul_i32 s{S_QOFF}, s28, {128*7168}")
    I(a, f"s_mul_i32 s30, s67, {1792*2}"); I(a, f"s_add_u32 s{S_QOFF}, s{S_QOFF}, s30")
    I(a, f"s_mul_i32 s{S_POFF}, s29, {128*2}")
    I(a, f"s_mul_i32 s30, s67, {1792*2048}"); I(a, f"s_add_u32 s{S_POFF}, s{S_POFF}, s30")
    if rotA or rotB:
        g.rot = True
        I(a, f"s_and_b32 s30, s27, 3"); I(a, f"s_mul_i32 s30, s30, {rotA}")
        I(a, f"s_lshr_b32 s31, s27, 2"); I(a, f"s_mul_i32 s31, s31, {rotB}")
        I(a, "s_add_u32 s55, s30, s31")
        I(a, "s_cmp_ge_u32 s55, 28"); I(a, "s_cselect_b32 s30, 28, 0"); I(a, "s_sub_u32 s55, s55, s30")
        I(a, "s_cmp_ge_u32 s55, 28"); I(a, "s_cselect_b32 s30, 28, 0"); I(a, "s_sub_u32 s55, s55, s30")
        I(a, f"s_lshl_b32 s30, s55, 7"); I(a, f"s_add_u32 s{S_QOFF}, s{S_QOFF}, s30")
        I(a, f"s_mul_i32 s30, s55, {64*2048}"); I(a, f"s_add_u32 s{S_POFF}, s{S_POFF}, s30")
    I(a, f"s_cmp_ge_u32 s{S_WAVE}, 4"); I(a, "s_cbranch_scc0 p2_compute")
    I(a, f"s_sub_u32 s{S_WAVE}, s{S_WAVE}, 4")
    loader_voffsets(a, g)
    I(a, "s_waitcnt lgkmcnt(0)")
    st(1)
    srd(a, S_QSRD, 4, 2048*3584*2); srd(a, S_PSRD, 6, 3584*1024*2)
    st(2)
    loader_main(a, g, first_wait_all=True, stamp=st if stamps else None)
    st(5); st(6); st(7)
    st.dump(8, 1)
    I(a, "s_endpgm")
    a.label("p2_compute")
    compute_setup(a, g)
    for nb in range(g.NB):
        for mb in range(g.MB):
            for r in range(16): I(a, f"v_mov_b32 v{acc_reg(g,nb,mb)+r}, 0")
    I(a, "s_waitcnt lgkmcnt(0)")
    st(1)
    common_srds(a)
    I(a, "s_mov_b32 s6, s4"); I(a, "s_mov_b32 s7, s5"); add64(a, 6, XS_OFF); srd(a, 56, 6, 256*32768)
    I(a, "s_mov_b32 s6, s4"); I(a, "s_mov_b32 s7, s5"); add64(a, 6, FLAG_OFF); srd(a, 8, 6, 256*128)
    st(2); st(3)
    compute_loop_x(a, g, stamp=f"s_memtime s[78:79]" if stamps else None, per=2)
    st(5)
    I(a, "s_nop 7"); I(a, "s_nop 7")
    I(a, f"s_lshl_b32 s60, s2, 15"); I(a, f"s_lshl_b32 s61, s{S_WAVE}, 13"); I(a, "s_add_u32 s60, s60, s61")
    I(a, "v_lshlrev_b32 v40, 4, v1")
    I(a, "s_cmp_eq_u32 s67, 0"); I(a, "s_cbranch_scc1 p2_send1")
    for keep, lab in ((1, None), (0, "p2_send1")):
        if lab: a.label(lab)
        smb = 1 - keep
        k = 0
        for nb in range(2):
            c = acc_reg(g, nb, smb)
            for q in range(4):
                I(a, f"buffer_store_dwordx4 v[{c+4*q}:{c+4*q+3}], v40, s[56:59], s60 offen offset:{k*1024} sc1" if k < 4 else
                     f"buffer_store_dwordx4 v[{c+4*q}:{c+4*q+3}], v41, s[56:59], s60 offen offset:{(k-4)*1024} sc1")
                if k == 0: I(a, "v_add_u32 v41, 4096, v40")
                k += 1
        if keep == 1: I(a, "s_branch p2_sent")
    a.label("p2_sent")
    I(a, "s_waitcnt vmcnt(0)")
    I(a, "s_barrier")
    I(a, f"s_xor_b32 s61, s2, {2 if remap else 1}")
    I(a, f"s_cmp_eq_u32 s{S_WAVE}, 0"); I(a, "s_cbranch_scc0 p2_waitb")
    I(a, "s_lshl_b32 s62, s2, 7"); I(a, "v_mov_b32 v42, s62"); I(a, "v_mov_b32 v43, 1")
    I(a, "buffer_store_dword v43, v42, s[8:11], 0 offen sc1")
    I(a, "s_lshl_b32 s62, s61, 7"); I(a, "v_mov_b32 v42, s62")
    a.label("p2_poll")
    I(a, "buffer_load_dword v43, v42, s[8:11], 0 offen sc1")
    I(a, "s_waitcnt vmcnt(0)")
    I(a, "v_readfirstlane_b32 s62, v43")
    I(a, "s_cmp_eq_u32 s62, 1"); I(a, "s_cbranch_scc0 p2_poll")
    a.label("p2_waitb")
    I(a, "s_barrier")
    st(6)
    I(a, f"s_lshl_b32 s60, s61, 15"); I(a, f"s_lshl_b32 s62, s{S_WAVE}, 13"); I(a, "s_add_u32 s60, s60, s62")
    for k in range(8):
        I(a, f"buffer_load_dwordx4 v[{64+4*k}:{64+4*k+3}], v{40 if k < 4 else 41}, s[56:59], s60 offen offset:{(k%4)*1024} sc1")
    I(a, "s_cmp_eq_u32 s67, 0"); I(a, "s_cbranch_scc1 p2_fin0")
    for keep, lab in ((1, None), (0, "p2_fin0")):
        if lab: a.label(lab)
        I(a, "s_waitcnt vmcnt(0)")
        k = 0
        for nb in range(2):
            c = acc_reg(g, nb, keep)
            for q in range(4):
                I(a, f"v_pk_add_f32 v[{c+4*q}:{c+4*q+1}], v[{c+4*q}:{c+4*q+1}], v[{64+4*k}:{64+4*k+1}]")
                I(a, f"v_pk_add_f32 v[{c+4*q+2}:{c+4*q+3}], v[{c+4*q+2}:{c+4*q+3}], v[{64+4*k+2}:{64+4*k+3}]")
                k += 1
        if keep == 1:
            for nb in range(2):
                for r in range(16): I(a, f"v_mov_b32 v{acc_reg(g,nb,0)+r}, v{acc_reg(g,nb,1)+r}")
            I(a, "s_branch p2_fin")
    a.label("p2_fin")
    I(a, f"s_lshl_b32 s30, s28, 7"); I(a, f"s_and_b32 s31, s{S_WAVE}, 1"); I(a, "s_lshl_b32 s31, s31, 6"); I(a, "s_add_u32 s30, s30, s31")
    I(a, "s_lshl_b32 s31, s67, 5"); I(a, "s_add_u32 s30, s30, s31")
    I(a, f"s_lshl_b32 s31, s29, 8"); I(a, f"s_lshr_b32 s62, s{S_WAVE}, 1"); I(a, "s_lshl_b32 s62, s62, 7"); I(a, "s_add_u32 s31, s31, s62")
    I(a, f"s_lshl_b32 s66, s{S_WAVE}, 12")
    final_block(a, g, 30, 31, [acc_reg(g,0,0), acc_reg(g,1,0)], 66)
    if stamps: I(a, "s_waitcnt vmcnt(0)")
    st(7)
    st.dump(8, 0)
    a.label("p2_end")
    I(a, "s_endpgm")
    return g
```

```python
import sys
from asmgen import *
import k1m, k2m, rtstamp
PFX = "gated_mix__spectral_fnet__dense_activation_squared_relu__prompt"
HEADER = open("cdna_kernels/" + PFX + ".s.ref").read().split("; Override launch")[0]
def gen(stamp=0, hsc="", trace=False, k1trace=False, **kw):
    a = Asm()
    a(HEADER.rstrip())
    a(f"; @launch kernel=k1_kernel grid=(256,1,1) block=(512,1,1) lds=163840")
    a(f"; @launch kernel=k2_kernel grid=(256,1,1) block=(512,1,1) lds=131072")
    a('.amdgcn_target "amdgcn-amd-amdhsa--gfx950"')
    a(".text")
    k1m.k_k1(a, "k1_kernel", stamps=(stamp in (1, 4)), hsc=hsc, astamp=(stamp in (3, 4)), trace=k1trace, **kw)
    k2m.k_k2(a, "k2_kernel", stamps=(stamp == 2), trace=trace)
    a('.section .rodata,"a"')
    for n in ("k1_kernel", "k2_kernel"):
        a(".p2align 6"); kernel_desc(a, n, 256, 96, 256)
    return a.text()
if __name__ == "__main__" and __import__("os").environ.get("RTSTAMP"):
    open("f2_r4.s", "w").write(gen(stamp=4))
    open("f2_r2.s", "w").write(gen(stamp=2))
elif __name__ == "__main__":
    open("f2.s", "w").write(gen())
    open("f2_s1.s", "w").write(gen(stamp=1))
    open("f2_s2.s", "w").write(gen(stamp=2))
    open("f2_s3.s", "w").write(gen(stamp=3))
    open("f2_rt.s", "w").write(rtstamp.instrument(gen(k1trace=True), ["k1_kernel", "k2_kernel"]))
    open("f2_s1f.s", "w").write(gen(stamp=1, fstamp=2))
```

```python
from asmgen import *
from gemm2 import S_WAVE, S_TMP, S_TMP2, S_DELTA, S_CNT, S_LEFT, S_STG, S_QOFF, S_POFF, S_MQ, S_MP, S_DN, S_DP, interleave
from p1v2 import load_ptr
from p2 import add64, Y_OFF, YP, YARR
from k0 import XF_OFF, XFP, XFARR
import os
AEXP = int(os.environ.get("AEXP", "0"))
ROT = int(os.environ.get("AROT", "0"))
MDPF = os.environ.get("MDPF", "pre")
PFDELAY = int(os.environ.get("PFDELAY", "0"))
MSPF = int(os.environ.get("MSPF", "1"))
MSR = int(os.environ.get("MSR", "1"))
ASTG = int(os.environ.get("ASTG", "0"))
PDBG = int(os.environ.get("PDBG", "0"))
NPOLL = int(os.environ.get("NPOLL", "1"))
PSLEEP = int(os.environ.get("PSLEEP", "2"))
PSLEEP0 = int(os.environ.get("PSLEEP0", "0"))
EARLYINV = int(os.environ.get("EARLYINV", "1"))
FOLDF_OFF = 34 << 20
QSRD = 8; PSRD = 12; MSRD = 16; YSRD = 20
STG = 53248; QB = 16384
RSZ = 16384
SMALL = 8*RSZ
CV = 153600
CX = CV + 1024
ACC_A = 112; ACC_B = 128
FA = 16
TB = 16

def a_regs(s):
    b = FA + 40*s
    return [b + 4*i for i in range(9)], b + 36
def a_reads(s, kk):
    A, B = a_regs(s)
    out = [f"ds_read_b128 v[{B}:{B+3}], v{3+kk}"]
    for nb in range(9):
        if AEXP == 1 and nb % 2 == 1: continue
        for h in range(2):
            out.append(f"ds_read_b64_tr_b16 v[{A[nb]+2*h}:{A[nb]+2*h+1}], v2 offset:{(16*kk+4*h)*XFP + nb*64}")
    return out
def a_mfmas(s):
    A, B = a_regs(s)
    return [f"v_mfma_f32_32x32x16_bf16 v[{ACC_A+16*nb}:{ACC_A+16*nb+15}], v[{A[nb]}:{A[nb]+3}], v[{B}:{B+3}], v[{ACC_A+16*nb}:{ACC_A+16*nb+15}]" for nb in range(9)]

BF = [[84, 88, 92, 96], [100, 104, 108, 112], [116, 120, 124, 12]]

def sidx_to(a, j, dst):
    if j >= 8: I(a, f"s_mov_b32 s{dst}, 8")
    elif ROT: I(a, f"s_add_u32 s{dst}, s67, {j}"); I(a, f"s_and_b32 s{dst}, s{dst}, 7")
    else: I(a, f"s_mov_b32 s{dst}, {j}")
def a_issue_q(a, s_stg, j):
    sidx_to(a, j, 59); I(a, "s_lshl_b32 s59, s59, 7"); I(a, f"s_add_u32 s59, s59, s{S_QOFF}")
    I(a, f"s_add_u32 m0, s{s_stg}, s{S_MQ}"); I(a, "s_nop 0")
    for i in range(4):
        I(a, f"buffer_load_dwordx4 v{2+i}, s[{QSRD}:{QSRD+3}], s59 offen offset:{i*1024} lds")
def a_issue_p(a, j):
    sidx_to(a, j, 59); I(a, f"s_mul_i32 s{S_TMP}, s59, {64*XFP}"); I(a, f"s_add_u32 s{S_TMP}, s{S_TMP}, s{S_POFF}")
    I(a, f"s_add_u32 m0, s{S_STG}, s{S_MP}"); I(a, "s_nop 0")
    vv = 7 if j >= 8 else 6
    for i in range(9):
        if i and i % 4 == 0:
            I(a, "s_add_u32 m0, m0, 4096"); I(a, f"s_add_u32 s{S_TMP}, s{S_TMP}, 4096"); I(a, "s_nop 0")
        I(a, f"buffer_load_dwordx4 v{vv}, s[{PSRD}:{PSRD+3}], s{S_TMP} offen offset:{(i%4)*1024} lds")
    I(a, f"s_add_u32 s{S_STG}, s{S_STG}, {STG}")
    I(a, f"s_cmp_ge_u32 s{S_STG}, {3*STG}")
    I(a, f"s_cselect_b32 s{S_STG}, 0, s{S_STG}")
def a_stage_issue(a, j):
    a_issue_q(a, S_STG, j); a_issue_p(a, j)

def m_issue(a, h, s):
    I(a, f"s_add_u32 m0, s55, {(h*4+s)*RSZ}")
    I(a, f"s_add_u32 s56, s54, {h*128*4096 + s*128}")
    for i in range(4):
        I(a, f"buffer_load_dwordx4 v{96+i}, s[{MSRD}:{MSRD+3}], s56 offen offset:{i*1024} lds")
def m_issue_small(a, h):
    I(a, f"s_lshl_b32 s56, s{S_WAVE}, 10"); I(a, f"s_add_u32 m0, s56, {SMALL + h*4096}")
    I(a, f"s_add_u32 s56, s54, {h*128*4096 + 512}")
    I(a, f"buffer_load_dwordx4 v100, s[{MSRD}:{MSRD+3}], s56 offen lds")

def side_a(a, stage_off_s, nquads):
    I(a, f"v_add_u32 v21, s{stage_off_s}, v20")
    I(a, f"v_add_u32 v19, s{stage_off_s}, v23")
    accs = [24, 16, 17, 18]
    R = 32
    for z in range(2):
        I(a, f"ds_read_b64_tr_b16 v[{R+2*z}:{R+2*z+1}], v19 offset:{z*2*4*XFP}")
    for q in range(min(nquads, 12)):
        I(a, f"ds_read_b64_tr_b16 v[{R+4+2*q}:{R+4+2*q+1}], v21 offset:{q*4*XFP}")
    I(a, f"s_waitcnt lgkmcnt({min(nquads,12)})")
    if nquads == 16:
        for z in range(2):
            I(a, f"v_dot2_f32_bf16 v25, v{R+2*z}, v22, v25"); I(a, f"v_dot2_f32_bf16 v12, v{R+2*z+1}, v22, v12")
    else:
        lab = a.newlabel("sx")
        I(a, f"s_cmp_eq_u32 s{S_WAVE}, 0"); I(a, f"s_cbranch_scc0 {lab}")
        for z in range(2):
            I(a, f"v_dot2_f32_bf16 v25, v{R+2*z}, v22, v25"); I(a, f"v_dot2_f32_bf16 v12, v{R+2*z+1}, v22, v12")
        a.label(lab)
    for q in range(12, nquads):
        I(a, f"ds_read_b64_tr_b16 v[{R+4+2*q}:{R+4+2*q+1}], v21 offset:{q*4*XFP}")
    n = nquads
    for q in range(n):
        if q % 4 == 0: I(a, f"s_waitcnt lgkmcnt({min(max(n - 4 - q, 0), 15)})")
        I(a, f"v_dot2_f32_bf16 v{accs[(2*q) % 4]}, v{R+4+2*q}, v22, v{accs[(2*q) % 4]}")
        I(a, f"v_dot2_f32_bf16 v{accs[(2*q+1) % 4]}, v{R+4+2*q+1}, v22, v{accs[(2*q+1) % 4]}")

def side_b(a, h, s):
    accs = (28, 14) if h == 0 else (29, 15)
    R = 32
    if s < 4:
        for z in range(4):
            I(a, f"v_lshl_add_u32 v31, v13, 2, {z}")
            I(a, f"v_xor_b32 v10, v31, v27"); I(a, "v_lshl_add_u32 v10, v10, 4, v26"); I(a, f"v_add_u32 v10, {(h*4+s)*RSZ}, v10")
            I(a, f"v_lshl_add_u32 v11, v31, 4, v30")
            I(a, f"ds_read_b128 v[{R+8*z}:{R+8*z+3}], v10")
            I(a, f"ds_read_b128 v[{R+8*z+4}:{R+8*z+7}], v11 offset:{s*128}")
        for z in range(4):
            I(a, f"s_waitcnt lgkmcnt({2*(3-z)})")
            for q in range(4):
                I(a, f"v_dot2_f32_bf16 v{accs[q % 2]}, v{R+8*z+q}, v{R+8*z+4+q}, v{accs[q % 2]}")
    else:
        I(a, "v_lshrrev_b32 v10, 2, v26"); I(a, "v_lshl_add_u32 v10, v13, 4, v10"); I(a, f"v_add_u32 v10, {SMALL + h*4096}, v10")
        I(a, f"v_lshl_add_u32 v11, v13, 4, v30")
        I(a, f"ds_read_b128 v[{R}:{R+3}], v10"); I(a, f"ds_read_b128 v[{R+4}:{R+7}], v11 offset:512")
        I(a, "s_waitcnt lgkmcnt(0)")
        for q in range(4):
            I(a, f"v_dot2_f32_bf16 v{accs[q % 2]}, v{R+q}, v{R+4+q}, v{accs[q % 2]}")

def y_store_setup(a):
    I(a, "s_mov_b32 s6, s4"); I(a, "s_mov_b32 s7, s5"); add64(a, 6, Y_OFF); srd(a, YSRD, 6, 4*YARR)
    I(a, "s_lshl_b32 s56, s62, 1"); I(a, "s_add_u32 s56, s56, s64"); I(a, f"s_mul_i32 s56, s56, {YARR}")
    I(a, f"s_lshl_b32 s57, s{S_WAVE}, 14")
    I(a, "v_lshrrev_b32 v44, 5, v1"); I(a, "v_and_b32 v45, 31, v1")
    I(a, "s_lshl_b32 s58, s61, 8"); I(a, "s_add_u32 s58, s58, s63"); I(a, f"s_lshl_b32 s59, s{S_WAVE}, 6"); I(a, "s_add_u32 s58, s58, s59")
    I(a, "v_lshl_add_u32 v46, v44, 1, s58"); I(a, f"v_mul_u32_u24 v46, {YP}, v46"); I(a, "v_lshl_add_u32 v46, v45, 4, v46")
    for z in range(4):
        I(a, f"v_add_u32 v47, {2*z}, v44"); I(a, "v_xor_b32 v56, v45, v47")
        I(a, "v_lshlrev_b32 v47, 9, v47"); I(a, "v_lshl_add_u32 v47, v56, 4, v47"); I(a, f"v_add_u32 v{104+z}, s57, v47")

def y_store(a, i0, ysc):
    for i in range(i0, i0+8):
        r = 64 + (i - i0)*4
        I(a, f"ds_read_b128 v[{r}:{r+3}], v{104 + (i % 4)} offset:{(i // 4)*4096}")
    for z in range(8):
        ii = i0 + z; rr = 64 + z*4
        I(a, f"s_waitcnt lgkmcnt({7-z})")
        I(a, f"s_add_u32 s59, s56, {ii*4*YP}")
        I(a, f"buffer_store_dwordx4 v[{rr}:{rr+3}], v46, s[{YSRD}:{YSRD+3}], s59 offen {ysc}")

def a_wg(a, stamps=None, pref="aw", pre_compute=None, pre_loader=None, ysc=""):
    st = stamps or (lambda i: None)
    stl = st
    if ASTG:
        stl = (lambda i: None)
    load_ptr(a, 24, 8, 4); load_ptr(a, 28, 24, 4); load_ptr(a, 4, 104); load_ptr(a, 36, 96)
    I(a, "s_and_b32 s60, s2, 7")
    I(a, "s_sub_u32 s61, s2, 224"); I(a, "s_lshr_b32 s61, s61, 3")
    I(a, "s_lshr_b32 s62, s60, 2"); I(a, "s_bfe_u32 s63, s60, 0x10001"); I(a, "s_and_b32 s64, s60, 1")
    I(a, "s_lshr_b32 s65, s60, 1"); I(a, "s_cmp_eq_u32 s65, 0"); I(a, "s_cselect_b32 s65, 1, 0"); I(a, "s_cmp_eq_u32 s61, 3"); I(a, "s_cselect_b32 s65, s65, 0")
    I(a, f"s_cmp_ge_u32 s{S_WAVE}, 4"); I(a, f"s_cbranch_scc0 {pref}_compute")
    I(a, f"s_sub_u32 s{S_WAVE}, s{S_WAVE}, 4")
    I(a, "v_lshrrev_b32 v40, 3, v1"); I(a, "v_lshrrev_b32 v41, 4, v1"); I(a, "v_and_b32 v42, 7, v1")
    I(a, f"s_mul_i32 s{S_TMP}, s{S_WAVE}, {32*8192}")
    I(a, "v_mul_u32_u24 v43, 8192, v40"); I(a, "v_xor_b32 v42, v42, v41"); I(a, f"v_add_u32 v43, s{S_TMP}, v43"); I(a, "v_lshl_add_u32 v43, v42, 4, v43"); I(a, "v_xor_b32 v44, 64, v43")
    for i in range(4):
        I(a, f"v_add_u32 v{2+i}, {i*8*8192 - i*1024}, v{44 if i & 1 else 43}")
    I(a, "v_lshlrev_b32 v6, 4, v1")
    I(a, f"s_cmp_eq_u32 s{S_WAVE}, 0"); I(a, f"s_cselect_b32 s{S_TMP}, 0, 0x7fff0000"); I(a, f"v_add_u32 v7, s{S_TMP}, v6")
    I(a, "s_lshl_b32 s67, s61, 1")
    I(a, f"s_mul_i32 s{S_TMP}, s{S_WAVE}, {32*4096}")
    I(a, "v_mul_u32_u24 v43, 4096, v40"); I(a, f"v_add_u32 v43, s{S_TMP}, v43"); I(a, "v_lshl_add_u32 v43, v42, 4, v43"); I(a, "v_xor_b32 v44, 64, v43")
    for i in range(4):
        I(a, f"v_add_u32 v{96+i}, {i*8*4096 - i*1024}, v{44 if i & 1 else 43}")
    I(a, "v_lshrrev_b32 v43, 1, v1"); I(a, "v_lshlrev_b32 v43, 12, v43"); I(a, f"v_add_u32 v43, s{S_TMP}, v43"); I(a, "v_and_b32 v44, 1, v1"); I(a, "v_lshl_add_u32 v100, v44, 4, v43")
    I(a, f"s_mul_i32 s{S_MQ}, s{S_WAVE}, 4096")
    I(a, f"s_mul_i32 s{S_MP}, s{S_WAVE}, 9216"); I(a, f"s_add_u32 s{S_MP}, s{S_MP}, {QB}")
    I(a, f"s_mul_i32 s55, s{S_WAVE}, 4096")
    I(a, f"s_mov_b32 s{S_STG}, 0")
    I(a, "s_lshl_b32 s56, s61, 8"); I(a, "s_add_u32 s56, s56, s63"); I(a, f"s_lshl_b32 s{S_QOFF}, s56, 12")
    I(a, f"s_mul_i32 s{S_POFF}, s60, {XFARR}"); I(a, f"s_mul_i32 s56, s{S_WAVE}, 9216"); I(a, f"s_add_u32 s{S_POFF}, s{S_POFF}, s56")
    I(a, "s_lshl_b32 s54, s64, 11")
    I(a, "v_bfe_u32 v40, v1, 2, 2"); I(a, f"v_mul_u32_u24 v40, {XFP}, v40")
    I(a, "v_and_b32 v41, 3, v1"); I(a, "v_lshl_add_u32 v40, v41, 3, v40"); I(a, f"v_add_u32 v40, {QB}, v40")
    I(a, "v_lshrrev_b32 v41, 4, v1")
    I(a, f"s_lshl_b32 s56, s{S_WAVE}, 7"); I(a, "v_lshl_add_u32 v20, v41, 5, v40"); I(a, "v_add_u32 v20, s56, v20")
    I(a, "v_and_b32 v41, 1, v41"); I(a, "v_lshl_add_u32 v23, v41, 5, v40"); I(a, "v_add_u32 v23, 512, v23")
    I(a, "v_lshrrev_b32 v41, 5, v1"); I(a, f"s_lshl_b32 s56, s{S_WAVE}, 2"); I(a, "v_add_u32 v41, s56, v41"); I(a, f"v_mul_u32_u24 v41, {4*XFP}, v41"); I(a, "v_add_u32 v23, v23, v41")
    I(a, "v_mov_b32 v22, 0xbf803f80")
    for r in (24, 16, 17, 18, 25, 12, 28, 14, 29, 15): I(a, f"v_mov_b32 v{r}, 0")
    I(a, f"s_lshl_b32 s56, s{S_WAVE}, 5"); I(a, "v_and_b32 v26, 31, v1"); I(a, "v_add_u32 v26, s56, v26"); I(a, "v_bfe_u32 v27, v26, 1, 3"); I(a, "v_lshlrev_b32 v26, 7, v26")
    I(a, "v_lshrrev_b32 v13, 5, v1"); I(a, f"v_mov_b32 v30, {CV}")
    I(a, "s_waitcnt lgkmcnt(0)")
    stl(1)
    I(a, "s_cmp_eq_u32 s62, 1")
    I(a, "s_cselect_b32 s24, s26, s24"); I(a, "s_cselect_b32 s25, s27, s25"); I(a, "s_cselect_b32 s28, s30, s28"); I(a, "s_cselect_b32 s29, s31, s29")
    srd(a, QSRD, 24, 2048*2048*2); srd(a, MSRD, 28, 1024*1024*2)
    I(a, "s_mov_b32 s6, s4"); I(a, "s_mov_b32 s7, s5"); add64(a, 6, XF_OFF); srd(a, PSRD, 6, 8*XFARR)
    lab = a.newlabel("ni")
    I(a, f"s_cmp_eq_u32 s{S_WAVE}, 0"); I(a, f"s_cbranch_scc0 {lab}")
    I(a, "buffer_inv sc1"); I(a, "s_waitcnt vmcnt(0)")
    a.label(lab)
    for s_ in range(3):
        I(a, f"s_mov_b32 s58, {s_*STG}"); a_issue_q(a, 58, s_)
    I(a, "s_barrier")
    stl(2)
    a_issue_p(a, 0); a_issue_p(a, 1)
    I(a, "s_waitcnt vmcnt(9)"); stl(4); I(a, "s_barrier")
    I(a, f"s_mov_b32 s57, 0")
    def side(nq):
        lab = a.newlabel("ns")
        I(a, "s_cmp_eq_u32 s65, 1"); I(a, f"s_cbranch_scc0 {lab}")
        side_a(a, 57, nq)
        a.label(lab)
        I(a, f"s_add_u32 s57, s57, {STG}"); I(a, f"s_cmp_ge_u32 s57, {3*STG}"); I(a, "s_cselect_b32 s57, 0, s57")
    a_issue_p(a, 2)
    for t in range(8):
        side(16)
        rem = (9 if t == 0 else 13) if t + 2 <= 8 else 0
        I(a, f"s_waitcnt vmcnt({rem})")
        if ASTG == 2 and t < 6: st(t+1)
        I(a, "s_barrier")
        if ASTG == 1 and t < 6: st(t+1)
        if t + 3 <= 8: a_stage_issue(a, t + 3)
    m_issue(a, 0, 0); m_issue(a, 0, 1)
    lab = a.newlabel("ns")
    I(a, "s_cmp_eq_u32 s65, 1"); I(a, f"s_cbranch_scc0 {lab}")
    side_a(a, 57, 4)
    I(a, "v_add_f32 v24, v24, v16"); I(a, "v_add_f32 v17, v17, v18"); I(a, "v_add_f32 v24, v24, v17"); I(a, "v_add_f32 v25, v25, v12")
    I(a, "v_cvt_pk_bf16_f32 v31, v24, v24"); I(a, f"s_lshl_b32 s56, s{S_WAVE}, 7"); I(a, "v_lshlrev_b32 v40, 1, v1"); I(a, "v_add_u32 v40, s56, v40"); I(a, f"v_add_u32 v40, {CV}, v40")
    I(a, f"s_lshl_b32 s56, s{S_WAVE}, 8"); I(a, "v_lshlrev_b32 v41, 2, v1"); I(a, "v_add_u32 v41, s56, v41"); I(a, f"v_add_u32 v41, {CX}, v41")
    a.label(lab)
    I(a, "s_barrier")
    m_issue(a, 0, 2); m_issue(a, 0, 3)
    lab = a.newlabel("ns")
    I(a, "s_cmp_eq_u32 s65, 1"); I(a, f"s_cbranch_scc0 {lab}")
    I(a, f"ds_write_b16 v40, v31"); I(a, f"ds_write_b32 v41, v25"); I(a, "s_waitcnt lgkmcnt(0)")
    a.label(lab)
    I(a, "s_waitcnt vmcnt(8)"); I(a, "s_barrier")
    m_issue_small(a, 0); m_issue(a, 1, 0); m_issue(a, 1, 1)
    lab = a.newlabel("ns")
    I(a, "s_cmp_eq_u32 s65, 1"); I(a, f"s_cbranch_scc0 {lab}")
    lab0 = a.newlabel("ns")
    I(a, f"s_cmp_eq_u32 s{S_WAVE}, 0"); I(a, f"s_cbranch_scc0 {lab0}")
    I(a, "v_and_b32 v40, 31, v1"); I(a, "v_lshlrev_b32 v41, 2, v40"); I(a, f"v_add_u32 v41, {CX}, v41")
    for z in range(8): I(a, f"ds_read_b32 v{32+z}, v41 offset:{z*128}")
    I(a, "s_waitcnt lgkmcnt(0)")
    for z in range(1, 8): I(a, f"v_add_f32 v32, v32, v{32+z}")
    I(a, "v_cvt_pk_bf16_f32 v32, v32, v32"); I(a, "v_lshlrev_b32 v41, 1, v40"); I(a, f"v_add_u32 v41, {CV+512}, v41")
    I(a, "ds_write_b16 v41, v32"); I(a, "s_waitcnt lgkmcnt(0)")
    a.label(lab0)
    side_b(a, 0, 0); side_b(a, 0, 1)
    a.label(lab)
    I(a, "s_waitcnt vmcnt(9)"); I(a, "s_barrier")
    m_issue_small(a, 1); m_issue(a, 1, 2); m_issue(a, 1, 3)
    lab = a.newlabel("ns")
    I(a, "s_cmp_eq_u32 s65, 1"); I(a, f"s_cbranch_scc0 {lab}")
    side_b(a, 0, 2); side_b(a, 0, 3)
    a.label(lab)
    I(a, "s_waitcnt vmcnt(9)"); I(a, "s_barrier")
    lab = a.newlabel("ns")
    I(a, "s_cmp_eq_u32 s65, 1"); I(a, f"s_cbranch_scc0 {lab}")
    side_b(a, 0, 4); side_b(a, 1, 0); side_b(a, 1, 1)
    a.label(lab)
    I(a, "s_waitcnt vmcnt(0)"); I(a, "s_barrier")
    lab = a.newlabel("ns")
    I(a, "s_cmp_eq_u32 s65, 1"); I(a, f"s_cbranch_scc0 {lab}")
    side_b(a, 1, 2); side_b(a, 1, 3); side_b(a, 1, 4)
    I(a, "v_add_f32 v28, v28, v14"); I(a, "v_add_f32 v29, v29, v15")
    I(a, "v_mov_b32 v32, v28"); I(a, "v_mov_b32 v33, v29"); I(a, "s_nop 1")
    I(a, "v_permlane32_swap_b32 v32, v28"); I(a, "v_permlane32_swap_b32 v33, v29"); I(a, "s_nop 1")
    I(a, "v_add_f32 v28, v28, v32"); I(a, "v_add_f32 v29, v29, v33")
    I(a, "s_mov_b32 s6, s4"); I(a, "s_mov_b32 s7, s5"); add64(a, 6, Y_OFF); srd(a, YSRD, 6, 4*YARR)
    I(a, f"s_mul_i32 s56, s64, {YARR}"); I(a, f"s_add_u32 s56, s56, {1024*YP}")
    I(a, "v_cvt_pk_bf16_f32 v31, v28, v28"); I(a, "v_cvt_pk_bf16_f32 v12, v29, v29")
    I(a, f"s_lshl_b32 s57, s{S_WAVE}, 6"); I(a, "v_and_b32 v40, 31, v1"); I(a, "v_lshlrev_b32 v40, 1, v40"); I(a, "v_add_u32 v40, s57, v40")
    I(a, "v_cmp_gt_u32 vcc, 32, v1"); I(a, "v_mov_b32 v42, 0x7ffffff0"); I(a, "s_nop 0"); I(a, "v_cndmask_b32 v40, v42, v40, vcc")
    I(a, f"buffer_store_short v31, v40, s[{YSRD}:{YSRD+3}], s56 offen {ysc}")
    I(a, f"buffer_store_short v12, v40, s[{YSRD}:{YSRD+3}], s56 offen offset:256 {ysc}")
    I(a, "v_mov_b32 v32, 0")
    I(a, f"s_add_u32 s57, s56, {2*YARR}")
    I(a, f"buffer_store_short v32, v40, s[{YSRD}:{YSRD+3}], s57 offen {ysc}")
    I(a, f"buffer_store_short v32, v40, s[{YSRD}:{YSRD+3}], s57 offen offset:256 {ysc}")
    I(a, f"v_mov_b32 v41, {CV+544}"); I(a, "ds_read_u16 v33, v41"); I(a, "v_mov_b32 v40, 512")
    I(a, "v_cmp_eq_u32 vcc, 0, v1"); I(a, "s_nop 1"); I(a, "v_cndmask_b32 v40, v42, v40, vcc")
    I(a, "s_waitcnt lgkmcnt(0)")
    lab3 = a.newlabel("ns")
    I(a, f"s_cmp_eq_u32 s{S_WAVE}, 0"); I(a, f"s_cbranch_scc0 {lab3}")
    I(a, f"buffer_store_short v33, v40, s[{YSRD}:{YSRD+3}], s56 offen {ysc}")
    I(a, f"buffer_store_short v32, v40, s[{YSRD}:{YSRD+3}], s57 offen {ysc}")
    a.label(lab3)
    a.label(lab)
    y_store_setup(a)
    I(a, "s_barrier")
    y_store(a, 8, ysc)
    st(7)
    if stamps: stamps.dump(8, 1)
    I(a, "s_endpgm")
    a.label(f"{pref}_compute")
    I(a, "v_bfe_u32 v40, v1, 2, 2"); I(a, "v_lshrrev_b32 v41, 5, v1"); I(a, "v_lshl_add_u32 v41, v41, 3, v40")
    I(a, f"v_mul_u32_u24 v41, {XFP}, v41"); I(a, f"v_add_u32 v41, {QB}, v41")
    I(a, "v_bfe_u32 v42, v1, 4, 1"); I(a, "v_lshl_add_u32 v41, v42, 5, v41")
    I(a, "v_and_b32 v42, 3, v1"); I(a, "v_lshl_add_u32 v2, v42, 3, v41")
    I(a, "v_and_b32 v40, 31, v1"); I(a, f"s_lshl_b32 s{S_DELTA}, s{S_WAVE}, 12"); I(a, "v_lshlrev_b32 v43, 7, v40"); I(a, f"v_add_u32 v43, s{S_DELTA}, v43")
    I(a, "v_lshrrev_b32 v41, 5, v1"); I(a, "v_bfe_u32 v42, v1, 1, 3"); I(a, "v_xor_b32 v41, v41, v42")
    for kk in range(4):
        I(a, f"v_xor_b32 v44, {2*kk}, v41"); I(a, f"v_lshl_add_u32 v{3+kk}, v44, 4, v43")
    I(a, "v_lshlrev_b32 v43, 7, v40")
    for kk in range(4):
        I(a, f"v_xor_b32 v44, {2*kk}, v41"); I(a, f"v_lshl_add_u32 v{8+kk}, v44, 4, v43")
    I(a, "v_lshlrev_b32 v43, 5, v40"); I(a, "v_lshrrev_b32 v44, 5, v1"); I(a, "v_lshl_add_u32 v7, v44, 4, v43"); I(a, f"v_add_u32 v7, {SMALL}, v7")
    if pre_compute: pre_compute(a)
    for r in range(144): I(a, f"v_mov_b32 v{ACC_A+r}, 0")
    I(a, f"s_mov_b32 s{S_DN}, {(-2*STG) & 0xffffffff}"); I(a, f"s_mov_b32 s{S_DP}, {STG}")
    I(a, "s_lshl_b32 s56, s61, 8"); I(a, "s_add_u32 s56, s56, s63"); I(a, f"s_lshl_b32 s{S_QOFF}, s56, 12")
    I(a, "s_lshl_b32 s54, s64, 11")
    I(a, "s_mov_b32 s68, 0")
    I(a, "s_waitcnt lgkmcnt(0)")
    st(1)
    I(a, "s_cmp_eq_u32 s62, 1")
    I(a, "s_cselect_b32 s24, s26, s24"); I(a, "s_cselect_b32 s25, s27, s25"); I(a, "s_cselect_b32 s28, s30, s28"); I(a, "s_cselect_b32 s29, s31, s29")
    srd(a, QSRD, 24, 2048*2048*2); srd(a, MSRD, 28, 1024*1024*2)
    srd(a, 88, 36, 256)
    I(a, "s_mov_b32 s6, s4"); I(a, "s_mov_b32 s7, s5"); add64(a, 6, FOLDF_OFF); srd(a, 92, 6, 33*128)
    I(a, "v_lshlrev_b32 v101, 7, v1"); I(a, "v_cmp_gt_u32 vcc, 33, v1"); I(a, "v_mov_b32 v102, 0x7ffffff0"); I(a, "s_nop 0"); I(a, "v_cndmask_b32 v101, v102, v101, vcc")
    I(a, "s_mov_b32 s66, 0"); I(a, "s_mov_b32 s69, 0x10000"); I(a, "s_mov_b64 s[56:57], -1")
    labp = a.newlabel("pp"); labf = a.newlabel("pf0")
    I(a, f"s_cmp_eq_u32 s{S_WAVE}, 0"); I(a, f"s_cbranch_scc1 {labp}")
    if PFDELAY: I(a, f"s_sleep {PFDELAY}")
    I(a, "v_lshlrev_b32 v102, 13, v1")
    for r_ in range(2):
        I(a, f"s_lshl_b32 s58, s{S_WAVE}, 1"); I(a, f"s_add_u32 s58, s58, {1 + r_}")
        I(a, "s_lshl_b32 s58, s58, 7"); I(a, f"s_add_u32 s58, s58, s{S_QOFF}")
        for hf in range(2):
            I(a, f"buffer_load_dword v100, v102, s[{QSRD}:{QSRD+3}], s58 offen")
            if hf == 0: I(a, f"s_add_u32 s58, s58, {64*8192}")
    if MDPF == "pre":
        I(a, "s_lshl_b32 s58, s61, 6"); I(a, "v_add_u32 v102, s58, v1"); I(a, "v_lshlrev_b32 v102, 12, v102")
        I(a, f"s_sub_u32 s58, s{S_WAVE}, 1"); I(a, "s_lshl_b32 s58, s58, 8"); I(a, "s_add_u32 s58, s58, s54")
        I(a, f"buffer_load_dword v100, v102, s[{MSRD}:{MSRD+3}], s58 offen")
        I(a, f"s_cmp_eq_u32 s{S_WAVE}, 3"); I(a, f"s_cbranch_scc1 {labf}")
        I(a, f"buffer_load_dword v100, v102, s[{MSRD}:{MSRD+3}], s58 offen offset:128")
    I(a, f"s_branch {labf}")
    a.label(labp)
    lab = a.newlabel("np"); labx = a.newlabel("npx")
    I(a, "v_mov_b32 v102, 0")
    a.label(lab)
    I(a, "buffer_load_dword v96, v102, s[88:91], 0 offen sc1"); I(a, "s_waitcnt vmcnt(0)")
    I(a, "v_readfirstlane_b32 s66, v96")
    I(a, "s_sub_u32 s69, s69, 1"); I(a, f"s_cbranch_scc1 {labx}")
    I(a, "s_cmp_lg_u32 s66, 0"); I(a, f"s_cbranch_scc1 {labx}")
    I(a, "s_sleep 8"); I(a, f"s_branch {lab}")
    a.label(labx)
    I(a, "s_mov_b32 s69, 0x10000"); I(a, "s_mov_b32 s68, 1")
    if PDBG: st(5)
    def poll_eval():
        for q in range(4): I(a, f"v_xor_b32 v{96+q}, s66, v{96+q}")
        I(a, "v_or_b32 v96, v96, v97"); I(a, "v_or_b32 v98, v98, v99"); I(a, "v_or_b32 v96, v96, v98")
        I(a, "v_cmp_ne_u32 s[56:57], 0, v96"); I(a, "s_nop 4")
    def poll_test(mask):
        if mask == "all":
            I(a, "s_and_b32 s58, s57, 1"); I(a, "s_or_b32 s58, s58, s56")
        else:
            I(a, f"s_and_b32 s58, s56, {mask}")
    def poll(mask):
        lc = a.newlabel("pc"); ld = a.newlabel("pd")
        a.label(lc)
        poll_test(mask); I(a, f"s_cbranch_scc0 {ld}")
        I(a, "s_sub_u32 s69, s69, 1"); I(a, f"s_cbranch_scc1 {ld}")
        I(a, "buffer_load_dwordx4 v[96:99], v101, s[92:95], 0 offen sc1"); I(a, "s_waitcnt vmcnt(0)")
        poll_eval()
        if PSLEEP:
            poll_test(mask); I(a, f"s_cbranch_scc0 {ld}")
            I(a, f"s_sleep {PSLEEP}")
        I(a, f"s_branch {lc}")
        a.label(ld)
    if PDBG:
        I(a, "buffer_load_dwordx4 v[96:99], v101, s[92:95], 0 offen sc1"); I(a, "s_waitcnt vmcnt(0)"); st(6)
    poll("0xff")
    if PDBG: st(3)
    a.label(labf)
    for r in range(144): I(a, f"v_mov_b32 v{ACC_A+r}, 0") if False else None
    I(a, "s_barrier")
    labq = a.newlabel("pq")
    I(a, "s_cmp_eq_u32 s68, 1"); I(a, f"s_cbranch_scc0 {labq}")
    poll("0xfff")
    poll_test("all"); I(a, "s_cselect_b32 s68, 1, 0")
    I(a, "buffer_load_dwordx4 v[96:99], v101, s[92:95], 0 offen sc1")
    a.label(labq)
    I(a, "s_barrier")
    st(4)
    for r in a_reads(0, 0): I(a, r)
    I(a, f"s_mov_b32 s{S_CNT}, 8"); I(a, f"s_mov_b32 s{S_LEFT}, 0")
    a(".p2align 6")
    a.label(f"{pref}_aloop")
    for kk in range(3):
        I(a, "s_waitcnt lgkmcnt(0)")
        interleave(a, a_mfmas(kk & 1), a_reads((kk+1) & 1, kk+1), 3)
    I(a, "s_cmp_eq_u32 s68, 1"); I(a, f"s_cbranch_scc1 {pref}_chk")
    a.label(f"{pref}_chkret")
    I(a, "s_waitcnt lgkmcnt(0)"); I(a, "s_barrier")
    mf = a_mfmas(1)
    I(a, mf[0])
    I(a, f"s_add_u32 s{S_LEFT}, s{S_LEFT}, {STG}"); I(a, f"s_cmp_ge_u32 s{S_LEFT}, {3*STG}")
    I(a, f"s_cselect_b32 s{S_DELTA}, s{S_DN}, s{S_DP}"); I(a, f"s_cselect_b32 s{S_LEFT}, 0, s{S_LEFT}")
    for i in range(2, 7): I(a, f"v_add_u32 v{i}, s{S_DELTA}, v{i}")
    interleave(a, mf[1:], a_reads(0, 0) + [f"s_sub_u32 s{S_CNT}, s{S_CNT}, 1", f"s_cmp_lg_u32 s{S_CNT}, 0"], 3)
    I(a, f"s_cbranch_scc1 {pref}_aloop")
    I(a, "s_waitcnt lgkmcnt(0)")
    for m in a_mfmas(0): I(a, m)
    I(a, "s_barrier")
    st(2)
    I(a, "s_waitcnt vmcnt(0)")
    I(a, "s_nop 7"); I(a, "s_nop 3")
    I(a, f"v_cvt_pk_bf16_f32 v2, v{ACC_A+128+8}, v{ACC_A+128+8}")
    for kap in range(17):
        nb, k2 = kap // 2, kap % 2
        c = ACC_A + 16*nb + 8*k2; t = TB + 4*kap
        for z in range(4): I(a, f"v_cvt_pk_bf16_f32 v{t+z}, v{c+2*z}, v{c+2*z+1}")
        if kap > 0:
            tp = TB + 4*(kap-1)
            I(a, f"v_permlane32_swap_b32 v{tp}, v{tp+2}"); I(a, f"v_permlane32_swap_b32 v{tp+1}, v{tp+3}")
    I(a, "s_nop 1")
    tp = TB + 4*16
    I(a, f"v_permlane32_swap_b32 v{tp}, v{tp+2}"); I(a, f"v_permlane32_swap_b32 v{tp+1}, v{tp+3}")
    I(a, "s_barrier")
    if not PDBG: st(3)
    subs = [(h, kap) for h in range(2) for kap in range(17)]
    cur_base = [0]
    def rd(idx):
        h, kap = subs[idx]; s, kk = kap // 4, kap % 4
        F = BF[idx % 3]
        out = []
        if kap == 16:
            for nb in range(4): out.append(f"ds_read_b128 v[{F[nb]}:{F[nb]+3}], v7 offset:{h*4096 + nb*1024}")
            return out
        slot = h*4 + s
        base = (slot // 3)*3
        if base != cur_base[0]:
            d = (base - cur_base[0])*RSZ
            for i in range(8, 12): out.append(f"v_add_u32 v{i}, {d}, v{i}")
            cur_base[0] = base
        for nb in range(4): out.append(f"ds_read_b128 v[{F[nb]}:{F[nb]+3}], v{8+kk} offset:{(slot-base)*RSZ + nb*4096}")
        return out
    def need_barrier(idx):
        h, kap = subs[idx]
        return (h, kap) in ((0, 8), (0, 16), (1, 8))
    I(a, "v_and_b32 v4, 31, v1"); I(a, f"s_lshl_b32 s57, s{S_WAVE}, 14"); I(a, "v_lshlrev_b32 v3, 9, v4"); I(a, "v_add_u32 v3, s57, v3")
    I(a, "v_lshrrev_b32 v5, 5, v1"); I(a, "v_lshl_add_u32 v3, v5, 3, v3"); I(a, "v_and_b32 v4, 7, v4"); I(a, "v_lshl_add_u32 v3, v4, 4, v3")
    def epi_fill(h):
        out = []
        for nb in range(4):
            for q in range(4):
                c = ACC_B + 16*(4*h+nb) + 4*q; ch = (4*h+nb)*4 + q
                out += [f"v_cvt_pk_bf16_f32 v4, v{c}, v{c+1}", f"v_cvt_pk_bf16_f32 v5, v{c+2}, v{c+3}", f"v_xor_b32 v6, {(ch & 7) << 4}, v3",
                        f"ds_write_b64 v6, v[4:5] offset:{(ch >> 3)*128}"]
        return out
    pend = epi_fill(0)
    q = []
    def emit(ins_list, tag):
        for ins in ins_list:
            I(a, ins)
            if ins.startswith("ds_"): q.append(tag if ins.startswith("ds_read") else "w")
    emit(rd(0), 0); emit(rd(1), 1)
    for idx, (h, kap) in enumerate(subs):
        nxt = idx + 2
        last = max(i for i, t in enumerate(q) if t == idx)
        n_after = len(q) - 1 - last
        I(a, f"s_waitcnt lgkmcnt({min(n_after, 15)})")
        del q[:last+1]
        if nxt < len(subs) and need_barrier(nxt): I(a, "s_barrier")
        F = BF[idx % 3]
        mf = []
        for nb in range(4):
            c = ACC_B + 16*(4*h + nb)
            src = "0" if kap == 0 else f"v[{c}:{c+15}]"
            mf.append(f"v_mfma_f32_32x32x16_bf16 v[{c}:{c+15}], v[{F[nb]}:{F[nb]+3}], v[{TB+4*kap}:{TB+4*kap+3}], {src}")
        fill = rd(nxt) if nxt < len(subs) else []
        per = 2
        if h == 1 and kap >= 8:
            take = 8 if kap < 16 else len(pend)
            fill = fill + pend[:take]; pend = pend[take:]; per = 4
        fl = list(fill)
        for m in mf:
            I(a, m)
            emit(fl[:per], nxt); fl = fl[per:]
        emit(fl, nxt)
    assert not pend
    I(a, "s_nop 7"); I(a, "s_nop 3")
    if not PDBG: st(5)
    for ins in epi_fill(1): I(a, ins)
    y_store_setup(a)
    I(a, "v_and_b32 v40, 31, v1"); I(a, f"s_lshl_b32 s{S_DELTA}, s{S_WAVE}, 5"); I(a, f"v_add_u32 v41, s{S_DELTA}, v40")
    I(a, "s_lshl_b32 s57, s61, 8"); I(a, "s_add_u32 s57, s57, s63")
    I(a, "v_lshlrev_b32 v41, 1, v41"); I(a, "v_add_u32 v41, s57, v41"); I(a, f"v_mul_u32_u24 v41, {YP}, v41"); I(a, "v_add_u32 v41, 512, v41")
    I(a, "v_cmp_gt_u32 vcc, 32, v1"); I(a, "v_mov_b32 v42, 0x7ffffff0"); I(a, "s_nop 0"); I(a, "v_cndmask_b32 v41, v42, v41, vcc")
    I(a, f"buffer_store_short v2, v41, s[{YSRD}:{YSRD+3}], s56 offen {ysc}")
    I(a, "s_waitcnt lgkmcnt(0)"); I(a, "s_barrier")
    y_store(a, 0, ysc)
    if not PDBG: st(6)
    if stamps: I(a, "s_waitcnt vmcnt(0)")
    st(7)
    if stamps: stamps.dump(8, 0)
    I(a, "s_endpgm")
    a.label(f"{pref}_chk")
    I(a, "s_mov_b32 s68, 0")
    I(a, "s_waitcnt vmcnt(0)")
    poll_eval()
    poll("all")
    I(a, f"s_branch {pref}_chkret")
```

```python
from asmgen import *
from gemm2 import *
import gemm3
from gemm3 import acc16, fr16, reads16, mfma16, nblk16, V_QA as QA16
from p1v2 import load_ptr, epi_addrs_read, wave_origin
from p2 import StampsAt, add64, FLAG_OFF, G_OFF
from k0 import XF_OFF, XFP, XFARR
import fold2, awg7 as awg3
FOLDF_OFF = 34 << 20
import os
TWICE = int(os.environ.get('TWICE', '0'))
PSTAMP = int(os.environ.get('PSTAMP', '0'))
NONCE_SC = os.environ.get('NONCE_SC', '')
S_PFS = 56; S_PFOFF = 60; S_PFSTEP = 61; V_PF = 30

def compute_loop16p(a, g, bias_base, hook_label=None, hook_cnt=None, stamp=None):
    p = g.pref; NB, MB = nblk16(g); naddr = 2 + NB
    I(a, "s_barrier")
    if stamp: I(a, stamp); I(a, "s_waitcnt lgkmcnt(0)")
    for r in reads16(g, 0, 0): I(a, r)
    I(a, f"s_mov_b32 s{S_CNT}, {g.nk}"); I(a, f"s_mov_b32 s{S_LEFT}, 0")
    A, B = fr16(g, 0)
    first = [f"v_mfma_f32_16x16x32_bf16 v[{acc16(g,nb,mb)}:{acc16(g,nb,mb)+3}], v[{A[nb]}:{A[nb]+3}], v[{B[mb]}:{B[mb]+3}], v[{bias_base+4*nb}:{bias_base+4*nb+3}]" for nb in range(NB) for mb in range(MB)]
    I(a, "s_waitcnt lgkmcnt(0)")
    interleave(a, first, reads16(g, 1, 1), 1)
    if hook_label:
        I(a, f"s_branch {hook_label}")
    else:
        I(a, f"s_branch {p}_c_mid")
    a(".p2align 6")
    a.label(f"{p}_c_loop")
    I(a, "s_waitcnt lgkmcnt(0)")
    interleave(a, mfma16(g, 0), reads16(g, 1, 1), 1)
    a.label(f"{p}_c_mid")
    I(a, "s_waitcnt lgkmcnt(0)"); I(a, "s_barrier")
    mf = mfma16(g, 1)
    I(a, mf[0])
    I(a, f"s_add_u32 s{S_LEFT}, s{S_LEFT}, {g.STAGE}"); I(a, f"s_cmp_ge_u32 s{S_LEFT}, {g.LDS}")
    I(a, mf[1])
    I(a, f"s_cselect_b32 s{S_DELTA}, s{S_DN}, s{S_DP}"); I(a, f"s_cselect_b32 s{S_LEFT}, 0, s{S_LEFT}")
    vupd = [f"v_add_u32 v{QA16+i}, s{S_DELTA}, v{QA16+i}" for i in range(naddr)]
    fill = vupd + reads16(g, 0, 0) + [f"s_sub_u32 s{S_CNT}, s{S_CNT}, 1", f"s_cmp_lg_u32 s{S_CNT}, 0"]
    interleave(a, mf[2:], fill, 1)
    I(a, f"s_cbranch_scc1 {p}_c_loop")
    I(a, "s_waitcnt lgkmcnt(0)")

def k_k1(a, name, stamps=False, hsc="", astamp=False, npf0=3, w3pf=False, steppf=True, trace=False, pf_after=True, fstamp=False):
    g = G(BM=256, BN=128, WM=2, WN=2, NS=3, ldq=2048, ldp=7168, nk=16, pref="p1")
    st = StampsAt(a, stamps, 70)
    kernel_begin(a, name)
    st(0)
    I(a, "s_cmp_ge_u32 s2, 256"); I(a, "s_cbranch_scc1 p1_end")
    lane_wave(a)
    I(a, "s_cmp_ge_u32 s2, 224"); I(a, "s_cbranch_scc1 aw_entry")
    load_ptr(a, 4, 0); load_ptr(a, 20, 48, 4); load_ptr(a, 24, 104); load_ptr(a, 36, 64); load_ptr(a, 38, 80); load_ptr(a, 62, 96)
    I(a, "s_and_b32 s26, s2, 7"); I(a, "s_lshr_b32 s27, s2, 3")
    I(a, "s_mul_i32 s28, s27, 37"); I(a, "s_lshr_b32 s28, s28, 8")
    I(a, "s_mul_i32 s29, s28, 7"); I(a, "s_sub_u32 s27, s27, s29")
    I(a, "s_lshr_b32 s29, s26, 2"); I(a, "s_and_b32 s26, s26, 3")
    I(a, "s_lshl_b32 s29, s29, 2"); I(a, "s_add_u32 s28, s28, s29")
    I(a, "s_mul_i32 s26, s26, 7"); I(a, "s_add_u32 s29, s26, s27")
    I(a, f"s_mul_i32 s{S_QOFF}, s28, {256*2048}")
    I(a, f"s_mul_i32 s{S_POFF}, s29, {128*2}")
    I(a, f"s_mov_b32 s{S_QSRD+2}, {2048*1024*2}"); I(a, f"s_mov_b32 s{S_QSRD+3}, 0x00020000")
    I(a, f"s_mov_b32 s{S_PSRD+2}, {1024*3584*2}"); I(a, f"s_mov_b32 s{S_PSRD+3}, 0x00020000")
    I(a, f"s_cmp_ge_u32 s{S_WAVE}, 4"); I(a, "s_cbranch_scc0 p1_compute")
    I(a, f"s_sub_u32 s{S_WAVE}, s{S_WAVE}, 4")
    gemm3.loader_voffsets16(a, g)
    I(a, f"s_cmp_eq_u32 s{S_WAVE}, 0"); I(a, f"s_cselect_b32 s{S_TMP}, 16, 0")
    I(a, f"s_mul_i32 s{S_DELTA}, s2, 16"); I(a, f"v_add_u32 v{V_PF}, s{S_DELTA}, v1"); I(a, f"v_lshlrev_b32 v{V_PF}, 7, v{V_PF}")
    I(a, f"v_cmp_gt_u32 vcc, s{S_TMP}, v1"); I(a, f"v_mov_b32 v46, 0x7ffffff0"); I(a, "s_nop 0"); I(a, f"v_cndmask_b32 v{V_PF}, v46, v{V_PF}, vcc")
    I(a, "s_waitcnt lgkmcnt(0)")
    st(1)
    I(a, f"s_mov_b32 s{S_QSRD}, s4"); I(a, f"s_and_b32 s{S_QSRD+1}, s5, 0xffff")
    I(a, f"s_mov_b32 s{S_PSRD}, s20"); I(a, f"s_and_b32 s{S_PSRD+1}, s21, 0xffff")
    I(a, f"s_mov_b32 s{S_PFOFF}, {64*7168}")
    srd(a, 88, 62, 256)
    I(a, "s_cmp_eq_u32 s2, 0"); I(a, "s_cbranch_scc0 p1_nn"); I(a, f"s_cmp_eq_u32 s{S_WAVE}, 3"); I(a, "s_cbranch_scc0 p1_nn")
    I(a, "s_memrealtime s[58:59]"); I(a, "s_waitcnt lgkmcnt(0)"); I(a, "s_or_b32 s58, s58, 1")
    I(a, "v_mov_b32 v26, 0"); I(a, "v_mov_b32 v27, s58")
    I(a, "buffer_store_dword v27, v26, s[88:91], 0 offen sc1")
    a.label("p1_nn")
    X = 1 if steppf else 0
    def pf():
        if not steppf: return
        I(a, f"buffer_load_dword v47, v{V_PF}, s[{S_PSRD}:{S_PSRD+3}], s{S_PFOFF} offen")
        I(a, f"s_add_u32 s{S_PFOFF}, s{S_PFOFF}, {64*7168}")
    if trace:
        I(a, "s_add_u32 s64, s24, 0x6400000"); I(a, "s_addc_u32 s65, s25, 0"); srd(a, 84, 64, 1<<22)
        I(a, "s_lshl_b32 s62, s2, 12"); I(a, f"s_lshl_b32 s68, s{S_WAVE}, 10"); I(a, "s_add_u32 s68, s68, s62"); I(a, "v_mov_b32 v31, 0")
    def tr():
        if not trace: return
        I(a, "s_memrealtime s[90:91]"); I(a, "s_memtime s[92:93]"); I(a, "s_waitcnt lgkmcnt(0)")
        I(a, "v_mov_b32 v28, s90"); I(a, "v_mov_b32 v29, s92")
        I(a, "buffer_store_dwordx2 v[28:29], v31, s[84:87], s68 offen"); I(a, "s_add_u32 s68, s68, 8")
    if trace: X += 1
    st(2)
    PER = g.PER
    if not pf_after:
        for i in range(npf0): pf()
    stage_issue(a, g)
    if not PSTAMP: st(3)
    stage_issue(a, g)
    npa = (npf0 if (pf_after and steppf) else 0)
    if pf_after:
        for i in range(npf0): pf()
    I(a, f"s_waitcnt vmcnt({PER+npa})")
    st(4)
    I(a, "s_barrier"); tr()
    srd(a, 88, 62, 256)
    I(a, "s_mov_b32 s6, s24"); I(a, "s_mov_b32 s7, s25"); add64(a, 6, FOLDF_OFF); srd(a, 92, 6, 33*128)
    I(a, "v_mov_b32 v27, 0")
    I(a, f"s_cmp_eq_u32 s{S_WAVE}, 3"); I(a, "s_cbranch_scc0 p1_nonl")
    I(a, f"buffer_load_dword v26, v27, s[88:91], 0 offen {NONCE_SC}")
    a.label("p1_nonl")
    stage_issue(a, g); pf()
    I(a, f"s_waitcnt vmcnt({PER + X})"); I(a, "s_barrier")
    I(a, f"s_cmp_eq_u32 s{S_WAVE}, 3"); I(a, "s_cbranch_scc0 p1_nopub"); I(a, "s_cmp_lt_u32 s2, 132"); I(a, "s_cbranch_scc0 p1_nopub")
    I(a, "s_mov_b32 s59, 0x10000")
    a.label("p1_npoll")
    I(a, "v_readfirstlane_b32 s58, v26")
    I(a, "s_sub_u32 s59, s59, 1"); I(a, "s_cbranch_scc1 p1_ngo")
    I(a, "s_cmp_lg_u32 s58, 0"); I(a, "s_cbranch_scc1 p1_ngo")
    I(a, "buffer_load_dword v26, v27, s[88:91], 0 offen sc1"); I(a, "s_waitcnt vmcnt(0)")
    I(a, "s_branch p1_npoll")
    a.label("p1_ngo")
    I(a, "s_lshr_b32 s58, s2, 2"); I(a, "s_lshl_b32 s58, s58, 7"); I(a, "s_and_b32 s59, s2, 3"); I(a, "s_lshl_b32 s59, s59, 2"); I(a, "s_add_u32 s58, s58, s59")
    I(a, "v_mov_b32 v25, 0x7ffffff0"); I(a, "v_mov_b32 v27, s58"); I(a, "v_cmp_eq_u32 vcc, 0, v1"); I(a, "s_nop 1"); I(a, "v_cndmask_b32 v27, v25, v27, vcc")
    I(a, "buffer_store_dword v26, v27, s[92:95], 0 offen sc1")
    a.label("p1_nopub")
    if PSTAMP: st(3)
    tr(); stage_issue(a, g); pf()
    I(a, f"s_mov_b32 s{S_CNT}, {g.nk-3-1}")
    a.label("p1_ld_loop")
    I(a, f"s_waitcnt vmcnt({PER + X + (1 if steppf else 0)})"); I(a, "s_barrier"); tr(); stage_issue(a, g); pf()
    I(a, f"s_sub_u32 s{S_CNT}, s{S_CNT}, 1"); I(a, f"s_cmp_lg_u32 s{S_CNT}, 0"); I(a, "s_cbranch_scc1 p1_ld_loop")
    I(a, "s_bfe_u32 s60, s2, 0x10001"); I(a, f"s_mul_i32 s60, s60, {1792*2048}")
    I(a, "s_and_b32 s61, s2, 1"); I(a, "s_lshl_b32 s61, s61, 10"); I(a, "s_add_u32 s60, s60, s61")
    I(a, "s_lshr_b32 s61, s2, 3"); I(a, f"s_mul_i32 s61, s61, {64*2048}"); I(a, "s_add_u32 s60, s60, s61")
    I(a, f"s_mul_i32 s61, s{S_WAVE}, {16*2048}"); I(a, "s_add_u32 s60, s60, s61")
    srd(a, S_PFS, 36, 3584*1024*2)
    I(a, "v_lshrrev_b32 v46, 3, v1"); I(a, "v_lshlrev_b32 v46, 11, v46"); I(a, "v_and_b32 v45, 7, v1"); I(a, "v_lshl_add_u32 v46, v45, 7, v46")
    I(a, f"buffer_load_dword v47, v46, s[{S_PFS}:{S_PFS+3}], s60 offen")
    I(a, f"s_add_u32 s60, s60, {8*2048}")
    I(a, f"buffer_load_dword v47, v46, s[{S_PFS}:{S_PFS+3}], s60 offen")
    I(a, f"s_waitcnt vmcnt({PER + X + (1 if steppf else 0) + 2})"); I(a, "s_barrier")
    I(a, f"s_waitcnt vmcnt({(1 if steppf else 0) + 2})"); I(a, "s_barrier")
    I(a, f"s_barrier")
    st(5)
    srd(a, 16, 24, 2048*3584*2)
    wave_origin(a, g, 28, 29, 30, 31)
    epi_addrs_read(a, g, 7168, 30, 31)
    I(a, f"s_cmp_eq_u32 s{S_WAVE}, 3"); I(a, "s_cbranch_scc0 p1_noflag")
    I(a, "s_mov_b32 s6, s24"); I(a, "s_mov_b32 s7, s25"); add64(a, 6, FLAG_OFF); srd(a, 32, 6, 256*128)
    I(a, "v_mul_u32_u24 v40, 224, v1"); I(a, "v_add_u32 v40, s2, v40"); I(a, "v_lshlrev_b32 v40, 7, v40"); I(a, "v_mov_b32 v42, 0"); I(a, "v_mov_b32 v43, 0")
    I(a, "buffer_store_dwordx2 v[42:43], v40, s[32:35], 0 offen")
    a.label("p1_noflag")
    for mb in range(4):
        I(a, "s_barrier")
        for i in range(4):
            r = 64 + mb*16 + i*4
            I(a, f"ds_read_b128 v[{r}:{r+3}], v62 offset:{mb*4096 + i*1024}")
        for i in range(4):
            r = 64 + mb*16 + i*4
            I(a, f"s_mov_b32 s{S_TMP2}, {(mb*32 + i*8) * 7168}")
            I(a, f"s_waitcnt lgkmcnt({3-i})")
            I(a, f"buffer_store_dwordx4 v[{r}:{r+3}], v63, s[16:19], s{S_TMP2} offen {hsc}")
    st(6)
    if stamps: I(a, "s_waitcnt vmcnt(0)")
    st(7); st.dump(8, 1)
    I(a, "s_endpgm")
    a.label("p1_compute")
    I(a, "s_setprio 3")
    I(a, f"s_lshl_b32 s69, s2, 2"); I(a, f"s_add_u32 s69, s69, s{S_WAVE}")
    fold2.fold_pre(a, 69)
    I(a, f"s_mul_i32 s68, s{S_WAVE}, 10240"); I(a, f"s_add_u32 s68, s68, {2*g.STAGE}")
    I(a, "s_mov_b32 s14, 2048"); I(a, "s_mov_b32 s15, 0x00020000")
    wave_origin(a, g, 28, 29, 30, 31)
    I(a, "v_lshrrev_b32 v8, 4, v1"); I(a, "v_lshlrev_b32 v8, 3, v8")
    I(a, "s_waitcnt lgkmcnt(0)")
    st(1)
    I(a, f"s_mov_b32 s{S_QSRD}, s4"); I(a, f"s_and_b32 s{S_QSRD+1}, s5, 0xffff")
    I(a, "s_mov_b32 s12, s38"); I(a, "s_and_b32 s13, s39, 0xffff")
    I(a, "s_cmp_gt_u32 s69, 512"); I(a, "s_cbranch_scc1 p1_skipload")
    fold2.fold_loads(a, S_QSRD, 12, 68)
    a.label("p1_skipload")
    if fstamp == 2: st(2)
    srd(a, 32, 22, 3584*2)
    I(a, "s_mov_b32 s6, s24"); I(a, "s_mov_b32 s7, s25"); add64(a, 6, XF_OFF); srd(a, 16, 6, 8*XFARR)
    I(a, "s_mov_b32 s6, s24"); I(a, "s_mov_b32 s7, s25"); add64(a, 6, G_OFF); srd(a, 40, 6, 2048*8)
    I(a, "s_cmp_gt_u32 s69, 527"); I(a, "s_cbranch_scc1 p1_nofold")
    I(a, "s_cmp_gt_u32 s69, 512"); I(a, "s_cbranch_scc1 p1_zero")
    for nb in range(4):
        I(a, f"buffer_load_dwordx2 v[{184+2*nb}:{184+2*nb+1}], v8, s[32:35], s31 offen offset:{nb*32}")
    if fstamp == 2: st(3)
    if TWICE:
        I(a, "s_mov_b32 s86, s68"); I(a, "s_mov_b32 s87, 0")
        a.label("p1_fold_again")
        I(a, "s_mov_b32 s68, s86")
    fold2.fold_lds_reads(a, 68, (st if fstamp == 1 else ((lambda i: st(4)) if fstamp == 2 else None)), nyounger=4)
    fold2.fold_compute(a, 69, 16, 40, st=st if fstamp == 1 else None)
    if TWICE:
        I(a, "s_add_u32 s87, s87, 1"); I(a, "s_cmp_eq_u32 s87, 1"); I(a, "s_cbranch_scc1 p1_fold_again")
    if fstamp:
        st(5); I(a, 's_waitcnt vmcnt(0)'); st(6)
    I(a, "s_waitcnt vmcnt(10)")
    I(a, "s_branch p1_folded")
    a.label("p1_zero")
    for nb in range(4):
        I(a, f"buffer_load_dwordx2 v[{184+2*nb}:{184+2*nb+1}], v8, s[32:35], s31 offen offset:{nb*32}")
    fold2.fold_zero(a, 69, 16)
    I(a, "s_waitcnt vmcnt(8)")
    I(a, "s_branch p1_folded")
    a.label("p1_nofold")
    for nb in range(4):
        I(a, f"buffer_load_dwordx2 v[{184+2*nb}:{184+2*nb+1}], v8, s[32:35], s31 offen offset:{nb*32}")
    I(a, f"s_cmp_eq_u32 s{S_WAVE}, {3 if w3pf else 99}"); I(a, "s_cbranch_scc0 p1_nopf")
    load_ptr(a, 52, 8, 4); load_ptr(a, 64, 24, 4)
    I(a, "s_lshl_b32 s58, s2, 6"); I(a, "v_add_u32 v4, s58, v1")
    I(a, f"s_mov_b32 s59, {(1<<32)//9+1}"); I(a, "v_mul_hi_u32 v5, v4, s59"); I(a, "v_mul_u32_u24 v6, 9, v5"); I(a, "v_sub_u32 v6, v4, v6")
    I(a, "v_lshlrev_b32 v7, 12, v5"); I(a, "v_lshl_add_u32 v7, v6, 7, v7")
    I(a, "v_cmp_ge_u32 vcc, 1024, v5"); I(a, "v_mov_b32 v9, 0x7ffffff0"); I(a, "s_waitcnt lgkmcnt(0)"); I(a, "v_cndmask_b32 v7, v9, v7, vcc")
    srd(a, 12, 52, 2048*2048*2); srd(a, 16, 54, 2048*2048*2)
    I(a, "buffer_load_dword v25, v7, s[12:15], 0 offen"); I(a, "buffer_load_dword v25, v7, s[16:19], 0 offen")
    I(a, f"s_mov_b32 s59, {(1<<32)//5+1}"); I(a, "v_mul_hi_u32 v5, v4, s59"); I(a, "v_mul_u32_u24 v6, 5, v5"); I(a, "v_sub_u32 v6, v4, v6")
    I(a, "v_lshlrev_b32 v7, 11, v5"); I(a, "v_lshl_add_u32 v7, v6, 7, v7")
    I(a, "v_cmp_ge_u32 vcc, 512, v5"); I(a, "v_mov_b32 v9, 0x7ffffff0"); I(a, "s_nop 0"); I(a, "v_cndmask_b32 v7, v9, v7, vcc")
    srd(a, 12, 64, 1024*1024*2); srd(a, 16, 66, 1024*1024*2)
    I(a, "buffer_load_dword v25, v7, s[12:15], 0 offen"); I(a, "buffer_load_dword v25, v7, s[16:19], 0 offen")
    I(a, "s_waitcnt vmcnt(4)")
    I(a, "s_branch p1_folded")
    a.label("p1_nopf")
    I(a, "s_waitcnt vmcnt(0)")
    a.label("p1_folded")
    if fstamp:
        st(7); st0 = st; st = (lambda i: None)
    st(2)
    for nb in range(4):
        for j in range(4):
            src = 184 + 2*nb + j//2; d = 8 + 4*nb + j
            if j % 2 == 0: I(a, f"v_lshlrev_b32 v{d}, 16, v{src}")
            else: I(a, f"v_and_b32 v{d}, 0xffff0000, v{src}")
    setup16_noclobber(a, g)
    st(3)
    compute_loop16p(a, g, 8, hook_label="p1_hook", hook_cnt=g.nk, stamp="s_memtime s[78:79]" if (stamps and not fstamp) else None)
    st(5)
    I(a, f"s_mul_i32 s{S_TMP}, s{S_WAVE}, {g.wm*128}")
    I(a, "v_and_b32 v18, 15, v1"); I(a, "v_lshlrev_b32 v19, 7, v18"); I(a, f"v_add_u32 v19, s{S_TMP}, v19")
    I(a, "v_bfe_u32 v24, v1, 4, 1"); I(a, "v_lshl_add_u32 v19, v24, 3, v19")
    I(a, "v_and_b32 v18, 7, v18"); I(a, "v_lshrrev_b32 v24, 5, v1")
    for nb in range(4):
        I(a, f"v_add_u32 v25, {2*nb}, v24"); I(a, "v_xor_b32 v25, v25, v18"); I(a, f"v_lshl_add_u32 v{20+nb}, v25, 4, v19")
    k = 0
    for mb2 in range(4):
        for mb in (2*mb2, 2*mb2+1):
            for nb in range(4):
                cc = acc16(g, nb, mb); t = 8 + (k % 4) * 2; k += 1
                for r in range(4): I(a, f"v_max_f32 v{cc+r}, 0, v{cc+r}")
                for r in (0, 2): I(a, f"v_pk_mul_f32 v[{cc+r}:{cc+r+1}], v[{cc+r}:{cc+r+1}], v[{cc+r}:{cc+r+1}]")
                I(a, f"v_cvt_pk_bf16_f32 v{t}, v{cc}, v{cc+1}"); I(a, f"v_cvt_pk_bf16_f32 v{t+1}, v{cc+2}, v{cc+3}")
                I(a, f"ds_write_b64 v{20+nb}, v[{t}:{t+1}] offset:{mb*2048}")
        I(a, "s_waitcnt lgkmcnt(0)"); I(a, "s_barrier")
    st(6); st(7)
    if fstamp: st0.dump(8, 0)
    else: st.dump(8, 0)
    a.label("p1_end")
    I(a, "s_endpgm")
    a.label("p1_hook")
    I(a, "s_cmp_gt_u32 s69, 527"); I(a, "s_cbranch_scc1 p1_c_mid")
    I(a, "s_waitcnt vmcnt(0)")
    I(a, "s_branch p1_c_mid")
    a.label("aw_entry")
    sa = StampsAt(a, astamp, 70)
    if astamp: sa(0)
    awg3.a_wg(a, stamps=sa if astamp else None, ysc=os.environ.get('YSC', ''))
    return g

def setup16_noclobber(a, g):
    import math
    lw = int(math.log2(g.WM)); V_QA = gemm3.V_QA; V_PA = gemm3.V_PA
    I(a, f"s_and_b32 s{S_TMP}, s{S_WAVE}, {g.WM-1}"); I(a, f"s_lshr_b32 s{S_TMP2}, s{S_WAVE}, {lw}")
    I(a, "v_and_b32 v27, 15, v1"); I(a, f"s_mul_i32 s{S_DELTA}, s{S_TMP}, {g.wm*128}"); I(a, "v_lshlrev_b32 v27, 7, v27"); I(a, f"v_add_u32 v27, s{S_DELTA}, v27")
    I(a, "v_lshrrev_b32 v28, 4, v1"); I(a, "v_bfe_u32 v29, v1, 1, 3"); I(a, "v_xor_b32 v28, v28, v29")
    for ks in range(2):
        I(a, f"v_xor_b32 v30, {4*ks}, v28"); I(a, f"v_lshl_add_u32 v{V_QA+ks}, v30, 4, v27")
    I(a, "v_bfe_u32 v27, v1, 2, 2"); I(a, "v_lshrrev_b32 v28, 4, v1"); I(a, "v_lshl_add_u32 v29, v28, 3, v27")
    I(a, f"v_lshlrev_b32 v29, 8, v29"); I(a, f"v_add_u32 v29, {g.QB}, v29")
    I(a, "v_and_b32 v30, 1, v1"); I(a, "v_lshl_add_u32 v29, v30, 3, v29")
    I(a, "v_bfe_u32 v30, v1, 1, 1")
    I(a, f"s_mul_i32 s{S_DELTA}, s{S_TMP2}, {g.wn//8}"); I(a, f"v_add_u32 v30, s{S_DELTA}, v30")
    I(a, "v_lshlrev_b32 v27, 2, v27"); I(a, "v_and_b32 v28, 1, v28"); I(a, "v_lshlrev_b32 v28, 1, v28"); I(a, "v_xor_b32 v27, v27, v28")
    NB, MB = nblk16(g)
    for nb in range(NB):
        I(a, f"v_add_u32 v31, {2*nb}, v30"); I(a, "v_xor_b32 v31, v31, v27"); I(a, f"v_lshl_add_u32 v{V_PA+nb}, v31, 4, v29")
    I(a, f"s_mov_b32 s{S_DN}, {(-(g.NS-1)*g.STAGE) & 0xffffffff}"); I(a, f"s_mov_b32 s{S_DP}, {g.STAGE}")
```

```python
import sys
from asmgen import *
import k1n as k1m, k2n as k2m, rtstamp
PFX = "gated_mix__spectral_fnet__dense_activation_squared_relu__prompt"
HEADER = open("cdna_kernels/" + PFX + ".s.ref").read().split("; Override launch")[0]
def gen(stamp=0, hsc=__import__("os").environ.get("HSC", "sc0 sc1"), trace=False, k1trace=False, **kw):
    a = Asm()
    a(HEADER.rstrip())
    a(f"; @launch kernel=k1_kernel grid=(256,1,1) block=(512,1,1) lds=163840")
    a(f"; @launch kernel=k2_kernel grid=(256,1,1) block=(512,1,1) lds=131072")
    a('.amdgcn_target "amdgcn-amd-amdhsa--gfx950"')
    a(".text")
    k1m.k_k1(a, "k1_kernel", stamps=(stamp in (1, 4)), hsc=hsc, astamp=(stamp in (3, 4)), trace=k1trace, **kw)
    k2m.k_k2(a, "k2_kernel", stamps=(stamp == 2), trace=trace)
    a('.section .rodata,"a"')
    for n in ("k1_kernel", "k2_kernel"):
        a(".p2align 6"); kernel_desc(a, n, 256, 96, 256)
    return a.text()
if __name__ == "__main__" and __import__("os").environ.get("RTSTAMP"):
    open("f3_r4.s", "w").write(gen(stamp=4))
    open("f3_r2.s", "w").write(gen(stamp=2))
    open("f3_rf.s", "w").write(gen(stamp=1, fstamp=2))
elif __name__ == "__main__":
    open("f3.s", "w").write(gen())
    open("f3_s1.s", "w").write(gen(stamp=1))
    open("f3_s2.s", "w").write(gen(stamp=2))
    open("f3_s3.s", "w").write(gen(stamp=3))
    open("f3_rt.s", "w").write(rtstamp.instrument(gen(k1trace=True), ["k1_kernel", "k2_kernel"]))
    open("f3_s1f.s", "w").write(gen(stamp=1, fstamp=2))
```

```python
from asmgen import *
from gemm2 import *
import gemm3
from gemm3 import acc16, loader_voffsets16, compute_setup16, compute_loop16
from p1v2 import load_ptr
from p2 import StampsAt, add64, Y_OFF, YP, YARR, G_OFF, FLAG_OFF
from p2b import y_loads, y_precombine, T1
XS_OFF = 40 << 20

import os
PFP = int(os.environ.get("PFP", "0")); PFD = int(os.environ.get("PFD", "6"))
def k_k2(a, name, stamps=False, NS=4, trace=False):
    g = G(BM=128, BN=128, WM=2, WN=2, NS=NS, ldq=7168, ldp=2048, nk=28, pref="p2")
    st = StampsAt(a, stamps, 70)
    kernel_begin(a, name)
    st(0)
    I(a, "s_cmp_ge_u32 s2, 256"); I(a, "s_cbranch_scc1 p2_end")
    load_ptr(a, 6, 64); load_ptr(a, 20, 72); load_ptr(a, 22, 88); load_ptr(a, 4, 104)
    lane_wave(a)
    I(a, "s_lshr_b32 s27, s2, 3")
    I(a, "s_bfe_u32 s67, s2, 0x10001")
    I(a, "s_bfe_u32 s28, s2, 0x10002"); I(a, "s_lshl_b32 s28, s28, 3"); I(a, "s_lshr_b32 s30, s27, 2"); I(a, "s_add_u32 s28, s28, s30")
    I(a, "s_and_b32 s29, s2, 1"); I(a, "s_lshl_b32 s29, s29, 2"); I(a, "s_and_b32 s30, s27, 3"); I(a, "s_add_u32 s29, s29, s30")
    PX = 2
    I(a, f"s_mul_i32 s{S_QOFF}, s28, {128*7168}")
    I(a, f"s_mul_i32 s30, s67, {1792*2}"); I(a, f"s_add_u32 s{S_QOFF}, s{S_QOFF}, s30")
    I(a, f"s_mul_i32 s{S_POFF}, s29, {128*2}")
    I(a, f"s_mul_i32 s30, s67, {1792*2048}"); I(a, f"s_add_u32 s{S_POFF}, s{S_POFF}, s30")
    I(a, f"s_and_b32 s31, s{S_WAVE}, 1"); I(a, "s_lshl_b32 s31, s31, 6"); I(a, "s_lshl_b32 s30, s28, 7"); I(a, "s_add_u32 s30, s30, s31")
    I(a, "s_lshl_b32 s31, s67, 5"); I(a, "s_add_u32 s30, s30, s31")
    I(a, f"s_bfe_u32 s31, s{S_WAVE}, 0x10001"); I(a, "s_lshl_b32 s31, s31, 7"); I(a, "s_lshl_b32 s66, s29, 8"); I(a, "s_add_u32 s31, s31, s66")
    I(a, f"s_cmp_ge_u32 s{S_WAVE}, 4"); I(a, "s_cbranch_scc0 p2_compute")
    I(a, f"s_sub_u32 s{S_WAVE}, s{S_WAVE}, 4")
    loader_voffsets16(a, g, s_perm=67, nblk=2)
    I(a, "s_waitcnt lgkmcnt(0)")
    st(1)
    srd(a, S_PSRD, 6, 3584*1024*2); srd(a, S_QSRD, 4, 2048*3584*2)
    st(2)
    PER = g.PER
    stage_issue(a, g)
    st(3)
    stage_issue(a, g)
    I(a, f"s_waitcnt vmcnt({PER})")
    st(4)
    I(a, "s_barrier")
    for s in range(2, NS): stage_issue(a, g)
    srd(a, 16, 22, 2048*1024*2)
    I(a, "s_mov_b32 s6, s4"); I(a, "s_mov_b32 s7, s5"); add64(a, 6, Y_OFF); srd(a, 24, 6, 4*YARR)
    I(a, "s_mov_b32 s6, s4"); I(a, "s_mov_b32 s7, s5"); add64(a, 6, G_OFF); srd(a, 36, 6, 2048*8)
    I(a, f"s_mov_b32 s63, {YARR}"); I(a, f"s_mov_b32 s64, {2*YARR}"); I(a, f"s_mov_b32 s65, {3*YARR}")
    X = 0
    if trace:
        X = 1
        I(a, "s_add_u32 s60, s4, 0x6400000"); I(a, "s_addc_u32 s61, s5, 0"); srd(a, 56, 60, 1<<22)
        I(a, "s_lshl_b32 s62, s2, 12"); I(a, f"s_lshl_b32 s68, s{S_WAVE}, 10"); I(a, "s_add_u32 s68, s68, s62"); I(a, "v_mov_b32 v30, 0")
    def tr():
        if not trace: return
        I(a, "s_memrealtime s[90:91]"); I(a, "s_memtime s[92:93]"); I(a, "s_waitcnt lgkmcnt(0)")
        I(a, "v_mov_b32 v28, s90"); I(a, "v_mov_b32 v29, s92")
        I(a, "buffer_store_dwordx2 v[28:29], v30, s[56:59], s68 offen"); I(a, "s_add_u32 s68, s68, 8")
    if PFP and not trace:
        P = PFP
        I(a, f"s_lshl_b32 s58, s{S_WAVE}, 6"); I(a, "v_add_u32 v20, s58, v1")
        I(a, "s_bfe_u32 s58, s2, 0x20003"); I(a, "s_lshl_b32 s58, s58, 5")
        I(a, "v_and_b32 v21, 31, v20"); I(a, "v_add_u32 v21, s58, v21"); I(a, f"v_mul_u32_u24 v21, {g.ldq}, v21")
        I(a, "v_lshrrev_b32 v22, 5, v20"); I(a, "v_lshl_add_u32 v21, v22, 7, v21")
        I(a, f"v_cmp_gt_u32 vcc, {32*P}, v20"); I(a, "v_mov_b32 v23, 0x7ffffff0"); I(a, "s_nop 0"); I(a, "v_cndmask_b32 v21, v23, v21, vcc")
        I(a, "v_sub_u32 v24, 255, v20")
        I(a, "s_bfe_u32 s58, s2, 0x30005"); I(a, "s_lshl_b32 s58, s58, 3")
        I(a, "v_and_b32 v25, 7, v24"); I(a, "v_add_u32 v25, s58, v25")
        I(a, "v_lshrrev_b32 v26, 4, v24"); I(a, "v_lshl_add_u32 v25, v26, 6, v25")
        I(a, "v_lshlrev_b32 v25, 11, v25"); I(a, "v_bfe_u32 v26, v24, 3, 1"); I(a, "v_lshl_add_u32 v25, v26, 7, v25")
        I(a, f"v_cmp_gt_u32 vcc, {16*P}, v24"); I(a, "s_nop 1"); I(a, "v_cndmask_b32 v25, v23, v25, vcc")
        assert 48*P <= 256
        nst = g.nk - NS
        npf = 2
        def cntpf(i):
            return npf * sum(1 for j in (i-3, i-2, i-1) if j >= 0 and j % P == 0 and active(j))
        def active(j): return j + NS + PFD0 < g.nk
        PFD0 = PFD - NS if PFD >= NS else 0
        for i in range(nst):
            I(a, f"s_waitcnt vmcnt({(NS-2)*PER + cntpf(i)})"); I(a, "s_barrier"); stage_issue(a, g)
            if i % P == 0 and active(i):
                I(a, f"s_add_u32 s58, s{S_QOFF}, {PFD0*128}"); I(a, f"s_add_u32 s59, s{S_POFF}, {PFD0*64*g.ldp}")
                I(a, f"buffer_load_dword v27, v21, s[{S_QSRD}:{S_QSRD+3}], s58 offen")
                I(a, f"buffer_load_dword v27, v25, s[{S_PSRD}:{S_PSRD+3}], s59 offen")
        PFX = sum(npf for j in (nst-3, nst-2, nst-1) if j % P == 0 and active(j))
        assert PFX == 0 or True
    else:
        PFX = 0
        I(a, f"s_mov_b32 s{S_CNT}, {g.nk-NS}")
        if trace:
            I(a, f"s_waitcnt vmcnt({(NS-2)*PER})"); I(a, "s_barrier"); tr(); stage_issue(a, g)
            I(a, f"s_waitcnt vmcnt({(NS-3)*PER + PER+1})"); I(a, "s_barrier"); tr(); stage_issue(a, g)
            I(a, f"s_mov_b32 s{S_CNT}, {g.nk-NS-2}")
        a.label("p2_ld_loop")
        I(a, f"s_waitcnt vmcnt({(NS-2)*(PER+X)})"); I(a, "s_barrier"); tr(); stage_issue(a, g)
        I(a, f"s_sub_u32 s{S_CNT}, s{S_CNT}, 1"); I(a, f"s_cmp_lg_u32 s{S_CNT}, 0"); I(a, "s_cbranch_scc1 p2_ld_loop")
    y_loads(a, 30, 31, "p2")
    for t in range(g.nk - NS, g.nk):
        rem = max(min(t + NS - 1, g.nk - 1) - (t + 1), 0)
        if t + 1 <= g.nk - 1: I(a, f"s_waitcnt vmcnt({rem*(PER+X) + 20})")
        I(a, "s_barrier")
    st(5)
    I(a, "s_waitcnt vmcnt(0)")
    y_precombine(a)
    W = 50
    I(a, f"s_lshl_b32 s66, s{S_WAVE}, 12")
    I(a, f"v_lshrrev_b32 v{W}, 3, v1"); I(a, f"v_and_b32 v{W+2}, 7, v1"); I(a, f"v_xor_b32 v{W+2}, v{W+2}, v{W}")
    I(a, f"v_lshlrev_b32 v{W+3}, 7, v{W}"); I(a, f"v_lshl_add_u32 v{W+3}, v{W+2}, 4, v{W+3}"); I(a, f"v_add_u32 v{W+12}, s66, v{W+3}")
    I(a, f"v_add_u32 v{W}, s30, v{W}"); I(a, f"v_lshlrev_b32 v{W}, 11, v{W}"); I(a, f"v_and_b32 v{W+2}, 7, v1")
    I(a, f"v_lshl_add_u32 v{W}, v{W+2}, 4, v{W}"); I(a, f"v_add_u32 v{W+13}, s31, v{W}")
    st(6)
    I(a, "s_barrier"); I(a, "s_barrier"); I(a, "s_barrier")
    for i in range(4):
        I(a, f"ds_read_b128 v[{64+4*i}:{64+4*i+3}], v{W+12} offset:{i*1024}")
    for i in range(4):
        I(a, f"s_waitcnt lgkmcnt({3-i})")
        og = 33 + 2*i
        I(a, f"v_mov_b32 v46, v{og}"); I(a, f"v_mov_b32 v47, v{og}")
        for p in range(4):
            bb = 64 + 4*i + p; d = T1 + i*8 + p*2
            I(a, f"v_lshlrev_b32 v48, 16, v{bb}"); I(a, f"v_and_b32 v49, 0xffff0000, v{bb}")
            I(a, f"v_pk_fma_f32 v[{d}:{d+1}], v[48:49], v[46:47], v[{d}:{d+1}]")
            I(a, f"v_cvt_pk_bf16_f32 v{bb}, v{d}, v{d+1}")
        I(a, f"s_mov_b32 s{S_TMP2}, {i*8*2048}")
        I(a, f"buffer_store_dwordx4 v[{64+4*i}:{64+4*i+3}], v{W+13}, s[16:19], s{S_TMP2} offen {os.environ.get('OSC', 'sc0 sc1')}")
    if stamps: I(a, "s_waitcnt vmcnt(0)")
    st(7); st.dump(8, 1)
    I(a, "s_endpgm")
    a.label("p2_compute")
    compute_setup16(a, g)
    for nb in range(4):
        for mb in (2, 3):
            for r in range(4): I(a, f"v_mov_b32 v{acc16(g,nb,mb)+r}, 0")
    I(a, "s_waitcnt lgkmcnt(0)")
    st(1)
    srd(a, 32, 20, 2048)
    I(a, "v_lshrrev_b32 v8, 4, v1"); I(a, "v_lshlrev_b32 v8, 3, v8")
    for nb in range(4):
        I(a, f"buffer_load_dwordx2 v[{10+2*nb}:{10+2*nb+1}], v8, s[32:35], s31 offen offset:{nb*32}")
    I(a, "s_mov_b32 s6, s4"); I(a, "s_mov_b32 s7, s5"); add64(a, 6, XS_OFF); srd(a, 56, 6, 256*16384)
    I(a, "s_mov_b32 s6, s4"); I(a, "s_mov_b32 s7, s5"); add64(a, 6, FLAG_OFF); srd(a, 8, 6, 256*128)
    I(a, f"s_lshl_b32 s66, s{S_WAVE}, 12")
    I(a, "v_and_b32 v18, 15, v1"); I(a, "v_lshlrev_b32 v19, 7, v18"); I(a, f"v_add_u32 v19, s66, v19")
    I(a, "v_bfe_u32 v24, v1, 4, 1"); I(a, "v_lshl_add_u32 v19, v24, 3, v19")
    I(a, "v_and_b32 v18, 7, v18"); I(a, "v_lshrrev_b32 v24, 5, v1")
    for nb in range(4):
        I(a, f"v_add_u32 v25, {2*nb}, v24"); I(a, "v_xor_b32 v25, v25, v18"); I(a, f"v_lshl_add_u32 v{20+nb}, v25, 4, v19")
    I(a, "s_waitcnt vmcnt(0)")
    for nb in range(4):
        for j in range(4):
            src = 10 + 2*nb + j//2
            for mb in (0, 1):
                d = acc16(g, nb, mb) + j
                if j % 2 == 0: I(a, f"v_lshlrev_b32 v{d}, 16, v{src}")
                else: I(a, f"v_and_b32 v{d}, 0xffff0000, v{src}")
    compute_loop16(a, g, stamp=f"s_memtime s[78:79]" if stamps else None)
    st(5)
    I(a, "s_nop 7"); I(a, "s_nop 7")
    I(a, "v_lshlrev_b32 v8, 4, v1")
    I(a, f"s_xor_b32 s61, s2, {PX}")
    I(a, f"s_lshl_b32 s60, s61, 14"); I(a, f"s_lshl_b32 s62, s{S_WAVE}, 12"); I(a, "s_add_u32 s60, s60, s62")
    for nb in range(4):
        t = 32 + nb*4
        for z, mb in enumerate((2, 3)):
            c = acc16(g, nb, mb)
            I(a, f"v_cvt_pk_bf16_f32 v{t+2*z}, v{c}, v{c+1}"); I(a, f"v_cvt_pk_bf16_f32 v{t+2*z+1}, v{c+2}, v{c+3}")
        I(a, f"buffer_store_dwordx4 v[{t}:{t+3}], v8, s[56:59], s60 offen offset:{nb*1024} sc1")
    st(2)
    I(a, "s_waitcnt vmcnt(0)")
    st(3)
    I(a, "s_barrier")
    I(a, f"s_cmp_eq_u32 s{S_WAVE}, 0"); I(a, "s_cbranch_scc0 p2_waitb")
    I(a, "s_lshl_b32 s62, s2, 7"); I(a, "v_mov_b32 v12, s62"); I(a, "v_mov_b32 v13, 1")
    I(a, f"buffer_store_dword v13, v12, s[8:11], 0 offen sc1")
    I(a, "s_lshl_b32 s62, s61, 7"); I(a, "v_mov_b32 v12, s62")
    I(a, "s_mov_b32 s69, 0x20000")
    a.label("p2_poll")
    I(a, f"buffer_load_dword v13, v12, s[8:11], 0 offen sc1")
    I(a, "s_waitcnt vmcnt(0)")
    I(a, "v_readfirstlane_b32 s62, v13")
    I(a, "s_sub_u32 s69, s69, 1"); I(a, "s_cbranch_scc1 p2_waitb")
    I(a, "s_cmp_eq_u32 s62, 1"); I(a, "s_cbranch_scc0 p2_poll")
    a.label("p2_waitb")
    I(a, "s_barrier")
    st(6)
    I(a, f"s_lshl_b32 s60, s2, 14"); I(a, f"s_lshl_b32 s62, s{S_WAVE}, 12"); I(a, "s_add_u32 s60, s60, s62")
    for nb in range(4):
        t = 32 + nb*4
        I(a, f"buffer_load_dwordx4 v[{t}:{t+3}], v8, s[56:59], s60 offen offset:{nb*1024} sc1")
    for nb in range(4):
        t = 32 + nb*4
        I(a, f"s_waitcnt vmcnt({3-nb})")
        for z, mb in enumerate((0, 1)):
            c = acc16(g, nb, mb)
            for hh in range(2):
                I(a, f"v_lshlrev_b32 v10, 16, v{t+2*z+hh}"); I(a, f"v_and_b32 v11, 0xffff0000, v{t+2*z+hh}")
                I(a, f"v_pk_add_f32 v[{c+2*hh}:{c+2*hh+1}], v[{c+2*hh}:{c+2*hh+1}], v[10:11]")
            tt = 48 + (nb*2+z)*2
            I(a, f"v_cvt_pk_bf16_f32 v{tt}, v{c}, v{c+1}"); I(a, f"v_cvt_pk_bf16_f32 v{tt+1}, v{c+2}, v{c+3}")
            I(a, f"ds_write_b64 v{20+nb}, v[{tt}:{tt+1}] offset:{mb*2048}")
    I(a, "s_waitcnt lgkmcnt(0)")
    I(a, "s_barrier")
    st(7); st.dump(8, 0)
    a.label("p2_end")
    I(a, "s_endpgm")
    return g
```

```python
class Asm:
    def __init__(self):
        self.lines = []
        self.nlabel = 0
    def __call__(self, s=""):
        for l in s.split("\n"):
            self.lines.append(l)
    def c(self, s):
        self.lines.append("    ; " + s)
    def label(self, name):
        self.lines.append(name + ":")
    def newlabel(self, p="L"):
        self.nlabel += 1
        return f"{p}_{self.nlabel}"
    def text(self):
        return "\n".join(self.lines) + "\n"

def I(a, s):
    a.lines.append("    " + s)

def kernel_begin(a, name):
    a(f".globl {name}")
    a(".p2align 8")
    a(f".type {name},@function")
    a(f"{name}:")

def kernel_desc(a, name, vgpr, sgpr, accum, wgy=False):
    a(f".amdhsa_kernel {name}")
    a(f"  .amdhsa_next_free_vgpr {vgpr}")
    a(f"  .amdhsa_next_free_sgpr {sgpr}")
    a(f"  .amdhsa_accum_offset {accum}")
    a(f"  .amdhsa_group_segment_fixed_size 0")
    a(f"  .amdhsa_kernarg_size 112")
    a(f"  .amdhsa_user_sgpr_count 2")
    a(f"  .amdhsa_user_sgpr_kernarg_segment_ptr 1")
    a(f"  .amdhsa_system_sgpr_workgroup_id_x 1")
    if wgy:
        a(f"  .amdhsa_system_sgpr_workgroup_id_y 1")
    a(f"  .amdhsa_float_denorm_mode_32 3")
    a(f"  .amdhsa_float_denorm_mode_16_64 3")
    a(".end_amdhsa_kernel")

def srd(a, s, ptr, nbytes):
    I(a, f"s_mov_b32 s{s}, s{ptr}")
    I(a, f"s_and_b32 s{s+1}, s{ptr+1}, 0xffff")
    I(a, f"s_mov_b32 s{s+2}, {nbytes}")
    I(a, f"s_mov_b32 s{s+3}, 0x00020000")

def add_pads(a, i0, i1, nch, pref, ret, every=13):
    seg = a.lines[i0:i1]
    out = []; n = 0; pads = []
    pos = []
    cnt = every
    for k, l in enumerate(seg):
        isins = l.startswith("    ") and not l.strip().startswith(";")
        if isins:
            if cnt >= every:
                pos.append(k); cnt = 0
            cnt += 1
    npad = len(pos)
    names = [f"{pref}_pad{j}" for j in range(npad)]
    pset = {k: j for j, k in enumerate(pos)}
    for k, l in enumerate(seg):
        if k in pset:
            j = pset[k]
            out.append(names[j] + ":")
            tgt = names[j + nch] if j + nch < npad else ret
            out.append(f"    s_cbranch_execz {tgt}")
        out.append(l)
    a.lines[i0:i1] = out
    return names[:nch], npad

def warm_dispatch(a, s_idx, entries, ret):
    I(a, "s_mov_b64 exec, 0")
    for k, e in enumerate(entries):
        I(a, f"s_cmp_eq_u32 s{s_idx}, {k}"); I(a, f"s_cbranch_scc1 {e}")
```

```python
from asmgen import *
from gemm2 import S_WAVE, S_TMP, S_TMP2, S_DELTA, S_CNT, S_LEFT, S_STG, S_QOFF, S_POFF, S_MQ, S_MP, S_DN, S_DP, interleave
from p1v2 import load_ptr
from p2 import add64, Y_OFF, YP, YARR
from k0 import XF_OFF, XFP, XFARR
import os
AEXP = int(os.environ.get("AEXP", "0"))
ROT = int(os.environ.get("AROT", "0"))
MDPF = os.environ.get("MDPF", "h1")
MDH1 = os.environ.get("MDH1", "reg")
PFDELAY = int(os.environ.get("PFDELAY", "0"))
MSPF = int(os.environ.get("MSPF", "1"))
MSR = int(os.environ.get("MSR", "1"))
ASTG = int(os.environ.get("ASTG", "0"))
PDBG = int(os.environ.get("PDBG", "0"))
MDLOOP = int(os.environ.get("MDLOOP", "0"))
WARM = int(os.environ.get("WARM", "1"))
PADEV = int(os.environ.get("PADEV", "41"))
MDPRE = int(os.environ.get("MDPRE", "1"))
NWX = int(os.environ.get("NWX", "2"))
NCH = int(os.environ.get("NCH", "6"))
NPOLL = int(os.environ.get("NPOLL", "1"))
PSLEEP = int(os.environ.get("PSLEEP", "2"))
PSLEEP0 = int(os.environ.get("PSLEEP0", "0"))
EARLYINV = int(os.environ.get("EARLYINV", "1"))
FOLDF_OFF = 34 << 20
QSRD = 8; PSRD = 12; MSRD = 16; YSRD = 20
STG = 53248; QB = 16384
RSZ = 16384
SMALL = 8*RSZ
CV = 153600
CX = CV + 1024
ACC_A = 112; ACC_B = 128
FA = 16
TB = 16

def a_regs(s):
    b = FA + 40*s
    return [b + 4*i for i in range(9)], b + 36
def a_reads(s, kk):
    A, B = a_regs(s)
    out = [f"ds_read_b128 v[{B}:{B+3}], v{3+kk}"]
    for nb in range(9):
        if AEXP == 1 and nb % 2 == 1: continue
        for h in range(2):
            out.append(f"ds_read_b64_tr_b16 v[{A[nb]+2*h}:{A[nb]+2*h+1}], v2 offset:{(16*kk+4*h)*XFP + nb*64}")
    return out
def a_mfmas(s):
    A, B = a_regs(s)
    return [f"v_mfma_f32_32x32x16_bf16 v[{ACC_A+16*nb}:{ACC_A+16*nb+15}], v[{A[nb]}:{A[nb]+3}], v[{B}:{B+3}], v[{ACC_A+16*nb}:{ACC_A+16*nb+15}]" for nb in range(9)]

BF = [[84, 88, 92, 96], [100, 104, 108, 112], [116, 120, 124, 12]]

def sidx_to(a, j, dst):
    if j >= 8: I(a, f"s_mov_b32 s{dst}, 8")
    elif ROT: I(a, f"s_add_u32 s{dst}, s67, {j}"); I(a, f"s_and_b32 s{dst}, s{dst}, 7")
    else: I(a, f"s_mov_b32 s{dst}, {j}")
def a_issue_q(a, s_stg, j):
    sidx_to(a, j, 59); I(a, "s_lshl_b32 s59, s59, 7"); I(a, f"s_add_u32 s59, s59, s{S_QOFF}")
    I(a, f"s_add_u32 m0, s{s_stg}, s{S_MQ}"); I(a, "s_nop 0")
    for i in range(4):
        I(a, f"buffer_load_dwordx4 v{2+i}, s[{QSRD}:{QSRD+3}], s59 offen offset:{i*1024} lds")
def a_issue_p(a, j):
    sidx_to(a, j, 59); I(a, f"s_mul_i32 s{S_TMP}, s59, {64*XFP}"); I(a, f"s_add_u32 s{S_TMP}, s{S_TMP}, s{S_POFF}")
    I(a, f"s_add_u32 m0, s{S_STG}, s{S_MP}"); I(a, "s_nop 0")
    vv = 7 if j >= 8 else 6
    for i in range(9):
        if i and i % 4 == 0:
            I(a, "s_add_u32 m0, m0, 4096"); I(a, f"s_add_u32 s{S_TMP}, s{S_TMP}, 4096"); I(a, "s_nop 0")
        I(a, f"buffer_load_dwordx4 v{vv}, s[{PSRD}:{PSRD+3}], s{S_TMP} offen offset:{(i%4)*1024} lds")
    I(a, f"s_add_u32 s{S_STG}, s{S_STG}, {STG}")
    I(a, f"s_cmp_ge_u32 s{S_STG}, {3*STG}")
    I(a, f"s_cselect_b32 s{S_STG}, 0, s{S_STG}")
def a_stage_issue(a, j):
    a_issue_q(a, S_STG, j); a_issue_p(a, j)

MR = 112
def m_load(a, h, s):
    I(a, f"s_add_u32 s56, s54, {h*128*4096 + s*128}")
    for i in range(4):
        r = MR + ((h*4+s)*4 + i)*4
        I(a, f"buffer_load_dwordx4 v[{r}:{r+3}], v{96+i}, s[{MSRD}:{MSRD+3}], s56 offen offset:{i*1024}")
def m_load_small(a, h):
    I(a, f"s_add_u32 s56, s54, {h*128*4096 + 512}")
    r = MR + 128 + 4*h
    I(a, f"buffer_load_dwordx4 v[{r}:{r+3}], v100, s[{MSRD}:{MSRD+3}], s56 offen")
def m_write(a, h, s):
    slot = h*4 + s
    for i in range(4):
        r = MR + (slot*4 + i)*4
        I(a, f"ds_write_b128 v{8 + slot//4}, v[{r}:{r+3}] offset:{(slot%4)*RSZ + i*1024}")
def m_write_small(a, h):
    r = MR + 128 + 4*h
    I(a, f"ds_write_b128 v10, v[{r}:{r+3}] offset:{h*4096}")

def side_a(a, stage_off_s, nquads):
    I(a, f"v_add_u32 v21, s{stage_off_s}, v20")
    I(a, f"v_add_u32 v19, s{stage_off_s}, v23")
    accs = [24, 16, 17, 18]
    R = 32
    for z in range(2):
        I(a, f"ds_read_b64_tr_b16 v[{R+2*z}:{R+2*z+1}], v19 offset:{z*2*4*XFP}")
    for q in range(min(nquads, 12)):
        I(a, f"ds_read_b64_tr_b16 v[{R+4+2*q}:{R+4+2*q+1}], v21 offset:{q*4*XFP}")
    I(a, f"s_waitcnt lgkmcnt({min(nquads,12)})")
    if nquads == 16:
        for z in range(2):
            I(a, f"v_dot2_f32_bf16 v25, v{R+2*z}, v22, v25"); I(a, f"v_dot2_f32_bf16 v12, v{R+2*z+1}, v22, v12")
    else:
        lab = a.newlabel("sx")
        I(a, f"s_cmp_eq_u32 s{S_WAVE}, 0"); I(a, f"s_cbranch_scc0 {lab}")
        for z in range(2):
            I(a, f"v_dot2_f32_bf16 v25, v{R+2*z}, v22, v25"); I(a, f"v_dot2_f32_bf16 v12, v{R+2*z+1}, v22, v12")
        a.label(lab)
    for q in range(12, nquads):
        I(a, f"ds_read_b64_tr_b16 v[{R+4+2*q}:{R+4+2*q+1}], v21 offset:{q*4*XFP}")
    n = nquads
    for q in range(n):
        if q % 4 == 0: I(a, f"s_waitcnt lgkmcnt({min(max(n - 4 - q, 0), 15)})")
        I(a, f"v_dot2_f32_bf16 v{accs[(2*q) % 4]}, v{R+4+2*q}, v22, v{accs[(2*q) % 4]}")
        I(a, f"v_dot2_f32_bf16 v{accs[(2*q+1) % 4]}, v{R+4+2*q+1}, v22, v{accs[(2*q+1) % 4]}")

def m_issue(a, h, s):
    I(a, f"s_add_u32 m0, s55, {(h*4+s)*RSZ}")
    I(a, f"s_add_u32 s56, s54, {h*128*4096 + s*128}")
    for i in range(4):
        I(a, f"buffer_load_dwordx4 v{96+i}, s[{MSRD}:{MSRD+3}], s56 offen offset:{i*1024} lds")
def m_issue_small(a, h):
    I(a, f"s_lshl_b32 s56, s{S_WAVE}, 10"); I(a, f"s_add_u32 m0, s56, {SMALL + h*4096}")
    I(a, f"s_add_u32 s56, s54, {h*128*4096 + 512}")
    I(a, f"buffer_load_dwordx4 v100, s[{MSRD}:{MSRD+3}], s56 offen lds")

CR = 176
def side_b_setup(a):
    for z in range(4):
        I(a, f"v_lshl_add_u32 v31, v13, 2, {z}")
        I(a, f"v_xor_b32 v11, v31, v27"); I(a, f"v_lshl_add_u32 v{32+z}, v11, 4, v26"); I(a, f"v_add_u32 v{36+z}, 65536, v{32+z}")
        I(a, f"v_lshl_add_u32 v{40+z}, v31, 4, v30")
    I(a, "v_lshrrev_b32 v44, 2, v26"); I(a, "v_lshl_add_u32 v44, v13, 4, v44"); I(a, f"v_add_u32 v44, {SMALL}, v44")
    I(a, f"v_lshl_add_u32 v45, v13, 4, v30")
    n = 0
    for s_ in range(4):
        for z in range(4):
            r = CR + (s_*4+z)*4
            I(a, f"ds_read_b128 v[{r}:{r+3}], v{40+z} offset:{s_*128}"); n += 1
        if s_ == 2: I(a, "s_waitcnt lgkmcnt(4)")
    I(a, f"ds_read_b128 v[{CR+64}:{CR+67}], v45 offset:512")
    I(a, "s_waitcnt lgkmcnt(0)")
def side_b_h(a, h):
    accs = (28, 14) if h == 0 else (29, 15)
    R = 112
    base = 32 + 4*h
    def rdm(s_, z):
        r = R + (s_*4+z)*4
        I(a, f"ds_read_b128 v[{r}:{r+3}], v{base+z} offset:{s_*RSZ}")
    def dots(s_, z):
        r = R + (s_*4+z)*4; c = CR + (s_*4+z)*4
        for q in range(4): I(a, f"v_dot2_f32_bf16 v{accs[q % 2]}, v{r+q}, v{c+q}, v{accs[q % 2]}")
    for s_ in range(3):
        for z in range(4): rdm(s_, z)
    I(a, "s_waitcnt lgkmcnt(8)")
    for z in range(4): dots(0, z)
    for z in range(4): rdm(3, z)
    I(a, f"ds_read_b128 v[48:51], v44 offset:{h*4096}")
    I(a, "s_waitcnt lgkmcnt(9)")
    for z in range(4): dots(1, z)
    I(a, "s_waitcnt lgkmcnt(5)")
    for z in range(4): dots(2, z)
    I(a, "s_waitcnt lgkmcnt(1)")
    for z in range(4): dots(3, z)
    I(a, "s_waitcnt lgkmcnt(0)")
    for q in range(4): I(a, f"v_dot2_f32_bf16 v{accs[q % 2]}, v{48+q}, v{CR+64+q}, v{accs[q % 2]}")

def y_store_setup(a):
    I(a, "s_mov_b32 s6, s4"); I(a, "s_mov_b32 s7, s5"); add64(a, 6, Y_OFF); srd(a, YSRD, 6, 4*YARR)
    I(a, "s_lshl_b32 s56, s62, 1"); I(a, "s_add_u32 s56, s56, s64"); I(a, f"s_mul_i32 s56, s56, {YARR}")
    I(a, f"s_lshl_b32 s57, s{S_WAVE}, 14")
    I(a, "v_lshrrev_b32 v44, 5, v1"); I(a, "v_and_b32 v45, 31, v1")
    I(a, "s_lshl_b32 s58, s61, 8"); I(a, "s_add_u32 s58, s58, s63"); I(a, f"s_lshl_b32 s59, s{S_WAVE}, 6"); I(a, "s_add_u32 s58, s58, s59")
    I(a, "v_lshl_add_u32 v46, v44, 1, s58"); I(a, f"v_mul_u32_u24 v46, {YP}, v46"); I(a, "v_lshl_add_u32 v46, v45, 4, v46")
    for z in range(4):
        I(a, f"v_add_u32 v47, {2*z}, v44"); I(a, "v_xor_b32 v56, v45, v47")
        I(a, "v_lshlrev_b32 v47, 9, v47"); I(a, "v_lshl_add_u32 v47, v56, 4, v47"); I(a, f"v_add_u32 v{104+z}, s57, v47")

def y_store(a, i0, ysc):
    for i in range(i0, i0+8):
        r = 64 + (i - i0)*4
        I(a, f"ds_read_b128 v[{r}:{r+3}], v{104 + (i % 4)} offset:{(i // 4)*4096}")
    for z in range(8):
        ii = i0 + z; rr = 64 + z*4
        I(a, f"s_waitcnt lgkmcnt({7-z})")
        I(a, f"s_add_u32 s59, s56, {ii*4*YP}")
        I(a, f"buffer_store_dwordx4 v[{rr}:{rr+3}], v46, s[{YSRD}:{YSRD+3}], s59 offen {ysc}")

def a_wg(a, stamps=None, pref="aw", pre_compute=None, pre_loader=None, ysc=""):
    st = stamps or (lambda i: None)
    stl = st
    if ASTG:
        stl = (lambda i: None)
    load_ptr(a, 24, 8, 4); load_ptr(a, 28, 24, 4); load_ptr(a, 4, 104); load_ptr(a, 36, 96)
    I(a, "s_and_b32 s60, s2, 7")
    I(a, "s_sub_u32 s61, s2, 224"); I(a, "s_lshr_b32 s61, s61, 3")
    I(a, "s_lshr_b32 s62, s60, 2"); I(a, "s_bfe_u32 s63, s60, 0x10001"); I(a, "s_and_b32 s64, s60, 1")
    I(a, "s_lshr_b32 s65, s60, 1"); I(a, "s_cmp_eq_u32 s65, 0"); I(a, "s_cselect_b32 s65, 1, 0"); I(a, "s_cmp_eq_u32 s61, 3"); I(a, "s_cselect_b32 s65, s65, 0")
    I(a, f"s_cmp_ge_u32 s{S_WAVE}, 4"); I(a, f"s_cbranch_scc0 {pref}_compute")
    I(a, f"s_sub_u32 s{S_WAVE}, s{S_WAVE}, 4")
    I(a, "v_lshrrev_b32 v40, 3, v1"); I(a, "v_lshrrev_b32 v41, 4, v1"); I(a, "v_and_b32 v42, 7, v1")
    I(a, f"s_mul_i32 s{S_TMP}, s{S_WAVE}, {32*8192}")
    I(a, "v_mul_u32_u24 v43, 8192, v40"); I(a, "v_xor_b32 v42, v42, v41"); I(a, f"v_add_u32 v43, s{S_TMP}, v43"); I(a, "v_lshl_add_u32 v43, v42, 4, v43"); I(a, "v_xor_b32 v44, 64, v43")
    for i in range(4):
        I(a, f"v_add_u32 v{2+i}, {i*8*8192 - i*1024}, v{44 if i & 1 else 43}")
    I(a, "v_lshlrev_b32 v6, 4, v1")
    I(a, f"s_cmp_eq_u32 s{S_WAVE}, 0"); I(a, f"s_cselect_b32 s{S_TMP}, 0, 0x7fff0000"); I(a, f"v_add_u32 v7, s{S_TMP}, v6")
    I(a, "s_lshl_b32 s67, s61, 1")
    I(a, f"s_mul_i32 s{S_TMP}, s{S_WAVE}, {32*4096}")
    I(a, "v_mul_u32_u24 v43, 4096, v40"); I(a, f"v_add_u32 v43, s{S_TMP}, v43"); I(a, "v_lshl_add_u32 v43, v42, 4, v43"); I(a, "v_xor_b32 v44, 64, v43")
    for i in range(4):
        I(a, f"v_add_u32 v{96+i}, {i*8*4096 - i*1024}, v{44 if i & 1 else 43}")
    I(a, "v_lshrrev_b32 v43, 1, v1"); I(a, "v_lshlrev_b32 v43, 12, v43"); I(a, f"v_add_u32 v43, s{S_TMP}, v43"); I(a, "v_and_b32 v44, 1, v1"); I(a, "v_lshl_add_u32 v100, v44, 4, v43")
    I(a, f"s_mul_i32 s{S_MQ}, s{S_WAVE}, 4096")
    I(a, f"s_mul_i32 s{S_MP}, s{S_WAVE}, 9216"); I(a, f"s_add_u32 s{S_MP}, s{S_MP}, {QB}")
    I(a, f"s_mul_i32 s55, s{S_WAVE}, 4096")
    I(a, f"s_mov_b32 s{S_STG}, 0")
    I(a, "s_lshl_b32 s56, s61, 8"); I(a, "s_add_u32 s56, s56, s63"); I(a, f"s_lshl_b32 s{S_QOFF}, s56, 12")
    I(a, f"s_mul_i32 s{S_POFF}, s60, {XFARR}"); I(a, f"s_mul_i32 s56, s{S_WAVE}, 9216"); I(a, f"s_add_u32 s{S_POFF}, s{S_POFF}, s56")
    I(a, "s_lshl_b32 s54, s64, 11")
    I(a, "v_bfe_u32 v40, v1, 2, 2"); I(a, f"v_mul_u32_u24 v40, {XFP}, v40")
    I(a, "v_and_b32 v41, 3, v1"); I(a, "v_lshl_add_u32 v40, v41, 3, v40"); I(a, f"v_add_u32 v40, {QB}, v40")
    I(a, "v_lshrrev_b32 v41, 4, v1")
    I(a, f"s_lshl_b32 s56, s{S_WAVE}, 7"); I(a, "v_lshl_add_u32 v20, v41, 5, v40"); I(a, "v_add_u32 v20, s56, v20")
    I(a, "v_and_b32 v41, 1, v41"); I(a, "v_lshl_add_u32 v23, v41, 5, v40"); I(a, "v_add_u32 v23, 512, v23")
    I(a, "v_lshrrev_b32 v41, 5, v1"); I(a, f"s_lshl_b32 s56, s{S_WAVE}, 2"); I(a, "v_add_u32 v41, s56, v41"); I(a, f"v_mul_u32_u24 v41, {4*XFP}, v41"); I(a, "v_add_u32 v23, v23, v41")
    I(a, "v_mov_b32 v22, 0xbf803f80")
    for r in (24, 16, 17, 18, 25, 12, 28, 14, 29, 15): I(a, f"v_mov_b32 v{r}, 0")
    I(a, f"s_lshl_b32 s56, s{S_WAVE}, 5"); I(a, "v_and_b32 v26, 31, v1"); I(a, "v_add_u32 v26, s56, v26"); I(a, "v_bfe_u32 v27, v26, 1, 3"); I(a, "v_lshlrev_b32 v26, 7, v26")
    I(a, "v_lshrrev_b32 v13, 5, v1"); I(a, f"v_mov_b32 v30, {CV}")
    I(a, "s_waitcnt lgkmcnt(0)")
    stl(1)
    I(a, "s_cmp_eq_u32 s62, 1")
    I(a, "s_cselect_b32 s24, s26, s24"); I(a, "s_cselect_b32 s25, s27, s25"); I(a, "s_cselect_b32 s28, s30, s28"); I(a, "s_cselect_b32 s29, s31, s29")
    srd(a, QSRD, 24, 2048*2048*2); srd(a, MSRD, 28, 1024*1024*2)
    I(a, "s_mov_b32 s6, s4"); I(a, "s_mov_b32 s7, s5"); add64(a, 6, XF_OFF); srd(a, PSRD, 6, 8*XFARR)
    lab = a.newlabel("ni")
    I(a, f"s_cmp_eq_u32 s{S_WAVE}, 0"); I(a, f"s_cbranch_scc0 {lab}")
    I(a, "buffer_inv sc1"); I(a, "s_waitcnt vmcnt(0)")
    a.label(lab)
    for s_ in range(3):
        I(a, f"s_mov_b32 s58, {s_*STG}"); a_issue_q(a, 58, s_)
    I(a, "v_lshlrev_b32 v8, 4, v1"); I(a, "v_add_u32 v8, s55, v8"); I(a, "v_add_u32 v9, 65536, v8")
    I(a, f"s_lshl_b32 s56, s{S_WAVE}, 10"); I(a, f"s_add_u32 s56, s56, {SMALL}"); I(a, "v_lshlrev_b32 v10, 4, v1"); I(a, "v_add_u32 v10, s56, v10")
    for h_ in range(MDPRE):
        for s_ in range(4): m_load(a, h_, s_)
        m_load_small(a, h_)
    stl(3)
    if WARM:
        I(a, "s_mov_b32 s6, s4"); I(a, "s_mov_b32 s7, s5"); add64(a, 6, Y_OFF); srd(a, YSRD, 6, 4*YARR)
        I(a, f"s_lshl_b32 s58, s61, 2"); I(a, f"s_add_u32 s58, s58, s{S_WAVE}")
        lw_idx = len(a.lines)
        a.label(f"{pref}_lwret"); I(a, "s_mov_b64 exec, -1")
    stl(5)
    I(a, "s_barrier")
    lw0 = len(a.lines)
    stl(2)
    a_issue_p(a, 0); a_issue_p(a, 1)
    I(a, "s_waitcnt vmcnt(9)"); stl(4); I(a, "s_barrier")
    I(a, f"s_mov_b32 s57, 0")
    def side(nq):
        lab = a.newlabel("ns")
        I(a, "s_cmp_eq_u32 s65, 1"); I(a, f"s_cbranch_scc0 {lab}")
        side_a(a, 57, nq)
        a.label(lab)
        I(a, f"s_add_u32 s57, s57, {STG}"); I(a, f"s_cmp_ge_u32 s57, {3*STG}"); I(a, "s_cselect_b32 s57, 0, s57")
    a_issue_p(a, 2)
    pieces = []
    for h_ in range(MDPRE, 2 if MDH1 == "reg" else 0):
        for s_ in range(4):
            for i_ in range(4): pieces.append((h_, s_, i_))
        pieces.append((h_, -1, 0))
    def m_piece(p):
        h_, s_, i_ = p
        if s_ < 0: m_load_small(a, h_); return
        I(a, f"s_add_u32 s56, s54, {h_*128*4096 + s_*128}")
        r = MR + ((h_*4+s_)*4 + i_)*4
        I(a, f"buffer_load_dwordx4 v[{r}:{r+3}], v{96+i_}, s[{MSRD}:{MSRD+3}], s56 offen offset:{i_*1024}")
    per = -(-len(pieces) // NCH) if pieces else 0
    chunks = [pieces[i*per:(i+1)*per] for i in range(8)]
    for t in range(8):
        side(16)
        if t + 2 <= 8:
            rem = (9 if t == 0 else 13)
            if t >= 2: rem += len(chunks[t-2])
            if t >= 1: rem += len(chunks[t-1])
        else:
            rem = 0
        I(a, f"s_waitcnt vmcnt({rem})")
        if ASTG == 2 and t < 6: st(t+1)
        I(a, "s_barrier")
        if ASTG == 1 and t < 6: st(t+1)
        if t + 3 <= 8: a_stage_issue(a, t + 3)
        for p in chunks[t]: m_piece(p)
    lab = a.newlabel("ns")
    I(a, "s_cmp_eq_u32 s65, 1"); I(a, f"s_cbranch_scc0 {lab}")
    side_a(a, 57, 4)
    I(a, "v_add_f32 v24, v24, v16"); I(a, "v_add_f32 v17, v17, v18"); I(a, "v_add_f32 v24, v24, v17"); I(a, "v_add_f32 v25, v25, v12")
    I(a, "v_cvt_pk_bf16_f32 v31, v24, v24"); I(a, f"s_lshl_b32 s56, s{S_WAVE}, 7"); I(a, "v_lshlrev_b32 v40, 1, v1"); I(a, "v_add_u32 v40, s56, v40"); I(a, f"v_add_u32 v40, {CV}, v40")
    I(a, f"s_lshl_b32 s56, s{S_WAVE}, 8"); I(a, "v_lshlrev_b32 v41, 2, v1"); I(a, "v_add_u32 v41, s56, v41"); I(a, f"v_add_u32 v41, {CX}, v41")
    I(a, f"ds_write_b16 v40, v31"); I(a, f"ds_write_b32 v41, v25")
    a.label(lab)
    dma1 = (MDH1 == "dma" and MDPRE < 2)
    if dma1: m_issue(a, 1, 0); m_issue(a, 1, 1)
    for sl in range(NWX): m_write(a, 0, sl)
    I(a, "s_barrier")
    for sl in range(NWX, 4): m_write(a, 0, sl)
    m_write_small(a, 0)
    if dma1: m_issue(a, 1, 2); m_issue(a, 1, 3); m_issue_small(a, 1)
    I(a, "s_waitcnt lgkmcnt(0)"); I(a, "s_barrier")
    if MDH1 == "reg" or MDPRE == 2:
        for sl in range(4): m_write(a, 1, sl)
        m_write_small(a, 1)
        I(a, "s_waitcnt lgkmcnt(0)")
    lab = a.newlabel("ns")
    I(a, "s_cmp_eq_u32 s65, 1"); I(a, f"s_cbranch_scc0 {lab}")
    I(a, "v_and_b32 v40, 31, v1"); I(a, "v_lshlrev_b32 v41, 2, v40"); I(a, f"v_add_u32 v41, {CX}, v41")
    for z in range(8): I(a, f"ds_read_b32 v{32+z}, v41 offset:{z*128}")
    I(a, "s_waitcnt lgkmcnt(0)")
    for z in range(1, 8): I(a, f"v_add_f32 v32, v32, v{32+z}")
    I(a, "v_cvt_pk_bf16_f32 v32, v32, v32"); I(a, "v_lshlrev_b32 v41, 1, v40"); I(a, f"v_add_u32 v41, {CV+512}, v41")
    I(a, "ds_write_b16 v41, v32"); I(a, "s_waitcnt lgkmcnt(0)")
    side_b_setup(a)
    side_b_h(a, 0)
    a.label(lab)
    if dma1: I(a, "s_waitcnt vmcnt(0)")
    I(a, "s_barrier")
    lab = a.newlabel("ns")
    I(a, "s_cmp_eq_u32 s65, 1"); I(a, f"s_cbranch_scc0 {lab}")
    side_b_h(a, 1)
    a.label(lab)
    I(a, "s_barrier")
    lab = a.newlabel("ns")
    I(a, "s_cmp_eq_u32 s65, 1"); I(a, f"s_cbranch_scc0 {lab}")
    I(a, "v_add_f32 v28, v28, v14"); I(a, "v_add_f32 v29, v29, v15")
    I(a, "v_mov_b32 v32, v28"); I(a, "v_mov_b32 v33, v29"); I(a, "s_nop 1")
    I(a, "v_permlane32_swap_b32 v32, v28"); I(a, "v_permlane32_swap_b32 v33, v29"); I(a, "s_nop 1")
    I(a, "v_add_f32 v28, v28, v32"); I(a, "v_add_f32 v29, v29, v33")
    I(a, "s_mov_b32 s6, s4"); I(a, "s_mov_b32 s7, s5"); add64(a, 6, Y_OFF); srd(a, YSRD, 6, 4*YARR)
    I(a, f"s_mul_i32 s56, s64, {YARR}"); I(a, f"s_add_u32 s56, s56, {1024*YP}")
    I(a, "v_cvt_pk_bf16_f32 v31, v28, v28"); I(a, "v_cvt_pk_bf16_f32 v12, v29, v29")
    I(a, f"s_lshl_b32 s57, s{S_WAVE}, 6"); I(a, "v_and_b32 v40, 31, v1"); I(a, "v_lshlrev_b32 v40, 1, v40"); I(a, "v_add_u32 v40, s57, v40")
    I(a, "v_cmp_gt_u32 vcc, 32, v1"); I(a, "v_mov_b32 v42, 0x7ffffff0"); I(a, "s_nop 0"); I(a, "v_cndmask_b32 v40, v42, v40, vcc")
    I(a, f"buffer_store_short v31, v40, s[{YSRD}:{YSRD+3}], s56 offen {ysc}")
    I(a, f"buffer_store_short v12, v40, s[{YSRD}:{YSRD+3}], s56 offen offset:256 {ysc}")
    I(a, "v_mov_b32 v32, 0")
    I(a, f"s_add_u32 s57, s56, {2*YARR}")
    I(a, f"buffer_store_short v32, v40, s[{YSRD}:{YSRD+3}], s57 offen {ysc}")
    I(a, f"buffer_store_short v32, v40, s[{YSRD}:{YSRD+3}], s57 offen offset:256 {ysc}")
    I(a, f"v_mov_b32 v41, {CV+544}"); I(a, "ds_read_u16 v33, v41"); I(a, "v_mov_b32 v40, 512")
    I(a, "v_cmp_eq_u32 vcc, 0, v1"); I(a, "s_nop 1"); I(a, "v_cndmask_b32 v40, v42, v40, vcc")
    I(a, "s_waitcnt lgkmcnt(0)")
    lab3 = a.newlabel("ns")
    I(a, f"s_cmp_eq_u32 s{S_WAVE}, 0"); I(a, f"s_cbranch_scc0 {lab3}")
    I(a, f"buffer_store_short v33, v40, s[{YSRD}:{YSRD+3}], s56 offen {ysc}")
    I(a, f"buffer_store_short v32, v40, s[{YSRD}:{YSRD+3}], s57 offen {ysc}")
    a.label(lab3)
    a.label(lab)
    y_store_setup(a)
    I(a, "s_barrier")
    y_store(a, 8, ysc)
    if WARM:
        ents, npad = add_pads(a, lw0, len(a.lines), 16, f"{pref}_l", f"{pref}_lwret", every=PADEV)
        tmp = Asm(); warm_dispatch(tmp, 58, ents, None)
        a.lines[lw_idx:lw_idx] = tmp.lines
    st(7)
    if stamps: stamps.dump(8, 1)
    I(a, "s_endpgm")
    a.label(f"{pref}_compute")
    I(a, "v_bfe_u32 v40, v1, 2, 2"); I(a, "v_lshrrev_b32 v41, 5, v1"); I(a, "v_lshl_add_u32 v41, v41, 3, v40")
    I(a, f"v_mul_u32_u24 v41, {XFP}, v41"); I(a, f"v_add_u32 v41, {QB}, v41")
    I(a, "v_bfe_u32 v42, v1, 4, 1"); I(a, "v_lshl_add_u32 v41, v42, 5, v41")
    I(a, "v_and_b32 v42, 3, v1"); I(a, "v_lshl_add_u32 v2, v42, 3, v41")
    I(a, "v_and_b32 v40, 31, v1"); I(a, f"s_lshl_b32 s{S_DELTA}, s{S_WAVE}, 12"); I(a, "v_lshlrev_b32 v43, 7, v40"); I(a, f"v_add_u32 v43, s{S_DELTA}, v43")
    I(a, "v_lshrrev_b32 v41, 5, v1"); I(a, "v_bfe_u32 v42, v1, 1, 3"); I(a, "v_xor_b32 v41, v41, v42")
    for kk in range(4):
        I(a, f"v_xor_b32 v44, {2*kk}, v41"); I(a, f"v_lshl_add_u32 v{3+kk}, v44, 4, v43")
    I(a, "v_lshlrev_b32 v43, 7, v40")
    for kk in range(4):
        I(a, f"v_xor_b32 v44, {2*kk}, v41"); I(a, f"v_lshl_add_u32 v{8+kk}, v44, 4, v43")
    I(a, "v_lshlrev_b32 v43, 5, v40"); I(a, "v_lshrrev_b32 v44, 5, v1"); I(a, "v_lshl_add_u32 v7, v44, 4, v43"); I(a, f"v_add_u32 v7, {SMALL}, v7")
    if pre_compute: pre_compute(a)
    for r in range(144): I(a, f"v_mov_b32 v{ACC_A+r}, 0")
    I(a, f"s_mov_b32 s{S_DN}, {(-2*STG) & 0xffffffff}"); I(a, f"s_mov_b32 s{S_DP}, {STG}")
    I(a, "s_lshl_b32 s56, s61, 8"); I(a, "s_add_u32 s56, s56, s63"); I(a, f"s_lshl_b32 s{S_QOFF}, s56, 12")
    I(a, "s_lshl_b32 s54, s64, 11")
    I(a, "s_mov_b32 s68, 0")
    I(a, "s_waitcnt lgkmcnt(0)")
    st(1)
    I(a, "s_cmp_eq_u32 s62, 1")
    I(a, "s_cselect_b32 s24, s26, s24"); I(a, "s_cselect_b32 s25, s27, s25"); I(a, "s_cselect_b32 s28, s30, s28"); I(a, "s_cselect_b32 s29, s31, s29")
    srd(a, QSRD, 24, 2048*2048*2); srd(a, MSRD, 28, 1024*1024*2)
    srd(a, 88, 36, 256)
    I(a, "s_mov_b32 s6, s4"); I(a, "s_mov_b32 s7, s5"); add64(a, 6, FOLDF_OFF); srd(a, 92, 6, 33*128)
    I(a, "v_lshlrev_b32 v101, 7, v1"); I(a, "v_cmp_gt_u32 vcc, 33, v1"); I(a, "v_mov_b32 v102, 0x7ffffff0"); I(a, "s_nop 0"); I(a, "v_cndmask_b32 v101, v102, v101, vcc")
    I(a, "s_mov_b32 s66, 0"); I(a, "s_mov_b32 s69, 0x10000"); I(a, "s_mov_b64 s[56:57], -1")
    if MDLOOP:
        I(a, "v_mul_u32_u24 v103, 52, v1"); I(a, "v_lshrrev_b32 v103, 8, v103")
        I(a, "v_mul_u32_u24 v104, 5, v103"); I(a, "v_sub_u32 v104, v1, v104")
        I(a, f"s_lshl_b32 s58, s61, 6"); I(a, f"s_lshl_b32 s59, s{S_WAVE}, 2"); I(a, "s_add_u32 s58, s58, s59")
        I(a, "v_add_u32 v103, s58, v103"); I(a, "v_lshlrev_b32 v103, 12, v103"); I(a, "v_lshl_add_u32 v103, v104, 7, v103")
        I(a, "v_cmp_gt_u32 vcc, 20, v1"); I(a, "s_mov_b32 s67, s54"); I(a, "v_cndmask_b32 v103, v102, v103, vcc")
    labp = a.newlabel("pp"); labf = a.newlabel("pf0")
    I(a, f"s_cmp_eq_u32 s{S_WAVE}, 0"); I(a, f"s_cbranch_scc1 {labp}")
    if PFDELAY: I(a, f"s_sleep {PFDELAY}")
    I(a, "v_lshlrev_b32 v102, 13, v1")
    for r_ in range(2):
        I(a, f"s_lshl_b32 s58, s{S_WAVE}, 1"); I(a, f"s_add_u32 s58, s58, {1 + r_}")
        I(a, "s_lshl_b32 s58, s58, 7"); I(a, f"s_add_u32 s58, s58, s{S_QOFF}")
        for hf in range(2):
            I(a, f"buffer_load_dword v100, v102, s[{QSRD}:{QSRD+3}], s58 offen")
            if hf == 0: I(a, f"s_add_u32 s58, s58, {64*8192}")
    labw_ = a.newlabel("pfe")
    if MDPF == "pre":
        I(a, "s_lshl_b32 s58, s61, 6"); I(a, "v_add_u32 v102, s58, v1"); I(a, "v_lshlrev_b32 v102, 12, v102")
        I(a, f"s_sub_u32 s58, s{S_WAVE}, 1"); I(a, "s_lshl_b32 s58, s58, 8"); I(a, "s_add_u32 s58, s58, s54")
        I(a, f"buffer_load_dword v100, v102, s[{MSRD}:{MSRD+3}], s58 offen")
        I(a, f"s_cmp_eq_u32 s{S_WAVE}, 3"); I(a, f"s_cbranch_scc1 {labw_}")
        I(a, f"buffer_load_dword v100, v102, s[{MSRD}:{MSRD+3}], s58 offen offset:128")
    a.label(labw_)
    if MDPF == "h1":
        I(a, "s_lshl_b32 s58, s61, 5"); I(a, "s_add_u32 s58, s58, 128"); I(a, "v_and_b32 v102, 31, v1"); I(a, "v_add_u32 v102, s58, v102"); I(a, "v_lshlrev_b32 v102, 12, v102")
        I(a, "v_lshrrev_b32 v104, 5, v1"); I(a, "v_lshl_add_u32 v102, v104, 7, v102")
        I(a, f"s_sub_u32 s58, s{S_WAVE}, 1"); I(a, "s_lshl_b32 s58, s58, 8"); I(a, "s_add_u32 s58, s58, s54")
        I(a, f"buffer_load_dword v100, v102, s[{MSRD}:{MSRD+3}], s58 offen")
    if WARM:
        I(a, "s_mov_b32 s6, s4"); I(a, "s_mov_b32 s7, s5"); add64(a, 6, Y_OFF); srd(a, YSRD, 6, 4*YARR)
        I(a, f"s_mul_i32 s58, s61, 3"); I(a, f"s_add_u32 s58, s58, s{S_WAVE}"); I(a, "s_sub_u32 s58, s58, 1")
        cw_idx = len(a.lines)
        a.label(f"{pref}_cwret"); I(a, "s_mov_b64 exec, -1")
    I(a, f"s_branch {labf}")
    a.label(labp)
    lab = a.newlabel("np"); labx = a.newlabel("npx")
    I(a, "v_mov_b32 v102, 0")
    a.label(lab)
    I(a, "buffer_load_dword v96, v102, s[88:91], 0 offen sc1"); I(a, "s_waitcnt vmcnt(0)")
    I(a, "v_readfirstlane_b32 s66, v96")
    I(a, "s_sub_u32 s69, s69, 1"); I(a, f"s_cbranch_scc1 {labx}")
    I(a, "s_cmp_lg_u32 s66, 0"); I(a, f"s_cbranch_scc1 {labx}")
    I(a, "s_sleep 8"); I(a, f"s_branch {lab}")
    a.label(labx)
    I(a, "s_mov_b32 s69, 0x10000"); I(a, "s_mov_b32 s68, 1")
    def poll_eval():
        for q in range(4): I(a, f"v_xor_b32 v{96+q}, s66, v{96+q}")
        I(a, "v_or_b32 v96, v96, v97"); I(a, "v_or_b32 v98, v98, v99"); I(a, "v_or_b32 v96, v96, v98")
        I(a, "v_cmp_ne_u32 s[56:57], 0, v96"); I(a, "s_nop 4")
    def poll_test(mask):
        if mask == "all":
            I(a, "s_and_b32 s58, s57, 1"); I(a, "s_or_b32 s58, s58, s56")
        else:
            I(a, f"s_and_b32 s58, s56, {mask}")
    def poll(mask):
        lc = a.newlabel("pc"); ld = a.newlabel("pd")
        a.label(lc)
        poll_test(mask); I(a, f"s_cbranch_scc0 {ld}")
        I(a, "s_sub_u32 s69, s69, 1"); I(a, f"s_cbranch_scc1 {ld}")
        I(a, "buffer_load_dwordx4 v[96:99], v101, s[92:95], 0 offen sc1"); I(a, "s_waitcnt vmcnt(0)")
        poll_eval()
        if PSLEEP:
            poll_test(mask); I(a, f"s_cbranch_scc0 {ld}")
            I(a, f"s_sleep {PSLEEP}")
        I(a, f"s_branch {lc}")
        a.label(ld)
    if PDBG:
        I(a, "buffer_load_dwordx4 v[96:99], v101, s[92:95], 0 offen sc1"); I(a, "s_waitcnt vmcnt(0)"); st(6)
    poll("0xff")
    if PDBG: st(3)
    a.label(labf)
    if PDBG: st(5)
    for r in range(144): I(a, f"v_mov_b32 v{ACC_A+r}, 0") if False else None
    I(a, "s_barrier")
    labq = a.newlabel("pq")
    I(a, "s_cmp_eq_u32 s68, 1"); I(a, f"s_cbranch_scc0 {labq}")
    poll("0xfff")
    poll_test("all"); I(a, "s_cselect_b32 s68, 1, 0")
    I(a, "buffer_load_dwordx4 v[96:99], v101, s[92:95], 0 offen sc1")
    a.label(labq)
    I(a, "s_barrier")
    st(4)
    for r in a_reads(0, 0): I(a, r)
    I(a, f"s_mov_b32 s{S_CNT}, 8"); I(a, f"s_mov_b32 s{S_LEFT}, 0")
    a(".p2align 6")
    a.label(f"{pref}_aloop")
    for kk in range(3):
        I(a, "s_waitcnt lgkmcnt(0)")
        interleave(a, a_mfmas(kk & 1), a_reads((kk+1) & 1, kk+1), 3)
    I(a, "s_cmp_eq_u32 s68, 1"); I(a, f"s_cbranch_scc1 {pref}_chk")
    a.label(f"{pref}_chkret")
    I(a, "s_waitcnt lgkmcnt(0)"); I(a, "s_barrier")
    mf = a_mfmas(1)
    I(a, mf[0])
    I(a, f"s_add_u32 s{S_LEFT}, s{S_LEFT}, {STG}"); I(a, f"s_cmp_ge_u32 s{S_LEFT}, {3*STG}")
    I(a, f"s_cselect_b32 s{S_DELTA}, s{S_DN}, s{S_DP}"); I(a, f"s_cselect_b32 s{S_LEFT}, 0, s{S_LEFT}")
    for i in range(2, 7): I(a, f"v_add_u32 v{i}, s{S_DELTA}, v{i}")
    if MDLOOP:
        lsk = a.newlabel("mp")
        I(a, f"s_sub_u32 s58, s{S_CNT}, {MDLOOP}"); I(a, "s_cmp_lt_u32 s58, 4"); I(a, f"s_cbranch_scc0 {lsk}")
        I(a, f"buffer_load_dword v100, v103, s[{MSRD}:{MSRD+3}], s67 offen"); I(a, f"s_add_u32 s67, s67, {16*4096}")
        a.label(lsk)
    interleave(a, mf[1:], a_reads(0, 0) + [f"s_sub_u32 s{S_CNT}, s{S_CNT}, 1", f"s_cmp_lg_u32 s{S_CNT}, 0"], 3)
    I(a, f"s_cbranch_scc1 {pref}_aloop")
    I(a, "s_waitcnt lgkmcnt(0)")
    for m in a_mfmas(0): I(a, m)
    cw0 = len(a.lines)
    I(a, "s_barrier")
    st(2)
    I(a, "s_waitcnt vmcnt(0)")
    I(a, "s_nop 7"); I(a, "s_nop 3")
    I(a, f"v_cvt_pk_bf16_f32 v2, v{ACC_A+128+8}, v{ACC_A+128+8}")
    for kap in range(17):
        nb, k2 = kap // 2, kap % 2
        c = ACC_A + 16*nb + 8*k2; t = TB + 4*kap
        for z in range(4): I(a, f"v_cvt_pk_bf16_f32 v{t+z}, v{c+2*z}, v{c+2*z+1}")
        if kap > 0:
            tp = TB + 4*(kap-1)
            I(a, f"v_permlane32_swap_b32 v{tp}, v{tp+2}"); I(a, f"v_permlane32_swap_b32 v{tp+1}, v{tp+3}")
    I(a, "s_nop 1")
    tp = TB + 4*16
    I(a, f"v_permlane32_swap_b32 v{tp}, v{tp+2}"); I(a, f"v_permlane32_swap_b32 v{tp+1}, v{tp+3}")
    I(a, "s_barrier")
    if not PDBG: st(3)
    subs = [(h, kap) for h in range(2) for kap in range(17)]
    cur_base = [0]
    def rd(idx):
        h, kap = subs[idx]; s, kk = kap // 4, kap % 4
        F = BF[idx % 3]
        out = []
        if kap == 16:
            for nb in range(4): out.append(f"ds_read_b128 v[{F[nb]}:{F[nb]+3}], v7 offset:{h*4096 + nb*1024}")
            return out
        slot = h*4 + s
        base = (slot // 3)*3
        if base != cur_base[0]:
            d = (base - cur_base[0])*RSZ
            for i in range(8, 12): out.append(f"v_add_u32 v{i}, {d}, v{i}")
            cur_base[0] = base
        for nb in range(4): out.append(f"ds_read_b128 v[{F[nb]}:{F[nb]+3}], v{8+kk} offset:{(slot-base)*RSZ + nb*4096}")
        return out
    def need_barrier(idx):
        h, kap = subs[idx]
        return (h, kap) in ((1, 0), (1, 8))
    I(a, "v_and_b32 v4, 31, v1"); I(a, f"s_lshl_b32 s57, s{S_WAVE}, 14"); I(a, "v_lshlrev_b32 v3, 9, v4"); I(a, "v_add_u32 v3, s57, v3")
    I(a, "v_lshrrev_b32 v5, 5, v1"); I(a, "v_lshl_add_u32 v3, v5, 3, v3"); I(a, "v_and_b32 v4, 7, v4"); I(a, "v_lshl_add_u32 v3, v4, 4, v3")
    def epi_fill(h):
        out = []
        for nb in range(4):
            for q in range(4):
                c = ACC_B + 16*(4*h+nb) + 4*q; ch = (4*h+nb)*4 + q
                out += [f"v_cvt_pk_bf16_f32 v4, v{c}, v{c+1}", f"v_cvt_pk_bf16_f32 v5, v{c+2}, v{c+3}", f"v_xor_b32 v6, {(ch & 7) << 4}, v3",
                        f"ds_write_b64 v6, v[4:5] offset:{(ch >> 3)*128}"]
        return out
    pend = epi_fill(0)
    q = []
    def emit(ins_list, tag):
        for ins in ins_list:
            I(a, ins)
            if ins.startswith("ds_"): q.append(tag if ins.startswith("ds_read") else "w")
    emit(rd(0), 0); emit(rd(1), 1)
    for idx, (h, kap) in enumerate(subs):
        nxt = idx + 2
        last = max(i for i, t in enumerate(q) if t == idx)
        n_after = len(q) - 1 - last
        I(a, f"s_waitcnt lgkmcnt({min(n_after, 15)})")
        del q[:last+1]
        if nxt < len(subs) and need_barrier(nxt): I(a, "s_barrier")
        F = BF[idx % 3]
        mf = []
        for nb in range(4):
            c = ACC_B + 16*(4*h + nb)
            src = "0" if kap == 0 else f"v[{c}:{c+15}]"
            mf.append(f"v_mfma_f32_32x32x16_bf16 v[{c}:{c+15}], v[{F[nb]}:{F[nb]+3}], v[{TB+4*kap}:{TB+4*kap+3}], {src}")
        fill = rd(nxt) if nxt < len(subs) else []
        per = 2
        if h == 1 and kap >= 8:
            take = 8 if kap < 16 else len(pend)
            fill = fill + pend[:take]; pend = pend[take:]; per = 4
        fl = list(fill)
        for m in mf:
            I(a, m)
            emit(fl[:per], nxt); fl = fl[per:]
        emit(fl, nxt)
    assert not pend
    I(a, "s_nop 7"); I(a, "s_nop 3")
    if not PDBG: st(5)
    for ins in epi_fill(1): I(a, ins)
    y_store_setup(a)
    I(a, "v_and_b32 v40, 31, v1"); I(a, f"s_lshl_b32 s{S_DELTA}, s{S_WAVE}, 5"); I(a, f"v_add_u32 v41, s{S_DELTA}, v40")
    I(a, "s_lshl_b32 s57, s61, 8"); I(a, "s_add_u32 s57, s57, s63")
    I(a, "v_lshlrev_b32 v41, 1, v41"); I(a, "v_add_u32 v41, s57, v41"); I(a, f"v_mul_u32_u24 v41, {YP}, v41"); I(a, "v_add_u32 v41, 512, v41")
    I(a, "v_cmp_gt_u32 vcc, 32, v1"); I(a, "v_mov_b32 v42, 0x7ffffff0"); I(a, "s_nop 0"); I(a, "v_cndmask_b32 v41, v42, v41, vcc")
    I(a, f"buffer_store_short v2, v41, s[{YSRD}:{YSRD+3}], s56 offen {ysc}")
    I(a, "s_waitcnt lgkmcnt(0)"); I(a, "s_barrier")
    y_store(a, 0, ysc)
    if WARM:
        ents, npad = add_pads(a, cw0, len(a.lines), 12, f"{pref}_c", f"{pref}_cwret", every=PADEV)
        tmp = Asm(); warm_dispatch(tmp, 58, ents, None)
        a.lines[cw_idx:cw_idx] = tmp.lines
    if not PDBG: st(6)
    if stamps: I(a, "s_waitcnt vmcnt(0)")
    st(7)
    if stamps: stamps.dump(8, 0)
    I(a, "s_endpgm")
    a.label(f"{pref}_chk")
    I(a, "s_mov_b32 s68, 0")
    I(a, "s_waitcnt vmcnt(0)")
    poll_eval()
    poll("all")
    I(a, f"s_branch {pref}_chkret")
```

```python
from asmgen import *
from gemm2 import S_WAVE, S_TMP, S_TMP2, S_DELTA, S_CNT, S_LEFT, S_STG, S_QOFF, S_POFF, S_MQ, S_MP, S_DN, S_DP, interleave
from p1v2 import load_ptr
from p2 import add64, Y_OFF, YP, YARR
from k0 import XF_OFF, XFP, XFARR
import os
AEXP = int(os.environ.get("AEXP", "0"))
ROT = int(os.environ.get("AROT", "0"))
MDPF = os.environ.get("MDPF", "h1")
MDH1 = os.environ.get("MDH1", "reg")
PFDELAY = int(os.environ.get("PFDELAY", "0"))
MSPF = int(os.environ.get("MSPF", "1"))
MSR = int(os.environ.get("MSR", "1"))
ASTG = int(os.environ.get("ASTG", "0"))
PDBG = int(os.environ.get("PDBG", "0"))
MDLOOP = int(os.environ.get("MDLOOP", "0"))
WARM = int(os.environ.get("WARM", "1"))
PADEV = int(os.environ.get("PADEV", "41"))
MDPRE = int(os.environ.get("MDPRE", "1"))
NWX = int(os.environ.get("NWX", "2"))
NCH = int(os.environ.get("NCH", "6"))
NODOT = int(os.environ.get("NODOT", "1"))
NPOLL = int(os.environ.get("NPOLL", "1"))
PSLEEP = int(os.environ.get("PSLEEP", "2"))
PSLEEP0 = int(os.environ.get("PSLEEP0", "0"))
EARLYINV = int(os.environ.get("EARLYINV", "1"))
FOLDF_OFF = 34 << 20
QSRD = 8; PSRD = 12; MSRD = 16; YSRD = 20
STG = 53248; QB = 16384
RSZ = 16384
SMALL = 8*RSZ
CV = 153600
CX = CV + 1024
ACC_A = 112; ACC_B = 128
FA = 16
TB = 16

def a_regs(s):
    b = FA + 40*s
    return [b + 4*i for i in range(9)], b + 36
def a_reads(s, kk):
    A, B = a_regs(s)
    out = [f"ds_read_b128 v[{B}:{B+3}], v{3+kk}"]
    for nb in range(9):
        if AEXP == 1 and nb % 2 == 1: continue
        for h in range(2):
            out.append(f"ds_read_b64_tr_b16 v[{A[nb]+2*h}:{A[nb]+2*h+1}], v2 offset:{(16*kk+4*h)*XFP + nb*64}")
    return out
def a_mfmas(s):
    A, B = a_regs(s)
    return [f"v_mfma_f32_32x32x16_bf16 v[{ACC_A+16*nb}:{ACC_A+16*nb+15}], v[{A[nb]}:{A[nb]+3}], v[{B}:{B+3}], v[{ACC_A+16*nb}:{ACC_A+16*nb+15}]" for nb in range(9)]

BF = [[84, 88, 92, 96], [100, 104, 108, 112], [116, 120, 124, 12]]

def sidx_to(a, j, dst):
    if j >= 8: I(a, f"s_mov_b32 s{dst}, 8")
    elif ROT: I(a, f"s_add_u32 s{dst}, s67, {j}"); I(a, f"s_and_b32 s{dst}, s{dst}, 7")
    else: I(a, f"s_mov_b32 s{dst}, {j}")
def a_issue_q(a, s_stg, j):
    sidx_to(a, j, 59); I(a, "s_lshl_b32 s59, s59, 7"); I(a, f"s_add_u32 s59, s59, s{S_QOFF}")
    I(a, f"s_add_u32 m0, s{s_stg}, s{S_MQ}"); I(a, "s_nop 0")
    for i in range(4):
        I(a, f"buffer_load_dwordx4 v{2+i}, s[{QSRD}:{QSRD+3}], s59 offen offset:{i*1024} lds")
def a_issue_p(a, j):
    sidx_to(a, j, 59); I(a, f"s_mul_i32 s{S_TMP}, s59, {64*XFP}"); I(a, f"s_add_u32 s{S_TMP}, s{S_TMP}, s{S_POFF}")
    I(a, f"s_add_u32 m0, s{S_STG}, s{S_MP}"); I(a, "s_nop 0")
    vv = 7 if j >= 8 else 6
    for i in range(9):
        if i and i % 4 == 0:
            I(a, "s_add_u32 m0, m0, 4096"); I(a, f"s_add_u32 s{S_TMP}, s{S_TMP}, 4096"); I(a, "s_nop 0")
        I(a, f"buffer_load_dwordx4 v{vv}, s[{PSRD}:{PSRD+3}], s{S_TMP} offen offset:{(i%4)*1024} lds")
    I(a, f"s_add_u32 s{S_STG}, s{S_STG}, {STG}")
    I(a, f"s_cmp_ge_u32 s{S_STG}, {3*STG}")
    I(a, f"s_cselect_b32 s{S_STG}, 0, s{S_STG}")
def a_stage_issue(a, j):
    a_issue_q(a, S_STG, j); a_issue_p(a, j)

MR = 112
def m_load(a, h, s):
    I(a, f"s_add_u32 s56, s54, {h*128*4096 + s*128}")
    for i in range(4):
        r = MR + ((h*4+s)*4 + i)*4
        I(a, f"buffer_load_dwordx4 v[{r}:{r+3}], v{96+i}, s[{MSRD}:{MSRD+3}], s56 offen offset:{i*1024}")
def m_load_small(a, h):
    I(a, f"s_add_u32 s56, s54, {h*128*4096 + 512}")
    r = MR + 128 + 4*h
    I(a, f"buffer_load_dwordx4 v[{r}:{r+3}], v100, s[{MSRD}:{MSRD+3}], s56 offen")
def m_write(a, h, s):
    slot = h*4 + s
    for i in range(4):
        r = MR + (slot*4 + i)*4
        I(a, f"ds_write_b128 v{8 + slot//4}, v[{r}:{r+3}] offset:{(slot%4)*RSZ + i*1024}")
def m_write_small(a, h):
    r = MR + 128 + 4*h
    I(a, f"ds_write_b128 v10, v[{r}:{r+3}] offset:{h*4096}")

CX2 = CX + 1024
def side_a(a, stage_off_s, tail=False):
    accs = [24, 16, 17, 18]
    R = 32
    end = a.newlabel("sae")
    if tail:
        I(a, f"s_cmp_eq_u32 s{S_WAVE}, 0"); I(a, f"s_cbranch_scc0 {end}")
    I(a, f"v_add_u32 v21, s{stage_off_s}, v20")
    for q in range(4):
        I(a, f"ds_read_b64_tr_b16 v[{R+4+2*q}:{R+4+2*q+1}], v21 offset:{q*4*XFP}")
    lab = a.newlabel("sz")
    I(a, "s_cmp_eq_u32 s61, 0"); I(a, f"s_cbranch_scc0 {lab}")
    I(a, f"v_add_u32 v19, s{stage_off_s}, v23")
    for z in range(2):
        I(a, f"ds_read_b64_tr_b16 v[{R+2*z}:{R+2*z+1}], v19 offset:{z*2*4*XFP}")
    I(a, "s_waitcnt lgkmcnt(0)")
    for z in range(2):
        I(a, f"v_dot2_f32_bf16 v25, v{R+2*z}, v22, v25"); I(a, f"v_dot2_f32_bf16 v12, v{R+2*z+1}, v22, v12")
    a.label(lab)
    I(a, "s_waitcnt lgkmcnt(0)")
    for q in range(4):
        I(a, f"v_dot2_f32_bf16 v{accs[(2*q) % 4]}, v{R+4+2*q}, v22, v{accs[(2*q) % 4]}")
        I(a, f"v_dot2_f32_bf16 v{accs[(2*q+1) % 4]}, v{R+4+2*q+1}, v22, v{accs[(2*q+1) % 4]}")
    a.label(end)

def m_issue(a, h, s):
    I(a, f"s_add_u32 m0, s55, {(h*4+s)*RSZ}")
    I(a, f"s_add_u32 s56, s54, {h*128*4096 + s*128}")
    for i in range(4):
        I(a, f"buffer_load_dwordx4 v{96+i}, s[{MSRD}:{MSRD+3}], s56 offen offset:{i*1024} lds")
def m_issue_small(a, h):
    I(a, f"s_lshl_b32 s56, s{S_WAVE}, 10"); I(a, f"s_add_u32 m0, s56, {SMALL + h*4096}")
    I(a, f"s_add_u32 s56, s54, {h*128*4096 + 512}")
    I(a, f"buffer_load_dwordx4 v100, s[{MSRD}:{MSRD+3}], s56 offen lds")

CR = 176
def side_b_setup(a):
    I(a, f"s_mul_i32 s56, s61, {RSZ}")
    for z in range(4):
        I(a, f"v_lshl_add_u32 v31, v13, 2, {z}")
        I(a, f"v_xor_b32 v11, v31, v27"); I(a, f"v_lshl_add_u32 v{32+z}, v11, 4, v26"); I(a, f"v_add_u32 v{32+z}, s56, v{32+z}"); I(a, f"v_add_u32 v{36+z}, 65536, v{32+z}")
        I(a, f"v_lshl_add_u32 v{40+z}, v31, 4, v30")
    I(a, "v_lshrrev_b32 v44, 2, v26"); I(a, "v_lshl_add_u32 v44, v13, 4, v44"); I(a, f"v_add_u32 v44, {SMALL}, v44")
    I(a, f"v_lshl_add_u32 v45, v13, 4, v30")
    for z in range(4):
        I(a, f"ds_read_b128 v[{CR+4*z}:{CR+4*z+3}], v{40+z}")
    I(a, f"ds_read_b128 v[{CR+16}:{CR+19}], v45 offset:512")
    I(a, "s_waitcnt lgkmcnt(0)")
def side_b_h(a, h):
    accs = (28, 14) if h == 0 else (29, 15)
    R = 112
    base = 32 + 4*h
    for z in range(4):
        I(a, f"ds_read_b128 v[{R+4*z}:{R+4*z+3}], v{base+z}")
    I(a, f"ds_read_b128 v[48:51], v44 offset:{h*4096}")
    for z in range(4):
        I(a, f"s_waitcnt lgkmcnt({4-z})")
        for q in range(4): I(a, f"v_dot2_f32_bf16 v{accs[q % 2]}, v{R+4*z+q}, v{CR+4*z+q}, v{accs[q % 2]}")
    lab = a.newlabel("sb")
    I(a, "s_waitcnt lgkmcnt(0)")
    I(a, "s_cmp_eq_u32 s61, 0"); I(a, f"s_cbranch_scc0 {lab}")
    for q in range(4): I(a, f"v_dot2_f32_bf16 v{accs[q % 2]}, v{48+q}, v{CR+16+q}, v{accs[q % 2]}")
    a.label(lab)

def y_store_setup(a):
    I(a, "s_mov_b32 s6, s4"); I(a, "s_mov_b32 s7, s5"); add64(a, 6, Y_OFF); srd(a, YSRD, 6, 4*YARR)
    I(a, "s_lshl_b32 s56, s62, 1"); I(a, "s_add_u32 s56, s56, s64"); I(a, f"s_mul_i32 s56, s56, {YARR}")
    I(a, f"s_lshl_b32 s57, s{S_WAVE}, 14")
    I(a, "v_lshrrev_b32 v44, 5, v1"); I(a, "v_and_b32 v45, 31, v1")
    I(a, "s_lshl_b32 s58, s61, 8"); I(a, "s_add_u32 s58, s58, s63"); I(a, f"s_lshl_b32 s59, s{S_WAVE}, 6"); I(a, "s_add_u32 s58, s58, s59")
    I(a, "v_lshl_add_u32 v46, v44, 1, s58"); I(a, f"v_mul_u32_u24 v46, {YP}, v46"); I(a, "v_lshl_add_u32 v46, v45, 4, v46")
    for z in range(4):
        I(a, f"v_add_u32 v47, {2*z}, v44"); I(a, "v_xor_b32 v56, v45, v47")
        I(a, "v_lshlrev_b32 v47, 9, v47"); I(a, "v_lshl_add_u32 v47, v56, 4, v47"); I(a, f"v_add_u32 v{104+z}, s57, v47")

def y_store(a, i0, ysc):
    for i in range(i0, i0+8):
        r = 64 + (i - i0)*4
        I(a, f"ds_read_b128 v[{r}:{r+3}], v{104 + (i % 4)} offset:{(i // 4)*4096}")
    for z in range(8):
        ii = i0 + z; rr = 64 + z*4
        I(a, f"s_waitcnt lgkmcnt({7-z})")
        I(a, f"s_add_u32 s59, s56, {ii*4*YP}")
        I(a, f"buffer_store_dwordx4 v[{rr}:{rr+3}], v46, s[{YSRD}:{YSRD+3}], s59 offen {ysc}")

def a_wg(a, stamps=None, pref="aw", pre_compute=None, pre_loader=None, ysc=""):
    st = stamps or (lambda i: None)
    stl = st
    if ASTG:
        stl = (lambda i: None)
    load_ptr(a, 24, 8, 4); load_ptr(a, 28, 24, 4); load_ptr(a, 4, 104); load_ptr(a, 36, 96)
    I(a, "s_and_b32 s60, s2, 7")
    I(a, "s_sub_u32 s61, s2, 224"); I(a, "s_lshr_b32 s61, s61, 3")
    I(a, "s_lshr_b32 s62, s60, 2"); I(a, "s_bfe_u32 s63, s60, 0x10001"); I(a, "s_and_b32 s64, s60, 1")
    I(a, "s_lshr_b32 s65, s60, 1"); I(a, "s_cmp_eq_u32 s65, 0"); I(a, "s_cselect_b32 s65, 1, 0")
    I(a, f"s_cmp_ge_u32 s{S_WAVE}, 4"); I(a, f"s_cbranch_scc0 {pref}_compute")
    I(a, f"s_sub_u32 s{S_WAVE}, s{S_WAVE}, 4")
    I(a, "v_lshrrev_b32 v40, 3, v1"); I(a, "v_lshrrev_b32 v41, 4, v1"); I(a, "v_and_b32 v42, 7, v1")
    I(a, f"s_mul_i32 s{S_TMP}, s{S_WAVE}, {32*8192}")
    I(a, "v_mul_u32_u24 v43, 8192, v40"); I(a, "v_xor_b32 v42, v42, v41"); I(a, f"v_add_u32 v43, s{S_TMP}, v43"); I(a, "v_lshl_add_u32 v43, v42, 4, v43"); I(a, "v_xor_b32 v44, 64, v43")
    for i in range(4):
        I(a, f"v_add_u32 v{2+i}, {i*8*8192 - i*1024}, v{44 if i & 1 else 43}")
    I(a, "v_lshlrev_b32 v6, 4, v1")
    I(a, f"s_cmp_eq_u32 s{S_WAVE}, 0"); I(a, f"s_cselect_b32 s{S_TMP}, 0, 0x7fff0000"); I(a, f"v_add_u32 v7, s{S_TMP}, v6")
    I(a, "s_lshl_b32 s67, s61, 1")
    I(a, f"s_mul_i32 s{S_TMP}, s{S_WAVE}, {32*4096}")
    I(a, "v_mul_u32_u24 v43, 4096, v40"); I(a, f"v_add_u32 v43, s{S_TMP}, v43"); I(a, "v_lshl_add_u32 v43, v42, 4, v43"); I(a, "v_xor_b32 v44, 64, v43")
    for i in range(4):
        I(a, f"v_add_u32 v{96+i}, {i*8*4096 - i*1024}, v{44 if i & 1 else 43}")
    I(a, "v_lshrrev_b32 v43, 1, v1"); I(a, "v_lshlrev_b32 v43, 12, v43"); I(a, f"v_add_u32 v43, s{S_TMP}, v43"); I(a, "v_and_b32 v44, 1, v1"); I(a, "v_lshl_add_u32 v100, v44, 4, v43")
    I(a, f"s_mul_i32 s{S_MQ}, s{S_WAVE}, 4096")
    I(a, f"s_mul_i32 s{S_MP}, s{S_WAVE}, 9216"); I(a, f"s_add_u32 s{S_MP}, s{S_MP}, {QB}")
    I(a, f"s_mul_i32 s55, s{S_WAVE}, 4096")
    I(a, f"s_mov_b32 s{S_STG}, 0")
    I(a, "s_lshl_b32 s56, s61, 8"); I(a, "s_add_u32 s56, s56, s63"); I(a, f"s_lshl_b32 s{S_QOFF}, s56, 12")
    I(a, f"s_mul_i32 s{S_POFF}, s60, {XFARR}"); I(a, f"s_mul_i32 s56, s{S_WAVE}, 9216"); I(a, f"s_add_u32 s{S_POFF}, s{S_POFF}, s56")
    I(a, "s_lshl_b32 s54, s64, 11")
    I(a, "v_bfe_u32 v40, v1, 2, 2"); I(a, f"v_mul_u32_u24 v40, {XFP}, v40")
    I(a, "v_and_b32 v41, 3, v1"); I(a, "v_lshl_add_u32 v40, v41, 3, v40"); I(a, f"v_add_u32 v40, {QB}, v40")
    I(a, "v_lshrrev_b32 v41, 4, v1")
    I(a, f"s_mul_i32 s56, s{S_WAVE}, {16*XFP}"); I(a, "s_lshl_b32 s57, s61, 7"); I(a, "s_add_u32 s56, s56, s57"); I(a, "v_lshl_add_u32 v20, v41, 5, v40"); I(a, "v_add_u32 v20, s56, v20")
    I(a, "v_and_b32 v41, 1, v41"); I(a, "v_lshl_add_u32 v23, v41, 5, v40"); I(a, "v_add_u32 v23, 512, v23")
    I(a, "v_lshrrev_b32 v41, 5, v1"); I(a, f"s_lshl_b32 s56, s{S_WAVE}, 2"); I(a, "v_add_u32 v41, s56, v41"); I(a, f"v_mul_u32_u24 v41, {4*XFP}, v41"); I(a, "v_add_u32 v23, v23, v41")
    I(a, "v_mov_b32 v22, 0xbf803f80")
    for r in (24, 16, 17, 18, 25, 12, 28, 14, 29, 15, 70, 71, 72, 73, 74, 75): I(a, f"v_mov_b32 v{r}, 0")
    I(a, f"s_lshl_b32 s56, s{S_WAVE}, 5"); I(a, "v_and_b32 v26, 31, v1"); I(a, "v_add_u32 v26, s56, v26"); I(a, "v_bfe_u32 v27, v26, 1, 3"); I(a, "v_lshlrev_b32 v26, 7, v26")
    I(a, "v_lshrrev_b32 v13, 5, v1"); I(a, f"v_mov_b32 v30, {CV}")
    I(a, "s_waitcnt lgkmcnt(0)")
    stl(1)
    I(a, "s_cmp_eq_u32 s62, 1")
    I(a, "s_cselect_b32 s24, s26, s24"); I(a, "s_cselect_b32 s25, s27, s25"); I(a, "s_cselect_b32 s28, s30, s28"); I(a, "s_cselect_b32 s29, s31, s29")
    srd(a, QSRD, 24, 2048*2048*2); srd(a, MSRD, 28, 1024*1024*2)
    I(a, "s_mov_b32 s6, s4"); I(a, "s_mov_b32 s7, s5"); add64(a, 6, XF_OFF); srd(a, PSRD, 6, 8*XFARR)
    lab = a.newlabel("ni")
    I(a, f"s_cmp_eq_u32 s{S_WAVE}, 0"); I(a, f"s_cbranch_scc0 {lab}")
    I(a, "buffer_inv sc1"); I(a, "s_waitcnt vmcnt(0)")
    a.label(lab)
    for s_ in range(3):
        I(a, f"s_mov_b32 s58, {s_*STG}"); a_issue_q(a, 58, s_)
    I(a, "v_lshlrev_b32 v8, 4, v1"); I(a, "v_add_u32 v8, s55, v8"); I(a, "v_add_u32 v9, 65536, v8")
    I(a, f"s_lshl_b32 s56, s{S_WAVE}, 10"); I(a, f"s_add_u32 s56, s56, {SMALL}"); I(a, "v_lshlrev_b32 v10, 4, v1"); I(a, "v_add_u32 v10, s56, v10")
    for h_ in range(MDPRE):
        for s_ in range(4): m_load(a, h_, s_)
        m_load_small(a, h_)
    stl(3)
    if WARM:
        I(a, "s_mov_b32 s6, s4"); I(a, "s_mov_b32 s7, s5"); add64(a, 6, Y_OFF); srd(a, YSRD, 6, 4*YARR)
        I(a, f"s_lshl_b32 s58, s61, 2"); I(a, f"s_add_u32 s58, s58, s{S_WAVE}")
        lw_idx = len(a.lines)
        a.label(f"{pref}_lwret"); I(a, "s_mov_b64 exec, -1")
    stl(5)
    I(a, "s_barrier")
    lw0 = len(a.lines)
    stl(2)
    a_issue_p(a, 0); a_issue_p(a, 1)
    I(a, "s_waitcnt vmcnt(9)"); stl(4); I(a, "s_barrier")
    I(a, f"s_mov_b32 s57, 0")
    def side(nq):
        lab = a.newlabel("ns")
        I(a, "s_cmp_eq_u32 s65, 1"); I(a, f"s_cbranch_scc0 {lab}")
        side_a(a, 57)
        a.label(lab)
        I(a, f"s_add_u32 s57, s57, {STG}"); I(a, f"s_cmp_ge_u32 s57, {3*STG}"); I(a, "s_cselect_b32 s57, 0, s57")
    a_issue_p(a, 2)
    pieces = []
    for h_ in range(MDPRE, 2 if MDH1 == "reg" else 0):
        for s_ in range(4):
            for i_ in range(4): pieces.append((h_, s_, i_))
        pieces.append((h_, -1, 0))
    def m_piece(p):
        h_, s_, i_ = p
        if s_ < 0: m_load_small(a, h_); return
        I(a, f"s_add_u32 s56, s54, {h_*128*4096 + s_*128}")
        r = MR + ((h_*4+s_)*4 + i_)*4
        I(a, f"buffer_load_dwordx4 v[{r}:{r+3}], v{96+i_}, s[{MSRD}:{MSRD+3}], s56 offen offset:{i_*1024}")
    per = -(-len(pieces) // NCH) if pieces else 0
    chunks = [pieces[i*per:(i+1)*per] for i in range(8)]
    for t in range(8):
        side(16)
        if t + 2 <= 8:
            rem = (9 if t == 0 else 13)
            if t >= 2: rem += len(chunks[t-2])
            if t >= 1: rem += len(chunks[t-1])
        else:
            rem = 0
        I(a, f"s_waitcnt vmcnt({rem})")
        if ASTG == 2 and t < 6: st(t+1)
        I(a, "s_barrier")
        if ASTG == 1 and t < 6: st(t+1)
        if t + 3 <= 8: a_stage_issue(a, t + 3)
        for p in chunks[t]: m_piece(p)
    lab = a.newlabel("ns")
    I(a, "s_cmp_eq_u32 s65, 1"); I(a, f"s_cbranch_scc0 {lab}")
    side_a(a, 57, tail=True)
    I(a, "v_add_f32 v24, v24, v16"); I(a, "v_add_f32 v17, v17, v18"); I(a, "v_add_f32 v24, v24, v17"); I(a, "v_add_f32 v25, v25, v12")
    I(a, f"s_lshl_b32 s56, s{S_WAVE}, 8"); I(a, "v_lshlrev_b32 v41, 2, v1"); I(a, "v_add_u32 v41, s56, v41"); I(a, f"v_add_u32 v41, {CX}, v41")
    I(a, f"ds_write_b32 v41, v25"); I(a, f"ds_write_b32 v41, v24 offset:1024")
    a.label(lab)
    dma1 = (MDH1 == "dma" and MDPRE < 2)
    if dma1: m_issue(a, 1, 0); m_issue(a, 1, 1)
    for sl in range(NWX): m_write(a, 0, sl)
    I(a, "s_barrier")
    for sl in range(NWX, 4): m_write(a, 0, sl)
    m_write_small(a, 0)
    if dma1: m_issue(a, 1, 2); m_issue(a, 1, 3); m_issue_small(a, 1)
    I(a, "s_waitcnt lgkmcnt(0)"); I(a, "s_barrier")
    if MDH1 == "reg" or MDPRE == 2:
        for sl in range(4): m_write(a, 1, sl)
        m_write_small(a, 1)
        I(a, "s_waitcnt lgkmcnt(0)")
    lab = a.newlabel("ns")
    I(a, "s_cmp_eq_u32 s65, 1"); I(a, f"s_cbranch_scc0 {lab}")
    I(a, "v_and_b32 v40, 31, v1"); I(a, "v_lshlrev_b32 v41, 2, v40"); I(a, f"v_add_u32 v41, {CX}, v41")
    for z in range(8): I(a, f"ds_read_b32 v{32+z}, v41 offset:{z*128}")
    I(a, "v_lshlrev_b32 v42, 2, v1"); I(a, f"v_add_u32 v42, {CX2}, v42")
    for z in range(4): I(a, f"ds_read_b32 v{52+z}, v42 offset:{z*256}")
    I(a, "s_waitcnt lgkmcnt(0)")
    for z in range(1, 8): I(a, f"v_add_f32 v32, v32, v{32+z}")
    for z in range(1, 4): I(a, f"v_add_f32 v52, v52, v{52+z}")
    I(a, "v_cvt_pk_bf16_f32 v32, v32, v32"); I(a, "v_lshlrev_b32 v41, 1, v40"); I(a, f"v_add_u32 v41, {CV+512}, v41")
    I(a, "v_cvt_pk_bf16_f32 v52, v52, v52"); I(a, "v_lshlrev_b32 v42, 1, v1"); I(a, f"v_add_u32 v42, {CV}, v42")
    I(a, "ds_write_b16 v41, v32"); I(a, "ds_write_b16 v42, v52"); I(a, "s_waitcnt lgkmcnt(0)")
    side_b_setup(a)
    side_b_h(a, 0)
    a.label(lab)
    if dma1: I(a, "s_waitcnt vmcnt(0)")
    I(a, "s_barrier")
    lab = a.newlabel("ns")
    I(a, "s_cmp_eq_u32 s65, 1"); I(a, f"s_cbranch_scc0 {lab}")
    side_b_h(a, 1)
    a.label(lab)
    I(a, "s_barrier")
    lab = a.newlabel("ns")
    I(a, "s_cmp_eq_u32 s65, 1"); I(a, f"s_cbranch_scc0 {lab}")
    I(a, "v_add_f32 v28, v28, v14"); I(a, "v_add_f32 v29, v29, v15")
    I(a, "v_mov_b32 v32, v28"); I(a, "v_mov_b32 v33, v29"); I(a, "s_nop 1")
    I(a, "v_permlane32_swap_b32 v32, v28"); I(a, "v_permlane32_swap_b32 v33, v29"); I(a, "s_nop 1")
    I(a, "v_add_f32 v28, v28, v32"); I(a, "v_add_f32 v29, v29, v33")
    I(a, "s_mov_b32 s6, s4"); I(a, "s_mov_b32 s7, s5"); add64(a, 6, Y_OFF); srd(a, YSRD, 6, 4*YARR)
    I(a, f"s_mul_i32 s56, s64, {YARR}"); I(a, f"s_add_u32 s56, s56, {1024*YP}"); I(a, f"s_mul_i32 s57, s61, {YP}"); I(a, "s_add_u32 s56, s56, s57")
    I(a, "v_cvt_pk_bf16_f32 v31, v28, v28"); I(a, "v_cvt_pk_bf16_f32 v12, v29, v29")
    I(a, f"s_lshl_b32 s57, s{S_WAVE}, 6"); I(a, "v_and_b32 v40, 31, v1"); I(a, "v_lshlrev_b32 v40, 1, v40"); I(a, "v_add_u32 v40, s57, v40")
    I(a, "v_cmp_gt_u32 vcc, 32, v1"); I(a, "v_mov_b32 v42, 0x7ffffff0"); I(a, "s_nop 0"); I(a, "v_cndmask_b32 v40, v42, v40, vcc")
    I(a, f"buffer_store_short v31, v40, s[{YSRD}:{YSRD+3}], s56 offen {ysc}")
    I(a, f"buffer_store_short v12, v40, s[{YSRD}:{YSRD+3}], s56 offen offset:256 {ysc}")
    I(a, "v_mov_b32 v32, 0")
    I(a, f"v_mov_b32 v41, {CV+544}"); I(a, "ds_read_u16 v33, v41"); I(a, "v_mov_b32 v43, 512")
    I(a, "v_cmp_eq_u32 vcc, 0, v1"); I(a, "s_nop 1"); I(a, "v_cndmask_b32 v43, v42, v43, vcc")
    I(a, "s_waitcnt lgkmcnt(0)")
    lab4 = a.newlabel("ns")
    I(a, "s_cmp_eq_u32 s61, 0"); I(a, f"s_cbranch_scc1 {lab4}")
    I(a, "v_mov_b32 v33, 0")
    a.label(lab4)
    lab3 = a.newlabel("ns")
    I(a, f"s_cmp_eq_u32 s{S_WAVE}, 0"); I(a, f"s_cbranch_scc0 {lab3}")
    I(a, f"buffer_store_short v33, v43, s[{YSRD}:{YSRD+3}], s56 offen {ysc}")
    a.label(lab3)
    lab5 = a.newlabel("ns")
    I(a, "s_cmp_eq_u32 s61, 0"); I(a, f"s_cbranch_scc0 {lab5}")
    I(a, f"s_add_u32 s57, s56, {2*YARR}")
    I(a, f"buffer_store_short v32, v40, s[{YSRD}:{YSRD+3}], s57 offen {ysc}")
    I(a, f"buffer_store_short v32, v40, s[{YSRD}:{YSRD+3}], s57 offen offset:256 {ysc}")
    lab6 = a.newlabel("ns")
    I(a, f"s_cmp_eq_u32 s{S_WAVE}, 0"); I(a, f"s_cbranch_scc0 {lab6}")
    I(a, f"buffer_store_short v32, v43, s[{YSRD}:{YSRD+3}], s57 offen {ysc}")
    a.label(lab6)
    a.label(lab5)
    a.label(lab)
    y_store_setup(a)
    I(a, "s_barrier")
    y_store(a, 8, ysc)
    if WARM:
        ents, npad = add_pads(a, lw0, len(a.lines), 16, f"{pref}_l", f"{pref}_lwret", every=PADEV)
        tmp = Asm(); warm_dispatch(tmp, 58, ents, None)
        a.lines[lw_idx:lw_idx] = tmp.lines
    st(7)
    if stamps: stamps.dump(8, 1)
    I(a, "s_endpgm")
    a.label(f"{pref}_compute")
    I(a, "v_bfe_u32 v40, v1, 2, 2"); I(a, "v_lshrrev_b32 v41, 5, v1"); I(a, "v_lshl_add_u32 v41, v41, 3, v40")
    I(a, f"v_mul_u32_u24 v41, {XFP}, v41"); I(a, f"v_add_u32 v41, {QB}, v41")
    I(a, "v_bfe_u32 v42, v1, 4, 1"); I(a, "v_lshl_add_u32 v41, v42, 5, v41")
    I(a, "v_and_b32 v42, 3, v1"); I(a, "v_lshl_add_u32 v2, v42, 3, v41")
    I(a, "v_and_b32 v40, 31, v1"); I(a, f"s_lshl_b32 s{S_DELTA}, s{S_WAVE}, 12"); I(a, "v_lshlrev_b32 v43, 7, v40"); I(a, f"v_add_u32 v43, s{S_DELTA}, v43")
    I(a, "v_lshrrev_b32 v41, 5, v1"); I(a, "v_bfe_u32 v42, v1, 1, 3"); I(a, "v_xor_b32 v41, v41, v42")
    for kk in range(4):
        I(a, f"v_xor_b32 v44, {2*kk}, v41"); I(a, f"v_lshl_add_u32 v{3+kk}, v44, 4, v43")
    I(a, "v_lshlrev_b32 v43, 7, v40")
    for kk in range(4):
        I(a, f"v_xor_b32 v44, {2*kk}, v41"); I(a, f"v_lshl_add_u32 v{8+kk}, v44, 4, v43")
    I(a, "v_lshlrev_b32 v43, 5, v40"); I(a, "v_lshrrev_b32 v44, 5, v1"); I(a, "v_lshl_add_u32 v7, v44, 4, v43"); I(a, f"v_add_u32 v7, {SMALL}, v7")
    if pre_compute: pre_compute(a)
    for r in range(144): I(a, f"v_mov_b32 v{ACC_A+r}, 0")
    I(a, f"s_mov_b32 s{S_DN}, {(-2*STG) & 0xffffffff}"); I(a, f"s_mov_b32 s{S_DP}, {STG}")
    I(a, "s_lshl_b32 s56, s61, 8"); I(a, "s_add_u32 s56, s56, s63"); I(a, f"s_lshl_b32 s{S_QOFF}, s56, 12")
    I(a, "s_lshl_b32 s54, s64, 11")
    I(a, "s_mov_b32 s68, 0")
    I(a, "s_waitcnt lgkmcnt(0)")
    st(1)
    I(a, "s_cmp_eq_u32 s62, 1")
    I(a, "s_cselect_b32 s24, s26, s24"); I(a, "s_cselect_b32 s25, s27, s25"); I(a, "s_cselect_b32 s28, s30, s28"); I(a, "s_cselect_b32 s29, s31, s29")
    srd(a, QSRD, 24, 2048*2048*2); srd(a, MSRD, 28, 1024*1024*2)
    srd(a, 88, 36, 256)
    I(a, "s_mov_b32 s6, s4"); I(a, "s_mov_b32 s7, s5"); add64(a, 6, FOLDF_OFF); srd(a, 92, 6, 33*128)
    I(a, "v_lshlrev_b32 v101, 7, v1"); I(a, "v_cmp_gt_u32 vcc, 33, v1"); I(a, "v_mov_b32 v102, 0x7ffffff0"); I(a, "s_nop 0"); I(a, "v_cndmask_b32 v101, v102, v101, vcc")
    I(a, "s_mov_b32 s66, 0"); I(a, "s_mov_b32 s69, 0x10000"); I(a, "s_mov_b64 s[56:57], -1")
    if MDLOOP:
        I(a, "v_mul_u32_u24 v103, 52, v1"); I(a, "v_lshrrev_b32 v103, 8, v103")
        I(a, "v_mul_u32_u24 v104, 5, v103"); I(a, "v_sub_u32 v104, v1, v104")
        I(a, f"s_lshl_b32 s58, s61, 6"); I(a, f"s_lshl_b32 s59, s{S_WAVE}, 2"); I(a, "s_add_u32 s58, s58, s59")
        I(a, "v_add_u32 v103, s58, v103"); I(a, "v_lshlrev_b32 v103, 12, v103"); I(a, "v_lshl_add_u32 v103, v104, 7, v103")
        I(a, "v_cmp_gt_u32 vcc, 20, v1"); I(a, "s_mov_b32 s67, s54"); I(a, "v_cndmask_b32 v103, v102, v103, vcc")
    labp = a.newlabel("pp"); labf = a.newlabel("pf0")
    I(a, f"s_cmp_eq_u32 s{S_WAVE}, 0"); I(a, f"s_cbranch_scc1 {labp}")
    if PFDELAY: I(a, f"s_sleep {PFDELAY}")
    I(a, "v_lshlrev_b32 v102, 13, v1")
    for r_ in range(2):
        I(a, f"s_lshl_b32 s58, s{S_WAVE}, 1"); I(a, f"s_add_u32 s58, s58, {1 + r_}")
        I(a, "s_lshl_b32 s58, s58, 7"); I(a, f"s_add_u32 s58, s58, s{S_QOFF}")
        for hf in range(2):
            I(a, f"buffer_load_dword v100, v102, s[{QSRD}:{QSRD+3}], s58 offen")
            if hf == 0: I(a, f"s_add_u32 s58, s58, {64*8192}")
    labw_ = a.newlabel("pfe")
    if MDPF == "pre":
        I(a, "s_lshl_b32 s58, s61, 6"); I(a, "v_add_u32 v102, s58, v1"); I(a, "v_lshlrev_b32 v102, 12, v102")
        I(a, f"s_sub_u32 s58, s{S_WAVE}, 1"); I(a, "s_lshl_b32 s58, s58, 8"); I(a, "s_add_u32 s58, s58, s54")
        I(a, f"buffer_load_dword v100, v102, s[{MSRD}:{MSRD+3}], s58 offen")
        I(a, f"s_cmp_eq_u32 s{S_WAVE}, 3"); I(a, f"s_cbranch_scc1 {labw_}")
        I(a, f"buffer_load_dword v100, v102, s[{MSRD}:{MSRD+3}], s58 offen offset:128")
    a.label(labw_)
    if MDPF == "h1":
        I(a, "s_lshl_b32 s58, s61, 5"); I(a, "s_add_u32 s58, s58, 128"); I(a, "v_and_b32 v102, 31, v1"); I(a, "v_add_u32 v102, s58, v102"); I(a, "v_lshlrev_b32 v102, 12, v102")
        I(a, "v_lshrrev_b32 v104, 5, v1"); I(a, "v_lshl_add_u32 v102, v104, 7, v102")
        I(a, f"s_sub_u32 s58, s{S_WAVE}, 1"); I(a, "s_lshl_b32 s58, s58, 8"); I(a, "s_add_u32 s58, s58, s54")
        I(a, f"buffer_load_dword v100, v102, s[{MSRD}:{MSRD+3}], s58 offen")
    if WARM:
        I(a, "s_mov_b32 s6, s4"); I(a, "s_mov_b32 s7, s5"); add64(a, 6, Y_OFF); srd(a, YSRD, 6, 4*YARR)
        I(a, f"s_mul_i32 s58, s61, 3"); I(a, f"s_add_u32 s58, s58, s{S_WAVE}"); I(a, "s_sub_u32 s58, s58, 1")
        cw_idx = len(a.lines)
        a.label(f"{pref}_cwret"); I(a, "s_mov_b64 exec, -1")
    I(a, f"s_branch {labf}")
    a.label(labp)
    lab = a.newlabel("np"); labx = a.newlabel("npx")
    I(a, "v_mov_b32 v102, 0")
    a.label(lab)
    I(a, "buffer_load_dword v96, v102, s[88:91], 0 offen sc1"); I(a, "s_waitcnt vmcnt(0)")
    I(a, "v_readfirstlane_b32 s66, v96")
    I(a, "s_sub_u32 s69, s69, 1"); I(a, f"s_cbranch_scc1 {labx}")
    I(a, "s_cmp_lg_u32 s66, 0"); I(a, f"s_cbranch_scc1 {labx}")
    I(a, "s_sleep 8"); I(a, f"s_branch {lab}")
    a.label(labx)
    I(a, "s_mov_b32 s69, 0x10000"); I(a, "s_mov_b32 s68, 1")
    def poll_eval():
        for q in range(4): I(a, f"v_xor_b32 v{96+q}, s66, v{96+q}")
        I(a, "v_or_b32 v96, v96, v97"); I(a, "v_or_b32 v98, v98, v99"); I(a, "v_or_b32 v96, v96, v98")
        I(a, "v_cmp_ne_u32 s[56:57], 0, v96"); I(a, "s_nop 4")
    def poll_test(mask):
        if mask == "all":
            I(a, "s_and_b32 s58, s57, 1"); I(a, "s_or_b32 s58, s58, s56")
        else:
            I(a, f"s_and_b32 s58, s56, {mask}")
    def poll(mask):
        lc = a.newlabel("pc"); ld = a.newlabel("pd")
        I(a, "s_mov_b32 s69, 0x8000")
        a.label(lc)
        poll_test(mask); I(a, f"s_cbranch_scc0 {ld}")
        I(a, "s_sub_u32 s69, s69, 1"); I(a, f"s_cbranch_scc1 {ld}")
        I(a, "buffer_load_dwordx4 v[96:99], v101, s[92:95], 0 offen sc1"); I(a, "s_waitcnt vmcnt(0)")
        poll_eval()
        if PSLEEP:
            poll_test(mask); I(a, f"s_cbranch_scc0 {ld}")
            I(a, f"s_sleep {PSLEEP}")
        I(a, f"s_branch {lc}")
        a.label(ld)
    if PDBG:
        I(a, "buffer_load_dwordx4 v[96:99], v101, s[92:95], 0 offen sc1"); I(a, "s_waitcnt vmcnt(0)"); st(6)
    poll("0xff")
    if PDBG: st(3)
    a.label(labf)
    if PDBG: st(5)
    for r in range(144): I(a, f"v_mov_b32 v{ACC_A+r}, 0") if False else None
    I(a, "s_barrier")
    labq = a.newlabel("pq")
    I(a, "s_cmp_eq_u32 s68, 1"); I(a, f"s_cbranch_scc0 {labq}")
    poll("0xfff")
    poll_test("all"); I(a, "s_cselect_b32 s68, 1, 0")
    I(a, "buffer_load_dwordx4 v[96:99], v101, s[92:95], 0 offen sc1")
    a.label(labq)
    I(a, "s_barrier")
    st(4)
    for r in a_reads(0, 0): I(a, r)
    I(a, f"s_mov_b32 s{S_CNT}, 8"); I(a, f"s_mov_b32 s{S_LEFT}, 0")
    a(".p2align 6")
    a.label(f"{pref}_aloop")
    for kk in range(3):
        I(a, "s_waitcnt lgkmcnt(0)")
        interleave(a, a_mfmas(kk & 1), a_reads((kk+1) & 1, kk+1), 3)
    I(a, "s_cmp_eq_u32 s68, 1"); I(a, f"s_cbranch_scc1 {pref}_chk")
    a.label(f"{pref}_chkret")
    I(a, "s_waitcnt lgkmcnt(0)"); I(a, "s_barrier")
    mf = a_mfmas(1)
    I(a, mf[0])
    I(a, f"s_add_u32 s{S_LEFT}, s{S_LEFT}, {STG}"); I(a, f"s_cmp_ge_u32 s{S_LEFT}, {3*STG}")
    I(a, f"s_cselect_b32 s{S_DELTA}, s{S_DN}, s{S_DP}"); I(a, f"s_cselect_b32 s{S_LEFT}, 0, s{S_LEFT}")
    for i in range(2, 7): I(a, f"v_add_u32 v{i}, s{S_DELTA}, v{i}")
    if MDLOOP:
        lsk = a.newlabel("mp")
        I(a, f"s_sub_u32 s58, s{S_CNT}, {MDLOOP}"); I(a, "s_cmp_lt_u32 s58, 4"); I(a, f"s_cbranch_scc0 {lsk}")
        I(a, f"buffer_load_dword v100, v103, s[{MSRD}:{MSRD+3}], s67 offen"); I(a, f"s_add_u32 s67, s67, {16*4096}")
        a.label(lsk)
    interleave(a, mf[1:], a_reads(0, 0) + [f"s_sub_u32 s{S_CNT}, s{S_CNT}, 1", f"s_cmp_lg_u32 s{S_CNT}, 0"], 3)
    I(a, f"s_cbranch_scc1 {pref}_aloop")
    I(a, "s_waitcnt lgkmcnt(0)")
    for m in a_mfmas(0): I(a, m)
    cw0 = len(a.lines)
    I(a, "s_barrier")
    st(2)
    I(a, "s_waitcnt vmcnt(0)")
    I(a, "s_nop 7"); I(a, "s_nop 3")
    I(a, f"v_cvt_pk_bf16_f32 v2, v{ACC_A+128+8}, v{ACC_A+128+8}")
    for kap in range(17):
        nb, k2 = kap // 2, kap % 2
        c = ACC_A + 16*nb + 8*k2; t = TB + 4*kap
        for z in range(4): I(a, f"v_cvt_pk_bf16_f32 v{t+z}, v{c+2*z}, v{c+2*z+1}")
        if kap > 0:
            tp = TB + 4*(kap-1)
            I(a, f"v_permlane32_swap_b32 v{tp}, v{tp+2}"); I(a, f"v_permlane32_swap_b32 v{tp+1}, v{tp+3}")
    I(a, "s_nop 1")
    tp = TB + 4*16
    I(a, f"v_permlane32_swap_b32 v{tp}, v{tp+2}"); I(a, f"v_permlane32_swap_b32 v{tp+1}, v{tp+3}")
    I(a, "s_barrier")
    if not PDBG: st(3)
    subs = [(h, kap) for h in range(2) for kap in range(17)]
    cur_base = [0]
    def rd(idx):
        h, kap = subs[idx]; s, kk = kap // 4, kap % 4
        F = BF[idx % 3]
        out = []
        if kap == 16:
            for nb in range(4): out.append(f"ds_read_b128 v[{F[nb]}:{F[nb]+3}], v7 offset:{h*4096 + nb*1024}")
            return out
        slot = h*4 + s
        base = (slot // 3)*3
        if base != cur_base[0]:
            d = (base - cur_base[0])*RSZ
            for i in range(8, 12): out.append(f"v_add_u32 v{i}, {d}, v{i}")
            cur_base[0] = base
        for nb in range(4): out.append(f"ds_read_b128 v[{F[nb]}:{F[nb]+3}], v{8+kk} offset:{(slot-base)*RSZ + nb*4096}")
        return out
    def need_barrier(idx):
        h, kap = subs[idx]
        return (h, kap) in ((1, 0), (1, 8))
    I(a, "v_and_b32 v4, 31, v1"); I(a, f"s_lshl_b32 s57, s{S_WAVE}, 14"); I(a, "v_lshlrev_b32 v3, 9, v4"); I(a, "v_add_u32 v3, s57, v3")
    I(a, "v_lshrrev_b32 v5, 5, v1"); I(a, "v_lshl_add_u32 v3, v5, 3, v3"); I(a, "v_and_b32 v4, 7, v4"); I(a, "v_lshl_add_u32 v3, v4, 4, v3")
    def epi_fill(h):
        out = []
        for nb in range(4):
            for q in range(4):
                c = ACC_B + 16*(4*h+nb) + 4*q; ch = (4*h+nb)*4 + q
                out += [f"v_cvt_pk_bf16_f32 v4, v{c}, v{c+1}", f"v_cvt_pk_bf16_f32 v5, v{c+2}, v{c+3}", f"v_xor_b32 v6, {(ch & 7) << 4}, v3",
                        f"ds_write_b64 v6, v[4:5] offset:{(ch >> 3)*128}"]
        return out
    pend = epi_fill(0)
    q = []
    def emit(ins_list, tag):
        for ins in ins_list:
            I(a, ins)
            if ins.startswith("ds_"): q.append(tag if ins.startswith("ds_read") else "w")
    emit(rd(0), 0); emit(rd(1), 1)
    for idx, (h, kap) in enumerate(subs):
        nxt = idx + 2
        last = max(i for i, t in enumerate(q) if t == idx)
        n_after = len(q) - 1 - last
        I(a, f"s_waitcnt lgkmcnt({min(n_after, 15)})")
        del q[:last+1]
        if nxt < len(subs) and need_barrier(nxt): I(a, "s_barrier")
        F = BF[idx % 3]
        mf = []
        for nb in range(4):
            c = ACC_B + 16*(4*h + nb)
            src = "0" if kap == 0 else f"v[{c}:{c+15}]"
            mf.append(f"v_mfma_f32_32x32x16_bf16 v[{c}:{c+15}], v[{F[nb]}:{F[nb]+3}], v[{TB+4*kap}:{TB+4*kap+3}], {src}")
        fill = rd(nxt) if nxt < len(subs) else []
        per = 2
        if h == 1 and kap >= 8:
            take = 8 if kap < 16 else len(pend)
            fill = fill + pend[:take]; pend = pend[take:]; per = 4
        fl = list(fill)
        for m in mf:
            I(a, m)
            emit(fl[:per], nxt); fl = fl[per:]
        emit(fl, nxt)
    assert not pend
    I(a, "s_nop 7"); I(a, "s_nop 3")
    if not PDBG: st(5)
    for ins in epi_fill(1): I(a, ins)
    y_store_setup(a)
    I(a, "v_and_b32 v40, 31, v1"); I(a, f"s_lshl_b32 s{S_DELTA}, s{S_WAVE}, 5"); I(a, f"v_add_u32 v41, s{S_DELTA}, v40")
    I(a, "s_lshl_b32 s57, s61, 8"); I(a, "s_add_u32 s57, s57, s63")
    I(a, "v_lshlrev_b32 v41, 1, v41"); I(a, "v_add_u32 v41, s57, v41"); I(a, f"v_mul_u32_u24 v41, {YP}, v41"); I(a, "v_add_u32 v41, 512, v41")
    I(a, "v_cmp_gt_u32 vcc, 32, v1"); I(a, "v_mov_b32 v42, 0x7ffffff0"); I(a, "s_nop 0"); I(a, "v_cndmask_b32 v41, v42, v41, vcc")
    I(a, f"buffer_store_short v2, v41, s[{YSRD}:{YSRD+3}], s56 offen {ysc}")
    I(a, "s_waitcnt lgkmcnt(0)"); I(a, "s_barrier")
    y_store(a, 0, ysc)
    if WARM:
        ents, npad = add_pads(a, cw0, len(a.lines), 12, f"{pref}_c", f"{pref}_cwret", every=PADEV)
        tmp = Asm(); warm_dispatch(tmp, 58, ents, None)
        a.lines[cw_idx:cw_idx] = tmp.lines
    if not PDBG: st(6)
    if stamps: I(a, "s_waitcnt vmcnt(0)")
    st(7)
    if stamps: stamps.dump(8, 0)
    I(a, "s_endpgm")
    a.label(f"{pref}_chk")
    I(a, "s_mov_b32 s68, 0")
    I(a, "s_waitcnt vmcnt(0)")
    poll_eval()
    poll("all")
    I(a, f"s_branch {pref}_chkret")
```

```python
from asmgen import *
from gemm2 import *
import gemm3
from gemm3 import acc16, fr16, reads16, mfma16, nblk16, V_QA as QA16
from p1v2 import load_ptr, epi_addrs_read, wave_origin
from p2 import StampsAt, add64, FLAG_OFF, G_OFF
from k0 import XF_OFF, XFP, XFARR
import fold2, awg9 as awg3
FOLDF_OFF = 34 << 20
import os
TWICE = int(os.environ.get('TWICE', '0'))
BX = int(os.environ.get('BX', '0'))
LFLAG = 147456
PSTAMP = int(os.environ.get('PSTAMP', '0'))
NONCE_SC = os.environ.get('NONCE_SC', '')
S_PFS = 56; S_PFOFF = 60; S_PFSTEP = 61; V_PF = 30

def compute_loop16p(a, g, bias_base, hook_label=None, hook_cnt=None, stamp=None):
    p = g.pref; NB, MB = nblk16(g); naddr = 2 + NB
    I(a, "s_barrier")
    if stamp: I(a, stamp); I(a, "s_waitcnt lgkmcnt(0)")
    for r in reads16(g, 0, 0): I(a, r)
    I(a, f"s_mov_b32 s{S_CNT}, {g.nk}"); I(a, f"s_mov_b32 s{S_LEFT}, 0")
    A, B = fr16(g, 0)
    first = [f"v_mfma_f32_16x16x32_bf16 v[{acc16(g,nb,mb)}:{acc16(g,nb,mb)+3}], v[{A[nb]}:{A[nb]+3}], v[{B[mb]}:{B[mb]+3}], v[{bias_base+4*nb}:{bias_base+4*nb+3}]" for nb in range(NB) for mb in range(MB)]
    I(a, "s_waitcnt lgkmcnt(0)")
    interleave(a, first, reads16(g, 1, 1), 1)
    if hook_label:
        I(a, f"s_branch {hook_label}")
    else:
        I(a, f"s_branch {p}_c_mid")
    a(".p2align 6")
    a.label(f"{p}_c_loop")
    I(a, "s_waitcnt lgkmcnt(0)")
    interleave(a, mfma16(g, 0), reads16(g, 1, 1), 1)
    a.label(f"{p}_c_mid")
    I(a, "s_waitcnt lgkmcnt(0)"); I(a, "s_barrier")
    mf = mfma16(g, 1)
    I(a, mf[0])
    I(a, f"s_add_u32 s{S_LEFT}, s{S_LEFT}, {g.STAGE}"); I(a, f"s_cmp_ge_u32 s{S_LEFT}, {g.LDS}")
    I(a, mf[1])
    I(a, f"s_cselect_b32 s{S_DELTA}, s{S_DN}, s{S_DP}"); I(a, f"s_cselect_b32 s{S_LEFT}, 0, s{S_LEFT}")
    vupd = [f"v_add_u32 v{QA16+i}, s{S_DELTA}, v{QA16+i}" for i in range(naddr)]
    fill = vupd + reads16(g, 0, 0) + [f"s_sub_u32 s{S_CNT}, s{S_CNT}, 1", f"s_cmp_lg_u32 s{S_CNT}, 0"]
    interleave(a, mf[2:], fill, 1)
    I(a, f"s_cbranch_scc1 {p}_c_loop")
    I(a, "s_waitcnt lgkmcnt(0)")

def k_k1(a, name, stamps=False, hsc="", astamp=False, npf0=3, w3pf=False, steppf=True, trace=False, pf_after=True, fstamp=False):
    g = G(BM=256, BN=128, WM=2, WN=2, NS=3, ldq=2048, ldp=7168, nk=16, pref="p1")
    st = StampsAt(a, stamps, 70)
    kernel_begin(a, name)
    st(0)
    I(a, "s_cmp_ge_u32 s2, 256"); I(a, "s_cbranch_scc1 p1_end")
    lane_wave(a)
    I(a, "s_cmp_ge_u32 s2, 224"); I(a, "s_cbranch_scc1 aw_entry")
    load_ptr(a, 4, 0); load_ptr(a, 20, 48, 4); load_ptr(a, 24, 104); load_ptr(a, 36, 64); load_ptr(a, 38, 80); load_ptr(a, 62, 96)
    I(a, "s_and_b32 s26, s2, 7"); I(a, "s_lshr_b32 s27, s2, 3")
    I(a, "s_mul_i32 s28, s27, 37"); I(a, "s_lshr_b32 s28, s28, 8")
    I(a, "s_mul_i32 s29, s28, 7"); I(a, "s_sub_u32 s27, s27, s29")
    I(a, "s_lshr_b32 s29, s26, 2"); I(a, "s_and_b32 s26, s26, 3")
    I(a, "s_lshl_b32 s29, s29, 2"); I(a, "s_add_u32 s28, s28, s29")
    I(a, "s_mul_i32 s26, s26, 7"); I(a, "s_add_u32 s29, s26, s27")
    I(a, f"s_mul_i32 s{S_QOFF}, s28, {256*2048}")
    I(a, f"s_mul_i32 s{S_POFF}, s29, {128*2}")
    I(a, f"s_mov_b32 s{S_QSRD+2}, {2048*1024*2}"); I(a, f"s_mov_b32 s{S_QSRD+3}, 0x00020000")
    I(a, f"s_mov_b32 s{S_PSRD+2}, {1024*3584*2}"); I(a, f"s_mov_b32 s{S_PSRD+3}, 0x00020000")
    I(a, f"s_cmp_ge_u32 s{S_WAVE}, 4"); I(a, "s_cbranch_scc0 p1_compute")
    I(a, f"s_sub_u32 s{S_WAVE}, s{S_WAVE}, 4")
    gemm3.loader_voffsets16(a, g)
    I(a, f"s_cmp_eq_u32 s{S_WAVE}, 0"); I(a, f"s_cselect_b32 s{S_TMP}, 16, 0")
    I(a, f"s_mul_i32 s{S_DELTA}, s2, 16"); I(a, f"v_add_u32 v{V_PF}, s{S_DELTA}, v1"); I(a, f"v_lshlrev_b32 v{V_PF}, 7, v{V_PF}")
    I(a, f"v_cmp_gt_u32 vcc, s{S_TMP}, v1"); I(a, f"v_mov_b32 v46, 0x7ffffff0"); I(a, "s_nop 0"); I(a, f"v_cndmask_b32 v{V_PF}, v46, v{V_PF}, vcc")
    I(a, "s_waitcnt lgkmcnt(0)")
    st(1)
    I(a, f"s_mov_b32 s{S_QSRD}, s4"); I(a, f"s_and_b32 s{S_QSRD+1}, s5, 0xffff")
    I(a, f"s_mov_b32 s{S_PSRD}, s20"); I(a, f"s_and_b32 s{S_PSRD+1}, s21, 0xffff")
    I(a, f"s_mov_b32 s{S_PFOFF}, {64*7168}")
    srd(a, 88, 62, 256)
    I(a, "s_cmp_eq_u32 s2, 0"); I(a, "s_cbranch_scc0 p1_nn"); I(a, f"s_cmp_eq_u32 s{S_WAVE}, 3"); I(a, "s_cbranch_scc0 p1_nn")
    I(a, "s_memrealtime s[58:59]"); I(a, "s_waitcnt lgkmcnt(0)"); I(a, "s_or_b32 s58, s58, 1")
    I(a, "v_mov_b32 v26, 0"); I(a, "v_mov_b32 v27, s58")
    I(a, "buffer_store_dword v27, v26, s[88:91], 0 offen sc1")
    a.label("p1_nn")
    X = 1 if steppf else 0
    def pf():
        if not steppf: return
        I(a, f"buffer_load_dword v47, v{V_PF}, s[{S_PSRD}:{S_PSRD+3}], s{S_PFOFF} offen")
        I(a, f"s_add_u32 s{S_PFOFF}, s{S_PFOFF}, {64*7168}")
    if trace:
        I(a, "s_add_u32 s64, s24, 0x6400000"); I(a, "s_addc_u32 s65, s25, 0"); srd(a, 84, 64, 1<<22)
        I(a, "s_lshl_b32 s62, s2, 12"); I(a, f"s_lshl_b32 s68, s{S_WAVE}, 10"); I(a, "s_add_u32 s68, s68, s62"); I(a, "v_mov_b32 v31, 0")
    def tr():
        if not trace: return
        I(a, "s_memrealtime s[72:73]"); I(a, "s_memtime s[74:75]"); I(a, "s_waitcnt lgkmcnt(0)")
        I(a, "v_mov_b32 v28, s72"); I(a, "v_mov_b32 v29, s74")
        I(a, "buffer_store_dwordx2 v[28:29], v31, s[84:87], s68 offen"); I(a, "s_add_u32 s68, s68, 8")
    if trace: X += 1
    st(2)
    PER = g.PER
    if not pf_after:
        for i in range(npf0): pf()
    if BX == 3:
        I(a, f"v_mov_b32 v24, {LFLAG}")
        lab = a.newlabel("bi")
        I(a, "s_cmp_lt_u32 s2, 132"); I(a, f"s_cbranch_scc0 {lab}")
        I(a, "v_mov_b32 v20, 0"); I(a, "v_mov_b32 v21, 0"); I(a, "v_mov_b32 v22, 0"); I(a, "v_mov_b32 v23, 0")
        I(a, "ds_write_b128 v24, v[20:23]"); I(a, "s_waitcnt lgkmcnt(0)"); I(a, "s_barrier")
        a.label(lab)
    stage_issue(a, g)
    if not PSTAMP: st(3)
    npa = (npf0 if (pf_after and steppf) else 0)
    if BX == 2:
        for i in range(npa): pf()
        I(a, "s_barrier")
        stage_issue(a, g); stage_issue(a, g)
        I(a, f"s_waitcnt vmcnt({2*PER+npa})")
        npa = 0
    else:
        stage_issue(a, g)
        if pf_after:
            for i in range(npf0): pf()
        if BX == 3:
            lab = a.newlabel("lf"); labx = a.newlabel("lfx")
            I(a, "s_cmp_lt_u32 s2, 132"); I(a, f"s_cbranch_scc0 {labx}")
            I(a, "s_mov_b32 s59, 0x40000")
            a.label(lab)
            I(a, "ds_read_b128 v[20:23], v24"); I(a, "s_waitcnt lgkmcnt(0)")
            I(a, "v_and_b32 v20, v20, v21"); I(a, "v_and_b32 v22, v22, v23"); I(a, "v_and_b32 v20, v20, v22"); I(a, "s_nop 0")
            I(a, "v_readfirstlane_b32 s58, v20")
            I(a, "s_sub_u32 s59, s59, 1"); I(a, f"s_cbranch_scc1 {labx}")
            I(a, "s_cmp_eq_u32 s58, 1"); I(a, f"s_cbranch_scc1 {labx}")
            I(a, "s_sleep 1"); I(a, f"s_branch {lab}")
            a.label(labx)
            stage_issue(a, g)
            I(a, f"s_waitcnt vmcnt({2*PER+npa})")
        elif BX:
            I(a, "s_barrier")
            stage_issue(a, g)
            I(a, f"s_waitcnt vmcnt({2*PER+npa})")
        else:
            I(a, f"s_waitcnt vmcnt({PER+npa})")
    st(4)
    I(a, "s_barrier"); tr()
    I(a, "s_mov_b32 s6, s24"); I(a, "s_mov_b32 s7, s25"); add64(a, 6, FOLDF_OFF); srd(a, 92, 6, 33*128)
    I(a, "v_mov_b32 v27, 0")
    I(a, f"s_cmp_eq_u32 s{S_WAVE}, 3"); I(a, "s_cbranch_scc0 p1_nonl")
    I(a, f"buffer_load_dword v26, v27, s[88:91], 0 offen {NONCE_SC}")
    a.label("p1_nonl")
    if BX:
        pf()
        lab = a.newlabel("bw")
        I(a, f"s_cmp_eq_u32 s{S_WAVE}, 3"); I(a, f"s_cbranch_scc0 {lab}")
        I(a, f"s_cmp_lt_u32 s2, 132"); I(a, f"s_cbranch_scc0 {lab}")
        I(a, f"s_waitcnt vmcnt({1 if steppf else 0})")
        a.label(lab)
        I(a, f"s_waitcnt vmcnt({npa + PER + X})"); I(a, "s_barrier")
    else:
        stage_issue(a, g); pf()
        I(a, f"s_waitcnt vmcnt({PER + (1 if steppf else 0)})"); I(a, "s_barrier")
    I(a, f"s_cmp_eq_u32 s{S_WAVE}, 3"); I(a, "s_cbranch_scc0 p1_nopub"); I(a, "s_cmp_lt_u32 s2, 132"); I(a, "s_cbranch_scc0 p1_nopub")
    I(a, "s_mov_b32 s59, 0x10000")
    a.label("p1_npoll")
    I(a, "v_readfirstlane_b32 s58, v26")
    I(a, "s_sub_u32 s59, s59, 1"); I(a, "s_cbranch_scc1 p1_ngo")
    I(a, "s_cmp_lg_u32 s58, 0"); I(a, "s_cbranch_scc1 p1_ngo")
    I(a, "buffer_load_dword v26, v27, s[88:91], 0 offen sc1"); I(a, "s_waitcnt vmcnt(0)")
    I(a, "s_branch p1_npoll")
    a.label("p1_ngo")
    I(a, "s_lshr_b32 s58, s2, 2"); I(a, "s_lshl_b32 s58, s58, 7"); I(a, "s_and_b32 s59, s2, 3"); I(a, "s_lshl_b32 s59, s59, 2"); I(a, "s_add_u32 s58, s58, s59")
    I(a, "v_mov_b32 v25, 0x7ffffff0"); I(a, "v_mov_b32 v27, s58"); I(a, "v_cmp_eq_u32 vcc, 0, v1"); I(a, "s_nop 1"); I(a, "v_cndmask_b32 v27, v25, v27, vcc")
    I(a, "buffer_store_dword v26, v27, s[92:95], 0 offen sc1")
    a.label("p1_nopub")
    if PSTAMP: st(3)
    tr(); stage_issue(a, g); pf()
    I(a, f"s_mov_b32 s{S_CNT}, {g.nk-3-1}")
    a.label("p1_ld_loop")
    I(a, f"s_waitcnt vmcnt({PER + X + (1 if steppf else 0)})"); I(a, "s_barrier"); tr(); stage_issue(a, g); pf()
    I(a, f"s_sub_u32 s{S_CNT}, s{S_CNT}, 1"); I(a, f"s_cmp_lg_u32 s{S_CNT}, 0"); I(a, "s_cbranch_scc1 p1_ld_loop")
    I(a, "s_bfe_u32 s60, s2, 0x10001"); I(a, f"s_mul_i32 s60, s60, {1792*2048}")
    I(a, "s_and_b32 s61, s2, 1"); I(a, "s_lshl_b32 s61, s61, 10"); I(a, "s_add_u32 s60, s60, s61")
    I(a, "s_lshr_b32 s61, s2, 3"); I(a, f"s_mul_i32 s61, s61, {64*2048}"); I(a, "s_add_u32 s60, s60, s61")
    I(a, f"s_mul_i32 s61, s{S_WAVE}, {16*2048}"); I(a, "s_add_u32 s60, s60, s61")
    srd(a, S_PFS, 36, 3584*1024*2)
    I(a, "v_lshrrev_b32 v46, 3, v1"); I(a, "v_lshlrev_b32 v46, 11, v46"); I(a, "v_and_b32 v45, 7, v1"); I(a, "v_lshl_add_u32 v46, v45, 7, v46")
    I(a, f"buffer_load_dword v47, v46, s[{S_PFS}:{S_PFS+3}], s60 offen")
    I(a, f"s_add_u32 s60, s60, {8*2048}")
    I(a, f"buffer_load_dword v47, v46, s[{S_PFS}:{S_PFS+3}], s60 offen")
    I(a, f"s_waitcnt vmcnt({PER + X + (1 if steppf else 0) + 2})"); I(a, "s_barrier")
    I(a, f"s_waitcnt vmcnt({(1 if steppf else 0) + 2})"); I(a, "s_barrier")
    I(a, f"s_barrier")
    st(5)
    srd(a, 16, 24, 2048*3584*2)
    wave_origin(a, g, 28, 29, 30, 31)
    epi_addrs_read(a, g, 7168, 30, 31)
    I(a, f"s_cmp_eq_u32 s{S_WAVE}, 3"); I(a, "s_cbranch_scc0 p1_noflag")
    I(a, "s_mov_b32 s6, s24"); I(a, "s_mov_b32 s7, s25"); add64(a, 6, FLAG_OFF); srd(a, 32, 6, 256*128)
    I(a, "v_mul_u32_u24 v40, 224, v1"); I(a, "v_add_u32 v40, s2, v40"); I(a, "v_lshlrev_b32 v40, 7, v40"); I(a, "v_mov_b32 v42, 0"); I(a, "v_mov_b32 v43, 0")
    I(a, "buffer_store_dwordx2 v[42:43], v40, s[32:35], 0 offen")
    a.label("p1_noflag")
    for mb in range(4):
        I(a, "s_barrier")
        for i in range(4):
            r = 64 + mb*16 + i*4
            I(a, f"ds_read_b128 v[{r}:{r+3}], v62 offset:{mb*4096 + i*1024}")
        for i in range(4):
            r = 64 + mb*16 + i*4
            I(a, f"s_mov_b32 s{S_TMP2}, {(mb*32 + i*8) * 7168}")
            I(a, f"s_waitcnt lgkmcnt({3-i})")
            I(a, f"buffer_store_dwordx4 v[{r}:{r+3}], v63, s[16:19], s{S_TMP2} offen {hsc}")
    st(6)
    if stamps: I(a, "s_waitcnt vmcnt(0)")
    st(7); st.dump(8, 1)
    I(a, "s_endpgm")
    a.label("p1_compute")
    I(a, "s_setprio 3")
    I(a, f"s_lshl_b32 s69, s2, 2"); I(a, f"s_add_u32 s69, s69, s{S_WAVE}")
    fold2.fold_pre(a, 69)
    I(a, f"s_mul_i32 s68, s{S_WAVE}, 10240"); I(a, f"s_add_u32 s68, s68, {2*g.STAGE}")
    I(a, "s_mov_b32 s14, 2048"); I(a, "s_mov_b32 s15, 0x00020000")
    wave_origin(a, g, 28, 29, 30, 31)
    I(a, "v_lshrrev_b32 v8, 4, v1"); I(a, "v_lshlrev_b32 v8, 3, v8")
    I(a, "s_waitcnt lgkmcnt(0)")
    st(1)
    I(a, f"s_mov_b32 s{S_QSRD}, s4"); I(a, f"s_and_b32 s{S_QSRD+1}, s5, 0xffff")
    I(a, "s_mov_b32 s12, s38"); I(a, "s_and_b32 s13, s39, 0xffff")
    I(a, "s_cmp_gt_u32 s69, 512"); I(a, "s_cbranch_scc1 p1_skipload")
    fold2.fold_loads(a, S_QSRD, 12, 68)
    a.label("p1_skipload")
    if fstamp == 2: st(2)
    srd(a, 32, 22, 3584*2)
    I(a, "s_mov_b32 s6, s24"); I(a, "s_mov_b32 s7, s25"); add64(a, 6, XF_OFF); srd(a, 16, 6, 8*XFARR)
    I(a, "s_mov_b32 s6, s24"); I(a, "s_mov_b32 s7, s25"); add64(a, 6, G_OFF); srd(a, 40, 6, 2048*8)
    I(a, "s_cmp_gt_u32 s69, 527"); I(a, "s_cbranch_scc1 p1_nofold")
    I(a, "s_cmp_gt_u32 s69, 512"); I(a, "s_cbranch_scc1 p1_zero")
    for nb in range(4):
        I(a, f"buffer_load_dwordx2 v[{184+2*nb}:{184+2*nb+1}], v8, s[32:35], s31 offen offset:{nb*32}")
    if fstamp == 2: st(3)
    def setflag():
        I(a, f"s_lshl_b32 s58, s{S_WAVE}, 2"); I(a, f"s_add_u32 s58, s58, {LFLAG}"); I(a, "v_mov_b32 v193, s58"); I(a, "v_mov_b32 v194, 1")
        I(a, "ds_write_b32 v193, v194")
    after_reads = None
    if BX in (1, 2): after_reads = lambda: I(a, "s_barrier")
    if BX == 3:
        after_reads = setflag
        I(a, "s_barrier")
    if TWICE:
        I(a, "s_mov_b32 s86, s68"); I(a, "s_mov_b32 s87, 0")
        a.label("p1_fold_again")
        I(a, "s_mov_b32 s68, s86")
    fold2.fold_lds_reads(a, 68, (st if fstamp == 1 else ((lambda i: st(4)) if fstamp == 2 else None)), nyounger=4)
    fold2.fold_compute(a, 69, 16, 40, st=st if fstamp == 1 else None, after_reads=after_reads)
    if TWICE:
        I(a, "s_add_u32 s87, s87, 1"); I(a, "s_cmp_eq_u32 s87, 1"); I(a, "s_cbranch_scc1 p1_fold_again")
    if fstamp:
        st(5); I(a, 's_waitcnt vmcnt(0)'); st(6)
    I(a, "s_waitcnt vmcnt(10)")
    I(a, "s_branch p1_folded")
    a.label("p1_zero")
    for nb in range(4):
        I(a, f"buffer_load_dwordx2 v[{184+2*nb}:{184+2*nb+1}], v8, s[32:35], s31 offen offset:{nb*32}")
    if BX in (1, 2): I(a, "s_barrier")
    if BX == 3: I(a, "s_barrier"); setflag()
    fold2.fold_zero(a, 69, 16)
    I(a, "s_waitcnt vmcnt(8)")
    I(a, "s_branch p1_folded")
    a.label("p1_nofold")
    for nb in range(4):
        I(a, f"buffer_load_dwordx2 v[{184+2*nb}:{184+2*nb+1}], v8, s[32:35], s31 offen offset:{nb*32}")
    if BX in (1, 2): I(a, "s_barrier")
    I(a, f"s_cmp_eq_u32 s{S_WAVE}, {3 if w3pf else 99}"); I(a, "s_cbranch_scc0 p1_nopf")
    load_ptr(a, 52, 8, 4); load_ptr(a, 64, 24, 4)
    I(a, "s_lshl_b32 s58, s2, 6"); I(a, "v_add_u32 v4, s58, v1")
    I(a, f"s_mov_b32 s59, {(1<<32)//9+1}"); I(a, "v_mul_hi_u32 v5, v4, s59"); I(a, "v_mul_u32_u24 v6, 9, v5"); I(a, "v_sub_u32 v6, v4, v6")
    I(a, "v_lshlrev_b32 v7, 12, v5"); I(a, "v_lshl_add_u32 v7, v6, 7, v7")
    I(a, "v_cmp_ge_u32 vcc, 1024, v5"); I(a, "v_mov_b32 v9, 0x7ffffff0"); I(a, "s_waitcnt lgkmcnt(0)"); I(a, "v_cndmask_b32 v7, v9, v7, vcc")
    srd(a, 12, 52, 2048*2048*2); srd(a, 16, 54, 2048*2048*2)
    I(a, "buffer_load_dword v25, v7, s[12:15], 0 offen"); I(a, "buffer_load_dword v25, v7, s[16:19], 0 offen")
    I(a, f"s_mov_b32 s59, {(1<<32)//5+1}"); I(a, "v_mul_hi_u32 v5, v4, s59"); I(a, "v_mul_u32_u24 v6, 5, v5"); I(a, "v_sub_u32 v6, v4, v6")
    I(a, "v_lshlrev_b32 v7, 11, v5"); I(a, "v_lshl_add_u32 v7, v6, 7, v7")
    I(a, "v_cmp_ge_u32 vcc, 512, v5"); I(a, "v_mov_b32 v9, 0x7ffffff0"); I(a, "s_nop 0"); I(a, "v_cndmask_b32 v7, v9, v7, vcc")
    srd(a, 12, 64, 1024*1024*2); srd(a, 16, 66, 1024*1024*2)
    I(a, "buffer_load_dword v25, v7, s[12:15], 0 offen"); I(a, "buffer_load_dword v25, v7, s[16:19], 0 offen")
    I(a, "s_waitcnt vmcnt(4)")
    I(a, "s_branch p1_folded")
    a.label("p1_nopf")
    I(a, "s_waitcnt vmcnt(0)")
    a.label("p1_folded")
    if fstamp:
        st(7); st0 = st; st = (lambda i: None)
    st(2)
    for nb in range(4):
        for j in range(4):
            src = 184 + 2*nb + j//2; d = 8 + 4*nb + j
            if j % 2 == 0: I(a, f"v_lshlrev_b32 v{d}, 16, v{src}")
            else: I(a, f"v_and_b32 v{d}, 0xffff0000, v{src}")
    setup16_noclobber(a, g)
    st(3)
    compute_loop16p(a, g, 8, hook_label="p1_hook", hook_cnt=g.nk, stamp="s_memtime s[78:79]" if (stamps and not fstamp) else None)
    st(5)
    I(a, f"s_mul_i32 s{S_TMP}, s{S_WAVE}, {g.wm*128}")
    I(a, "v_and_b32 v18, 15, v1"); I(a, "v_lshlrev_b32 v19, 7, v18"); I(a, f"v_add_u32 v19, s{S_TMP}, v19")
    I(a, "v_bfe_u32 v24, v1, 4, 1"); I(a, "v_lshl_add_u32 v19, v24, 3, v19")
    I(a, "v_and_b32 v18, 7, v18"); I(a, "v_lshrrev_b32 v24, 5, v1")
    for nb in range(4):
        I(a, f"v_add_u32 v25, {2*nb}, v24"); I(a, "v_xor_b32 v25, v25, v18"); I(a, f"v_lshl_add_u32 v{20+nb}, v25, 4, v19")
    k = 0
    for mb2 in range(4):
        for mb in (2*mb2, 2*mb2+1):
            for nb in range(4):
                cc = acc16(g, nb, mb); t = 8 + (k % 4) * 2; k += 1
                for r in range(4): I(a, f"v_max_f32 v{cc+r}, 0, v{cc+r}")
                for r in (0, 2): I(a, f"v_pk_mul_f32 v[{cc+r}:{cc+r+1}], v[{cc+r}:{cc+r+1}], v[{cc+r}:{cc+r+1}]")
                I(a, f"v_cvt_pk_bf16_f32 v{t}, v{cc}, v{cc+1}"); I(a, f"v_cvt_pk_bf16_f32 v{t+1}, v{cc+2}, v{cc+3}")
                I(a, f"ds_write_b64 v{20+nb}, v[{t}:{t+1}] offset:{mb*2048}")
        I(a, "s_waitcnt lgkmcnt(0)"); I(a, "s_barrier")
    st(6); st(7)
    if fstamp: st0.dump(8, 0)
    else: st.dump(8, 0)
    a.label("p1_end")
    I(a, "s_endpgm")
    a.label("p1_hook")
    I(a, "s_cmp_gt_u32 s69, 527"); I(a, "s_cbranch_scc1 p1_c_mid")
    I(a, "s_waitcnt vmcnt(0)")
    I(a, "s_branch p1_c_mid")
    a.label("aw_entry")
    sa = StampsAt(a, astamp, 70)
    if astamp: sa(0)
    awg3.a_wg(a, stamps=sa if astamp else None, ysc=os.environ.get('YSC', ''))
    return g

def setup16_noclobber(a, g):
    import math
    lw = int(math.log2(g.WM)); V_QA = gemm3.V_QA; V_PA = gemm3.V_PA
    I(a, f"s_and_b32 s{S_TMP}, s{S_WAVE}, {g.WM-1}"); I(a, f"s_lshr_b32 s{S_TMP2}, s{S_WAVE}, {lw}")
    I(a, "v_and_b32 v27, 15, v1"); I(a, f"s_mul_i32 s{S_DELTA}, s{S_TMP}, {g.wm*128}"); I(a, "v_lshlrev_b32 v27, 7, v27"); I(a, f"v_add_u32 v27, s{S_DELTA}, v27")
    I(a, "v_lshrrev_b32 v28, 4, v1"); I(a, "v_bfe_u32 v29, v1, 1, 3"); I(a, "v_xor_b32 v28, v28, v29")
    for ks in range(2):
        I(a, f"v_xor_b32 v30, {4*ks}, v28"); I(a, f"v_lshl_add_u32 v{V_QA+ks}, v30, 4, v27")
    I(a, "v_bfe_u32 v27, v1, 2, 2"); I(a, "v_lshrrev_b32 v28, 4, v1"); I(a, "v_lshl_add_u32 v29, v28, 3, v27")
    I(a, f"v_lshlrev_b32 v29, 8, v29"); I(a, f"v_add_u32 v29, {g.QB}, v29")
    I(a, "v_and_b32 v30, 1, v1"); I(a, "v_lshl_add_u32 v29, v30, 3, v29")
    I(a, "v_bfe_u32 v30, v1, 1, 1")
    I(a, f"s_mul_i32 s{S_DELTA}, s{S_TMP2}, {g.wn//8}"); I(a, f"v_add_u32 v30, s{S_DELTA}, v30")
    I(a, "v_lshlrev_b32 v27, 2, v27"); I(a, "v_and_b32 v28, 1, v28"); I(a, "v_lshlrev_b32 v28, 1, v28"); I(a, "v_xor_b32 v27, v27, v28")
    NB, MB = nblk16(g)
    for nb in range(NB):
        I(a, f"v_add_u32 v31, {2*nb}, v30"); I(a, "v_xor_b32 v31, v31, v27"); I(a, f"v_lshl_add_u32 v{V_PA+nb}, v31, 4, v29")
    I(a, f"s_mov_b32 s{S_DN}, {(-(g.NS-1)*g.STAGE) & 0xffffffff}"); I(a, f"s_mov_b32 s{S_DP}, {g.STAGE}")
```

```python
from asmgen import *
from gemm2 import *
import gemm3
from gemm3 import acc16, loader_voffsets16, compute_setup16, compute_loop16
from p1v2 import load_ptr
from p2 import StampsAt, add64, Y_OFF, YP, YARR, G_OFF, FLAG_OFF
from p2b import y_loads, y_precombine, T1
XS_OFF = 40 << 20

import os
DIST = int(os.environ.get("DIST", "1"))
PFP = int(os.environ.get("PFP", "0")); PFD = int(os.environ.get("PFD", "6"))
def k_k2(a, name, stamps=False, NS=4, trace=False):
    g = G(BM=128, BN=128, WM=2, WN=2, NS=NS, ldq=7168, ldp=2048, nk=28, pref="p2")
    st = StampsAt(a, stamps, 70)
    kernel_begin(a, name)
    st(0)
    I(a, "s_cmp_ge_u32 s2, 256"); I(a, "s_cbranch_scc1 p2_end")
    load_ptr(a, 6, 64); load_ptr(a, 20, 72); load_ptr(a, 22, 88); load_ptr(a, 4, 104)
    lane_wave(a)
    I(a, "s_lshr_b32 s27, s2, 3")
    I(a, "s_bfe_u32 s67, s2, 0x10001")
    I(a, "s_bfe_u32 s28, s2, 0x10002"); I(a, "s_lshl_b32 s28, s28, 3"); I(a, "s_lshr_b32 s30, s27, 2"); I(a, "s_add_u32 s28, s28, s30")
    I(a, "s_and_b32 s29, s2, 1"); I(a, "s_lshl_b32 s29, s29, 2"); I(a, "s_and_b32 s30, s27, 3"); I(a, "s_add_u32 s29, s29, s30")
    PX = 2
    I(a, f"s_mul_i32 s{S_QOFF}, s28, {128*7168}")
    I(a, f"s_mul_i32 s30, s67, {1792*2}"); I(a, f"s_add_u32 s{S_QOFF}, s{S_QOFF}, s30")
    I(a, f"s_mul_i32 s{S_POFF}, s29, {128*2}")
    I(a, f"s_mul_i32 s30, s67, {1792*2048}"); I(a, f"s_add_u32 s{S_POFF}, s{S_POFF}, s30")
    I(a, f"s_and_b32 s31, s{S_WAVE}, 1"); I(a, "s_lshl_b32 s31, s31, 6"); I(a, "s_lshl_b32 s30, s28, 7"); I(a, "s_add_u32 s30, s30, s31")
    I(a, "s_lshl_b32 s31, s67, 5"); I(a, "s_add_u32 s30, s30, s31")
    I(a, f"s_bfe_u32 s31, s{S_WAVE}, 0x10001"); I(a, "s_lshl_b32 s31, s31, 7"); I(a, "s_lshl_b32 s66, s29, 8"); I(a, "s_add_u32 s31, s31, s66")
    I(a, f"s_cmp_ge_u32 s{S_WAVE}, 4"); I(a, "s_cbranch_scc0 p2_compute")
    I(a, f"s_sub_u32 s{S_WAVE}, s{S_WAVE}, 4")
    loader_voffsets16(a, g, s_perm=67, nblk=2)
    I(a, "s_waitcnt lgkmcnt(0)")
    st(1)
    srd(a, S_PSRD, 6, 3584*1024*2); srd(a, S_QSRD, 4, 2048*3584*2)
    st(2)
    PER = g.PER
    stage_issue(a, g)
    st(3)
    stage_issue(a, g)
    I(a, f"s_waitcnt vmcnt({PER})")
    st(4)
    I(a, "s_barrier")
    for s in range(2, NS): stage_issue(a, g)
    srd(a, 16, 22, 2048*1024*2)
    I(a, "s_mov_b32 s6, s4"); I(a, "s_mov_b32 s7, s5"); add64(a, 6, Y_OFF); srd(a, 24, 6, 4*YARR)
    I(a, "s_mov_b32 s6, s4"); I(a, "s_mov_b32 s7, s5"); add64(a, 6, G_OFF); srd(a, 36, 6, 2048*8)
    I(a, f"s_mov_b32 s63, {YARR}"); I(a, f"s_mov_b32 s64, {2*YARR}"); I(a, f"s_mov_b32 s65, {3*YARR}")
    X = 0
    if trace:
        X = 1
        I(a, "s_add_u32 s60, s4, 0x6400000"); I(a, "s_addc_u32 s61, s5, 0"); srd(a, 56, 60, 1<<22)
        I(a, "s_lshl_b32 s62, s2, 12"); I(a, f"s_lshl_b32 s68, s{S_WAVE}, 10"); I(a, "s_add_u32 s68, s68, s62"); I(a, "v_mov_b32 v30, 0")
    def tr():
        if not trace: return
        I(a, "s_memrealtime s[90:91]"); I(a, "s_memtime s[92:93]"); I(a, "s_waitcnt lgkmcnt(0)")
        I(a, "v_mov_b32 v28, s90"); I(a, "v_mov_b32 v29, s92")
        I(a, "buffer_store_dwordx2 v[28:29], v30, s[56:59], s68 offen"); I(a, "s_add_u32 s68, s68, 8")
    if PFP and not trace:
        P = PFP
        I(a, f"s_lshl_b32 s58, s{S_WAVE}, 6"); I(a, "v_add_u32 v20, s58, v1")
        I(a, "s_bfe_u32 s58, s2, 0x20003"); I(a, "s_lshl_b32 s58, s58, 5")
        I(a, "v_and_b32 v21, 31, v20"); I(a, "v_add_u32 v21, s58, v21"); I(a, f"v_mul_u32_u24 v21, {g.ldq}, v21")
        I(a, "v_lshrrev_b32 v22, 5, v20"); I(a, "v_lshl_add_u32 v21, v22, 7, v21")
        I(a, f"v_cmp_gt_u32 vcc, {32*P}, v20"); I(a, "v_mov_b32 v23, 0x7ffffff0"); I(a, "s_nop 0"); I(a, "v_cndmask_b32 v21, v23, v21, vcc")
        I(a, "v_sub_u32 v24, 255, v20")
        I(a, "s_bfe_u32 s58, s2, 0x30005"); I(a, "s_lshl_b32 s58, s58, 3")
        I(a, "v_and_b32 v25, 7, v24"); I(a, "v_add_u32 v25, s58, v25")
        I(a, "v_lshrrev_b32 v26, 4, v24"); I(a, "v_lshl_add_u32 v25, v26, 6, v25")
        I(a, "v_lshlrev_b32 v25, 11, v25"); I(a, "v_bfe_u32 v26, v24, 3, 1"); I(a, "v_lshl_add_u32 v25, v26, 7, v25")
        I(a, f"v_cmp_gt_u32 vcc, {16*P}, v24"); I(a, "s_nop 1"); I(a, "v_cndmask_b32 v25, v23, v25, vcc")
        assert 48*P <= 256
        nst = g.nk - NS
        npf = 2
        def cntpf(i):
            return npf * sum(1 for j in (i-3, i-2, i-1) if j >= 0 and j % P == 0 and active(j))
        def active(j): return j + NS + PFD0 < g.nk
        PFD0 = PFD - NS if PFD >= NS else 0
        for i in range(nst):
            I(a, f"s_waitcnt vmcnt({(NS-2)*PER + cntpf(i)})"); I(a, "s_barrier"); stage_issue(a, g)
            if i % P == 0 and active(i):
                I(a, f"s_add_u32 s58, s{S_QOFF}, {PFD0*128}"); I(a, f"s_add_u32 s59, s{S_POFF}, {PFD0*64*g.ldp}")
                I(a, f"buffer_load_dword v27, v21, s[{S_QSRD}:{S_QSRD+3}], s58 offen")
                I(a, f"buffer_load_dword v27, v25, s[{S_PSRD}:{S_PSRD+3}], s59 offen")
        PFX = sum(npf for j in (nst-3, nst-2, nst-1) if j % P == 0 and active(j))
        assert PFX == 0 or True
    else:
        PFX = 0
        I(a, f"s_mov_b32 s{S_CNT}, {g.nk-NS}")
        if trace:
            I(a, f"s_waitcnt vmcnt({(NS-2)*PER})"); I(a, "s_barrier"); tr(); stage_issue(a, g)
            I(a, f"s_waitcnt vmcnt({(NS-3)*PER + PER+1})"); I(a, "s_barrier"); tr(); stage_issue(a, g)
            I(a, f"s_mov_b32 s{S_CNT}, {g.nk-NS-2}")
        a.label("p2_ld_loop")
        I(a, f"s_waitcnt vmcnt({(NS-2)*(PER+X)})"); I(a, "s_barrier"); tr(); stage_issue(a, g)
        I(a, f"s_sub_u32 s{S_CNT}, s{S_CNT}, 1"); I(a, f"s_cmp_lg_u32 s{S_CNT}, 0"); I(a, "s_cbranch_scc1 p2_ld_loop")
    y_loads(a, 30, 31, "p2")
    E = 164
    if DIST:
        lab = a.newlabel("r4")
        I(a, "s_cmp_eq_u32 s30, 1024"); I(a, f"s_cbranch_scc0 {lab}")
        I(a, "v_cmp_gt_u32 vcc, 8, v1"); I(a, "v_mov_b32 v45, 0x7ff00000"); I(a, "s_nop 0"); I(a, "v_cndmask_b32 v44, v45, v43, vcc")
        for z in range(1, 4):
            r = E + 8*(z-1)
            I(a, f"s_mov_b32 s58, {(1024+z)*YP}"); I(a, f"s_add_u32 s59, s58, s63")
            I(a, f"buffer_load_dwordx3 v[{r}:{r+2}], v44, s[24:27], s58 offen")
            I(a, f"buffer_load_dwordx2 v[{r+4}:{r+5}], v44, s[24:27], s59 offen")
        a.label(lab)
    for t in range(g.nk - NS, g.nk):
        rem = max(min(t + NS - 1, g.nk - 1) - (t + 1), 0)
        if t + 1 <= g.nk - 1: I(a, f"s_waitcnt vmcnt({rem*(PER+X) + 20})")
        I(a, "s_barrier")
    st(5)
    I(a, "s_waitcnt vmcnt(0)")
    if DIST:
        lab = a.newlabel("r5")
        I(a, "s_cmp_eq_u32 s30, 1024"); I(a, f"s_cbranch_scc0 {lab}")
        for off in (0, 1, 2, 4, 5):
            d = 64 + off
            I(a, f"v_lshlrev_b32 v46, 16, v{d}"); I(a, f"v_and_b32 v47, 0xffff0000, v{d}")
            for z in range(1, 4):
                r = E + 8*(z-1) + off
                I(a, f"v_lshlrev_b32 v48, 16, v{r}"); I(a, f"v_and_b32 v49, 0xffff0000, v{r}")
                I(a, "v_pk_add_f32 v[46:47], v[46:47], v[48:49]")
            I(a, f"v_cvt_pk_bf16_f32 v{d}, v46, v47")
        a.label(lab)
    y_precombine(a)
    W = 50
    I(a, f"s_lshl_b32 s66, s{S_WAVE}, 12")
    I(a, f"v_lshrrev_b32 v{W}, 3, v1"); I(a, f"v_and_b32 v{W+2}, 7, v1"); I(a, f"v_xor_b32 v{W+2}, v{W+2}, v{W}")
    I(a, f"v_lshlrev_b32 v{W+3}, 7, v{W}"); I(a, f"v_lshl_add_u32 v{W+3}, v{W+2}, 4, v{W+3}"); I(a, f"v_add_u32 v{W+12}, s66, v{W+3}")
    I(a, f"v_add_u32 v{W}, s30, v{W}"); I(a, f"v_lshlrev_b32 v{W}, 11, v{W}"); I(a, f"v_and_b32 v{W+2}, 7, v1")
    I(a, f"v_lshl_add_u32 v{W}, v{W+2}, 4, v{W}"); I(a, f"v_add_u32 v{W+13}, s31, v{W}")
    st(6)
    I(a, "s_barrier"); I(a, "s_barrier"); I(a, "s_barrier")
    for i in range(4):
        I(a, f"ds_read_b128 v[{64+4*i}:{64+4*i+3}], v{W+12} offset:{i*1024}")
    for i in range(4):
        I(a, f"s_waitcnt lgkmcnt({3-i})")
        og = 33 + 2*i
        I(a, f"v_mov_b32 v46, v{og}"); I(a, f"v_mov_b32 v47, v{og}")
        for p in range(4):
            bb = 64 + 4*i + p; d = T1 + i*8 + p*2
            I(a, f"v_lshlrev_b32 v48, 16, v{bb}"); I(a, f"v_and_b32 v49, 0xffff0000, v{bb}")
            I(a, f"v_pk_fma_f32 v[{d}:{d+1}], v[48:49], v[46:47], v[{d}:{d+1}]")
            I(a, f"v_cvt_pk_bf16_f32 v{bb}, v{d}, v{d+1}")
        I(a, f"s_mov_b32 s{S_TMP2}, {i*8*2048}")
        I(a, f"buffer_store_dwordx4 v[{64+4*i}:{64+4*i+3}], v{W+13}, s[16:19], s{S_TMP2} offen {os.environ.get('OSC', 'sc0 sc1')}")
    if stamps: I(a, "s_waitcnt vmcnt(0)")
    st(7); st.dump(8, 1)
    I(a, "s_endpgm")
    a.label("p2_compute")
    compute_setup16(a, g)
    for nb in range(4):
        for mb in (2, 3):
            for r in range(4): I(a, f"v_mov_b32 v{acc16(g,nb,mb)+r}, 0")
    I(a, "s_waitcnt lgkmcnt(0)")
    st(1)
    srd(a, 32, 20, 2048)
    I(a, "v_lshrrev_b32 v8, 4, v1"); I(a, "v_lshlrev_b32 v8, 3, v8")
    for nb in range(4):
        I(a, f"buffer_load_dwordx2 v[{10+2*nb}:{10+2*nb+1}], v8, s[32:35], s31 offen offset:{nb*32}")
    I(a, "s_mov_b32 s6, s4"); I(a, "s_mov_b32 s7, s5"); add64(a, 6, XS_OFF); srd(a, 56, 6, 256*16384)
    I(a, "s_mov_b32 s6, s4"); I(a, "s_mov_b32 s7, s5"); add64(a, 6, FLAG_OFF); srd(a, 8, 6, 256*128)
    I(a, f"s_lshl_b32 s66, s{S_WAVE}, 12")
    I(a, "v_and_b32 v18, 15, v1"); I(a, "v_lshlrev_b32 v19, 7, v18"); I(a, f"v_add_u32 v19, s66, v19")
    I(a, "v_bfe_u32 v24, v1, 4, 1"); I(a, "v_lshl_add_u32 v19, v24, 3, v19")
    I(a, "v_and_b32 v18, 7, v18"); I(a, "v_lshrrev_b32 v24, 5, v1")
    for nb in range(4):
        I(a, f"v_add_u32 v25, {2*nb}, v24"); I(a, "v_xor_b32 v25, v25, v18"); I(a, f"v_lshl_add_u32 v{20+nb}, v25, 4, v19")
    I(a, "s_waitcnt vmcnt(0)")
    for nb in range(4):
        for j in range(4):
            src = 10 + 2*nb + j//2
            for mb in (0, 1):
                d = acc16(g, nb, mb) + j
                if j % 2 == 0: I(a, f"v_lshlrev_b32 v{d}, 16, v{src}")
                else: I(a, f"v_and_b32 v{d}, 0xffff0000, v{src}")
    compute_loop16(a, g, stamp=f"s_memtime s[78:79]" if stamps else None)
    st(5)
    I(a, "s_nop 7"); I(a, "s_nop 7")
    I(a, "v_lshlrev_b32 v8, 4, v1")
    I(a, f"s_xor_b32 s61, s2, {PX}")
    I(a, f"s_lshl_b32 s60, s61, 14"); I(a, f"s_lshl_b32 s62, s{S_WAVE}, 12"); I(a, "s_add_u32 s60, s60, s62")
    for nb in range(4):
        t = 32 + nb*4
        for z, mb in enumerate((2, 3)):
            c = acc16(g, nb, mb)
            I(a, f"v_cvt_pk_bf16_f32 v{t+2*z}, v{c}, v{c+1}"); I(a, f"v_cvt_pk_bf16_f32 v{t+2*z+1}, v{c+2}, v{c+3}")
        I(a, f"buffer_store_dwordx4 v[{t}:{t+3}], v8, s[56:59], s60 offen offset:{nb*1024} sc1")
    st(2)
    I(a, "s_waitcnt vmcnt(0)")
    st(3)
    I(a, "s_barrier")
    I(a, f"s_cmp_eq_u32 s{S_WAVE}, 0"); I(a, "s_cbranch_scc0 p2_waitb")
    I(a, "s_lshl_b32 s62, s2, 7"); I(a, "v_mov_b32 v12, s62"); I(a, "v_mov_b32 v13, 1")
    I(a, f"buffer_store_dword v13, v12, s[8:11], 0 offen sc1")
    I(a, "s_lshl_b32 s62, s61, 7"); I(a, "v_mov_b32 v12, s62")
    I(a, "s_mov_b32 s69, 0x20000")
    a.label("p2_poll")
    I(a, f"buffer_load_dword v13, v12, s[8:11], 0 offen sc1")
    I(a, "s_waitcnt vmcnt(0)")
    I(a, "v_readfirstlane_b32 s62, v13")
    I(a, "s_sub_u32 s69, s69, 1"); I(a, "s_cbranch_scc1 p2_waitb")
    I(a, "s_cmp_eq_u32 s62, 1"); I(a, "s_cbranch_scc0 p2_poll")
    a.label("p2_waitb")
    I(a, "s_barrier")
    st(6)
    I(a, f"s_lshl_b32 s60, s2, 14"); I(a, f"s_lshl_b32 s62, s{S_WAVE}, 12"); I(a, "s_add_u32 s60, s60, s62")
    for nb in range(4):
        t = 32 + nb*4
        I(a, f"buffer_load_dwordx4 v[{t}:{t+3}], v8, s[56:59], s60 offen offset:{nb*1024} sc1")
    for nb in range(4):
        t = 32 + nb*4
        I(a, f"s_waitcnt vmcnt({3-nb})")
        for z, mb in enumerate((0, 1)):
            c = acc16(g, nb, mb)
            for hh in range(2):
                I(a, f"v_lshlrev_b32 v10, 16, v{t+2*z+hh}"); I(a, f"v_and_b32 v11, 0xffff0000, v{t+2*z+hh}")
                I(a, f"v_pk_add_f32 v[{c+2*hh}:{c+2*hh+1}], v[{c+2*hh}:{c+2*hh+1}], v[10:11]")
            tt = 48 + (nb*2+z)*2
            I(a, f"v_cvt_pk_bf16_f32 v{tt}, v{c}, v{c+1}"); I(a, f"v_cvt_pk_bf16_f32 v{tt+1}, v{c+2}, v{c+3}")
            I(a, f"ds_write_b64 v{20+nb}, v[{tt}:{tt+1}] offset:{mb*2048}")
    I(a, "s_waitcnt lgkmcnt(0)")
    I(a, "s_barrier")
    st(7); st.dump(8, 0)
    a.label("p2_end")
    I(a, "s_endpgm")
    return g
```

```python
from asmgen import *
from gemm2 import S_WAVE, S_TMP, S_TMP2, S_DELTA, S_CNT, S_LEFT, S_STG, S_QOFF, S_POFF, S_MQ, S_MP, S_DN, S_DP, interleave
from p1v2 import load_ptr
from p2 import add64, Y_OFF, YP, YARR
from k0 import XF_OFF, XFP, XFARR
import os
AEXP = int(os.environ.get("AEXP", "0"))
ROT = int(os.environ.get("AROT", "0"))
MDPF = os.environ.get("MDPF", "h1")
MDH1 = os.environ.get("MDH1", "reg")
PFDELAY = int(os.environ.get("PFDELAY", "0"))
MSPF = int(os.environ.get("MSPF", "1"))
MSR = int(os.environ.get("MSR", "1"))
ASTG = int(os.environ.get("ASTG", "0"))
PDBG = int(os.environ.get("PDBG", "0"))
MDLOOP = int(os.environ.get("MDLOOP", "0"))
WARM = int(os.environ.get("WARM", "1"))
PADEV = int(os.environ.get("PADEV", "41"))
MDPRE = int(os.environ.get("MDPRE", "1"))
NWX = int(os.environ.get("NWX", "2"))
NCH = int(os.environ.get("NCH", "6"))
NODOT = int(os.environ.get("NODOT", "1"))
NPOLL = int(os.environ.get("NPOLL", "1"))
PSLEEP = int(os.environ.get("PSLEEP", "2"))
PSLEEP0 = int(os.environ.get("PSLEEP0", "0"))
EARLYINV = int(os.environ.get("EARLYINV", "1"))
FOLDF_OFF = 34 << 20
QSRD = 8; PSRD = 12; MSRD = 16; YSRD = 20
STG = 53248; QB = 16384
RSZ = 16384
SMALL = 8*RSZ
CV = 153600
CX = CV + 1024
ACC_A = 112; ACC_B = 128
FA = 16
TB = 16

def a_regs(s):
    b = FA + 40*s
    return [b + 4*i for i in range(9)], b + 36
def a_reads(s, kk):
    A, B = a_regs(s)
    out = [f"ds_read_b128 v[{B}:{B+3}], v{3+kk}"]
    for nb in range(9):
        if AEXP == 1 and nb % 2 == 1: continue
        for h in range(2):
            out.append(f"ds_read_b64_tr_b16 v[{A[nb]+2*h}:{A[nb]+2*h+1}], v2 offset:{(16*kk+4*h)*XFP + nb*64}")
    return out
def a_mfmas(s):
    A, B = a_regs(s)
    return [f"v_mfma_f32_32x32x16_bf16 v[{ACC_A+16*nb}:{ACC_A+16*nb+15}], v[{A[nb]}:{A[nb]+3}], v[{B}:{B+3}], v[{ACC_A+16*nb}:{ACC_A+16*nb+15}]" for nb in range(9)]

BF = [[84, 88, 92, 96], [100, 104, 108, 112], [116, 120, 124, 12]]

def sidx_to(a, j, dst):
    if j >= 8: I(a, f"s_mov_b32 s{dst}, 8")
    elif ROT: I(a, f"s_add_u32 s{dst}, s67, {j}"); I(a, f"s_and_b32 s{dst}, s{dst}, 7")
    else: I(a, f"s_mov_b32 s{dst}, {j}")
def a_issue_q(a, s_stg, j):
    sidx_to(a, j, 59); I(a, "s_lshl_b32 s59, s59, 7"); I(a, f"s_add_u32 s59, s59, s{S_QOFF}")
    I(a, f"s_add_u32 m0, s{s_stg}, s{S_MQ}"); I(a, "s_nop 0")
    for i in range(4):
        I(a, f"buffer_load_dwordx4 v{2+i}, s[{QSRD}:{QSRD+3}], s59 offen offset:{i*1024} lds")
def a_issue_p(a, j):
    sidx_to(a, j, 59); I(a, f"s_mul_i32 s{S_TMP}, s59, {64*XFP}"); I(a, f"s_add_u32 s{S_TMP}, s{S_TMP}, s{S_POFF}")
    I(a, f"s_add_u32 m0, s{S_STG}, s{S_MP}"); I(a, "s_nop 0")
    vv = 7 if j >= 8 else 6
    for i in range(9):
        if i and i % 4 == 0:
            I(a, "s_add_u32 m0, m0, 4096"); I(a, f"s_add_u32 s{S_TMP}, s{S_TMP}, 4096"); I(a, "s_nop 0")
        I(a, f"buffer_load_dwordx4 v{vv}, s[{PSRD}:{PSRD+3}], s{S_TMP} offen offset:{(i%4)*1024} lds")
    I(a, f"s_add_u32 s{S_STG}, s{S_STG}, {STG}")
    I(a, f"s_cmp_ge_u32 s{S_STG}, {3*STG}")
    I(a, f"s_cselect_b32 s{S_STG}, 0, s{S_STG}")
def a_stage_issue(a, j):
    a_issue_q(a, S_STG, j); a_issue_p(a, j)

MR = 112
def m_load(a, h, s):
    I(a, f"s_add_u32 s56, s54, {h*128*4096 + s*128}")
    for i in range(4):
        r = MR + ((h*4+s)*4 + i)*4
        I(a, f"buffer_load_dwordx4 v[{r}:{r+3}], v{96+i}, s[{MSRD}:{MSRD+3}], s56 offen offset:{i*1024}")
def m_load_small(a, h):
    I(a, f"s_add_u32 s56, s54, {h*128*4096 + 512}")
    r = MR + 128 + 4*h
    I(a, f"buffer_load_dwordx4 v[{r}:{r+3}], v100, s[{MSRD}:{MSRD+3}], s56 offen")
def m_write(a, h, s):
    slot = h*4 + s
    for i in range(4):
        r = MR + (slot*4 + i)*4
        I(a, f"ds_write_b128 v{8 + slot//4}, v[{r}:{r+3}] offset:{(slot%4)*RSZ + i*1024}")
def m_write_small(a, h):
    r = MR + 128 + 4*h
    I(a, f"ds_write_b128 v10, v[{r}:{r+3}] offset:{h*4096}")

CX2 = CX + 1024
def side_a(a, stage_off_s, tail=False):
    accs = [24, 16, 17, 18]
    R = 32
    end = a.newlabel("sae")
    if tail:
        I(a, f"s_cmp_eq_u32 s{S_WAVE}, 0"); I(a, f"s_cbranch_scc0 {end}")
    I(a, f"v_add_u32 v21, s{stage_off_s}, v20")
    for q in range(4):
        I(a, f"ds_read_b64_tr_b16 v[{R+4+2*q}:{R+4+2*q+1}], v21 offset:{q*4*XFP}")
    lab = a.newlabel("sz")
    I(a, "s_cmp_eq_u32 s61, 0"); I(a, f"s_cbranch_scc0 {lab}")
    I(a, f"v_add_u32 v19, s{stage_off_s}, v23")
    for z in range(2):
        I(a, f"ds_read_b64_tr_b16 v[{R+2*z}:{R+2*z+1}], v19 offset:{z*2*4*XFP}")
    I(a, "s_waitcnt lgkmcnt(0)")
    for z in range(2):
        I(a, f"v_dot2_f32_bf16 v25, v{R+2*z}, v22, v25"); I(a, f"v_dot2_f32_bf16 v12, v{R+2*z+1}, v22, v12")
    a.label(lab)
    I(a, "s_waitcnt lgkmcnt(0)")
    for q in range(4):
        I(a, f"v_dot2_f32_bf16 v{accs[(2*q) % 4]}, v{R+4+2*q}, v22, v{accs[(2*q) % 4]}")
        I(a, f"v_dot2_f32_bf16 v{accs[(2*q+1) % 4]}, v{R+4+2*q+1}, v22, v{accs[(2*q+1) % 4]}")
    a.label(end)

def m_issue(a, h, s):
    I(a, f"s_add_u32 m0, s55, {(h*4+s)*RSZ}")
    I(a, f"s_add_u32 s56, s54, {h*128*4096 + s*128}")
    for i in range(4):
        I(a, f"buffer_load_dwordx4 v{96+i}, s[{MSRD}:{MSRD+3}], s56 offen offset:{i*1024} lds")
def m_issue_small(a, h):
    I(a, f"s_lshl_b32 s56, s{S_WAVE}, 10"); I(a, f"s_add_u32 m0, s56, {SMALL + h*4096}")
    I(a, f"s_add_u32 s56, s54, {h*128*4096 + 512}")
    I(a, f"buffer_load_dwordx4 v100, s[{MSRD}:{MSRD+3}], s56 offen lds")

CR = 176
def side_b_setup(a):
    I(a, f"s_mul_i32 s56, s61, {RSZ}")
    for z in range(4):
        I(a, f"v_lshl_add_u32 v31, v13, 2, {z}")
        I(a, f"v_xor_b32 v11, v31, v27"); I(a, f"v_lshl_add_u32 v{32+z}, v11, 4, v26"); I(a, f"v_add_u32 v{32+z}, s56, v{32+z}"); I(a, f"v_add_u32 v{36+z}, 65536, v{32+z}")
        I(a, f"v_lshl_add_u32 v{40+z}, v31, 4, v30")
    I(a, "v_lshrrev_b32 v44, 2, v26"); I(a, "v_lshl_add_u32 v44, v13, 4, v44"); I(a, f"v_add_u32 v44, {SMALL}, v44")
    I(a, f"v_lshl_add_u32 v45, v13, 4, v30")
    for z in range(4):
        I(a, f"ds_read_b128 v[{CR+4*z}:{CR+4*z+3}], v{40+z}")
    I(a, f"ds_read_b128 v[{CR+16}:{CR+19}], v45 offset:512")
    I(a, "s_waitcnt lgkmcnt(0)")
def side_b_h(a, h):
    accs = (28, 14) if h == 0 else (29, 15)
    R = 112
    base = 32 + 4*h
    for z in range(4):
        I(a, f"ds_read_b128 v[{R+4*z}:{R+4*z+3}], v{base+z}")
    I(a, f"ds_read_b128 v[48:51], v44 offset:{h*4096}")
    for z in range(4):
        I(a, f"s_waitcnt lgkmcnt({4-z})")
        for q in range(4): I(a, f"v_dot2_f32_bf16 v{accs[q % 2]}, v{R+4*z+q}, v{CR+4*z+q}, v{accs[q % 2]}")
    lab = a.newlabel("sb")
    I(a, "s_waitcnt lgkmcnt(0)")
    I(a, "s_cmp_eq_u32 s61, 0"); I(a, f"s_cbranch_scc0 {lab}")
    for q in range(4): I(a, f"v_dot2_f32_bf16 v{accs[q % 2]}, v{48+q}, v{CR+16+q}, v{accs[q % 2]}")
    a.label(lab)

def y_store_setup(a):
    I(a, "s_mov_b32 s6, s4"); I(a, "s_mov_b32 s7, s5"); add64(a, 6, Y_OFF); srd(a, YSRD, 6, 4*YARR)
    I(a, "s_lshl_b32 s56, s62, 1"); I(a, "s_add_u32 s56, s56, s64"); I(a, f"s_mul_i32 s56, s56, {YARR}")
    I(a, f"s_lshl_b32 s57, s{S_WAVE}, 14")
    I(a, "v_lshrrev_b32 v44, 5, v1"); I(a, "v_and_b32 v45, 31, v1")
    I(a, "s_lshl_b32 s58, s61, 8"); I(a, "s_add_u32 s58, s58, s63"); I(a, f"s_lshl_b32 s59, s{S_WAVE}, 6"); I(a, "s_add_u32 s58, s58, s59")
    I(a, "v_lshl_add_u32 v46, v44, 1, s58"); I(a, f"v_mul_u32_u24 v46, {YP}, v46"); I(a, "v_lshl_add_u32 v46, v45, 4, v46")
    for z in range(4):
        I(a, f"v_add_u32 v47, {2*z}, v44"); I(a, "v_xor_b32 v56, v45, v47")
        I(a, "v_lshlrev_b32 v47, 9, v47"); I(a, "v_lshl_add_u32 v47, v56, 4, v47"); I(a, f"v_add_u32 v{104+z}, s57, v47")

def y_store(a, i0, ysc):
    for i in range(i0, i0+8):
        r = 64 + (i - i0)*4
        I(a, f"ds_read_b128 v[{r}:{r+3}], v{104 + (i % 4)} offset:{(i // 4)*4096}")
    for z in range(8):
        ii = i0 + z; rr = 64 + z*4
        I(a, f"s_waitcnt lgkmcnt({7-z})")
        I(a, f"s_add_u32 s59, s56, {ii*4*YP}")
        I(a, f"buffer_store_dwordx4 v[{rr}:{rr+3}], v46, s[{YSRD}:{YSRD+3}], s59 offen {ysc}")

def a_wg(a, stamps=None, pref="aw", pre_compute=None, pre_loader=None, ysc="", fused=None):
    st = stamps or (lambda i: None)
    stl = st
    if ASTG:
        stl = (lambda i: None)
    load_ptr(a, 24, 8, 4); load_ptr(a, 28, 24, 4); load_ptr(a, 4, 104); load_ptr(a, 36, 96)
    I(a, "s_and_b32 s60, s2, 7")
    I(a, "s_sub_u32 s61, s2, 224"); I(a, "s_lshr_b32 s61, s61, 3")
    I(a, "s_lshr_b32 s62, s60, 2"); I(a, "s_bfe_u32 s63, s60, 0x10001"); I(a, "s_and_b32 s64, s60, 1")
    I(a, "s_lshr_b32 s65, s60, 1"); I(a, "s_cmp_eq_u32 s65, 0"); I(a, "s_cselect_b32 s65, 1, 0")
    I(a, f"s_cmp_ge_u32 s{S_WAVE}, 4"); I(a, f"s_cbranch_scc0 {pref}_compute")
    I(a, f"s_sub_u32 s{S_WAVE}, s{S_WAVE}, 4")
    I(a, "v_lshrrev_b32 v40, 3, v1"); I(a, "v_lshrrev_b32 v41, 4, v1"); I(a, "v_and_b32 v42, 7, v1")
    I(a, f"s_mul_i32 s{S_TMP}, s{S_WAVE}, {32*8192}")
    I(a, "v_mul_u32_u24 v43, 8192, v40"); I(a, "v_xor_b32 v42, v42, v41"); I(a, f"v_add_u32 v43, s{S_TMP}, v43"); I(a, "v_lshl_add_u32 v43, v42, 4, v43"); I(a, "v_xor_b32 v44, 64, v43")
    for i in range(4):
        I(a, f"v_add_u32 v{2+i}, {i*8*8192 - i*1024}, v{44 if i & 1 else 43}")
    I(a, "v_lshlrev_b32 v6, 4, v1")
    I(a, f"s_cmp_eq_u32 s{S_WAVE}, 0"); I(a, f"s_cselect_b32 s{S_TMP}, 0, 0x7fff0000"); I(a, f"v_add_u32 v7, s{S_TMP}, v6")
    I(a, "s_lshl_b32 s67, s61, 1")
    I(a, f"s_mul_i32 s{S_TMP}, s{S_WAVE}, {32*4096}")
    I(a, "v_mul_u32_u24 v43, 4096, v40"); I(a, f"v_add_u32 v43, s{S_TMP}, v43"); I(a, "v_lshl_add_u32 v43, v42, 4, v43"); I(a, "v_xor_b32 v44, 64, v43")
    for i in range(4):
        I(a, f"v_add_u32 v{96+i}, {i*8*4096 - i*1024}, v{44 if i & 1 else 43}")
    I(a, "v_lshrrev_b32 v43, 1, v1"); I(a, "v_lshlrev_b32 v43, 12, v43"); I(a, f"v_add_u32 v43, s{S_TMP}, v43"); I(a, "v_and_b32 v44, 1, v1"); I(a, "v_lshl_add_u32 v100, v44, 4, v43")
    I(a, f"s_mul_i32 s{S_MQ}, s{S_WAVE}, 4096")
    I(a, f"s_mul_i32 s{S_MP}, s{S_WAVE}, 9216"); I(a, f"s_add_u32 s{S_MP}, s{S_MP}, {QB}")
    I(a, f"s_mul_i32 s55, s{S_WAVE}, 4096")
    I(a, f"s_mov_b32 s{S_STG}, 0")
    I(a, "s_lshl_b32 s56, s61, 8"); I(a, "s_add_u32 s56, s56, s63"); I(a, f"s_lshl_b32 s{S_QOFF}, s56, 12")
    I(a, f"s_mul_i32 s{S_POFF}, s60, {XFARR}"); I(a, f"s_mul_i32 s56, s{S_WAVE}, 9216"); I(a, f"s_add_u32 s{S_POFF}, s{S_POFF}, s56")
    I(a, "s_lshl_b32 s54, s64, 11")
    I(a, "v_bfe_u32 v40, v1, 2, 2"); I(a, f"v_mul_u32_u24 v40, {XFP}, v40")
    I(a, "v_and_b32 v41, 3, v1"); I(a, "v_lshl_add_u32 v40, v41, 3, v40"); I(a, f"v_add_u32 v40, {QB}, v40")
    I(a, "v_lshrrev_b32 v41, 4, v1")
    I(a, f"s_mul_i32 s56, s{S_WAVE}, {16*XFP}"); I(a, "s_lshl_b32 s57, s61, 7"); I(a, "s_add_u32 s56, s56, s57"); I(a, "v_lshl_add_u32 v20, v41, 5, v40"); I(a, "v_add_u32 v20, s56, v20")
    I(a, "v_and_b32 v41, 1, v41"); I(a, "v_lshl_add_u32 v23, v41, 5, v40"); I(a, "v_add_u32 v23, 512, v23")
    I(a, "v_lshrrev_b32 v41, 5, v1"); I(a, f"s_lshl_b32 s56, s{S_WAVE}, 2"); I(a, "v_add_u32 v41, s56, v41"); I(a, f"v_mul_u32_u24 v41, {4*XFP}, v41"); I(a, "v_add_u32 v23, v23, v41")
    I(a, "v_mov_b32 v22, 0xbf803f80")
    for r in (24, 16, 17, 18, 25, 12, 28, 14, 29, 15, 70, 71, 72, 73, 74, 75): I(a, f"v_mov_b32 v{r}, 0")
    I(a, f"s_lshl_b32 s56, s{S_WAVE}, 5"); I(a, "v_and_b32 v26, 31, v1"); I(a, "v_add_u32 v26, s56, v26"); I(a, "v_bfe_u32 v27, v26, 1, 3"); I(a, "v_lshlrev_b32 v26, 7, v26")
    I(a, "v_lshrrev_b32 v13, 5, v1"); I(a, f"v_mov_b32 v30, {CV}")
    I(a, "s_waitcnt lgkmcnt(0)")
    stl(1)
    I(a, "s_cmp_eq_u32 s62, 1")
    I(a, "s_cselect_b32 s24, s26, s24"); I(a, "s_cselect_b32 s25, s27, s25"); I(a, "s_cselect_b32 s28, s30, s28"); I(a, "s_cselect_b32 s29, s31, s29")
    srd(a, QSRD, 24, 2048*2048*2); srd(a, MSRD, 28, 1024*1024*2)
    I(a, "s_mov_b32 s6, s4"); I(a, "s_mov_b32 s7, s5"); add64(a, 6, XF_OFF); srd(a, PSRD, 6, 8*XFARR)
    lab = a.newlabel("ni")
    I(a, f"s_cmp_eq_u32 s{S_WAVE}, 0"); I(a, f"s_cbranch_scc0 {lab}")
    I(a, "buffer_inv sc1"); I(a, "s_waitcnt vmcnt(0)")
    a.label(lab)
    for s_ in range(3):
        I(a, f"s_mov_b32 s58, {s_*STG}"); a_issue_q(a, 58, s_)
    I(a, "v_lshlrev_b32 v8, 4, v1"); I(a, "v_add_u32 v8, s55, v8"); I(a, "v_add_u32 v9, 65536, v8")
    I(a, f"s_lshl_b32 s56, s{S_WAVE}, 10"); I(a, f"s_add_u32 s56, s56, {SMALL}"); I(a, "v_lshlrev_b32 v10, 4, v1"); I(a, "v_add_u32 v10, s56, v10")
    for h_ in range(MDPRE):
        for s_ in range(4): m_load(a, h_, s_)
        m_load_small(a, h_)
    if fused:
        srd(a, 88, 36, 256)
        I(a, "s_mov_b32 s34, 0"); I(a, "s_mov_b32 s35, 1"); I(a, "v_mov_b32 v11, 0")
        I(a, "buffer_load_dword v31, v11, s[88:91], 0 offen sc1")
    stl(3)
    if WARM:
        I(a, "s_mov_b32 s6, s4"); I(a, "s_mov_b32 s7, s5"); add64(a, 6, Y_OFF); srd(a, YSRD, 6, 4*YARR)
        I(a, f"s_lshl_b32 s58, s61, 2"); I(a, f"s_add_u32 s58, s58, s{S_WAVE}")
        lw_idx = len(a.lines)
        a.label(f"{pref}_lwret"); I(a, "s_mov_b64 exec, -1")
    stl(5)
    I(a, "s_barrier")
    lw0 = len(a.lines)
    stl(2)
    a_issue_p(a, 0); a_issue_p(a, 1)
    I(a, "s_waitcnt vmcnt(9)"); stl(4); I(a, "s_barrier")
    if fused:
        lp = a.newlabel("np"); lx = a.newlabel("npx")
        I(a, "s_mov_b32 s59, 0x8000")
        a.label(lp)
        I(a, "v_readfirstlane_b32 s34, v31")
        I(a, "s_sub_u32 s59, s59, 1"); I(a, f"s_cbranch_scc1 {lx}")
        I(a, "s_cmp_lg_u32 s34, 0"); I(a, f"s_cbranch_scc1 {lx}")
        I(a, "buffer_load_dword v31, v11, s[88:91], 0 offen sc1"); I(a, "s_waitcnt vmcnt(0)")
        I(a, f"s_branch {lp}")
        a.label(lx)
    I(a, f"s_mov_b32 s57, 0")
    def side(nq):
        lab = a.newlabel("ns")
        I(a, "s_cmp_eq_u32 s65, 1"); I(a, f"s_cbranch_scc0 {lab}")
        side_a(a, 57)
        a.label(lab)
        I(a, f"s_add_u32 s57, s57, {STG}"); I(a, f"s_cmp_ge_u32 s57, {3*STG}"); I(a, "s_cselect_b32 s57, 0, s57")
    a_issue_p(a, 2)
    pieces = []
    for h_ in range(MDPRE, 2 if MDH1 == "reg" else 0):
        for s_ in range(4):
            for i_ in range(4): pieces.append((h_, s_, i_))
        pieces.append((h_, -1, 0))
    def m_piece(p):
        h_, s_, i_ = p
        if s_ < 0: m_load_small(a, h_); return
        I(a, f"s_add_u32 s56, s54, {h_*128*4096 + s_*128}")
        r = MR + ((h_*4+s_)*4 + i_)*4
        I(a, f"buffer_load_dwordx4 v[{r}:{r+3}], v{96+i_}, s[{MSRD}:{MSRD+3}], s56 offen offset:{i_*1024}")
    per = -(-len(pieces) // NCH) if pieces else 0
    chunks = [pieces[i*per:(i+1)*per] for i in range(8)]
    for t in range(8):
        side(16)
        if t + 2 <= 8:
            rem = (9 if t == 0 else 13)
            if t >= 2: rem += len(chunks[t-2])
            if t >= 1: rem += len(chunks[t-1])
        else:
            rem = 0
        I(a, f"s_waitcnt vmcnt({rem})")
        if ASTG == 2 and t < 6: st(t+1)
        I(a, "s_barrier")
        if ASTG == 1 and t < 6: st(t+1)
        if t + 3 <= 8: a_stage_issue(a, t + 3)
        for p in chunks[t]: m_piece(p)
    lab = a.newlabel("ns")
    I(a, "s_cmp_eq_u32 s65, 1"); I(a, f"s_cbranch_scc0 {lab}")
    side_a(a, 57, tail=True)
    I(a, "v_add_f32 v24, v24, v16"); I(a, "v_add_f32 v17, v17, v18"); I(a, "v_add_f32 v24, v24, v17"); I(a, "v_add_f32 v25, v25, v12")
    I(a, f"s_lshl_b32 s56, s{S_WAVE}, 8"); I(a, "v_lshlrev_b32 v41, 2, v1"); I(a, "v_add_u32 v41, s56, v41"); I(a, f"v_add_u32 v41, {CX}, v41")
    I(a, f"ds_write_b32 v41, v25"); I(a, f"ds_write_b32 v41, v24 offset:1024")
    a.label(lab)
    dma1 = (MDH1 == "dma" and MDPRE < 2)
    if dma1: m_issue(a, 1, 0); m_issue(a, 1, 1)
    for sl in range(NWX): m_write(a, 0, sl)
    I(a, "s_barrier")
    for sl in range(NWX, 4): m_write(a, 0, sl)
    m_write_small(a, 0)
    if dma1: m_issue(a, 1, 2); m_issue(a, 1, 3); m_issue_small(a, 1)
    I(a, "s_waitcnt lgkmcnt(0)"); I(a, "s_barrier")
    if MDH1 == "reg" or MDPRE == 2:
        for sl in range(4): m_write(a, 1, sl)
        m_write_small(a, 1)
        I(a, "s_waitcnt lgkmcnt(0)")
    lab = a.newlabel("ns")
    I(a, "s_cmp_eq_u32 s65, 1"); I(a, f"s_cbranch_scc0 {lab}")
    I(a, "v_and_b32 v40, 31, v1"); I(a, "v_lshlrev_b32 v41, 2, v40"); I(a, f"v_add_u32 v41, {CX}, v41")
    for z in range(8): I(a, f"ds_read_b32 v{32+z}, v41 offset:{z*128}")
    I(a, "v_lshlrev_b32 v42, 2, v1"); I(a, f"v_add_u32 v42, {CX2}, v42")
    for z in range(4): I(a, f"ds_read_b32 v{52+z}, v42 offset:{z*256}")
    I(a, "s_waitcnt lgkmcnt(0)")
    for z in range(1, 8): I(a, f"v_add_f32 v32, v32, v{32+z}")
    for z in range(1, 4): I(a, f"v_add_f32 v52, v52, v{52+z}")
    I(a, "v_cvt_pk_bf16_f32 v32, v32, v32"); I(a, "v_lshlrev_b32 v41, 1, v40"); I(a, f"v_add_u32 v41, {CV+512}, v41")
    I(a, "v_cvt_pk_bf16_f32 v52, v52, v52"); I(a, "v_lshlrev_b32 v42, 1, v1"); I(a, f"v_add_u32 v42, {CV}, v42")
    I(a, "ds_write_b16 v41, v32"); I(a, "ds_write_b16 v42, v52"); I(a, "s_waitcnt lgkmcnt(0)")
    side_b_setup(a)
    side_b_h(a, 0)
    a.label(lab)
    if dma1: I(a, "s_waitcnt vmcnt(0)")
    I(a, "s_barrier")
    lab = a.newlabel("ns")
    I(a, "s_cmp_eq_u32 s65, 1"); I(a, f"s_cbranch_scc0 {lab}")
    side_b_h(a, 1)
    a.label(lab)
    I(a, "s_barrier")
    lab = a.newlabel("ns")
    I(a, "s_cmp_eq_u32 s65, 1"); I(a, f"s_cbranch_scc0 {lab}")
    I(a, "v_add_f32 v28, v28, v14"); I(a, "v_add_f32 v29, v29, v15")
    I(a, "v_mov_b32 v32, v28"); I(a, "v_mov_b32 v33, v29"); I(a, "s_nop 1")
    I(a, "v_permlane32_swap_b32 v32, v28"); I(a, "v_permlane32_swap_b32 v33, v29"); I(a, "s_nop 1")
    I(a, "v_add_f32 v28, v28, v32"); I(a, "v_add_f32 v29, v29, v33")
    I(a, "s_mov_b32 s6, s4"); I(a, "s_mov_b32 s7, s5"); add64(a, 6, Y_OFF); srd(a, YSRD, 6, 4*YARR)
    I(a, f"s_mul_i32 s56, s64, {YARR}"); I(a, f"s_add_u32 s56, s56, {1024*YP}"); I(a, f"s_mul_i32 s57, s61, {YP}"); I(a, "s_add_u32 s56, s56, s57")
    I(a, "v_cvt_pk_bf16_f32 v31, v28, v28"); I(a, "v_cvt_pk_bf16_f32 v12, v29, v29")
    I(a, f"s_lshl_b32 s57, s{S_WAVE}, 6"); I(a, "v_and_b32 v40, 31, v1"); I(a, "v_lshlrev_b32 v40, 1, v40"); I(a, "v_add_u32 v40, s57, v40")
    I(a, "v_cmp_gt_u32 vcc, 32, v1"); I(a, "v_mov_b32 v42, 0x7ffffff0"); I(a, "s_nop 0"); I(a, "v_cndmask_b32 v40, v42, v40, vcc")
    I(a, f"buffer_store_short v31, v40, s[{YSRD}:{YSRD+3}], s56 offen {ysc}")
    I(a, f"buffer_store_short v12, v40, s[{YSRD}:{YSRD+3}], s56 offen offset:256 {ysc}")
    I(a, "v_mov_b32 v32, 0")
    I(a, f"v_mov_b32 v41, {CV+544}"); I(a, "ds_read_u16 v33, v41"); I(a, "v_mov_b32 v43, 512")
    I(a, "v_cmp_eq_u32 vcc, 0, v1"); I(a, "s_nop 1"); I(a, "v_cndmask_b32 v43, v42, v43, vcc")
    I(a, "s_waitcnt lgkmcnt(0)")
    lab4 = a.newlabel("ns")
    I(a, "s_cmp_eq_u32 s61, 0"); I(a, f"s_cbranch_scc1 {lab4}")
    I(a, "v_mov_b32 v33, 0")
    a.label(lab4)
    lab3 = a.newlabel("ns")
    I(a, f"s_cmp_eq_u32 s{S_WAVE}, 0"); I(a, f"s_cbranch_scc0 {lab3}")
    I(a, f"buffer_store_short v33, v43, s[{YSRD}:{YSRD+3}], s56 offen {ysc}")
    a.label(lab3)
    lab5 = a.newlabel("ns")
    I(a, "s_cmp_eq_u32 s61, 0"); I(a, f"s_cbranch_scc0 {lab5}")
    I(a, f"s_add_u32 s57, s56, {2*YARR}")
    I(a, f"buffer_store_short v32, v40, s[{YSRD}:{YSRD+3}], s57 offen {ysc}")
    I(a, f"buffer_store_short v32, v40, s[{YSRD}:{YSRD+3}], s57 offen offset:256 {ysc}")
    lab6 = a.newlabel("ns")
    I(a, f"s_cmp_eq_u32 s{S_WAVE}, 0"); I(a, f"s_cbranch_scc0 {lab6}")
    I(a, f"buffer_store_short v32, v43, s[{YSRD}:{YSRD+3}], s57 offen {ysc}")
    a.label(lab6)
    a.label(lab5)
    a.label(lab)
    y_store_setup(a)
    I(a, "s_barrier")
    if fused: y_store(a, 0, ysc)
    y_store(a, 8, ysc)
    if WARM:
        ents, npad = add_pads(a, lw0, len(a.lines), 16, f"{pref}_l", f"{pref}_lwret", every=PADEV)
        tmp = Asm(); warm_dispatch(tmp, 58, ents, None)
        a.lines[lw_idx:lw_idx] = tmp.lines
    if fused:
        I(a, "s_sub_u32 s58, s2, 224"); I(a, "s_lshl_b32 s58, s58, 2"); I(a, "s_add_u32 s58, s58, 65536")
        I(a, "v_lshlrev_b32 v28, 7, v1"); I(a, "v_add_u32 v28, s58, v28"); I(a, "v_mov_b32 v25, 0x7ffffff0"); I(a, "v_cmp_gt_u32 vcc, 8, v1"); I(a, "s_nop 1"); I(a, "v_cndmask_b32 v28, v25, v28, vcc")
        I(a, "s_branch f_ld")
    else:
        st(7)
        if stamps: stamps.dump(8, 1)
        I(a, "s_endpgm")
    a.label(f"{pref}_compute")
    I(a, "v_bfe_u32 v40, v1, 2, 2"); I(a, "v_lshrrev_b32 v41, 5, v1"); I(a, "v_lshl_add_u32 v41, v41, 3, v40")
    I(a, f"v_mul_u32_u24 v41, {XFP}, v41"); I(a, f"v_add_u32 v41, {QB}, v41")
    I(a, "v_bfe_u32 v42, v1, 4, 1"); I(a, "v_lshl_add_u32 v41, v42, 5, v41")
    I(a, "v_and_b32 v42, 3, v1"); I(a, "v_lshl_add_u32 v2, v42, 3, v41")
    I(a, "v_and_b32 v40, 31, v1"); I(a, f"s_lshl_b32 s{S_DELTA}, s{S_WAVE}, 12"); I(a, "v_lshlrev_b32 v43, 7, v40"); I(a, f"v_add_u32 v43, s{S_DELTA}, v43")
    I(a, "v_lshrrev_b32 v41, 5, v1"); I(a, "v_bfe_u32 v42, v1, 1, 3"); I(a, "v_xor_b32 v41, v41, v42")
    for kk in range(4):
        I(a, f"v_xor_b32 v44, {2*kk}, v41"); I(a, f"v_lshl_add_u32 v{3+kk}, v44, 4, v43")
    I(a, "v_lshlrev_b32 v43, 7, v40")
    for kk in range(4):
        I(a, f"v_xor_b32 v44, {2*kk}, v41"); I(a, f"v_lshl_add_u32 v{8+kk}, v44, 4, v43")
    I(a, "v_lshlrev_b32 v43, 5, v40"); I(a, "v_lshrrev_b32 v44, 5, v1"); I(a, "v_lshl_add_u32 v7, v44, 4, v43"); I(a, f"v_add_u32 v7, {SMALL}, v7")
    if pre_compute: pre_compute(a)
    for r in range(144): I(a, f"v_mov_b32 v{ACC_A+r}, 0")
    I(a, f"s_mov_b32 s{S_DN}, {(-2*STG) & 0xffffffff}"); I(a, f"s_mov_b32 s{S_DP}, {STG}")
    I(a, "s_lshl_b32 s56, s61, 8"); I(a, "s_add_u32 s56, s56, s63"); I(a, f"s_lshl_b32 s{S_QOFF}, s56, 12")
    I(a, "s_lshl_b32 s54, s64, 11")
    I(a, "s_mov_b32 s68, 0")
    I(a, "s_waitcnt lgkmcnt(0)")
    st(1)
    I(a, "s_cmp_eq_u32 s62, 1")
    I(a, "s_cselect_b32 s24, s26, s24"); I(a, "s_cselect_b32 s25, s27, s25"); I(a, "s_cselect_b32 s28, s30, s28"); I(a, "s_cselect_b32 s29, s31, s29")
    srd(a, QSRD, 24, 2048*2048*2); srd(a, MSRD, 28, 1024*1024*2)
    srd(a, 88, 36, 256)
    I(a, "s_mov_b32 s6, s4"); I(a, "s_mov_b32 s7, s5"); add64(a, 6, FOLDF_OFF); srd(a, 92, 6, 33*128)
    I(a, "v_lshlrev_b32 v101, 7, v1"); I(a, "v_cmp_gt_u32 vcc, 33, v1"); I(a, "v_mov_b32 v102, 0x7ffffff0"); I(a, "s_nop 0"); I(a, "v_cndmask_b32 v101, v102, v101, vcc")
    I(a, "s_mov_b32 s66, 0"); I(a, "s_mov_b32 s69, 0x10000"); I(a, "s_mov_b64 s[56:57], -1")
    if MDLOOP:
        I(a, "v_mul_u32_u24 v103, 52, v1"); I(a, "v_lshrrev_b32 v103, 8, v103")
        I(a, "v_mul_u32_u24 v104, 5, v103"); I(a, "v_sub_u32 v104, v1, v104")
        I(a, f"s_lshl_b32 s58, s61, 6"); I(a, f"s_lshl_b32 s59, s{S_WAVE}, 2"); I(a, "s_add_u32 s58, s58, s59")
        I(a, "v_add_u32 v103, s58, v103"); I(a, "v_lshlrev_b32 v103, 12, v103"); I(a, "v_lshl_add_u32 v103, v104, 7, v103")
        I(a, "v_cmp_gt_u32 vcc, 20, v1"); I(a, "s_mov_b32 s67, s54"); I(a, "v_cndmask_b32 v103, v102, v103, vcc")
    labp = a.newlabel("pp"); labf = a.newlabel("pf0")
    I(a, f"s_cmp_eq_u32 s{S_WAVE}, 0"); I(a, f"s_cbranch_scc1 {labp}")
    if PFDELAY: I(a, f"s_sleep {PFDELAY}")
    I(a, "v_lshlrev_b32 v102, 13, v1")
    for r_ in range(2):
        I(a, f"s_lshl_b32 s58, s{S_WAVE}, 1"); I(a, f"s_add_u32 s58, s58, {1 + r_}")
        I(a, "s_lshl_b32 s58, s58, 7"); I(a, f"s_add_u32 s58, s58, s{S_QOFF}")
        for hf in range(2):
            I(a, f"buffer_load_dword v100, v102, s[{QSRD}:{QSRD+3}], s58 offen")
            if hf == 0: I(a, f"s_add_u32 s58, s58, {64*8192}")
    labw_ = a.newlabel("pfe")
    if MDPF == "pre":
        I(a, "s_lshl_b32 s58, s61, 6"); I(a, "v_add_u32 v102, s58, v1"); I(a, "v_lshlrev_b32 v102, 12, v102")
        I(a, f"s_sub_u32 s58, s{S_WAVE}, 1"); I(a, "s_lshl_b32 s58, s58, 8"); I(a, "s_add_u32 s58, s58, s54")
        I(a, f"buffer_load_dword v100, v102, s[{MSRD}:{MSRD+3}], s58 offen")
        I(a, f"s_cmp_eq_u32 s{S_WAVE}, 3"); I(a, f"s_cbranch_scc1 {labw_}")
        I(a, f"buffer_load_dword v100, v102, s[{MSRD}:{MSRD+3}], s58 offen offset:128")
    a.label(labw_)
    if MDPF == "h1":
        I(a, "s_lshl_b32 s58, s61, 5"); I(a, "s_add_u32 s58, s58, 128"); I(a, "v_and_b32 v102, 31, v1"); I(a, "v_add_u32 v102, s58, v102"); I(a, "v_lshlrev_b32 v102, 12, v102")
        I(a, "v_lshrrev_b32 v104, 5, v1"); I(a, "v_lshl_add_u32 v102, v104, 7, v102")
        I(a, f"s_sub_u32 s58, s{S_WAVE}, 1"); I(a, "s_lshl_b32 s58, s58, 8"); I(a, "s_add_u32 s58, s58, s54")
        I(a, f"buffer_load_dword v100, v102, s[{MSRD}:{MSRD+3}], s58 offen")
    if WARM:
        I(a, "s_mov_b32 s6, s4"); I(a, "s_mov_b32 s7, s5"); add64(a, 6, Y_OFF); srd(a, YSRD, 6, 4*YARR)
        I(a, f"s_mul_i32 s58, s61, 3"); I(a, f"s_add_u32 s58, s58, s{S_WAVE}"); I(a, "s_sub_u32 s58, s58, 1")
        cw_idx = len(a.lines)
        a.label(f"{pref}_cwret"); I(a, "s_mov_b64 exec, -1")
    I(a, f"s_branch {labf}")
    a.label(labp)
    lab = a.newlabel("np"); labx = a.newlabel("npx")
    I(a, "v_mov_b32 v102, 0")
    a.label(lab)
    I(a, "buffer_load_dword v96, v102, s[88:91], 0 offen sc1"); I(a, "s_waitcnt vmcnt(0)")
    I(a, "v_readfirstlane_b32 s66, v96")
    I(a, "s_sub_u32 s69, s69, 1"); I(a, f"s_cbranch_scc1 {labx}")
    I(a, "s_cmp_lg_u32 s66, 0"); I(a, f"s_cbranch_scc1 {labx}")
    I(a, "s_sleep 8"); I(a, f"s_branch {lab}")
    a.label(labx)
    I(a, "s_mov_b32 s69, 0x10000"); I(a, "s_mov_b32 s68, 1")
    def poll_eval():
        for q in range(4): I(a, f"v_xor_b32 v{96+q}, s66, v{96+q}")
        I(a, "v_or_b32 v96, v96, v97"); I(a, "v_or_b32 v98, v98, v99"); I(a, "v_or_b32 v96, v96, v98")
        I(a, "v_cmp_ne_u32 s[56:57], 0, v96"); I(a, "s_nop 4")
    def poll_test(mask):
        if mask == "all":
            I(a, "s_and_b32 s58, s57, 1"); I(a, "s_or_b32 s58, s58, s56")
        else:
            I(a, f"s_and_b32 s58, s56, {mask}")
    def poll(mask):
        lc = a.newlabel("pc"); ld = a.newlabel("pd")
        I(a, "s_mov_b32 s69, 0x8000")
        a.label(lc)
        poll_test(mask); I(a, f"s_cbranch_scc0 {ld}")
        I(a, "s_sub_u32 s69, s69, 1"); I(a, f"s_cbranch_scc1 {ld}")
        I(a, "buffer_load_dwordx4 v[96:99], v101, s[92:95], 0 offen sc1"); I(a, "s_waitcnt vmcnt(0)")
        poll_eval()
        if PSLEEP:
            poll_test(mask); I(a, f"s_cbranch_scc0 {ld}")
            I(a, f"s_sleep {PSLEEP}")
        I(a, f"s_branch {lc}")
        a.label(ld)
    if PDBG:
        I(a, "buffer_load_dwordx4 v[96:99], v101, s[92:95], 0 offen sc1"); I(a, "s_waitcnt vmcnt(0)"); st(6)
    poll("0xff")
    if PDBG: st(3)
    a.label(labf)
    if PDBG: st(5)
    for r in range(144): I(a, f"v_mov_b32 v{ACC_A+r}, 0") if False else None
    I(a, "s_barrier")
    labq = a.newlabel("pq")
    I(a, "s_cmp_eq_u32 s68, 1"); I(a, f"s_cbranch_scc0 {labq}")
    poll("0xfff")
    poll_test("all"); I(a, "s_cselect_b32 s68, 1, 0")
    I(a, "buffer_load_dwordx4 v[96:99], v101, s[92:95], 0 offen sc1")
    a.label(labq)
    I(a, "s_barrier")
    st(4)
    for r in a_reads(0, 0): I(a, r)
    I(a, f"s_mov_b32 s{S_CNT}, 8"); I(a, f"s_mov_b32 s{S_LEFT}, 0")
    a(".p2align 6")
    a.label(f"{pref}_aloop")
    for kk in range(3):
        I(a, "s_waitcnt lgkmcnt(0)")
        interleave(a, a_mfmas(kk & 1), a_reads((kk+1) & 1, kk+1), 3)
    I(a, "s_cmp_eq_u32 s68, 1"); I(a, f"s_cbranch_scc1 {pref}_chk")
    a.label(f"{pref}_chkret")
    I(a, "s_waitcnt lgkmcnt(0)"); I(a, "s_barrier")
    mf = a_mfmas(1)
    I(a, mf[0])
    I(a, f"s_add_u32 s{S_LEFT}, s{S_LEFT}, {STG}"); I(a, f"s_cmp_ge_u32 s{S_LEFT}, {3*STG}")
    I(a, f"s_cselect_b32 s{S_DELTA}, s{S_DN}, s{S_DP}"); I(a, f"s_cselect_b32 s{S_LEFT}, 0, s{S_LEFT}")
    for i in range(2, 7): I(a, f"v_add_u32 v{i}, s{S_DELTA}, v{i}")
    if MDLOOP:
        lsk = a.newlabel("mp")
        I(a, f"s_sub_u32 s58, s{S_CNT}, {MDLOOP}"); I(a, "s_cmp_lt_u32 s58, 4"); I(a, f"s_cbranch_scc0 {lsk}")
        I(a, f"buffer_load_dword v100, v103, s[{MSRD}:{MSRD+3}], s67 offen"); I(a, f"s_add_u32 s67, s67, {16*4096}")
        a.label(lsk)
    interleave(a, mf[1:], a_reads(0, 0) + [f"s_sub_u32 s{S_CNT}, s{S_CNT}, 1", f"s_cmp_lg_u32 s{S_CNT}, 0"], 3)
    I(a, f"s_cbranch_scc1 {pref}_aloop")
    I(a, "s_waitcnt lgkmcnt(0)")
    for m in a_mfmas(0): I(a, m)
    cw0 = len(a.lines)
    I(a, "s_barrier")
    st(2)
    I(a, "s_waitcnt vmcnt(0)")
    I(a, "s_nop 7"); I(a, "s_nop 3")
    I(a, f"v_cvt_pk_bf16_f32 v2, v{ACC_A+128+8}, v{ACC_A+128+8}")
    I(a, "s_mov_b32 s6, s4"); I(a, "s_mov_b32 s7, s5"); add64(a, 6, Y_OFF); srd(a, YSRD, 6, 4*YARR)
    I(a, "s_lshl_b32 s56, s62, 1"); I(a, "s_add_u32 s56, s56, s64"); I(a, f"s_mul_i32 s56, s56, {YARR}")
    I(a, "v_and_b32 v40, 31, v1"); I(a, f"s_lshl_b32 s{S_DELTA}, s{S_WAVE}, 5"); I(a, f"v_add_u32 v41, s{S_DELTA}, v40")
    I(a, "s_lshl_b32 s57, s61, 8"); I(a, "s_add_u32 s57, s57, s63")
    I(a, "v_lshlrev_b32 v41, 1, v41"); I(a, "v_add_u32 v41, s57, v41"); I(a, f"v_mul_u32_u24 v41, {YP}, v41"); I(a, "v_add_u32 v41, 512, v41")
    I(a, "v_cmp_gt_u32 vcc, 32, v1"); I(a, "v_mov_b32 v42, 0x7ffffff0"); I(a, "s_nop 0"); I(a, "v_cndmask_b32 v41, v42, v41, vcc")
    I(a, f"buffer_store_short v2, v41, s[{YSRD}:{YSRD+3}], s56 offen {ysc}")
    for kap in range(17):
        nb, k2 = kap // 2, kap % 2
        c = ACC_A + 16*nb + 8*k2; t = TB + 4*kap
        for z in range(4): I(a, f"v_cvt_pk_bf16_f32 v{t+z}, v{c+2*z}, v{c+2*z+1}")
        if kap > 0:
            tp = TB + 4*(kap-1)
            I(a, f"v_permlane32_swap_b32 v{tp}, v{tp+2}"); I(a, f"v_permlane32_swap_b32 v{tp+1}, v{tp+3}")
    I(a, "s_nop 1")
    tp = TB + 4*16
    I(a, f"v_permlane32_swap_b32 v{tp}, v{tp+2}"); I(a, f"v_permlane32_swap_b32 v{tp+1}, v{tp+3}")
    I(a, "s_barrier")
    if not PDBG: st(3)
    subs = [(h, kap) for h in range(2) for kap in range(17)]
    cur_base = [0]
    def rd(idx):
        h, kap = subs[idx]; s, kk = kap // 4, kap % 4
        F = BF[idx % 3]
        out = []
        if kap == 16:
            for nb in range(4): out.append(f"ds_read_b128 v[{F[nb]}:{F[nb]+3}], v7 offset:{h*4096 + nb*1024}")
            return out
        slot = h*4 + s
        base = (slot // 3)*3
        if base != cur_base[0]:
            d = (base - cur_base[0])*RSZ
            for i in range(8, 12): out.append(f"v_add_u32 v{i}, {d}, v{i}")
            cur_base[0] = base
        for nb in range(4): out.append(f"ds_read_b128 v[{F[nb]}:{F[nb]+3}], v{8+kk} offset:{(slot-base)*RSZ + nb*4096}")
        return out
    def need_barrier(idx):
        h, kap = subs[idx]
        return (h, kap) in ((1, 0), (1, 8))
    I(a, "v_and_b32 v4, 31, v1"); I(a, f"s_lshl_b32 s57, s{S_WAVE}, 14"); I(a, "v_lshlrev_b32 v3, 9, v4"); I(a, "v_add_u32 v3, s57, v3")
    I(a, "v_lshrrev_b32 v5, 5, v1"); I(a, "v_lshl_add_u32 v3, v5, 3, v3"); I(a, "v_and_b32 v4, 7, v4"); I(a, "v_lshl_add_u32 v3, v4, 4, v3")
    def epi_fill(h):
        out = []
        for nb in range(4):
            for q in range(4):
                c = ACC_B + 16*(4*h+nb) + 4*q; ch = (4*h+nb)*4 + q
                out += [f"v_cvt_pk_bf16_f32 v4, v{c}, v{c+1}", f"v_cvt_pk_bf16_f32 v5, v{c+2}, v{c+3}", f"v_xor_b32 v6, {(ch & 7) << 4}, v3",
                        f"ds_write_b64 v6, v[4:5] offset:{(ch >> 3)*128}"]
        return out
    pend = epi_fill(0)
    q = []
    def emit(ins_list, tag):
        for ins in ins_list:
            I(a, ins)
            if ins.startswith("ds_"): q.append(tag if ins.startswith("ds_read") else "w")
    emit(rd(0), 0); emit(rd(1), 1)
    for idx, (h, kap) in enumerate(subs):
        nxt = idx + 2
        last = max(i for i, t in enumerate(q) if t == idx)
        n_after = len(q) - 1 - last
        I(a, f"s_waitcnt lgkmcnt({min(n_after, 15)})")
        del q[:last+1]
        if nxt < len(subs) and need_barrier(nxt): I(a, "s_barrier")
        F = BF[idx % 3]
        mf = []
        for nb in range(4):
            c = ACC_B + 16*(4*h + nb)
            src = "0" if kap == 0 else f"v[{c}:{c+15}]"
            mf.append(f"v_mfma_f32_32x32x16_bf16 v[{c}:{c+15}], v[{F[nb]}:{F[nb]+3}], v[{TB+4*kap}:{TB+4*kap+3}], {src}")
        fill = rd(nxt) if nxt < len(subs) else []
        per = 2
        if h == 1 and kap >= 8:
            take = 8 if kap < 16 else len(pend)
            fill = fill + pend[:take]; pend = pend[take:]; per = 4
        fl = list(fill)
        for m in mf:
            I(a, m)
            emit(fl[:per], nxt); fl = fl[per:]
        emit(fl, nxt)
    assert not pend
    I(a, "s_nop 7"); I(a, "s_nop 3")
    if not PDBG: st(5)
    for ins in epi_fill(1): I(a, ins)
    if not fused: y_store_setup(a)
    I(a, "s_waitcnt lgkmcnt(0)"); I(a, "s_barrier")
    if not fused: y_store(a, 0, ysc)
    if WARM:
        ents, npad = add_pads(a, cw0, len(a.lines), 12, f"{pref}_c", f"{pref}_cwret", every=PADEV)
        tmp = Asm(); warm_dispatch(tmp, 58, ents, None)
        a.lines[cw_idx:cw_idx] = tmp.lines
    if not PDBG: st(6)
    if stamps: I(a, "s_waitcnt vmcnt(0)")
    st(7)
    if fused: I(a, "s_branch f_cp")
    else:
        if stamps: stamps.dump(8, 0)
        I(a, "s_endpgm")
    a.label(f"{pref}_chk")
    I(a, "s_mov_b32 s68, 0")
    I(a, "s_waitcnt vmcnt(0)")
    poll_eval()
    poll("all")
    I(a, f"s_branch {pref}_chkret")
```

```python
from asmgen import *
from gemm2 import *
import gemm3
from gemm3 import acc16, fr16, reads16, mfma16, nblk16, V_QA as QA16
from p1v2 import load_ptr, epi_addrs_read, wave_origin
from p2 import StampsAt, add64, FLAG_OFF, G_OFF
from k0 import XF_OFF, XFP, XFARR
import fold2, awg9 as awg3
FOLDF_OFF = 34 << 20
import os
TWICE = int(os.environ.get('TWICE', '0'))
BX = int(os.environ.get('BX', '0'))
LFLAG = 147456
PSTAMP = int(os.environ.get('PSTAMP', '0'))
NONCE_SC = os.environ.get('NONCE_SC', '')
S_PFS = 56; S_PFOFF = 60; S_PFSTEP = 61; V_PF = 30

def compute_loop16p(a, g, bias_base, hook_label=None, hook_cnt=None, stamp=None):
    p = g.pref; NB, MB = nblk16(g); naddr = 2 + NB
    I(a, "s_barrier")
    if stamp: I(a, stamp); I(a, "s_waitcnt lgkmcnt(0)")
    for r in reads16(g, 0, 0): I(a, r)
    I(a, f"s_mov_b32 s{S_CNT}, {g.nk}"); I(a, f"s_mov_b32 s{S_LEFT}, 0")
    A, B = fr16(g, 0)
    first = [f"v_mfma_f32_16x16x32_bf16 v[{acc16(g,nb,mb)}:{acc16(g,nb,mb)+3}], v[{A[nb]}:{A[nb]+3}], v[{B[mb]}:{B[mb]+3}], v[{bias_base+4*nb}:{bias_base+4*nb+3}]" for nb in range(NB) for mb in range(MB)]
    I(a, "s_waitcnt lgkmcnt(0)")
    interleave(a, first, reads16(g, 1, 1), 1)
    if hook_label:
        I(a, f"s_branch {hook_label}")
    else:
        I(a, f"s_branch {p}_c_mid")
    a(".p2align 6")
    a.label(f"{p}_c_loop")
    I(a, "s_waitcnt lgkmcnt(0)")
    interleave(a, mfma16(g, 0), reads16(g, 1, 1), 1)
    a.label(f"{p}_c_mid")
    I(a, "s_waitcnt lgkmcnt(0)"); I(a, "s_barrier")
    mf = mfma16(g, 1)
    I(a, mf[0])
    I(a, f"s_add_u32 s{S_LEFT}, s{S_LEFT}, {g.STAGE}"); I(a, f"s_cmp_ge_u32 s{S_LEFT}, {g.LDS}")
    I(a, mf[1])
    I(a, f"s_cselect_b32 s{S_DELTA}, s{S_DN}, s{S_DP}"); I(a, f"s_cselect_b32 s{S_LEFT}, 0, s{S_LEFT}")
    vupd = [f"v_add_u32 v{QA16+i}, s{S_DELTA}, v{QA16+i}" for i in range(naddr)]
    fill = vupd + reads16(g, 0, 0) + [f"s_sub_u32 s{S_CNT}, s{S_CNT}, 1", f"s_cmp_lg_u32 s{S_CNT}, 0"]
    interleave(a, mf[2:], fill, 1)
    I(a, f"s_cbranch_scc1 {p}_c_loop")
    I(a, "s_waitcnt lgkmcnt(0)")

def k_k1(a, name, fused=None, stamps=False, hsc="", astamp=False, npf0=3, w3pf=False, steppf=True, trace=False, pf_after=True, fstamp=False):
    g = G(BM=256, BN=128, WM=2, WN=2, NS=3, ldq=2048, ldp=7168, nk=16, pref="p1")
    st = StampsAt(a, stamps, 70)
    kernel_begin(a, name)
    st(0)
    if fused and fused.get("st0"): fused["st0"]()
    I(a, "s_cmp_ge_u32 s2, 256"); I(a, "s_cbranch_scc1 p1_end")
    lane_wave(a)
    I(a, "s_cmp_ge_u32 s2, 224"); I(a, "s_cbranch_scc1 aw_entry")
    load_ptr(a, 4, 0); load_ptr(a, 20, 48, 4); load_ptr(a, 24, 104); load_ptr(a, 36, 64); load_ptr(a, 38, 80); load_ptr(a, 62, 96)
    I(a, "s_and_b32 s26, s2, 7"); I(a, "s_lshr_b32 s27, s2, 3")
    I(a, "s_mul_i32 s28, s27, 37"); I(a, "s_lshr_b32 s28, s28, 8")
    I(a, "s_mul_i32 s29, s28, 7"); I(a, "s_sub_u32 s27, s27, s29")
    I(a, "s_lshr_b32 s29, s26, 2"); I(a, "s_and_b32 s26, s26, 3")
    I(a, "s_lshl_b32 s29, s29, 2"); I(a, "s_add_u32 s28, s28, s29")
    I(a, "s_mul_i32 s26, s26, 7"); I(a, "s_add_u32 s29, s26, s27")
    I(a, f"s_mul_i32 s{S_QOFF}, s28, {256*2048}")
    I(a, f"s_mul_i32 s{S_POFF}, s29, {128*2}")
    I(a, f"s_mov_b32 s{S_QSRD+2}, {2048*1024*2}"); I(a, f"s_mov_b32 s{S_QSRD+3}, 0x00020000")
    I(a, f"s_mov_b32 s{S_PSRD+2}, {1024*3584*2}"); I(a, f"s_mov_b32 s{S_PSRD+3}, 0x00020000")
    I(a, f"s_cmp_ge_u32 s{S_WAVE}, 4"); I(a, "s_cbranch_scc0 p1_compute")
    I(a, f"s_sub_u32 s{S_WAVE}, s{S_WAVE}, 4")
    gemm3.loader_voffsets16(a, g)
    I(a, f"s_cmp_eq_u32 s{S_WAVE}, 0"); I(a, f"s_cselect_b32 s{S_TMP}, 16, 0")
    I(a, f"s_mul_i32 s{S_DELTA}, s2, 16"); I(a, f"v_add_u32 v{V_PF}, s{S_DELTA}, v1"); I(a, f"v_lshlrev_b32 v{V_PF}, 7, v{V_PF}")
    I(a, f"v_cmp_gt_u32 vcc, s{S_TMP}, v1"); I(a, f"v_mov_b32 v46, 0x7ffffff0"); I(a, "s_nop 0"); I(a, f"v_cndmask_b32 v{V_PF}, v46, v{V_PF}, vcc")
    I(a, "s_waitcnt lgkmcnt(0)")
    st(1)
    I(a, f"s_mov_b32 s{S_QSRD}, s4"); I(a, f"s_and_b32 s{S_QSRD+1}, s5, 0xffff")
    I(a, f"s_mov_b32 s{S_PSRD}, s20"); I(a, f"s_and_b32 s{S_PSRD+1}, s21, 0xffff")
    I(a, f"s_mov_b32 s{S_PFOFF}, {64*7168}")
    I(a, "s_mov_b32 s34, 0"); I(a, "s_mov_b32 s35, 0")
    srd(a, 88, 62, 256)
    I(a, "s_cmp_eq_u32 s2, 0"); I(a, "s_cbranch_scc0 p1_nn"); I(a, f"s_cmp_eq_u32 s{S_WAVE}, 3"); I(a, "s_cbranch_scc0 p1_nn")
    I(a, "s_memrealtime s[58:59]"); I(a, "s_waitcnt lgkmcnt(0)"); I(a, "s_or_b32 s58, s58, 1")
    I(a, "v_mov_b32 v26, 0"); I(a, "v_mov_b32 v27, s58")
    I(a, "buffer_store_dword v27, v26, s[88:91], 0 offen sc1")
    a.label("p1_nn")
    X = 1 if steppf else 0
    def pf():
        if not steppf: return
        I(a, f"buffer_load_dword v47, v{V_PF}, s[{S_PSRD}:{S_PSRD+3}], s{S_PFOFF} offen")
        I(a, f"s_add_u32 s{S_PFOFF}, s{S_PFOFF}, {64*7168}")
    if trace:
        I(a, "s_add_u32 s64, s24, 0x6400000"); I(a, "s_addc_u32 s65, s25, 0"); srd(a, 84, 64, 1<<22)
        I(a, "s_lshl_b32 s62, s2, 12"); I(a, f"s_lshl_b32 s68, s{S_WAVE}, 10"); I(a, "s_add_u32 s68, s68, s62"); I(a, "v_mov_b32 v31, 0")
    def tr():
        if not trace: return
        I(a, "s_memrealtime s[72:73]"); I(a, "s_memtime s[74:75]"); I(a, "s_waitcnt lgkmcnt(0)")
        I(a, "v_mov_b32 v28, s72"); I(a, "v_mov_b32 v29, s74")
        I(a, "buffer_store_dwordx2 v[28:29], v31, s[84:87], s68 offen"); I(a, "s_add_u32 s68, s68, 8")
    if trace: X += 1
    st(2)
    PER = g.PER
    if not pf_after:
        for i in range(npf0): pf()
    if BX == 3:
        I(a, f"v_mov_b32 v24, {LFLAG}")
        lab = a.newlabel("bi")
        I(a, "s_cmp_lt_u32 s2, 132"); I(a, f"s_cbranch_scc0 {lab}")
        I(a, "v_mov_b32 v20, 0"); I(a, "v_mov_b32 v21, 0"); I(a, "v_mov_b32 v22, 0"); I(a, "v_mov_b32 v23, 0")
        I(a, "ds_write_b128 v24, v[20:23]"); I(a, "s_waitcnt lgkmcnt(0)"); I(a, "s_barrier")
        a.label(lab)
    stage_issue(a, g)
    if not PSTAMP: st(3)
    npa = (npf0 if (pf_after and steppf) else 0)
    if BX == 2:
        for i in range(npa): pf()
        I(a, "s_barrier")
        stage_issue(a, g); stage_issue(a, g)
        I(a, f"s_waitcnt vmcnt({2*PER+npa})")
        npa = 0
    else:
        stage_issue(a, g)
        if pf_after:
            for i in range(npf0): pf()
        if BX == 3:
            lab = a.newlabel("lf"); labx = a.newlabel("lfx")
            I(a, "s_cmp_lt_u32 s2, 132"); I(a, f"s_cbranch_scc0 {labx}")
            I(a, "s_mov_b32 s59, 0x40000")
            a.label(lab)
            I(a, "ds_read_b128 v[20:23], v24"); I(a, "s_waitcnt lgkmcnt(0)")
            I(a, "v_and_b32 v20, v20, v21"); I(a, "v_and_b32 v22, v22, v23"); I(a, "v_and_b32 v20, v20, v22"); I(a, "s_nop 0")
            I(a, "v_readfirstlane_b32 s58, v20")
            I(a, "s_sub_u32 s59, s59, 1"); I(a, f"s_cbranch_scc1 {labx}")
            I(a, "s_cmp_eq_u32 s58, 1"); I(a, f"s_cbranch_scc1 {labx}")
            I(a, "s_sleep 1"); I(a, f"s_branch {lab}")
            a.label(labx)
            stage_issue(a, g)
            I(a, f"s_waitcnt vmcnt({2*PER+npa})")
        elif BX:
            I(a, "s_barrier")
            stage_issue(a, g)
            I(a, f"s_waitcnt vmcnt({2*PER+npa})")
        else:
            I(a, f"s_waitcnt vmcnt({PER+npa})")
    st(4)
    I(a, "s_barrier"); tr()
    I(a, "s_mov_b32 s6, s24"); I(a, "s_mov_b32 s7, s25"); add64(a, 6, FOLDF_OFF); srd(a, 92, 6, 33*128)
    I(a, "v_mov_b32 v27, 0")
    I(a, f"s_cmp_eq_u32 s{S_WAVE}, 3"); I(a, "s_cbranch_scc0 p1_nonl")
    I(a, f"buffer_load_dword v26, v27, s[88:91], 0 offen {NONCE_SC}")
    a.label("p1_nonl")
    if BX:
        pf()
        lab = a.newlabel("bw")
        I(a, f"s_cmp_eq_u32 s{S_WAVE}, 3"); I(a, f"s_cbranch_scc0 {lab}")
        I(a, f"s_cmp_lt_u32 s2, 132"); I(a, f"s_cbranch_scc0 {lab}")
        I(a, f"s_waitcnt vmcnt({1 if steppf else 0})")
        a.label(lab)
        I(a, f"s_waitcnt vmcnt({npa + PER + X})"); I(a, "s_barrier")
    else:
        stage_issue(a, g); pf()
        I(a, f"s_waitcnt vmcnt({PER + (1 if steppf else 0)})"); I(a, "s_barrier")
    I(a, f"s_cmp_eq_u32 s{S_WAVE}, 3"); I(a, "s_cbranch_scc0 p1_nopub")
    if not fused: I(a, "s_cmp_lt_u32 s2, 132"); I(a, "s_cbranch_scc0 p1_nopub")
    I(a, "s_mov_b32 s59, 0x10000")
    a.label("p1_npoll")
    I(a, "v_readfirstlane_b32 s58, v26")
    I(a, "s_sub_u32 s59, s59, 1"); I(a, "s_cbranch_scc1 p1_ngo")
    I(a, "s_cmp_lg_u32 s58, 0"); I(a, "s_cbranch_scc1 p1_ngo")
    I(a, "buffer_load_dword v26, v27, s[88:91], 0 offen sc1"); I(a, "s_waitcnt vmcnt(0)")
    I(a, "s_branch p1_npoll")
    a.label("p1_ngo")
    if fused:
        I(a, "s_mov_b32 s34, s58")
        I(a, "s_cmp_lt_u32 s2, 132"); I(a, "s_cbranch_scc0 p1_nopub")
    I(a, "s_lshr_b32 s58, s2, 2"); I(a, "s_lshl_b32 s58, s58, 7"); I(a, "s_and_b32 s59, s2, 3"); I(a, "s_lshl_b32 s59, s59, 2"); I(a, "s_add_u32 s58, s58, s59")
    I(a, "v_mov_b32 v25, 0x7ffffff0"); I(a, "v_mov_b32 v27, s58"); I(a, "v_cmp_eq_u32 vcc, 0, v1"); I(a, "s_nop 1"); I(a, "v_cndmask_b32 v27, v25, v27, vcc")
    I(a, "buffer_store_dword v26, v27, s[92:95], 0 offen sc1")
    a.label("p1_nopub")
    if PSTAMP: st(3)
    tr(); stage_issue(a, g); pf()
    I(a, f"s_mov_b32 s{S_CNT}, {g.nk-3-1}")
    a.label("p1_ld_loop")
    I(a, f"s_waitcnt vmcnt({PER + X + (1 if steppf else 0)})"); I(a, "s_barrier"); tr(); stage_issue(a, g); pf()
    I(a, f"s_sub_u32 s{S_CNT}, s{S_CNT}, 1"); I(a, f"s_cmp_lg_u32 s{S_CNT}, 0"); I(a, "s_cbranch_scc1 p1_ld_loop")
    I(a, "s_bfe_u32 s60, s2, 0x10001"); I(a, f"s_mul_i32 s60, s60, {1792*2048}")
    I(a, "s_and_b32 s61, s2, 1"); I(a, "s_lshl_b32 s61, s61, 10"); I(a, "s_add_u32 s60, s60, s61")
    I(a, "s_lshr_b32 s61, s2, 3"); I(a, f"s_mul_i32 s61, s61, {64*2048}"); I(a, "s_add_u32 s60, s60, s61")
    I(a, f"s_mul_i32 s61, s{S_WAVE}, {16*2048}"); I(a, "s_add_u32 s60, s60, s61")
    srd(a, S_PFS, 36, 3584*1024*2)
    I(a, "v_lshrrev_b32 v46, 3, v1"); I(a, "v_lshlrev_b32 v46, 11, v46"); I(a, "v_and_b32 v45, 7, v1"); I(a, "v_lshl_add_u32 v46, v45, 7, v46")
    I(a, f"buffer_load_dword v47, v46, s[{S_PFS}:{S_PFS+3}], s60 offen")
    I(a, f"s_add_u32 s60, s60, {8*2048}")
    I(a, f"buffer_load_dword v47, v46, s[{S_PFS}:{S_PFS+3}], s60 offen")
    I(a, f"s_waitcnt vmcnt({PER + X + (1 if steppf else 0) + 2})"); I(a, "s_barrier")
    I(a, f"s_waitcnt vmcnt({(1 if steppf else 0) + 2})"); I(a, "s_barrier")
    I(a, f"s_barrier")
    st(5)
    srd(a, 16, 24, 2048*3584*2)
    wave_origin(a, g, 28, 29, 30, 31)
    epi_addrs_read(a, g, 7168, 30, 31)
    if not fused:
        I(a, f"s_cmp_eq_u32 s{S_WAVE}, 3"); I(a, "s_cbranch_scc0 p1_noflag")
        I(a, "s_mov_b32 s6, s24"); I(a, "s_mov_b32 s7, s25"); add64(a, 6, FLAG_OFF); srd(a, 32, 6, 1024*128)
        I(a, "v_min_u32 v40, 16, v1"); I(a, "v_mul_u32_u24 v40, 224, v40"); I(a, "v_add_u32 v40, s2, v40"); I(a, "v_lshlrev_b32 v40, 7, v40"); I(a, "v_mov_b32 v42, 0"); I(a, "v_mov_b32 v43, 0")
        I(a, "buffer_store_dwordx2 v[42:43], v40, s[32:35], 0 offen")
        a.label("p1_noflag")
    for mb in range(4):
        I(a, "s_barrier")
        for i in range(4):
            r = 64 + mb*16 + i*4
            I(a, f"ds_read_b128 v[{r}:{r+3}], v62 offset:{mb*4096 + i*1024}")
        for i in range(4):
            r = 64 + mb*16 + i*4
            I(a, f"s_mov_b32 s{S_TMP2}, {(mb*32 + i*8) * 7168}")
            I(a, f"s_waitcnt lgkmcnt({3-i})")
            I(a, f"buffer_store_dwordx4 v[{r}:{r+3}], v63, s[16:19], s{S_TMP2} offen {hsc}")
    st(6)
    if stamps: I(a, "s_waitcnt vmcnt(0)")
    if fused:
        I(a, "s_lshl_b32 s58, s28, 7"); I(a, "s_lshl_b32 s59, s29, 2"); I(a, "s_add_u32 s58, s58, s59")
        I(a, "v_mov_b32 v28, s58"); I(a, "v_mov_b32 v25, 0x7ffffff0"); I(a, "v_cmp_eq_u32 vcc, 0, v1"); I(a, "s_nop 1"); I(a, "v_cndmask_b32 v28, v25, v28, vcc")
        I(a, "s_branch f_ld")
    else:
        st(7); st.dump(8, 1)
        I(a, "s_endpgm")
    a.label("p1_compute")
    I(a, "s_setprio 3")
    I(a, f"s_lshl_b32 s69, s2, 2"); I(a, f"s_add_u32 s69, s69, s{S_WAVE}")
    fold2.fold_pre(a, 69)
    I(a, f"s_mul_i32 s68, s{S_WAVE}, 10240"); I(a, f"s_add_u32 s68, s68, {2*g.STAGE}")
    I(a, "s_mov_b32 s14, 2048"); I(a, "s_mov_b32 s15, 0x00020000")
    wave_origin(a, g, 28, 29, 30, 31)
    I(a, "v_lshrrev_b32 v8, 4, v1"); I(a, "v_lshlrev_b32 v8, 3, v8")
    I(a, "s_waitcnt lgkmcnt(0)")
    st(1)
    I(a, f"s_mov_b32 s{S_QSRD}, s4"); I(a, f"s_and_b32 s{S_QSRD+1}, s5, 0xffff")
    I(a, "s_mov_b32 s12, s38"); I(a, "s_and_b32 s13, s39, 0xffff")
    I(a, "s_cmp_gt_u32 s69, 512"); I(a, "s_cbranch_scc1 p1_skipload")
    fold2.fold_loads(a, S_QSRD, 12, 68)
    a.label("p1_skipload")
    if fstamp == 2: st(2)
    srd(a, 32, 22, 3584*2)
    I(a, "s_mov_b32 s6, s24"); I(a, "s_mov_b32 s7, s25"); add64(a, 6, XF_OFF); srd(a, 16, 6, 8*XFARR)
    I(a, "s_mov_b32 s6, s24"); I(a, "s_mov_b32 s7, s25"); add64(a, 6, G_OFF); srd(a, 40, 6, 2048*8)
    I(a, "s_cmp_gt_u32 s69, 527"); I(a, "s_cbranch_scc1 p1_nofold")
    I(a, "s_cmp_gt_u32 s69, 512"); I(a, "s_cbranch_scc1 p1_zero")
    for nb in range(4):
        I(a, f"buffer_load_dwordx2 v[{184+2*nb}:{184+2*nb+1}], v8, s[32:35], s31 offen offset:{nb*32}")
    if fstamp == 2: st(3)
    def setflag():
        I(a, f"s_lshl_b32 s58, s{S_WAVE}, 2"); I(a, f"s_add_u32 s58, s58, {LFLAG}"); I(a, "v_mov_b32 v193, s58"); I(a, "v_mov_b32 v194, 1")
        I(a, "ds_write_b32 v193, v194")
    after_reads = None
    if BX in (1, 2): after_reads = lambda: I(a, "s_barrier")
    if BX == 3:
        after_reads = setflag
        I(a, "s_barrier")
    if TWICE:
        I(a, "s_mov_b32 s86, s68"); I(a, "s_mov_b32 s87, 0")
        a.label("p1_fold_again")
        I(a, "s_mov_b32 s68, s86")
    fold2.fold_lds_reads(a, 68, (st if fstamp == 1 else ((lambda i: st(4)) if fstamp == 2 else None)), nyounger=4)
    fold2.fold_compute(a, 69, 16, 40, st=st if fstamp == 1 else None, after_reads=after_reads)
    if TWICE:
        I(a, "s_add_u32 s87, s87, 1"); I(a, "s_cmp_eq_u32 s87, 1"); I(a, "s_cbranch_scc1 p1_fold_again")
    if fstamp:
        st(5); I(a, 's_waitcnt vmcnt(0)'); st(6)
    I(a, "s_waitcnt vmcnt(10)")
    I(a, "s_branch p1_folded")
    a.label("p1_zero")
    for nb in range(4):
        I(a, f"buffer_load_dwordx2 v[{184+2*nb}:{184+2*nb+1}], v8, s[32:35], s31 offen offset:{nb*32}")
    if BX in (1, 2): I(a, "s_barrier")
    if BX == 3: I(a, "s_barrier"); setflag()
    fold2.fold_zero(a, 69, 16)
    I(a, "s_waitcnt vmcnt(8)")
    I(a, "s_branch p1_folded")
    a.label("p1_nofold")
    for nb in range(4):
        I(a, f"buffer_load_dwordx2 v[{184+2*nb}:{184+2*nb+1}], v8, s[32:35], s31 offen offset:{nb*32}")
    if BX in (1, 2): I(a, "s_barrier")
    I(a, f"s_cmp_eq_u32 s{S_WAVE}, {3 if w3pf else 99}"); I(a, "s_cbranch_scc0 p1_nopf")
    load_ptr(a, 52, 8, 4); load_ptr(a, 64, 24, 4)
    I(a, "s_lshl_b32 s58, s2, 6"); I(a, "v_add_u32 v4, s58, v1")
    I(a, f"s_mov_b32 s59, {(1<<32)//9+1}"); I(a, "v_mul_hi_u32 v5, v4, s59"); I(a, "v_mul_u32_u24 v6, 9, v5"); I(a, "v_sub_u32 v6, v4, v6")
    I(a, "v_lshlrev_b32 v7, 12, v5"); I(a, "v_lshl_add_u32 v7, v6, 7, v7")
    I(a, "v_cmp_ge_u32 vcc, 1024, v5"); I(a, "v_mov_b32 v9, 0x7ffffff0"); I(a, "s_waitcnt lgkmcnt(0)"); I(a, "v_cndmask_b32 v7, v9, v7, vcc")
    srd(a, 12, 52, 2048*2048*2); srd(a, 16, 54, 2048*2048*2)
    I(a, "buffer_load_dword v25, v7, s[12:15], 0 offen"); I(a, "buffer_load_dword v25, v7, s[16:19], 0 offen")
    I(a, f"s_mov_b32 s59, {(1<<32)//5+1}"); I(a, "v_mul_hi_u32 v5, v4, s59"); I(a, "v_mul_u32_u24 v6, 5, v5"); I(a, "v_sub_u32 v6, v4, v6")
    I(a, "v_lshlrev_b32 v7, 11, v5"); I(a, "v_lshl_add_u32 v7, v6, 7, v7")
    I(a, "v_cmp_ge_u32 vcc, 512, v5"); I(a, "v_mov_b32 v9, 0x7ffffff0"); I(a, "s_nop 0"); I(a, "v_cndmask_b32 v7, v9, v7, vcc")
    srd(a, 12, 64, 1024*1024*2); srd(a, 16, 66, 1024*1024*2)
    I(a, "buffer_load_dword v25, v7, s[12:15], 0 offen"); I(a, "buffer_load_dword v25, v7, s[16:19], 0 offen")
    I(a, "s_waitcnt vmcnt(4)")
    I(a, "s_branch p1_folded")
    a.label("p1_nopf")
    I(a, "s_waitcnt vmcnt(0)")
    a.label("p1_folded")
    if fstamp:
        st(7); st0 = st; st = (lambda i: None)
    st(2)
    for nb in range(4):
        for j in range(4):
            src = 184 + 2*nb + j//2; d = 8 + 4*nb + j
            if j % 2 == 0: I(a, f"v_lshlrev_b32 v{d}, 16, v{src}")
            else: I(a, f"v_and_b32 v{d}, 0xffff0000, v{src}")
    setup16_noclobber(a, g)
    st(3)
    compute_loop16p(a, g, 8, hook_label="p1_hook", hook_cnt=g.nk, stamp="s_memtime s[78:79]" if (stamps and not fstamp) else None)
    st(5)
    I(a, f"s_mul_i32 s{S_TMP}, s{S_WAVE}, {g.wm*128}")
    I(a, "v_and_b32 v18, 15, v1"); I(a, "v_lshlrev_b32 v19, 7, v18"); I(a, f"v_add_u32 v19, s{S_TMP}, v19")
    I(a, "v_bfe_u32 v24, v1, 4, 1"); I(a, "v_lshl_add_u32 v19, v24, 3, v19")
    I(a, "v_and_b32 v18, 7, v18"); I(a, "v_lshrrev_b32 v24, 5, v1")
    for nb in range(4):
        I(a, f"v_add_u32 v25, {2*nb}, v24"); I(a, "v_xor_b32 v25, v25, v18"); I(a, f"v_lshl_add_u32 v{20+nb}, v25, 4, v19")
    k = 0
    for mb2 in range(4):
        for mb in (2*mb2, 2*mb2+1):
            for nb in range(4):
                cc = acc16(g, nb, mb); t = 8 + (k % 4) * 2; k += 1
                for r in range(4): I(a, f"v_max_f32 v{cc+r}, 0, v{cc+r}")
                for r in (0, 2): I(a, f"v_pk_mul_f32 v[{cc+r}:{cc+r+1}], v[{cc+r}:{cc+r+1}], v[{cc+r}:{cc+r+1}]")
                I(a, f"v_cvt_pk_bf16_f32 v{t}, v{cc}, v{cc+1}"); I(a, f"v_cvt_pk_bf16_f32 v{t+1}, v{cc+2}, v{cc+3}")
                I(a, f"ds_write_b64 v{20+nb}, v[{t}:{t+1}] offset:{mb*2048}")
        I(a, "s_waitcnt lgkmcnt(0)"); I(a, "s_barrier")
    st(6); st(7)
    if fused: I(a, "s_branch f_cp")
    elif fstamp: st0.dump(8, 0)
    else: st.dump(8, 0)
    a.label("p1_end")
    I(a, "s_endpgm")
    a.label("p1_hook")
    I(a, "s_cmp_gt_u32 s69, 527"); I(a, "s_cbranch_scc1 p1_c_mid")
    I(a, "s_waitcnt vmcnt(0)")
    I(a, "s_branch p1_c_mid")
    a.label("aw_entry")
    sa = StampsAt(a, astamp, 70)
    if astamp: sa(0)
    awg3.a_wg(a, stamps=sa if astamp else None, ysc=('sc0 sc1' if fused else os.environ.get('YSC', '')), fused=fused)
    return g

def setup16_noclobber(a, g):
    import math
    lw = int(math.log2(g.WM)); V_QA = gemm3.V_QA; V_PA = gemm3.V_PA
    I(a, f"s_and_b32 s{S_TMP}, s{S_WAVE}, {g.WM-1}"); I(a, f"s_lshr_b32 s{S_TMP2}, s{S_WAVE}, {lw}")
    I(a, "v_and_b32 v27, 15, v1"); I(a, f"s_mul_i32 s{S_DELTA}, s{S_TMP}, {g.wm*128}"); I(a, "v_lshlrev_b32 v27, 7, v27"); I(a, f"v_add_u32 v27, s{S_DELTA}, v27")
    I(a, "v_lshrrev_b32 v28, 4, v1"); I(a, "v_bfe_u32 v29, v1, 1, 3"); I(a, "v_xor_b32 v28, v28, v29")
    for ks in range(2):
        I(a, f"v_xor_b32 v30, {4*ks}, v28"); I(a, f"v_lshl_add_u32 v{V_QA+ks}, v30, 4, v27")
    I(a, "v_bfe_u32 v27, v1, 2, 2"); I(a, "v_lshrrev_b32 v28, 4, v1"); I(a, "v_lshl_add_u32 v29, v28, 3, v27")
    I(a, f"v_lshlrev_b32 v29, 8, v29"); I(a, f"v_add_u32 v29, {g.QB}, v29")
    I(a, "v_and_b32 v30, 1, v1"); I(a, "v_lshl_add_u32 v29, v30, 3, v29")
    I(a, "v_bfe_u32 v30, v1, 1, 1")
    I(a, f"s_mul_i32 s{S_DELTA}, s{S_TMP2}, {g.wn//8}"); I(a, f"v_add_u32 v30, s{S_DELTA}, v30")
    I(a, "v_lshlrev_b32 v27, 2, v27"); I(a, "v_and_b32 v28, 1, v28"); I(a, "v_lshlrev_b32 v28, 1, v28"); I(a, "v_xor_b32 v27, v27, v28")
    NB, MB = nblk16(g)
    for nb in range(NB):
        I(a, f"v_add_u32 v31, {2*nb}, v30"); I(a, "v_xor_b32 v31, v31, v27"); I(a, f"v_lshl_add_u32 v{V_PA+nb}, v31, 4, v29")
    I(a, f"s_mov_b32 s{S_DN}, {(-(g.NS-1)*g.STAGE) & 0xffffffff}"); I(a, f"s_mov_b32 s{S_DP}, {g.STAGE}")
```

```python
from asmgen import *
from gemm2 import *
import gemm3
from gemm3 import acc16, loader_voffsets16, compute_setup16, compute_loop16
from p1v2 import load_ptr
from p2 import StampsAt, add64, Y_OFF, YP, YARR, G_OFF, FLAG_OFF
from p2b import y_loads, y_loads_pre, y_loads_i, y_precombine, T1
XS_OFF = 40 << 20

import os
YSPLIT = int(os.environ.get("YSPLIT", "9"))
WFLAG = int(os.environ.get("WFLAG", "0"))
DIST = int(os.environ.get("DIST", "1"))
PFP = int(os.environ.get("PFP", "0")); PFD = int(os.environ.get("PFD", "6"))
HF_OFF = 35 << 20
def k_k2(a, name, stamps=False, NS=4, trace=False, fused=None):
    g = G(BM=128, BN=128, WM=2, WN=2, NS=NS, ldq=7168, ldp=2048, nk=28, pref="p2")
    st = StampsAt(a, stamps, 70)
    def common():
        load_ptr(a, 6, 64); load_ptr(a, 20, 72); load_ptr(a, 22, 88); load_ptr(a, 4, 104)
        if fused: load_ptr(a, 62, 96)
        else: lane_wave(a)
        I(a, "s_lshr_b32 s27, s2, 3")
        I(a, "s_bfe_u32 s67, s2, 0x10001")
        I(a, "s_bfe_u32 s28, s2, 0x10002"); I(a, "s_lshl_b32 s28, s28, 3"); I(a, "s_lshr_b32 s30, s27, 2"); I(a, "s_add_u32 s28, s28, s30")
        I(a, "s_and_b32 s29, s2, 1"); I(a, "s_lshl_b32 s29, s29, 2"); I(a, "s_and_b32 s30, s27, 3"); I(a, "s_add_u32 s29, s29, s30")
        I(a, f"s_mul_i32 s{S_QOFF}, s28, {128*7168}")
        I(a, f"s_mul_i32 s30, s67, {1792*2}"); I(a, f"s_add_u32 s{S_QOFF}, s{S_QOFF}, s30")
        I(a, f"s_mul_i32 s{S_POFF}, s29, {128*2}")
        I(a, f"s_mul_i32 s30, s67, {1792*2048}"); I(a, f"s_add_u32 s{S_POFF}, s{S_POFF}, s30")
        I(a, f"s_and_b32 s31, s{S_WAVE}, 1"); I(a, "s_lshl_b32 s31, s31, 6"); I(a, "s_lshl_b32 s30, s28, 7"); I(a, "s_add_u32 s30, s30, s31")
        I(a, "s_lshl_b32 s31, s67, 5"); I(a, "s_add_u32 s30, s30, s31")
        I(a, f"s_bfe_u32 s31, s{S_WAVE}, 0x10001"); I(a, "s_lshl_b32 s31, s31, 7"); I(a, "s_lshl_b32 s66, s29, 8"); I(a, "s_add_u32 s31, s31, s66")
    PX = 2
    PER = g.PER
    if not fused:
        kernel_begin(a, name)
        st(0)
        I(a, "s_cmp_ge_u32 s2, 256"); I(a, "s_cbranch_scc1 p2_end")
        common()
        I(a, f"s_cmp_ge_u32 s{S_WAVE}, 4"); I(a, "s_cbranch_scc0 p2_compute")
        I(a, f"s_sub_u32 s{S_WAVE}, s{S_WAVE}, 4")
    else:
        a.label("f_ld")
        st(1)
        I(a, "s_barrier")
        common()
    loader_voffsets16(a, g, s_perm=67, nblk=2)
    I(a, "s_waitcnt lgkmcnt(0)")
    if not fused: st(1)
    srd(a, S_PSRD, 6, 3584*1024*2); srd(a, S_QSRD, 4, 2048*3584*2)
    if fused:
        FS = 52
        I(a, "s_mov_b32 s6, s4"); I(a, "s_mov_b32 s7, s5"); add64(a, 6, HF_OFF); srd(a, FS, 6, 128*1024)
        laba = a.newlabel("fa")
        I(a, "s_cmp_eq_u32 s35, 1"); I(a, f"s_cbranch_scc1 {laba}")
        I(a, "s_waitcnt vmcnt(0)")
        a.label(laba)
        st(2)
        I(a, "s_barrier")
        labp = a.newlabel("fp"); labq = a.newlabel("fq"); labl = a.newlabel("fl")
        I(a, f"s_cmp_eq_u32 s{S_WAVE}, 3"); I(a, f"s_cbranch_scc0 {labp}"); I(a, "s_cmp_eq_u32 s35, 1"); I(a, f"s_cbranch_scc1 {labp}")
        I(a, "v_mov_b32 v29, s34")
        I(a, f"buffer_store_dword v29, v28, s[{FS}:{FS+3}], 0 offen sc1")
        a.label(labp)
        for s_ in range(NS):
            I(a, f"s_add_u32 m0, s{S_MP}, {s_*g.STAGE}"); I(a, f"s_add_u32 s58, s{S_POFF}, {s_*64*g.ldp}")
            for i in range(g.np_):
                I(a, f"buffer_load_dwordx4 v{VL+g.nq+i}, s[{S_PSRD}:{S_PSRD+3}], s58 offen offset:{(i&3)*1024} lds")
        I(a, f"s_cmp_eq_u32 s{S_WAVE}, 3"); I(a, f"s_cbranch_scc0 {labq}")
        I(a, "s_lshr_b32 s58, s28, 1"); I(a, "s_lshl_b32 s58, s58, 7"); I(a, "s_mul_i32 s59, s67, 56"); I(a, "s_add_u32 s58, s58, s59")
        I(a, "v_lshlrev_b32 v30, 2, v1"); I(a, "v_add_u32 v30, s58, v30"); I(a, "v_mov_b32 v25, 0x7ffffff0"); I(a, "v_cmp_gt_u32 vcc, 14, v1"); I(a, "s_nop 1"); I(a, "v_cndmask_b32 v30, v25, v30, vcc")
        I(a, "s_mov_b32 s59, 0x8000")
        a.label(labl)
        I(a, f"buffer_load_dword v31, v30, s[{FS}:{FS+3}], 0 offen sc1"); I(a, "s_waitcnt vmcnt(0)")
        I(a, "v_cmp_ne_u32 vcc, s34, v31"); I(a, "s_nop 4")
        I(a, "s_and_b32 s58, vcc_lo, 0x3fff"); I(a, f"s_cbranch_scc0 {labq}")
        I(a, "s_sub_u32 s59, s59, 1"); I(a, f"s_cbranch_scc1 {labq}")
        I(a, "s_sleep 2"); I(a, f"s_branch {labl}")
        a.label(labq)
        st(3)
        I(a, "s_barrier")
        for s_ in range(NS):
            I(a, f"s_add_u32 m0, s{S_MQ}, {s_*g.STAGE}"); I(a, f"s_add_u32 s58, s{S_QOFF}, {s_*128}")
            for i in range(g.nq):
                I(a, f"buffer_load_dwordx4 v{VL+i}, s[{S_QSRD}:{S_QSRD+3}], s58 offen offset:{(i&3)*1024} lds")
        I(a, f"s_add_u32 s{S_QOFF}, s{S_QOFF}, {NS*128}"); I(a, f"s_add_u32 s{S_POFF}, s{S_POFF}, {NS*64*g.ldp}")
        I(a, f"s_waitcnt vmcnt({(NS-1)*g.nq})")
        st(4)
        I(a, "s_barrier")
    else:
        st(2)
    if not fused:
        stage_issue(a, g)
        st(3)
        stage_issue(a, g)
        I(a, f"s_waitcnt vmcnt({PER})")
        st(4)
        I(a, "s_barrier")
        for s in range(2, NS): stage_issue(a, g)
    srd(a, 16, 22, 2048*1024*2)
    I(a, "s_mov_b32 s6, s4"); I(a, "s_mov_b32 s7, s5"); add64(a, 6, Y_OFF); srd(a, 24, 6, 4*YARR)
    I(a, "s_mov_b32 s6, s4"); I(a, "s_mov_b32 s7, s5"); add64(a, 6, G_OFF); srd(a, 36, 6, 2048*8)
    I(a, f"s_mov_b32 s63, {YARR}"); I(a, f"s_mov_b32 s64, {2*YARR}"); I(a, f"s_mov_b32 s65, {3*YARR}")
    X = 0
    if trace:
        X = 1
        I(a, "s_add_u32 s60, s4, 0x6400000"); I(a, "s_addc_u32 s61, s5, 0"); srd(a, 56, 60, 1<<22)
        I(a, "s_lshl_b32 s62, s2, 12"); I(a, f"s_lshl_b32 s68, s{S_WAVE}, 10"); I(a, "s_add_u32 s68, s68, s62"); I(a, "v_mov_b32 v30, 0")
    def tr():
        if not trace: return
        I(a, "s_memrealtime s[90:91]"); I(a, "s_memtime s[92:93]"); I(a, "s_waitcnt lgkmcnt(0)")
        I(a, "v_mov_b32 v28, s90"); I(a, "v_mov_b32 v29, s92")
        I(a, "buffer_store_dwordx2 v[28:29], v30, s[56:59], s68 offen"); I(a, "s_add_u32 s68, s68, 8")
    if PFP and not trace:
        P = PFP
        I(a, f"s_lshl_b32 s58, s{S_WAVE}, 6"); I(a, "v_add_u32 v20, s58, v1")
        I(a, "s_bfe_u32 s58, s2, 0x20003"); I(a, "s_lshl_b32 s58, s58, 5")
        I(a, "v_and_b32 v21, 31, v20"); I(a, "v_add_u32 v21, s58, v21"); I(a, f"v_mul_u32_u24 v21, {g.ldq}, v21")
        I(a, "v_lshrrev_b32 v22, 5, v20"); I(a, "v_lshl_add_u32 v21, v22, 7, v21")
        I(a, f"v_cmp_gt_u32 vcc, {32*P}, v20"); I(a, "v_mov_b32 v23, 0x7ffffff0"); I(a, "s_nop 0"); I(a, "v_cndmask_b32 v21, v23, v21, vcc")
        I(a, "v_sub_u32 v24, 255, v20")
        I(a, "s_bfe_u32 s58, s2, 0x30005"); I(a, "s_lshl_b32 s58, s58, 3")
        I(a, "v_and_b32 v25, 7, v24"); I(a, "v_add_u32 v25, s58, v25")
        I(a, "v_lshrrev_b32 v26, 4, v24"); I(a, "v_lshl_add_u32 v25, v26, 6, v25")
        I(a, "v_lshlrev_b32 v25, 11, v25"); I(a, "v_bfe_u32 v26, v24, 3, 1"); I(a, "v_lshl_add_u32 v25, v26, 7, v25")
        I(a, f"v_cmp_gt_u32 vcc, {16*P}, v24"); I(a, "s_nop 1"); I(a, "v_cndmask_b32 v25, v23, v25, vcc")
        assert 48*P <= 256
        nst = g.nk - NS
        npf = 2
        def cntpf(i):
            return npf * sum(1 for j in (i-3, i-2, i-1) if j >= 0 and j % P == 0 and active(j))
        def active(j): return j + NS + PFD0 < g.nk
        PFD0 = PFD - NS if PFD >= NS else 0
        for i in range(nst):
            I(a, f"s_waitcnt vmcnt({(NS-2)*PER + cntpf(i)})"); I(a, "s_barrier"); stage_issue(a, g)
            if i % P == 0 and active(i):
                I(a, f"s_add_u32 s58, s{S_QOFF}, {PFD0*128}"); I(a, f"s_add_u32 s59, s{S_POFF}, {PFD0*64*g.ldp}")
                I(a, f"buffer_load_dword v27, v21, s[{S_QSRD}:{S_QSRD+3}], s58 offen")
                I(a, f"buffer_load_dword v27, v25, s[{S_PSRD}:{S_PSRD+3}], s59 offen")
        PFX = sum(npf for j in (nst-3, nst-2, nst-1) if j % P == 0 and active(j))
        assert PFX == 0 or True
    elif fused:
        assert NS == 4 and g.nq == 4 and PER == 8
        I(a, "s_waitcnt vmcnt(8)"); I(a, "s_barrier"); stage_issue(a, g)
        I(a, "s_waitcnt vmcnt(12)"); I(a, "s_barrier"); stage_issue(a, g)
        I(a, f"s_mov_b32 s{S_CNT}, 18")
        a.label("p2_ld_loop")
        I(a, "s_waitcnt vmcnt(16)")
        I(a, f"s_cmp_eq_u32 s{S_CNT}, 14"); I(a, "s_cbranch_scc1 p2_ld_ypub")
        a.label("p2_ld_ypub_r")
        I(a, "s_barrier"); stage_issue(a, g)
        a.label("p2_ld_ypub_r2")
        I(a, f"s_sub_u32 s{S_CNT}, s{S_CNT}, 1"); I(a, f"s_cmp_lg_u32 s{S_CNT}, 0"); I(a, "s_cbranch_scc1 p2_ld_loop")
        ypub = Asm(); ypub.nlabel = a.nlabel + 1000
        ypub.label("p2_ld_ypub")
        I(ypub, "s_cmp_eq_u32 s35, 1"); I(ypub, "s_cbranch_scc0 p2_ld_ypub_r")
        I(ypub, "s_waitcnt vmcnt(0)"); I(ypub, "s_barrier")
        I(ypub, f"s_cmp_eq_u32 s{S_WAVE}, 3"); I(ypub, "s_cbranch_scc0 p2_ld_ypub_n")
        I(ypub, "v_mov_b32 v29, s34")
        I(ypub, f"buffer_store_dword v29, v28, s[{FS}:{FS+3}], 0 offen sc1")
        ypub.label("p2_ld_ypub_n")
        stage_issue(ypub, g)
        I(ypub, "s_branch p2_ld_ypub_r2")
        fused["ypub"] = ypub.lines
        I(a, "s_and_b32 s58, s2, 7"); I(a, "s_lshl_b32 s58, s58, 7"); I(a, "s_add_u32 s58, s58, 65536")
        I(a, "v_lshlrev_b32 v30, 2, v1"); I(a, "v_add_u32 v30, s58, v30"); I(a, "v_mov_b32 v25, 0x7ffffff0")
        I(a, f"s_cmp_eq_u32 s{S_WAVE}, 3"); I(a, "s_cselect_b32 s58, 32, 0"); I(a, "v_cmp_gt_u32 vcc, s58, v1"); I(a, "s_nop 1"); I(a, "v_cndmask_b32 v30, v25, v30, vcc")
        I(a, "s_waitcnt vmcnt(16)"); I(a, "s_barrier"); stage_issue(a, g)
        I(a, f"buffer_load_dword v31, v30, s[{FS}:{FS+3}], 0 offen sc1")
        I(a, "s_waitcnt vmcnt(17)"); I(a, "s_barrier"); stage_issue(a, g)
        I(a, "s_waitcnt vmcnt(17)"); I(a, "s_barrier"); stage_issue(a, g)
        I(a, "s_waitcnt vmcnt(16)")
        labq = a.newlabel("yq"); labl = a.newlabel("yl")
        I(a, f"s_cmp_eq_u32 s{S_WAVE}, 3"); I(a, f"s_cbranch_scc0 {labq}")
        I(a, "s_mov_b32 s59, 0x8000")
        a.label(labl)
        I(a, "v_cmp_ne_u32 vcc, s34, v31"); I(a, "s_nop 4")
        I(a, "s_cmp_eq_u32 vcc_lo, 0"); I(a, f"s_cbranch_scc1 {labq}")
        I(a, "s_sub_u32 s59, s59, 1"); I(a, f"s_cbranch_scc1 {labq}")
        I(a, f"buffer_load_dword v31, v30, s[{FS}:{FS+3}], 0 offen sc1"); I(a, "s_waitcnt vmcnt(0)")
        I(a, f"s_branch {labl}")
        a.label(labq)
        I(a, "s_barrier"); stage_issue(a, g)
    else:
        PFX = 0
        I(a, f"s_mov_b32 s{S_CNT}, {g.nk-NS}")
        if trace:
            I(a, f"s_waitcnt vmcnt({(NS-2)*PER})"); I(a, "s_barrier"); tr(); stage_issue(a, g)
            I(a, f"s_waitcnt vmcnt({(NS-3)*PER + PER+1})"); I(a, "s_barrier"); tr(); stage_issue(a, g)
            I(a, f"s_mov_b32 s{S_CNT}, {g.nk-NS-2}")
        a.label("p2_ld_loop")
        I(a, f"s_waitcnt vmcnt({(NS-2)*(PER+X)})"); I(a, "s_barrier"); tr(); stage_issue(a, g)
        I(a, f"s_sub_u32 s{S_CNT}, s{S_CNT}, 1"); I(a, f"s_cmp_lg_u32 s{S_CNT}, 0"); I(a, "s_cbranch_scc1 p2_ld_loop")
    E = 164
    def extra_rows():
        if not DIST: return
        lab = a.newlabel("r4")
        I(a, "s_cmp_eq_u32 s30, 1024"); I(a, f"s_cbranch_scc0 {lab}")
        I(a, "v_cmp_gt_u32 vcc, 8, v1"); I(a, "v_mov_b32 v45, 0x7ff00000"); I(a, "s_nop 0"); I(a, "v_cndmask_b32 v44, v45, v43, vcc")
        for z in range(1, 4):
            r = E + 8*(z-1)
            I(a, f"s_mov_b32 s58, {(1024+z)*YP}"); I(a, f"s_add_u32 s59, s58, s63")
            I(a, f"buffer_load_dwordx3 v[{r}:{r+2}], v44, s[24:27], s58 offen")
            I(a, f"buffer_load_dwordx2 v[{r+4}:{r+5}], v44, s[24:27], s59 offen")
        a.label(lab)
    if YSPLIT == 9:
        YM = 16384; YX = 49152
        y_loads_pre(a, 30, 31, "p2")
        I(a, "s_lshl_b32 s60, s29, 7"); I(a, "s_sub_u32 s61, 896, s60"); I(a, "s_cmp_eq_u32 s62, 1"); I(a, "s_cselect_b32 s60, s61, s60")
        I(a, f"s_lshr_b32 s58, s{S_WAVE}, 1"); I(a, "s_lshl_b32 s59, s58, 4")
        for q in range(2):
            I(a, f"v_lshrrev_b32 v44, 3, v1"); I(a, f"v_add_u32 v44, s30, v44"); I(a, f"v_add_u32 v44, s59, v44"); I(a, f"v_add_u32 v44, {8*q}, v44")
            I(a, "v_sub_u32 v45, 2048, v44"); I(a, "v_min_u32 v45, v44, v45"); I(a, f"v_mul_u32_u24 v45, {YP}, v45")
            I(a, "v_and_b32 v44, 7, v1"); I(a, f"v_lshl_add_u32 v{20+q}, v44, 4, v45"); I(a, f"v_add_u32 v{20+q}, s60, v{20+q}")
        I(a, f"s_and_b32 s61, s{S_WAVE}, 1"); I(a, "s_lshl_b32 s61, s61, 12"); I(a, "s_lshl_b32 s59, s59, 7"); I(a, "s_add_u32 s61, s61, s59"); I(a, f"s_add_u32 s61, s61, {YM}")
        def ydma(arr):
            so = ["0", "s63", "s64", "s65"][arr]
            for q in range(2):
                I(a, f"s_add_u32 m0, s61, {arr*8192 + q*1024}"); I(a, "s_nop 0")
                I(a, f"buffer_load_dwordx4 v{20+q}, s[24:27], {so} offen lds")
        I(a, "s_lshl_b32 s59, s28, 7"); I(a, "s_lshl_b32 s58, s67, 5"); I(a, "s_add_u32 s59, s59, s58")
        I(a, "v_lshrrev_b32 v44, 5, v1"); I(a, "v_lshlrev_b32 v44, 6, v44"); I(a, "v_and_b32 v45, 31, v1"); I(a, "v_add_u32 v44, v44, v45"); I(a, "v_add_u32 v44, s59, v44")
        I(a, "v_sub_u32 v45, 2048, v44"); I(a, "v_min_u32 v45, v44, v45"); I(a, f"v_mul_u32_u24 v22, {YP}, v45"); I(a, "v_add_u32 v22, s60, v22"); I(a, "v_add_u32 v22, 128, v22")
        ny = 0
        for j, t in enumerate(range(g.nk - NS, g.nk)):
            rem = max(min(t + NS - 1, g.nk - 1) - (t + 1), 0)
            if t + 1 <= g.nk - 1: I(a, f"s_waitcnt vmcnt({rem*(PER+X) + ny})")
            else: I(a, "s_waitcnt vmcnt(4)")
            I(a, "s_barrier")
            if j == 0:
                ydma(0); ydma(1); ny += 4
            if j == 1:
                ydma(2); ydma(3); ny += 4
                lab = a.newlabel("yx"); labe = a.newlabel("yxe")
                I(a, "s_cmp_eq_u32 s62, 1"); I(a, f"s_cbranch_scc0 {lab}"); I(a, f"s_cmp_lt_u32 s{S_WAVE}, 2"); I(a, f"s_cbranch_scc0 {lab}")
                I(a, f"s_lshl_b32 s58, s{S_WAVE}, 10"); I(a, f"s_add_u32 m0, s58, {YX}"); I(a, f"s_mul_i32 s58, s{S_WAVE}, {2*YARR}")
                I(a, f"buffer_load_dwordx4 v22, s[24:27], s58 offen lds")
                I(a, f"s_branch {labe}")
                a.label(lab)
                I(a, "v_mov_b32 v23, 0x7ffffff0"); I(a, "buffer_load_dword v24, v23, s[24:27], 0 offen")
                a.label(labe)
                ny += 1
            if j == 2:
                for i in range(4):
                    I(a, f"v_add_u32 v44, {8*i}, v42"); I(a, f"v_lshlrev_b32 v44, 3, v44")
                    I(a, f"buffer_load_dwordx2 v[{32+i*2}:{32+i*2+1}], v44, s[36:39], 0 offen")
                ny += 4
        extra_rows()
        I(a, f"s_and_b32 s61, s{S_WAVE}, 1"); I(a, "s_lshl_b32 s58, s61, 12"); I(a, f"s_add_u32 s58, s58, {YM}")
        I(a, "v_lshrrev_b32 v44, 3, v1"); I(a, "v_lshlrev_b32 v45, 7, v44"); I(a, "v_add_u32 v45, s58, v45")
        I(a, "v_subrev_u32 v46, s60, v43")
        I(a, "v_add_u32 v20, v45, v46")
        I(a, "s_lshl_b32 s58, s61, 9"); I(a, f"s_add_u32 s58, s58, {YX}")
        I(a, "v_lshlrev_b32 v47, 4, v44"); I(a, "v_add_u32 v47, s58, v47")
        I(a, "v_cmp_eq_u32 vcc, 120, v46"); I(a, "v_add_u32 v21, 8, v20")
        labf = a.newlabel("yf"); labd = a.newlabel("yd")
        I(a, "s_cmp_eq_u32 s62, 1"); I(a, f"s_cbranch_scc0 {labf}")
        for i in range(4):
            b = 64 + i*16
            I(a, f"v_add_u32 v48, {i*1024}, v21"); I(a, f"v_add_u32 v49, {i*128}, v47"); I(a, "v_cndmask_b32 v22, v48, v49, vcc")
            I(a, f"v_add_u32 v48, {i*1024 + 2*8192}, v21"); I(a, f"v_add_u32 v49, {i*128 + 1024}, v47"); I(a, "v_cndmask_b32 v23, v48, v49, vcc")
            I(a, f"ds_read_b64 v[{b}:{b+1}], v20 offset:{i*1024}"); I(a, f"ds_read_b32 v{b+2}, v22")
            I(a, f"ds_read_b64 v[{b+4}:{b+5}], v20 offset:{i*1024 + 8192}")
            I(a, f"ds_read_b64 v[{b+8}:{b+9}], v20 offset:{i*1024 + 2*8192}"); I(a, f"ds_read_b32 v{b+10}, v23")
            I(a, f"ds_read_b64 v[{b+12}:{b+13}], v20 offset:{i*1024 + 3*8192}")
            if i % 2 == 1: I(a, "s_waitcnt lgkmcnt(0)")
        I(a, f"s_branch {labd}")
        a.label(labf)
        for i in range(4):
            b = 64 + i*16
            for z in range(4):
                I(a, f"ds_read_b64 v[{b+4*z}:{b+4*z+1}], v20 offset:{i*1024 + z*8192}")
            if i % 2 == 1: I(a, "s_waitcnt lgkmcnt(0)")
        a.label(labd)
    elif YSPLIT == 0:
        y_loads(a, 30, 31, "p2")
        extra_rows()
        for t in range(g.nk - NS, g.nk):
            rem = max(min(t + NS - 1, g.nk - 1) - (t + 1), 0)
            if t + 1 <= g.nk - 1: I(a, f"s_waitcnt vmcnt({rem*(PER+X) + 20})")
            I(a, "s_barrier")
    else:
        y_loads_pre(a, 30, 31, "p2")
        ny = 0
        sched = {1: [[0], [1], [2], [3]], 2: [[], [0, 1], [2, 3], []], 3: [[], [], [], [0, 1, 2, 3]], 4: [[], [0], [1], [2, 3]]}[YSPLIT]
        for j, t in enumerate(range(g.nk - NS, g.nk)):
            rem = max(min(t + NS - 1, g.nk - 1) - (t + 1), 0)
            if t + 1 <= g.nk - 1: I(a, f"s_waitcnt vmcnt({rem*(PER+X) + ny})")
            I(a, "s_barrier")
            for i in sched[j]:
                y_loads_i(a, i); ny += 5
        extra_rows()
    st(5)
    I(a, "s_waitcnt vmcnt(0)")
    if DIST:
        lab = a.newlabel("r5")
        I(a, "s_cmp_eq_u32 s30, 1024"); I(a, f"s_cbranch_scc0 {lab}")
        for off in (0, 1, 2, 4, 5):
            d = 64 + off
            I(a, f"v_lshlrev_b32 v46, 16, v{d}"); I(a, f"v_and_b32 v47, 0xffff0000, v{d}")
            for z in range(1, 4):
                r = E + 8*(z-1) + off
                I(a, f"v_lshlrev_b32 v48, 16, v{r}"); I(a, f"v_and_b32 v49, 0xffff0000, v{r}")
                I(a, "v_pk_add_f32 v[46:47], v[46:47], v[48:49]")
            I(a, f"v_cvt_pk_bf16_f32 v{d}, v46, v47")
        a.label(lab)
    y_precombine(a)
    W = 50
    I(a, f"s_lshl_b32 s66, s{S_WAVE}, 12")
    I(a, f"v_lshrrev_b32 v{W}, 3, v1"); I(a, f"v_and_b32 v{W+2}, 7, v1"); I(a, f"v_xor_b32 v{W+2}, v{W+2}, v{W}")
    I(a, f"v_lshlrev_b32 v{W+3}, 7, v{W}"); I(a, f"v_lshl_add_u32 v{W+3}, v{W+2}, 4, v{W+3}"); I(a, f"v_add_u32 v{W+12}, s66, v{W+3}")
    I(a, f"v_add_u32 v{W}, s30, v{W}"); I(a, f"v_lshlrev_b32 v{W}, 11, v{W}"); I(a, f"v_and_b32 v{W+2}, 7, v1")
    I(a, f"v_lshl_add_u32 v{W}, v{W+2}, 4, v{W}"); I(a, f"v_add_u32 v{W+13}, s31, v{W}")
    st(6)
    if not WFLAG: I(a, "s_barrier"); I(a, "s_barrier")
    I(a, "s_barrier")
    for i in range(4):
        I(a, f"ds_read_b128 v[{64+4*i}:{64+4*i+3}], v{W+12} offset:{i*1024}")
    for i in range(4):
        I(a, f"s_waitcnt lgkmcnt({3-i})")
        og = 33 + 2*i
        I(a, f"v_mov_b32 v46, v{og}"); I(a, f"v_mov_b32 v47, v{og}")
        for p in range(4):
            bb = 64 + 4*i + p; d = T1 + i*8 + p*2
            I(a, f"v_lshlrev_b32 v48, 16, v{bb}"); I(a, f"v_and_b32 v49, 0xffff0000, v{bb}")
            I(a, f"v_pk_fma_f32 v[{d}:{d+1}], v[48:49], v[46:47], v[{d}:{d+1}]")
            I(a, f"v_cvt_pk_bf16_f32 v{bb}, v{d}, v{d+1}")
        I(a, f"s_mov_b32 s{S_TMP2}, {i*8*2048}")
        I(a, f"buffer_store_dwordx4 v[{64+4*i}:{64+4*i+3}], v{W+13}, s[16:19], s{S_TMP2} offen {os.environ.get('OSC', 'sc0 sc1')}")
    if stamps: I(a, "s_waitcnt vmcnt(0)")
    st(7); st.dump(8, 1)
    I(a, "s_endpgm")
    if fused: a.lines += fused["ypub"]
    if fused:
        a.label("f_cp")
        st(1)
        I(a, "s_barrier")
        common()
    else:
        a.label("p2_compute")
    compute_setup16(a, g)
    for nb in range(4):
        for mb in (2, 3):
            for r in range(4): I(a, f"v_mov_b32 v{acc16(g,nb,mb)+r}, 0")
    I(a, "s_waitcnt lgkmcnt(0)")
    if not fused: st(1)
    if fused:
        srd(a, 84 if not stamps else 88, 62, 256)
        NS_ = 84 if not stamps else 88
        I(a, "v_mov_b32 v27, 0"); I(a, f"buffer_load_dword v26, v27, s[{NS_}:{NS_+3}], 0 offen")
    srd(a, 32, 20, 2048)
    I(a, "v_lshrrev_b32 v8, 4, v1"); I(a, "v_lshlrev_b32 v8, 3, v8")
    for nb in range(4):
        I(a, f"buffer_load_dwordx2 v[{10+2*nb}:{10+2*nb+1}], v8, s[32:35], s31 offen offset:{nb*32}")
    I(a, "s_mov_b32 s6, s4"); I(a, "s_mov_b32 s7, s5"); add64(a, 6, XS_OFF); srd(a, 56, 6, 256*16384)
    I(a, "s_mov_b32 s6, s4"); I(a, "s_mov_b32 s7, s5"); add64(a, 6, FLAG_OFF); srd(a, 8, 6, 1024*128)
    I(a, f"s_lshl_b32 s66, s{S_WAVE}, 12")
    I(a, "v_and_b32 v18, 15, v1"); I(a, "v_lshlrev_b32 v19, 7, v18"); I(a, f"v_add_u32 v19, s66, v19")
    I(a, "v_bfe_u32 v24, v1, 4, 1"); I(a, "v_lshl_add_u32 v19, v24, 3, v19")
    I(a, "v_and_b32 v18, 7, v18"); I(a, "v_lshrrev_b32 v24, 5, v1")
    for nb in range(4):
        I(a, f"v_add_u32 v25, {2*nb}, v24"); I(a, "v_xor_b32 v25, v25, v18"); I(a, f"v_lshl_add_u32 v{20+nb}, v25, 4, v19")
    I(a, "s_waitcnt vmcnt(0)")
    if fused:
        lp = a.newlabel("np"); lx = a.newlabel("npx")
        I(a, "s_mov_b32 s69, 0x8000")
        a.label(lp)
        I(a, "v_readfirstlane_b32 s68, v26")
        I(a, "s_sub_u32 s69, s69, 1"); I(a, f"s_cbranch_scc1 {lx}")
        I(a, "s_cmp_lg_u32 s68, 0"); I(a, f"s_cbranch_scc1 {lx}")
        I(a, f"buffer_load_dword v26, v27, s[{NS_}:{NS_+3}], 0 offen sc1"); I(a, "s_waitcnt vmcnt(0)")
        I(a, f"s_branch {lp}")
        a.label(lx)
    for nb in range(4):
        for j in range(4):
            src = 10 + 2*nb + j//2
            for mb in (0, 1):
                d = acc16(g, nb, mb) + j
                if j % 2 == 0: I(a, f"v_lshlrev_b32 v{d}, 16, v{src}")
                else: I(a, f"v_and_b32 v{d}, 0xffff0000, v{src}")
    if fused:
        st(2)
        I(a, "s_barrier")
        I(a, "s_barrier")
        st(3)
    compute_loop16(a, g, stamp=(None if fused else f"s_memtime s[78:79]") if stamps else None)
    st(5)
    I(a, "s_nop 7"); I(a, "s_nop 7")
    I(a, "v_lshlrev_b32 v8, 4, v1")
    I(a, f"s_xor_b32 s61, s2, {PX}")
    I(a, f"s_lshl_b32 s60, s61, 14"); I(a, f"s_lshl_b32 s62, s{S_WAVE}, 12"); I(a, "s_add_u32 s60, s60, s62")
    for nb in range(4):
        t = 32 + nb*4
        for z, mb in enumerate((2, 3)):
            c = acc16(g, nb, mb)
            I(a, f"v_cvt_pk_bf16_f32 v{t+2*z}, v{c}, v{c+1}"); I(a, f"v_cvt_pk_bf16_f32 v{t+2*z+1}, v{c+2}, v{c+3}")
        I(a, f"buffer_store_dwordx4 v[{t}:{t+3}], v8, s[56:59], s60 offen offset:{nb*1024} sc1")
    if not fused: st(2)
    I(a, "s_waitcnt vmcnt(0)")
    if not fused: st(3)
    if WFLAG:
        I(a, f"s_lshl_b32 s62, s2, 2"); I(a, f"s_add_u32 s62, s62, s{S_WAVE}"); I(a, "s_lshl_b32 s62, s62, 7"); I(a, "v_mov_b32 v12, s62"); I(a, "v_mov_b32 v13, 1")
        I(a, f"buffer_store_dword v13, v12, s[8:11], 0 offen sc1")
        I(a, f"s_lshl_b32 s62, s61, 2"); I(a, f"s_add_u32 s62, s62, s{S_WAVE}"); I(a, "s_lshl_b32 s62, s62, 7"); I(a, "v_mov_b32 v12, s62")
        I(a, "s_mov_b32 s69, 0x20000")
        a.label("p2_poll")
        I(a, f"buffer_load_dword v13, v12, s[8:11], 0 offen sc1")
        I(a, "s_waitcnt vmcnt(0)")
        I(a, "v_readfirstlane_b32 s62, v13")
        I(a, "s_sub_u32 s69, s69, 1"); I(a, "s_cbranch_scc1 p2_waitb")
        I(a, "s_cmp_eq_u32 s62, 1"); I(a, "s_cbranch_scc0 p2_poll")
        a.label("p2_waitb")
    else:
        I(a, "s_barrier")
        I(a, f"s_cmp_eq_u32 s{S_WAVE}, 0"); I(a, "s_cbranch_scc0 p2_waitb")
        I(a, "s_lshl_b32 s62, s2, 7"); I(a, "v_mov_b32 v12, s62"); I(a, "v_mov_b32 v13, s68" if fused else "v_mov_b32 v13, 1")
        I(a, f"buffer_store_dword v13, v12, s[8:11], 0 offen sc1")
        I(a, "s_lshl_b32 s62, s61, 7"); I(a, "v_mov_b32 v12, s62")
        I(a, "s_mov_b32 s69, 0x20000")
        a.label("p2_poll")
        I(a, f"buffer_load_dword v13, v12, s[8:11], 0 offen sc1")
        I(a, "s_waitcnt vmcnt(0)")
        I(a, "v_readfirstlane_b32 s62, v13")
        I(a, "s_sub_u32 s69, s69, 1"); I(a, "s_cbranch_scc1 p2_waitb")
        I(a, "s_cmp_eq_u32 s62, s68" if fused else "s_cmp_eq_u32 s62, 1"); I(a, "s_cbranch_scc0 p2_poll")
        a.label("p2_waitb")
        I(a, "s_barrier")
    st(6)
    I(a, f"s_lshl_b32 s60, s2, 14"); I(a, f"s_lshl_b32 s62, s{S_WAVE}, 12"); I(a, "s_add_u32 s60, s60, s62")
    for nb in range(4):
        t = 32 + nb*4
        I(a, f"buffer_load_dwordx4 v[{t}:{t+3}], v8, s[56:59], s60 offen offset:{nb*1024} sc1")
    for nb in range(4):
        t = 32 + nb*4
        I(a, f"s_waitcnt vmcnt({3-nb})")
        for z, mb in enumerate((0, 1)):
            c = acc16(g, nb, mb)
            for hh in range(2):
                I(a, f"v_lshlrev_b32 v10, 16, v{t+2*z+hh}"); I(a, f"v_and_b32 v11, 0xffff0000, v{t+2*z+hh}")
                I(a, f"v_pk_add_f32 v[{c+2*hh}:{c+2*hh+1}], v[{c+2*hh}:{c+2*hh+1}], v[10:11]")
            tt = 48 + (nb*2+z)*2
            I(a, f"v_cvt_pk_bf16_f32 v{tt}, v{c}, v{c+1}"); I(a, f"v_cvt_pk_bf16_f32 v{tt+1}, v{c+2}, v{c+3}")
            I(a, f"ds_write_b64 v{20+nb}, v[{tt}:{tt+1}] offset:{mb*2048}")
    I(a, "s_waitcnt lgkmcnt(0)")
    I(a, "s_barrier")
    st(7); st.dump(8, 0)
    a.label("p2_end")
    I(a, "s_endpgm")
    return g
```

```python
import sys, json
from asmgen import *
from gemm2 import *
from p1v2 import load_ptr, compute_loop_x
from p2 import StampsAt, add64, H_OFF, Y_OFF, YP, YARR, G_OFF, FLAG_OFF
XS_OFF = 40 << 20

def loader_voffsets_perm(a, g, s_kq):
    I(a, "v_lshrrev_b32 v40, 3, v1")
    I(a, "v_lshrrev_b32 v41, 4, v1")
    I(a, "v_and_b32 v42, 7, v1")
    I(a, f"v_mul_u32_u24 v43, {g.ldq}, v40")
    I(a, "v_xor_b32 v42, v42, v41")
    I(a, "v_lshl_add_u32 v43, v42, 4, v43")
    I(a, "v_xor_b32 v44, 64, v43")
    for grp in range(2):
        I(a, f"s_and_b32 s{S_TMP}, s{S_WAVE}, 1"); I(a, f"s_lshl_b32 s{S_TMP}, s{S_TMP}, 1")
        I(a, f"s_add_u32 s{S_TMP}, s{S_TMP}, {grp}"); I(a, f"s_add_u32 s{S_TMP}, s{S_TMP}, s{s_kq}"); I(a, f"s_and_b32 s{S_TMP}, s{S_TMP}, 3")
        I(a, f"s_lshl_b32 s{S_TMP}, s{S_TMP}, 5")
        I(a, f"s_lshr_b32 s{S_TMP2}, s{S_WAVE}, 1"); I(a, f"s_lshl_b32 s{S_TMP2}, s{S_TMP2}, 7"); I(a, f"s_add_u32 s{S_TMP}, s{S_TMP}, s{S_TMP2}")
        I(a, f"s_mul_i32 s{S_TMP}, s{S_TMP}, {g.ldq}")
        for j in range(4):
            i = grp*4 + j
            c = j*8*g.ldq - (i & 3)*1024
            I(a, f"v_add_u32 v{VL+i}, {c}, v{44 if i & 1 else 43}")
            I(a, f"v_add_u32 v{VL+i}, s{S_TMP}, v{VL+i}")
    I(a, f"s_mul_i32 s{S_TMP}, s{S_WAVE}, {4*g.np_*g.ldp}")
    I(a, "v_and_b32 v42, 15, v1")
    I(a, "v_lshlrev_b32 v45, 2, v41")
    I(a, "v_xor_b32 v42, v42, v45")
    I(a, f"v_mul_u32_u24 v43, {g.ldp}, v41")
    I(a, f"v_add_u32 v43, s{S_TMP}, v43")
    I(a, "v_lshl_add_u32 v43, v42, 4, v43")
    for i in range(g.np_):
        c = i*4*g.ldp - (i & 3)*1024
        I(a, f"v_add_u32 v{VL+g.nq+i}, {c}, v43")
    I(a, f"s_mul_i32 s{S_MQ}, s{S_WAVE}, {g.nq*1024}")
    I(a, f"s_mul_i32 s{S_MP}, s{S_WAVE}, {g.np_*1024}")
    I(a, f"s_add_u32 s{S_MP}, s{S_MP}, {g.QB}")
    I(a, f"s_mov_b32 s{S_STG}, 0")

YR = 64
def y_loads_pre(a, s_row, s_colb, pref):
    I(a, f"v_lshrrev_b32 v40, 3, v1")
    I(a, f"v_and_b32 v41, 7, v1")
    I(a, f"v_add_u32 v42, s{s_row}, v40")
    I(a, f"s_lshr_b32 s{S_TMP}, s{s_colb}, 1")
    I(a, f"s_cmp_ge_u32 s{S_TMP}, 512")
    I(a, f"s_cselect_b32 s62, 1, 0")
    I(a, f"s_cbranch_scc1 {pref}_ymir")
    I(a, f"v_lshl_add_u32 v43, v41, 3, s{S_TMP}")
    I(a, f"s_branch {pref}_ygo")
    a.label(f"{pref}_ymir")
    I(a, f"s_sub_u32 s{S_TMP}, 1016, s{S_TMP}")
    I(a, f"v_lshlrev_b32 v43, 3, v41")
    I(a, f"v_sub_u32 v43, s{S_TMP}, v43")
    a.label(f"{pref}_ygo")
def y_loads_i(a, i):
    I(a, f"v_add_u32 v44, {8*i}, v42")
    I(a, f"v_sub_u32 v45, 2048, v44")
    I(a, f"v_min_u32 v45, v44, v45")
    I(a, f"v_mul_u32_u24 v45, {YP}, v45")
    I(a, f"v_add_u32 v45, v45, v43")
    b = YR + i*16
    I(a, f"buffer_load_dwordx3 v[{b}:{b+2}], v45, s[24:27], 0 offen")
    I(a, f"buffer_load_dwordx2 v[{b+4}:{b+5}], v45, s[24:27], s63 offen")
    I(a, f"buffer_load_dwordx3 v[{b+8}:{b+10}], v45, s[24:27], s64 offen")
    I(a, f"buffer_load_dwordx2 v[{b+12}:{b+13}], v45, s[24:27], s65 offen")
    I(a, f"v_lshlrev_b32 v44, 3, v44")
    I(a, f"buffer_load_dwordx2 v[{32+i*2}:{32+i*2+1}], v44, s[36:39], 0 offen")
def y_loads(a, s_row, s_colb, pref):
    y_loads_pre(a, s_row, s_colb, pref)
    for i in range(4): y_loads_i(a, i)

T1 = 128
def y_precombine(a):
    for i in range(4):
        b = YR + i*16; gv = 32 + i*2
        I(a, f"v_add_u32 v44, {8*i}, v42")
        I(a, f"v_cmp_lt_u32 vcc, 1024, v44")
        I(a, f"s_nop 1")
        I(a, f"v_cndmask_b32 v45, 0, 1, vcc")
        I(a, f"v_xor_b32 v45, s62, v45")
        I(a, f"v_cmp_eq_u32 vcc, 1, v45")
        I(a, f"v_sub_f32 v46, 0, v{gv}")
        I(a, f"s_nop 0")
        I(a, f"v_cndmask_b32 v46, v46, v{gv}, vcc")
        I(a, f"v_mov_b32 v47, v46")
        I(a, f"v_mov_b32 v48, v{gv}"); I(a, f"v_mov_b32 v49, v{gv}")
        lab_m = a.newlabel("fm"); lab_e = a.newlabel("fe")
        I(a, "s_cmp_eq_u32 s62, 1"); I(a, f"s_cbranch_scc1 {lab_m}")
        for mir in (0, 1):
            if mir: a.label(lab_m)
            for pidx in range(4):
                if not mir:
                    e0 = (b + pidx//2, pidx % 2); e1 = (b+4 + pidx//2, pidx % 2)
                    s0 = (b+8 + pidx//2, pidx % 2); s1 = (b+12 + pidx//2, pidx % 2)
                else:
                    k0 = 4 - pidx; k1 = 3 - pidx
                    e0 = (b + k0//2, k0 % 2); e1 = (b+4 + k1//2, k1 % 2)
                    s0 = (b+8 + k0//2, k0 % 2); s1 = (b+12 + k1//2, k1 % 2)
                def unp(dst, s):
                    if s[1]: I(a, f"v_and_b32 v{dst}, 0xffff0000, v{s[0]}")
                    else: I(a, f"v_lshlrev_b32 v{dst}, 16, v{s[0]}")
                d = T1 + i*8 + pidx*2
                unp(50, e0); unp(51, e1); unp(52, s0); unp(53, s1)
                I(a, f"v_pk_mul_f32 v[{d}:{d+1}], v[50:51], v[48:49]")
                I(a, f"v_pk_fma_f32 v[{d}:{d+1}], v[52:53], v[46:47], v[{d}:{d+1}]")
            if not mir: I(a, f"s_branch {lab_e}")
        a.label(lab_e)

def k_p2b(a, name, stamps=False):
    g = G(BM=256, BN=128, WM=2, WN=2, NS=3, ldq=7168, ldp=2048, nk=14, pref="p2")
    st = StampsAt(a, stamps, 70)
    kernel_begin(a, name)
    st(0)
    load_ptr(a, 6, 64); load_ptr(a, 20, 72); load_ptr(a, 22, 88); load_ptr(a, 4, 104)
    I(a, "s_cmp_ge_u32 s2, 256"); I(a, "s_cbranch_scc1 p2_end")
    lane_wave(a)
    I(a, "s_and_b32 s67, s2, 3")
    I(a, "s_bfe_u32 s28, s2, 0x10002"); I(a, "s_lshl_b32 s28, s28, 2")
    I(a, "s_lshr_b32 s27, s2, 3"); I(a, "s_lshr_b32 s30, s27, 3"); I(a, "s_add_u32 s28, s28, s30")
    I(a, "s_and_b32 s29, s27, 7")
    I(a, f"s_mul_i32 s{S_QOFF}, s28, {256*7168}")
    I(a, f"s_mul_i32 s30, s67, {896*2}"); I(a, f"s_add_u32 s{S_QOFF}, s{S_QOFF}, s30")
    I(a, f"s_mul_i32 s{S_POFF}, s29, {128*2}")
    I(a, f"s_mul_i32 s30, s67, {896*2048}"); I(a, f"s_add_u32 s{S_POFF}, s{S_POFF}, s30")
    I(a, f"s_and_b32 s31, s{S_WAVE}, 1"); I(a, "s_lshl_b32 s31, s31, 7"); I(a, "s_lshl_b32 s30, s28, 8"); I(a, "s_add_u32 s30, s30, s31")
    I(a, "s_lshl_b32 s31, s67, 5"); I(a, "s_add_u32 s30, s30, s31")
    I(a, f"s_bfe_u32 s31, s{S_WAVE}, 0x10001"); I(a, "s_lshl_b32 s31, s31, 7"); I(a, "s_lshl_b32 s66, s29, 8"); I(a, "s_add_u32 s31, s31, s66")
    I(a, f"s_cmp_ge_u32 s{S_WAVE}, 4"); I(a, "s_cbranch_scc0 p2_compute")
    I(a, f"s_sub_u32 s{S_WAVE}, s{S_WAVE}, 4")
    loader_voffsets_perm(a, g, 67)
    I(a, "s_waitcnt lgkmcnt(0)")
    st(1)
    srd(a, S_PSRD, 6, 3584*1024*2)
    srd(a, S_QSRD, 4, 2048*3584*2)
    st(2)
    PER = g.PER
    stage_issue(a, g)
    st(3)
    stage_issue(a, g)
    I(a, f"s_waitcnt vmcnt({PER})")
    st(4)
    I(a, "s_barrier")
    stage_issue(a, g)
    srd(a, 16, 22, 2048*1024*2)
    I(a, "s_mov_b32 s6, s4"); I(a, "s_mov_b32 s7, s5"); add64(a, 6, Y_OFF); srd(a, 24, 6, 4*YARR)
    I(a, "s_mov_b32 s6, s4"); I(a, "s_mov_b32 s7, s5"); add64(a, 6, G_OFF); srd(a, 36, 6, 2048*8)
    I(a, f"s_mov_b32 s63, {YARR}"); I(a, f"s_mov_b32 s64, {2*YARR}"); I(a, f"s_mov_b32 s65, {3*YARR}")
    I(a, f"s_mov_b32 s{S_CNT}, {g.nk-3}")
    a.label("p2_ld_loop")
    I(a, f"s_waitcnt vmcnt({PER})"); I(a, "s_barrier"); stage_issue(a, g)
    I(a, f"s_sub_u32 s{S_CNT}, s{S_CNT}, 1"); I(a, f"s_cmp_lg_u32 s{S_CNT}, 0"); I(a, "s_cbranch_scc1 p2_ld_loop")
    y_loads(a, 30, 31, "p2")
    I(a, f"s_waitcnt vmcnt({PER+20})"); I(a, "s_barrier")
    I(a, f"s_waitcnt vmcnt(20)"); I(a, "s_barrier")
    I(a, "s_barrier")
    st(5)
    I(a, "s_waitcnt vmcnt(0)")
    y_precombine(a)
    W = 50
    I(a, f"s_lshl_b32 s66, s{S_WAVE}, 12")
    I(a, f"v_lshrrev_b32 v{W}, 3, v1")
    I(a, f"v_and_b32 v{W+2}, 7, v1")
    I(a, f"v_xor_b32 v{W+2}, v{W+2}, v{W}")
    I(a, f"v_lshlrev_b32 v{W+3}, 7, v{W}")
    I(a, f"v_lshl_add_u32 v{W+3}, v{W+2}, 4, v{W+3}")
    I(a, f"v_add_u32 v{W+12}, s66, v{W+3}")
    I(a, f"v_add_u32 v{W}, s30, v{W}")
    I(a, f"v_lshlrev_b32 v{W}, 11, v{W}")
    I(a, f"v_and_b32 v{W+2}, 7, v1")
    I(a, f"v_lshl_add_u32 v{W}, v{W+2}, 4, v{W}")
    I(a, f"v_add_u32 v{W+13}, s31, v{W}")
    st(6)
    I(a, "s_barrier"); I(a, "s_barrier")
    I(a, "s_barrier")
    for i in range(4):
        I(a, f"ds_read_b128 v[{64+4*i}:{64+4*i+3}], v{W+12} offset:{i*1024}")
    for i in range(4):
        I(a, f"s_waitcnt lgkmcnt({3-i})")
        og = 33 + 2*i
        I(a, f"v_mov_b32 v46, v{og}"); I(a, f"v_mov_b32 v47, v{og}")
        for p in range(4):
            bb = 64 + 4*i + p; d = T1 + i*8 + p*2
            I(a, f"v_lshlrev_b32 v48, 16, v{bb}"); I(a, f"v_and_b32 v49, 0xffff0000, v{bb}")
            I(a, f"v_pk_fma_f32 v[{d}:{d+1}], v[48:49], v[46:47], v[{d}:{d+1}]")
            I(a, f"v_cvt_pk_bf16_f32 v{bb}, v{d}, v{d+1}")
        I(a, f"s_mov_b32 s{S_TMP2}, {i*8*2048}")
        I(a, f"buffer_store_dwordx4 v[{64+4*i}:{64+4*i+3}], v{W+13}, s[16:19], s{S_TMP2} offen")
    if stamps: I(a, "s_waitcnt vmcnt(0)")
    st(7); st.dump(8, 1)
    I(a, "s_endpgm")
    a.label("p2_compute")
    compute_setup(a, g)
    for nb in range(g.NB):
        for mb in range(1, g.MB):
            for r in range(16): I(a, f"v_mov_b32 v{acc_reg(g,nb,mb)+r}, 0")
    I(a, "s_waitcnt lgkmcnt(0)")
    st(1)
    srd(a, 32, 20, 2048)
    I(a, "v_lshrrev_b32 v40, 5, v1"); I(a, "v_lshlrev_b32 v40, 3, v40")
    for nb in range(2):
        for q in range(4):
            r = 16 + (nb*4+q)*2
            I(a, f"buffer_load_dwordx2 v[{r}:{r+1}], v40, s[32:35], s31 offen offset:{nb*64+q*16}")
    I(a, "s_mov_b32 s6, s4"); I(a, "s_mov_b32 s7, s5"); add64(a, 6, XS_OFF); srd(a, 56, 6, 256*49152)
    I(a, "s_mov_b32 s6, s4"); I(a, "s_mov_b32 s7, s5"); add64(a, 6, FLAG_OFF); srd(a, 8, 6, 256*128)
    W = 50
    I(a, f"s_lshl_b32 s66, s{S_WAVE}, 12")
    I(a, f"v_and_b32 v{W}, 31, v1")
    I(a, f"v_lshlrev_b32 v{W+1}, 7, v{W}")
    I(a, f"v_add_u32 v{W+1}, s66, v{W+1}")
    I(a, f"v_lshrrev_b32 v{W+2}, 5, v1")
    I(a, f"v_lshl_add_u32 v{W+1}, v{W+2}, 3, v{W+1}")
    I(a, f"v_and_b32 v{W}, 7, v{W}")
    for ch in range(8):
        I(a, f"v_xor_b32 v{W+2}, {ch}, v{W}")
        I(a, f"v_lshl_add_u32 v{W+4+ch}, v{W+2}, 4, v{W+1}")
    I(a, "s_waitcnt vmcnt(0)")
    for nb in range(2):
        for q in range(4):
            r = 16 + (nb*4+q)*2; d = acc_reg(g, nb, 0) + 4*q
            I(a, f"v_lshlrev_b32 v{d}, 16, v{r}"); I(a, f"v_and_b32 v{d+1}, 0xffff0000, v{r}")
            I(a, f"v_lshlrev_b32 v{d+2}, 16, v{r+1}"); I(a, f"v_and_b32 v{d+3}, 0xffff0000, v{r+1}")
    compute_loop_x(a, g, stamp=f"s_memtime s[78:79]" if stamps else None)
    st(5)
    I(a, "s_nop 7"); I(a, "s_nop 7")
    I(a, "v_lshlrev_b32 v40, 4, v1")
    for b in range(1, 4):
        I(a, f"s_add_u32 s60, s67, {b}"); I(a, "s_and_b32 s60, s60, 3"); I(a, "s_andn2_b32 s61, s2, 3"); I(a, "s_or_b32 s60, s60, s61")
        I(a, f"s_mul_i32 s60, s60, 49152"); I(a, f"s_lshl_b32 s61, s{S_WAVE}, 12"); I(a, "s_add_u32 s60, s60, s61")
        I(a, f"s_add_u32 s60, s60, {(b-1)*16384}")
        k = 0
        for nb in range(2):
            c = acc_reg(g, nb, b)
            for half in range(2):
                t = 64 + ((b-1)*4 + k)*4
                for r in range(4):
                    I(a, f"v_cvt_pk_bf16_f32 v{t+r}, v{c+8*half+2*r}, v{c+8*half+2*r+1}")
                I(a, f"buffer_store_dwordx4 v[{t}:{t+3}], v40, s[56:59], s60 offen offset:{k*1024} sc1")
                k += 1
    st(2)
    I(a, "s_waitcnt vmcnt(0)")
    st(3)
    I(a, "s_barrier")
    I(a, f"s_cmp_eq_u32 s{S_WAVE}, 0"); I(a, "s_cbranch_scc0 p2_waitb")
    I(a, "s_lshl_b32 s62, s2, 7"); I(a, "v_mov_b32 v42, s62"); I(a, "v_mov_b32 v43, 1")
    I(a, "buffer_store_dword v43, v42, s[8:11], 0 offen sc1")
    I(a, "s_andn2_b32 s61, s2, 3"); I(a, "v_and_b32 v42, 3, v1"); I(a, "v_add_u32 v42, s61, v42"); I(a, "v_lshlrev_b32 v42, 7, v42")
    a.label("p2_poll")
    I(a, "buffer_load_dword v43, v42, s[8:11], 0 offen sc1")
    I(a, "s_waitcnt vmcnt(0)")
    I(a, "v_cmp_ne_u32 vcc, 1, v43")
    I(a, "s_nop 4")
    I(a, "s_cmp_eq_u64 vcc, 0"); I(a, "s_cbranch_scc0 p2_poll")
    a.label("p2_waitb")
    I(a, "s_barrier")
    st(6)
    I(a, f"s_mul_i32 s60, s2, 49152"); I(a, f"s_lshl_b32 s61, s{S_WAVE}, 12"); I(a, "s_add_u32 s60, s60, s61")
    for b in range(3):
        for k in range(4):
            t = 64 + (b*4 + k)*4
            I(a, f"buffer_load_dwordx4 v[{t}:{t+3}], v40, s[56:59], s60 offen offset:{k*1024} sc1")
        I(a, "s_add_u32 s60, s60, 16384")
    for b in range(3):
        I(a, f"s_waitcnt vmcnt({8-4*b})")
        k = 0
        for nb in range(2):
            c = acc_reg(g, nb, 0)
            for half in range(2):
                t = 64 + (b*4 + k)*4
                for r in range(4):
                    I(a, f"v_lshlrev_b32 v44, 16, v{t+r}"); I(a, f"v_and_b32 v45, 0xffff0000, v{t+r}")
                    I(a, f"v_pk_add_f32 v[{c+8*half+2*r}:{c+8*half+2*r+1}], v[{c+8*half+2*r}:{c+8*half+2*r+1}], v[44:45]")
                k += 1
    for nb in range(2):
        c = acc_reg(g, nb, 0)
        for q in range(4):
            t = 16 + (nb*4+q)*2
            I(a, f"v_cvt_pk_bf16_f32 v{t}, v{c+4*q}, v{c+4*q+1}")
            I(a, f"v_cvt_pk_bf16_f32 v{t+1}, v{c+4*q+2}, v{c+4*q+3}")
            I(a, f"ds_write_b64 v{54+nb*4+q}, v[{t}:{t+1}]")
    I(a, "s_waitcnt lgkmcnt(0)")
    I(a, "s_barrier")
    st(7); st.dump(8, 0)
    a.label("p2_end")
    I(a, "s_endpgm")
    return g
```

```python
import sys, os
from asmgen import *
import k1n, k2n, rtstamp
from p2 import StampsAt
PFX = "gated_mix__spectral_fnet__dense_activation_squared_relu__prompt"
HEADER = open("cdna_kernels/" + PFX + ".s.ref").read().split("; Override launch")[0]
def gen(stamp=0, hsc=os.environ.get("HSC", "sc0 sc1"), **kw):
    a = Asm()
    a(HEADER.rstrip())
    a(f"; @launch kernel=f_kernel grid=(256,1,1) block=(512,1,1) lds=163840")
    a('.amdgcn_target "amdgcn-amd-amdhsa--gfx950"')
    a(".text")
    st0 = StampsAt(a, stamp == 2, 70)
    fused = {"st0": (lambda: st0(0))}
    k1n.k_k1(a, "f_kernel", fused=fused, hsc=hsc, **kw)
    k2n.k_k2(a, "f_kernel", stamps=(stamp == 2), fused=fused)
    a('.section .rodata,"a"')
    a(".p2align 6"); kernel_desc(a, "f_kernel", 256, 96, 256)
    return a.text()
if __name__ == "__main__":
    if os.environ.get("RTSTAMP"): open("f4_r2.s", "w").write(gen(stamp=2))
    else: open("f4.s", "w").write(gen())
```

```python
from asmgen import *
from gemm2 import *
import gemm3
from gemm3 import acc16, fr16, reads16, mfma16, nblk16, V_QA as QA16
from p1v2 import load_ptr, epi_addrs_read, wave_origin
from p2 import StampsAt, add64, FLAG_OFF, G_OFF
from k0 import XF_OFF, XFP, XFARR
import fold2, awg9 as awg3
FOLDF_OFF = 34 << 20
import os
TWICE = int(os.environ.get('TWICE', '0'))
BX = int(os.environ.get('BX', '0'))
LFLAG = 147456
PSTAMP = int(os.environ.get('PSTAMP', '0'))
NONCE_SC = os.environ.get('NONCE_SC', '')
S_PFS = 56; S_PFOFF = 60; S_PFSTEP = 61; V_PF = 30

def compute_loop16p(a, g, bias_base, hook_label=None, hook_cnt=None, stamp=None):
    p = g.pref; NB, MB = nblk16(g); naddr = 2 + NB
    I(a, "s_barrier")
    if stamp: I(a, stamp); I(a, "s_waitcnt lgkmcnt(0)")
    for r in reads16(g, 0, 0): I(a, r)
    I(a, f"s_mov_b32 s{S_CNT}, {g.nk}"); I(a, f"s_mov_b32 s{S_LEFT}, 0")
    A, B = fr16(g, 0)
    first = [f"v_mfma_f32_16x16x32_bf16 v[{acc16(g,nb,mb)}:{acc16(g,nb,mb)+3}], v[{A[nb]}:{A[nb]+3}], v[{B[mb]}:{B[mb]+3}], v[{bias_base+4*nb}:{bias_base+4*nb+3}]" for nb in range(NB) for mb in range(MB)]
    I(a, "s_waitcnt lgkmcnt(0)")
    interleave(a, first, reads16(g, 1, 1), 1)
    if hook_label:
        I(a, f"s_branch {hook_label}")
    else:
        I(a, f"s_branch {p}_c_mid")
    a(".p2align 6")
    a.label(f"{p}_c_loop")
    I(a, "s_waitcnt lgkmcnt(0)")
    interleave(a, mfma16(g, 0), reads16(g, 1, 1), 1)
    a.label(f"{p}_c_mid")
    I(a, "s_waitcnt lgkmcnt(0)"); I(a, "s_barrier")
    mf = mfma16(g, 1)
    I(a, mf[0])
    I(a, f"s_add_u32 s{S_LEFT}, s{S_LEFT}, {g.STAGE}"); I(a, f"s_cmp_ge_u32 s{S_LEFT}, {g.LDS}")
    I(a, mf[1])
    I(a, f"s_cselect_b32 s{S_DELTA}, s{S_DN}, s{S_DP}"); I(a, f"s_cselect_b32 s{S_LEFT}, 0, s{S_LEFT}")
    vupd = [f"v_add_u32 v{QA16+i}, s{S_DELTA}, v{QA16+i}" for i in range(naddr)]
    fill = vupd + reads16(g, 0, 0) + [f"s_sub_u32 s{S_CNT}, s{S_CNT}, 1", f"s_cmp_lg_u32 s{S_CNT}, 0"]
    interleave(a, mf[2:], fill, 1)
    I(a, f"s_cbranch_scc1 {p}_c_loop")
    I(a, "s_waitcnt lgkmcnt(0)")

def k_k1(a, name, fused=None, stamps=False, hsc="", astamp=False, npf0=3, w3pf=False, steppf=True, trace=False, pf_after=True, fstamp=False):
    g = G(BM=256, BN=128, WM=2, WN=2, NS=3, ldq=2048, ldp=7168, nk=16, pref="p1")
    st = StampsAt(a, stamps, 70)
    kernel_begin(a, name)
    st(0)
    if fused and fused.get("st0"): fused["st0"]()
    I(a, "s_cmp_ge_u32 s2, 256"); I(a, "s_cbranch_scc1 p1_end")
    lane_wave(a)
    I(a, "s_cmp_ge_u32 s2, 224"); I(a, "s_cbranch_scc1 aw_entry")
    load_ptr(a, 4, 0); load_ptr(a, 20, 48, 4); load_ptr(a, 24, 104); load_ptr(a, 36, 64); load_ptr(a, 38, 80); load_ptr(a, 62, 96)
    I(a, "s_and_b32 s26, s2, 7"); I(a, "s_lshr_b32 s27, s2, 3")
    I(a, "s_mul_i32 s28, s27, 37"); I(a, "s_lshr_b32 s28, s28, 8")
    I(a, "s_mul_i32 s29, s28, 7"); I(a, "s_sub_u32 s27, s27, s29")
    I(a, "s_lshr_b32 s29, s26, 2"); I(a, "s_and_b32 s26, s26, 3")
    I(a, "s_lshl_b32 s29, s29, 2"); I(a, "s_add_u32 s28, s28, s29")
    I(a, "s_mul_i32 s26, s26, 7"); I(a, "s_add_u32 s29, s26, s27")
    I(a, f"s_mul_i32 s{S_QOFF}, s28, {256*2048}")
    I(a, f"s_mul_i32 s{S_POFF}, s29, {128*2}")
    I(a, f"s_mov_b32 s{S_QSRD+2}, {2048*1024*2}"); I(a, f"s_mov_b32 s{S_QSRD+3}, 0x00020000")
    I(a, f"s_mov_b32 s{S_PSRD+2}, {1024*3584*2}"); I(a, f"s_mov_b32 s{S_PSRD+3}, 0x00020000")
    I(a, f"s_cmp_ge_u32 s{S_WAVE}, 4"); I(a, "s_cbranch_scc0 p1_compute")
    I(a, f"s_sub_u32 s{S_WAVE}, s{S_WAVE}, 4")
    gemm3.loader_voffsets16(a, g)
    I(a, f"s_cmp_eq_u32 s{S_WAVE}, 0"); I(a, f"s_cselect_b32 s{S_TMP}, 16, 0")
    I(a, f"s_mul_i32 s{S_DELTA}, s2, 16"); I(a, f"v_add_u32 v{V_PF}, s{S_DELTA}, v1"); I(a, f"v_lshlrev_b32 v{V_PF}, 7, v{V_PF}")
    I(a, f"v_cmp_gt_u32 vcc, s{S_TMP}, v1"); I(a, f"v_mov_b32 v46, 0x7ffffff0"); I(a, "s_nop 0"); I(a, f"v_cndmask_b32 v{V_PF}, v46, v{V_PF}, vcc")
    I(a, "s_waitcnt lgkmcnt(0)")
    st(1)
    I(a, f"s_mov_b32 s{S_QSRD}, s4"); I(a, f"s_and_b32 s{S_QSRD+1}, s5, 0xffff")
    I(a, f"s_mov_b32 s{S_PSRD}, s20"); I(a, f"s_and_b32 s{S_PSRD+1}, s21, 0xffff")
    I(a, f"s_mov_b32 s{S_PFOFF}, {64*7168}")
    I(a, "s_mov_b32 s34, 0"); I(a, "s_mov_b32 s35, 0")
    srd(a, 88, 62, 256)
    I(a, "s_cmp_eq_u32 s2, 0"); I(a, "s_cbranch_scc0 p1_nn"); I(a, f"s_cmp_eq_u32 s{S_WAVE}, 3"); I(a, "s_cbranch_scc0 p1_nn")
    I(a, "s_memrealtime s[58:59]"); I(a, "s_waitcnt lgkmcnt(0)"); I(a, "s_or_b32 s58, s58, 1")
    I(a, "v_mov_b32 v26, 0"); I(a, "v_mov_b32 v27, s58")
    I(a, "buffer_store_dword v27, v26, s[88:91], 0 offen sc1")
    a.label("p1_nn")
    X = 1 if steppf else 0
    def pf():
        if not steppf: return
        I(a, f"buffer_load_dword v47, v{V_PF}, s[{S_PSRD}:{S_PSRD+3}], s{S_PFOFF} offen")
        I(a, f"s_add_u32 s{S_PFOFF}, s{S_PFOFF}, {64*7168}")
    if trace:
        I(a, "s_add_u32 s64, s24, 0x6400000"); I(a, "s_addc_u32 s65, s25, 0"); srd(a, 84, 64, 1<<22)
        I(a, "s_lshl_b32 s62, s2, 12"); I(a, f"s_lshl_b32 s68, s{S_WAVE}, 10"); I(a, "s_add_u32 s68, s68, s62"); I(a, "v_mov_b32 v31, 0")
    def tr():
        if not trace: return
        I(a, "s_memrealtime s[72:73]"); I(a, "s_memtime s[74:75]"); I(a, "s_waitcnt lgkmcnt(0)")
        I(a, "v_mov_b32 v28, s72"); I(a, "v_mov_b32 v29, s74")
        I(a, "buffer_store_dwordx2 v[28:29], v31, s[84:87], s68 offen"); I(a, "s_add_u32 s68, s68, 8")
    if trace: X += 1
    st(2)
    PER = g.PER
    if not pf_after:
        for i in range(npf0): pf()
    if BX == 3:
        I(a, f"v_mov_b32 v24, {LFLAG}")
        lab = a.newlabel("bi")
        I(a, "s_cmp_lt_u32 s2, 132"); I(a, f"s_cbranch_scc0 {lab}")
        I(a, "v_mov_b32 v20, 0"); I(a, "v_mov_b32 v21, 0"); I(a, "v_mov_b32 v22, 0"); I(a, "v_mov_b32 v23, 0")
        I(a, "ds_write_b128 v24, v[20:23]"); I(a, "s_waitcnt lgkmcnt(0)"); I(a, "s_barrier")
        a.label(lab)
    stage_issue(a, g)
    if not PSTAMP: st(3)
    npa = (npf0 if (pf_after and steppf) else 0)
    if BX == 2:
        for i in range(npa): pf()
        I(a, "s_barrier")
        stage_issue(a, g); stage_issue(a, g)
        I(a, f"s_waitcnt vmcnt({2*PER+npa})")
        npa = 0
    else:
        stage_issue(a, g)
        if pf_after:
            for i in range(npf0): pf()
        if BX == 3:
            lab = a.newlabel("lf"); labx = a.newlabel("lfx")
            I(a, "s_cmp_lt_u32 s2, 132"); I(a, f"s_cbranch_scc0 {labx}")
            I(a, "s_mov_b32 s59, 0x40000")
            a.label(lab)
            I(a, "ds_read_b128 v[20:23], v24"); I(a, "s_waitcnt lgkmcnt(0)")
            I(a, "v_and_b32 v20, v20, v21"); I(a, "v_and_b32 v22, v22, v23"); I(a, "v_and_b32 v20, v20, v22"); I(a, "s_nop 0")
            I(a, "v_readfirstlane_b32 s58, v20")
            I(a, "s_sub_u32 s59, s59, 1"); I(a, f"s_cbranch_scc1 {labx}")
            I(a, "s_cmp_eq_u32 s58, 1"); I(a, f"s_cbranch_scc1 {labx}")
            I(a, "s_sleep 1"); I(a, f"s_branch {lab}")
            a.label(labx)
            stage_issue(a, g)
            I(a, f"s_waitcnt vmcnt({2*PER+npa})")
        elif BX:
            I(a, "s_barrier")
            stage_issue(a, g)
            I(a, f"s_waitcnt vmcnt({2*PER+npa})")
        else:
            I(a, f"s_waitcnt vmcnt({PER+npa})")
    st(4)
    I(a, "s_barrier"); tr()
    I(a, "s_mov_b32 s6, s24"); I(a, "s_mov_b32 s7, s25"); add64(a, 6, FOLDF_OFF); srd(a, 92, 6, 33*128)
    I(a, "v_mov_b32 v27, 0")
    if not fused: I(a, f"s_cmp_eq_u32 s{S_WAVE}, 3"); I(a, "s_cbranch_scc0 p1_nonl")
    I(a, f"buffer_load_dword v26, v27, s[88:91], 0 offen {NONCE_SC}")
    a.label("p1_nonl")
    if BX:
        pf()
        lab = a.newlabel("bw")
        I(a, f"s_cmp_eq_u32 s{S_WAVE}, 3"); I(a, f"s_cbranch_scc0 {lab}")
        I(a, f"s_cmp_lt_u32 s2, 132"); I(a, f"s_cbranch_scc0 {lab}")
        I(a, f"s_waitcnt vmcnt({1 if steppf else 0})")
        a.label(lab)
        I(a, f"s_waitcnt vmcnt({npa + PER + X})"); I(a, "s_barrier")
    else:
        stage_issue(a, g); pf()
        I(a, f"s_waitcnt vmcnt({PER + (1 if steppf else 0)})"); I(a, "s_barrier")
    if not fused:
        I(a, f"s_cmp_eq_u32 s{S_WAVE}, 3"); I(a, "s_cbranch_scc0 p1_nopub")
        I(a, "s_cmp_lt_u32 s2, 132"); I(a, "s_cbranch_scc0 p1_nopub")
    I(a, "s_mov_b32 s59, 0x10000")
    a.label("p1_npoll")
    I(a, "v_readfirstlane_b32 s58, v26")
    I(a, "s_sub_u32 s59, s59, 1"); I(a, "s_cbranch_scc1 p1_ngo")
    I(a, "s_cmp_lg_u32 s58, 0"); I(a, "s_cbranch_scc1 p1_ngo")
    I(a, "buffer_load_dword v26, v27, s[88:91], 0 offen sc1"); I(a, "s_waitcnt vmcnt(0)")
    I(a, "s_branch p1_npoll")
    a.label("p1_ngo")
    if fused:
        I(a, "s_mov_b32 s34, s58")
        I(a, f"s_cmp_eq_u32 s{S_WAVE}, 3"); I(a, "s_cbranch_scc0 p1_nopub")
        I(a, "s_cmp_lt_u32 s2, 132"); I(a, "s_cbranch_scc0 p1_nopub")
    I(a, "s_lshr_b32 s58, s2, 2"); I(a, "s_lshl_b32 s58, s58, 7"); I(a, "s_and_b32 s59, s2, 3"); I(a, "s_lshl_b32 s59, s59, 2"); I(a, "s_add_u32 s58, s58, s59")
    I(a, "v_mov_b32 v25, 0x7ffffff0"); I(a, "v_mov_b32 v27, s58"); I(a, "v_cmp_eq_u32 vcc, 0, v1"); I(a, "s_nop 1"); I(a, "v_cndmask_b32 v27, v25, v27, vcc")
    I(a, "buffer_store_dword v26, v27, s[92:95], 0 offen sc1")
    a.label("p1_nopub")
    if PSTAMP: st(3)
    tr(); stage_issue(a, g); pf()
    I(a, f"s_mov_b32 s{S_CNT}, {g.nk-3-1}")
    a.label("p1_ld_loop")
    I(a, f"s_waitcnt vmcnt({PER + X + (1 if steppf else 0)})"); I(a, "s_barrier"); tr(); stage_issue(a, g); pf()
    I(a, f"s_sub_u32 s{S_CNT}, s{S_CNT}, 1"); I(a, f"s_cmp_lg_u32 s{S_CNT}, 0"); I(a, "s_cbranch_scc1 p1_ld_loop")
    I(a, "s_bfe_u32 s60, s2, 0x10001"); I(a, f"s_mul_i32 s60, s60, {1792*2048}")
    I(a, "s_and_b32 s61, s2, 1"); I(a, "s_lshl_b32 s61, s61, 10"); I(a, "s_add_u32 s60, s60, s61")
    I(a, "s_lshr_b32 s61, s2, 3"); I(a, f"s_mul_i32 s61, s61, {64*2048}"); I(a, "s_add_u32 s60, s60, s61")
    I(a, f"s_mul_i32 s61, s{S_WAVE}, {16*2048}"); I(a, "s_add_u32 s60, s60, s61")
    srd(a, S_PFS, 36, 3584*1024*2)
    I(a, "v_lshrrev_b32 v46, 3, v1"); I(a, "v_lshlrev_b32 v46, 11, v46"); I(a, "v_and_b32 v45, 7, v1"); I(a, "v_lshl_add_u32 v46, v45, 7, v46")
    I(a, f"buffer_load_dword v47, v46, s[{S_PFS}:{S_PFS+3}], s60 offen")
    I(a, f"s_add_u32 s60, s60, {8*2048}")
    I(a, f"buffer_load_dword v47, v46, s[{S_PFS}:{S_PFS+3}], s60 offen")
    I(a, f"s_waitcnt vmcnt({PER + X + (1 if steppf else 0) + 2})"); I(a, "s_barrier")
    I(a, f"s_waitcnt vmcnt({(1 if steppf else 0) + 2})"); I(a, "s_barrier")
    I(a, f"s_barrier")
    st(5)
    srd(a, 16, 24, 2048*3584*2)
    wave_origin(a, g, 28, 29, 30, 31)
    epi_addrs_read(a, g, 7168, 30, 31)
    if not fused:
        I(a, f"s_cmp_eq_u32 s{S_WAVE}, 3"); I(a, "s_cbranch_scc0 p1_noflag")
        I(a, "s_mov_b32 s6, s24"); I(a, "s_mov_b32 s7, s25"); add64(a, 6, FLAG_OFF); srd(a, 32, 6, 1024*128)
        I(a, "v_min_u32 v40, 16, v1"); I(a, "v_mul_u32_u24 v40, 224, v40"); I(a, "v_add_u32 v40, s2, v40"); I(a, "v_lshlrev_b32 v40, 7, v40"); I(a, "v_mov_b32 v42, 0"); I(a, "v_mov_b32 v43, 0")
        I(a, "buffer_store_dwordx2 v[42:43], v40, s[32:35], 0 offen")
        a.label("p1_noflag")
    for mb in range(4):
        I(a, "s_barrier")
        for i in range(4):
            r = 64 + mb*16 + i*4
            I(a, f"ds_read_b128 v[{r}:{r+3}], v62 offset:{mb*4096 + i*1024}")
        for i in range(4):
            r = 64 + mb*16 + i*4
            I(a, f"s_mov_b32 s{S_TMP2}, {(mb*32 + i*8) * 7168}")
            I(a, f"s_waitcnt lgkmcnt({3-i})")
            I(a, f"buffer_store_dwordx4 v[{r}:{r+3}], v63, s[16:19], s{S_TMP2} offen {hsc}")
    st(6)
    if stamps: I(a, "s_waitcnt vmcnt(0)")
    if fused:
        I(a, "s_lshl_b32 s58, s28, 9"); I(a, "s_lshl_b32 s59, s29, 4"); I(a, "s_add_u32 s58, s58, s59"); I(a, f"s_lshl_b32 s59, s{S_WAVE}, 2"); I(a, "s_add_u32 s58, s58, s59")
        I(a, "v_mov_b32 v28, s58"); I(a, "v_mov_b32 v25, 0x7ffffff0"); I(a, "v_cmp_eq_u32 vcc, 0, v1"); I(a, "s_nop 1"); I(a, "v_cndmask_b32 v28, v25, v28, vcc")
        I(a, "s_mov_b32 s6, s24"); I(a, "s_mov_b32 s7, s25"); add64(a, 6, 35 << 20); srd(a, 52, 6, 128*1024)
        I(a, "v_mov_b32 v29, s34")
        I(a, "s_waitcnt vmcnt(0)")
        I(a, "buffer_store_dword v29, v28, s[52:55], 0 offen sc1")
        I(a, "s_branch f_ld")
    else:
        st(7); st.dump(8, 1)
        I(a, "s_endpgm")
    a.label("p1_compute")
    I(a, "s_setprio 3")
    I(a, f"s_lshl_b32 s69, s2, 2"); I(a, f"s_add_u32 s69, s69, s{S_WAVE}")
    fold2.fold_pre(a, 69)
    I(a, f"s_mul_i32 s68, s{S_WAVE}, 10240"); I(a, f"s_add_u32 s68, s68, {2*g.STAGE}")
    I(a, "s_mov_b32 s14, 2048"); I(a, "s_mov_b32 s15, 0x00020000")
    wave_origin(a, g, 28, 29, 30, 31)
    I(a, "v_lshrrev_b32 v8, 4, v1"); I(a, "v_lshlrev_b32 v8, 3, v8")
    I(a, "s_waitcnt lgkmcnt(0)")
    st(1)
    I(a, f"s_mov_b32 s{S_QSRD}, s4"); I(a, f"s_and_b32 s{S_QSRD+1}, s5, 0xffff")
    I(a, "s_mov_b32 s12, s38"); I(a, "s_and_b32 s13, s39, 0xffff")
    I(a, "s_cmp_gt_u32 s69, 512"); I(a, "s_cbranch_scc1 p1_skipload")
    fold2.fold_loads(a, S_QSRD, 12, 68)
    a.label("p1_skipload")
    if fstamp == 2: st(2)
    srd(a, 32, 22, 3584*2)
    I(a, "s_mov_b32 s6, s24"); I(a, "s_mov_b32 s7, s25"); add64(a, 6, XF_OFF); srd(a, 16, 6, 8*XFARR)
    I(a, "s_mov_b32 s6, s24"); I(a, "s_mov_b32 s7, s25"); add64(a, 6, G_OFF); srd(a, 40, 6, 2048*8)
    I(a, "s_cmp_gt_u32 s69, 527"); I(a, "s_cbranch_scc1 p1_nofold")
    I(a, "s_cmp_gt_u32 s69, 512"); I(a, "s_cbranch_scc1 p1_zero")
    for nb in range(4):
        I(a, f"buffer_load_dwordx2 v[{184+2*nb}:{184+2*nb+1}], v8, s[32:35], s31 offen offset:{nb*32}")
    if fstamp == 2: st(3)
    def setflag():
        I(a, f"s_lshl_b32 s58, s{S_WAVE}, 2"); I(a, f"s_add_u32 s58, s58, {LFLAG}"); I(a, "v_mov_b32 v193, s58"); I(a, "v_mov_b32 v194, 1")
        I(a, "ds_write_b32 v193, v194")
    after_reads = None
    if BX in (1, 2): after_reads = lambda: I(a, "s_barrier")
    if BX == 3:
        after_reads = setflag
        I(a, "s_barrier")
    if TWICE:
        I(a, "s_mov_b32 s86, s68"); I(a, "s_mov_b32 s87, 0")
        a.label("p1_fold_again")
        I(a, "s_mov_b32 s68, s86")
    fold2.fold_lds_reads(a, 68, (st if fstamp == 1 else ((lambda i: st(4)) if fstamp == 2 else None)), nyounger=4)
    fold2.fold_compute(a, 69, 16, 40, st=st if fstamp == 1 else None, after_reads=after_reads)
    if TWICE:
        I(a, "s_add_u32 s87, s87, 1"); I(a, "s_cmp_eq_u32 s87, 1"); I(a, "s_cbranch_scc1 p1_fold_again")
    if fstamp:
        st(5); I(a, 's_waitcnt vmcnt(0)'); st(6)
    I(a, "s_waitcnt vmcnt(10)")
    I(a, "s_branch p1_folded")
    a.label("p1_zero")
    for nb in range(4):
        I(a, f"buffer_load_dwordx2 v[{184+2*nb}:{184+2*nb+1}], v8, s[32:35], s31 offen offset:{nb*32}")
    if BX in (1, 2): I(a, "s_barrier")
    if BX == 3: I(a, "s_barrier"); setflag()
    fold2.fold_zero(a, 69, 16)
    I(a, "s_waitcnt vmcnt(8)")
    I(a, "s_branch p1_folded")
    a.label("p1_nofold")
    for nb in range(4):
        I(a, f"buffer_load_dwordx2 v[{184+2*nb}:{184+2*nb+1}], v8, s[32:35], s31 offen offset:{nb*32}")
    if BX in (1, 2): I(a, "s_barrier")
    I(a, f"s_cmp_eq_u32 s{S_WAVE}, {3 if w3pf else 99}"); I(a, "s_cbranch_scc0 p1_nopf")
    load_ptr(a, 52, 8, 4); load_ptr(a, 64, 24, 4)
    I(a, "s_lshl_b32 s58, s2, 6"); I(a, "v_add_u32 v4, s58, v1")
    I(a, f"s_mov_b32 s59, {(1<<32)//9+1}"); I(a, "v_mul_hi_u32 v5, v4, s59"); I(a, "v_mul_u32_u24 v6, 9, v5"); I(a, "v_sub_u32 v6, v4, v6")
    I(a, "v_lshlrev_b32 v7, 12, v5"); I(a, "v_lshl_add_u32 v7, v6, 7, v7")
    I(a, "v_cmp_ge_u32 vcc, 1024, v5"); I(a, "v_mov_b32 v9, 0x7ffffff0"); I(a, "s_waitcnt lgkmcnt(0)"); I(a, "v_cndmask_b32 v7, v9, v7, vcc")
    srd(a, 12, 52, 2048*2048*2); srd(a, 16, 54, 2048*2048*2)
    I(a, "buffer_load_dword v25, v7, s[12:15], 0 offen"); I(a, "buffer_load_dword v25, v7, s[16:19], 0 offen")
    I(a, f"s_mov_b32 s59, {(1<<32)//5+1}"); I(a, "v_mul_hi_u32 v5, v4, s59"); I(a, "v_mul_u32_u24 v6, 5, v5"); I(a, "v_sub_u32 v6, v4, v6")
    I(a, "v_lshlrev_b32 v7, 11, v5"); I(a, "v_lshl_add_u32 v7, v6, 7, v7")
    I(a, "v_cmp_ge_u32 vcc, 512, v5"); I(a, "v_mov_b32 v9, 0x7ffffff0"); I(a, "s_nop 0"); I(a, "v_cndmask_b32 v7, v9, v7, vcc")
    srd(a, 12, 64, 1024*1024*2); srd(a, 16, 66, 1024*1024*2)
    I(a, "buffer_load_dword v25, v7, s[12:15], 0 offen"); I(a, "buffer_load_dword v25, v7, s[16:19], 0 offen")
    I(a, "s_waitcnt vmcnt(4)")
    I(a, "s_branch p1_folded")
    a.label("p1_nopf")
    I(a, "s_waitcnt vmcnt(0)")
    a.label("p1_folded")
    if fstamp:
        st(7); st0 = st; st = (lambda i: None)
    st(2)
    for nb in range(4):
        for j in range(4):
            src = 184 + 2*nb + j//2; d = 8 + 4*nb + j
            if j % 2 == 0: I(a, f"v_lshlrev_b32 v{d}, 16, v{src}")
            else: I(a, f"v_and_b32 v{d}, 0xffff0000, v{src}")
    setup16_noclobber(a, g)
    st(3)
    compute_loop16p(a, g, 8, hook_label="p1_hook", hook_cnt=g.nk, stamp="s_memtime s[78:79]" if (stamps and not fstamp) else None)
    st(5)
    I(a, f"s_mul_i32 s{S_TMP}, s{S_WAVE}, {g.wm*128}")
    I(a, "v_and_b32 v18, 15, v1"); I(a, "v_lshlrev_b32 v19, 7, v18"); I(a, f"v_add_u32 v19, s{S_TMP}, v19")
    I(a, "v_bfe_u32 v24, v1, 4, 1"); I(a, "v_lshl_add_u32 v19, v24, 3, v19")
    I(a, "v_and_b32 v18, 7, v18"); I(a, "v_lshrrev_b32 v24, 5, v1")
    for nb in range(4):
        I(a, f"v_add_u32 v25, {2*nb}, v24"); I(a, "v_xor_b32 v25, v25, v18"); I(a, f"v_lshl_add_u32 v{20+nb}, v25, 4, v19")
    k = 0
    for mb2 in range(4):
        for mb in (2*mb2, 2*mb2+1):
            for nb in range(4):
                cc = acc16(g, nb, mb); t = 8 + (k % 4) * 2; k += 1
                for r in range(4): I(a, f"v_max_f32 v{cc+r}, 0, v{cc+r}")
                for r in (0, 2): I(a, f"v_pk_mul_f32 v[{cc+r}:{cc+r+1}], v[{cc+r}:{cc+r+1}], v[{cc+r}:{cc+r+1}]")
                I(a, f"v_cvt_pk_bf16_f32 v{t}, v{cc}, v{cc+1}"); I(a, f"v_cvt_pk_bf16_f32 v{t+1}, v{cc+2}, v{cc+3}")
                I(a, f"ds_write_b64 v{20+nb}, v[{t}:{t+1}] offset:{mb*2048}")
        I(a, "s_waitcnt lgkmcnt(0)"); I(a, "s_barrier")
    st(6); st(7)
    if fused: I(a, "s_branch f_cp")
    elif fstamp: st0.dump(8, 0)
    else: st.dump(8, 0)
    a.label("p1_end")
    I(a, "s_endpgm")
    a.label("p1_hook")
    I(a, "s_cmp_gt_u32 s69, 527"); I(a, "s_cbranch_scc1 p1_c_mid")
    I(a, "s_waitcnt vmcnt(0)")
    I(a, "s_branch p1_c_mid")
    a.label("aw_entry")
    sa = StampsAt(a, astamp, 70)
    if astamp: sa(0)
    awg3.a_wg(a, stamps=sa if astamp else None, ysc=('sc0 sc1' if fused else os.environ.get('YSC', '')), fused=fused)
    return g

def setup16_noclobber(a, g):
    import math
    lw = int(math.log2(g.WM)); V_QA = gemm3.V_QA; V_PA = gemm3.V_PA
    I(a, f"s_and_b32 s{S_TMP}, s{S_WAVE}, {g.WM-1}"); I(a, f"s_lshr_b32 s{S_TMP2}, s{S_WAVE}, {lw}")
    I(a, "v_and_b32 v27, 15, v1"); I(a, f"s_mul_i32 s{S_DELTA}, s{S_TMP}, {g.wm*128}"); I(a, "v_lshlrev_b32 v27, 7, v27"); I(a, f"v_add_u32 v27, s{S_DELTA}, v27")
    I(a, "v_lshrrev_b32 v28, 4, v1"); I(a, "v_bfe_u32 v29, v1, 1, 3"); I(a, "v_xor_b32 v28, v28, v29")
    for ks in range(2):
        I(a, f"v_xor_b32 v30, {4*ks}, v28"); I(a, f"v_lshl_add_u32 v{V_QA+ks}, v30, 4, v27")
    I(a, "v_bfe_u32 v27, v1, 2, 2"); I(a, "v_lshrrev_b32 v28, 4, v1"); I(a, "v_lshl_add_u32 v29, v28, 3, v27")
    I(a, f"v_lshlrev_b32 v29, 8, v29"); I(a, f"v_add_u32 v29, {g.QB}, v29")
    I(a, "v_and_b32 v30, 1, v1"); I(a, "v_lshl_add_u32 v29, v30, 3, v29")
    I(a, "v_bfe_u32 v30, v1, 1, 1")
    I(a, f"s_mul_i32 s{S_DELTA}, s{S_TMP2}, {g.wn//8}"); I(a, f"v_add_u32 v30, s{S_DELTA}, v30")
    I(a, "v_lshlrev_b32 v27, 2, v27"); I(a, "v_and_b32 v28, 1, v28"); I(a, "v_lshlrev_b32 v28, 1, v28"); I(a, "v_xor_b32 v27, v27, v28")
    NB, MB = nblk16(g)
    for nb in range(NB):
        I(a, f"v_add_u32 v31, {2*nb}, v30"); I(a, "v_xor_b32 v31, v31, v27"); I(a, f"v_lshl_add_u32 v{V_PA+nb}, v31, 4, v29")
    I(a, f"s_mov_b32 s{S_DN}, {(-(g.NS-1)*g.STAGE) & 0xffffffff}"); I(a, f"s_mov_b32 s{S_DP}, {g.STAGE}")
```

```python
from asmgen import *
from gemm2 import *
import gemm3
from gemm3 import acc16, loader_voffsets16, compute_setup16, compute_loop16
from p1v2 import load_ptr
from p2 import StampsAt, add64, Y_OFF, YP, YARR, G_OFF, FLAG_OFF
from p2b import y_loads, y_loads_pre, y_loads_i, y_precombine, T1
XS_OFF = 40 << 20

import os
YSPLIT = int(os.environ.get("YSPLIT", "9"))
WFLAG = int(os.environ.get("WFLAG", "0"))
HSLEEP = int(os.environ.get("HSLEEP", "2"))
DIST = int(os.environ.get("DIST", "1"))
PFP = int(os.environ.get("PFP", "0")); PFD = int(os.environ.get("PFD", "6"))
HF_OFF = 35 << 20
def k_k2(a, name, stamps=False, NS=4, trace=False, fused=None):
    g = G(BM=128, BN=128, WM=2, WN=2, NS=NS, ldq=7168, ldp=2048, nk=28, pref="p2")
    st = StampsAt(a, stamps, 70)
    def common():
        load_ptr(a, 6, 64); load_ptr(a, 20, 72); load_ptr(a, 22, 88); load_ptr(a, 4, 104)
        if fused: load_ptr(a, 62, 96)
        else: lane_wave(a)
        I(a, "s_lshr_b32 s27, s2, 3")
        I(a, "s_bfe_u32 s67, s2, 0x10001")
        I(a, "s_bfe_u32 s28, s2, 0x10002"); I(a, "s_lshl_b32 s28, s28, 3"); I(a, "s_lshr_b32 s30, s27, 2"); I(a, "s_add_u32 s28, s28, s30")
        I(a, "s_and_b32 s29, s2, 1"); I(a, "s_lshl_b32 s29, s29, 2"); I(a, "s_and_b32 s30, s27, 3"); I(a, "s_add_u32 s29, s29, s30")
        I(a, f"s_mul_i32 s{S_QOFF}, s28, {128*7168}")
        I(a, f"s_mul_i32 s30, s67, {1792*2}"); I(a, f"s_add_u32 s{S_QOFF}, s{S_QOFF}, s30")
        I(a, f"s_mul_i32 s{S_POFF}, s29, {128*2}")
        I(a, f"s_mul_i32 s30, s67, {1792*2048}"); I(a, f"s_add_u32 s{S_POFF}, s{S_POFF}, s30")
        I(a, f"s_and_b32 s31, s{S_WAVE}, 1"); I(a, "s_lshl_b32 s31, s31, 6"); I(a, "s_lshl_b32 s30, s28, 7"); I(a, "s_add_u32 s30, s30, s31")
        I(a, "s_lshl_b32 s31, s67, 5"); I(a, "s_add_u32 s30, s30, s31")
        I(a, f"s_bfe_u32 s31, s{S_WAVE}, 0x10001"); I(a, "s_lshl_b32 s31, s31, 7"); I(a, "s_lshl_b32 s66, s29, 8"); I(a, "s_add_u32 s31, s31, s66")
    PX = 2
    PER = g.PER
    if not fused:
        kernel_begin(a, name)
        st(0)
        I(a, "s_cmp_ge_u32 s2, 256"); I(a, "s_cbranch_scc1 p2_end")
        common()
        I(a, f"s_cmp_ge_u32 s{S_WAVE}, 4"); I(a, "s_cbranch_scc0 p2_compute")
        I(a, f"s_sub_u32 s{S_WAVE}, s{S_WAVE}, 4")
    else:
        a.label("f_ld")
        st(1)
        common()
    loader_voffsets16(a, g, s_perm=67, nblk=2)
    I(a, "s_waitcnt lgkmcnt(0)")
    if not fused: st(1)
    srd(a, S_PSRD, 6, 3584*1024*2); srd(a, S_QSRD, 4, 2048*3584*2)
    if fused:
        FS = 52
        I(a, "s_mov_b32 s6, s4"); I(a, "s_mov_b32 s7, s5"); add64(a, 6, HF_OFF); srd(a, FS, 6, 128*1024)
        st(2)
        I(a, "s_barrier")
        def p_part(s_):
            I(a, f"s_add_u32 m0, s{S_MP}, {s_*g.STAGE}"); I(a, f"s_add_u32 s58, s{S_POFF}, {s_*64*g.ldp}")
            for i in range(g.np_):
                I(a, f"buffer_load_dwordx4 v{VL+g.nq+i}, s[{S_PSRD}:{S_PSRD+3}], s58 offen offset:{(i&3)*1024} lds")
        def q_part(s_):
            I(a, f"s_add_u32 m0, s{S_MQ}, {s_*g.STAGE}"); I(a, f"s_add_u32 s58, s{S_QOFF}, {s_*128}")
            for i in range(g.nq):
                I(a, f"buffer_load_dwordx4 v{VL+i}, s[{S_QSRD}:{S_QSRD+3}], s58 offen offset:{(i&3)*1024} lds")
        for s_ in range(NS): p_part(s_)
        st(3)
        I(a, "s_barrier")
        for s_ in range(NS): q_part(s_)
        I(a, f"s_add_u32 s{S_QOFF}, s{S_QOFF}, {NS*128}"); I(a, f"s_add_u32 s{S_POFF}, s{S_POFF}, {NS*64*g.ldp}")
        I(a, f"s_waitcnt vmcnt({(NS-1)*g.nq})")
        st(4)
        I(a, "s_barrier")
    else:
        st(2)
    if not fused:
        stage_issue(a, g)
        st(3)
        stage_issue(a, g)
        I(a, f"s_waitcnt vmcnt({PER})")
        st(4)
        I(a, "s_barrier")
        for s in range(2, NS): stage_issue(a, g)
    srd(a, 16, 22, 2048*1024*2)
    I(a, "s_mov_b32 s6, s4"); I(a, "s_mov_b32 s7, s5"); add64(a, 6, Y_OFF); srd(a, 24, 6, 4*YARR)
    I(a, "s_mov_b32 s6, s4"); I(a, "s_mov_b32 s7, s5"); add64(a, 6, G_OFF); srd(a, 36, 6, 2048*8)
    I(a, f"s_mov_b32 s63, {YARR}"); I(a, f"s_mov_b32 s64, {2*YARR}"); I(a, f"s_mov_b32 s65, {3*YARR}")
    X = 0
    if trace:
        X = 1
        I(a, "s_add_u32 s60, s4, 0x6400000"); I(a, "s_addc_u32 s61, s5, 0"); srd(a, 56, 60, 1<<22)
        I(a, "s_lshl_b32 s62, s2, 12"); I(a, f"s_lshl_b32 s68, s{S_WAVE}, 10"); I(a, "s_add_u32 s68, s68, s62"); I(a, "v_mov_b32 v30, 0")
    def tr():
        if not trace: return
        I(a, "s_memrealtime s[90:91]"); I(a, "s_memtime s[92:93]"); I(a, "s_waitcnt lgkmcnt(0)")
        I(a, "v_mov_b32 v28, s90"); I(a, "v_mov_b32 v29, s92")
        I(a, "buffer_store_dwordx2 v[28:29], v30, s[56:59], s68 offen"); I(a, "s_add_u32 s68, s68, 8")
    if PFP and not trace:
        P = PFP
        I(a, f"s_lshl_b32 s58, s{S_WAVE}, 6"); I(a, "v_add_u32 v20, s58, v1")
        I(a, "s_bfe_u32 s58, s2, 0x20003"); I(a, "s_lshl_b32 s58, s58, 5")
        I(a, "v_and_b32 v21, 31, v20"); I(a, "v_add_u32 v21, s58, v21"); I(a, f"v_mul_u32_u24 v21, {g.ldq}, v21")
        I(a, "v_lshrrev_b32 v22, 5, v20"); I(a, "v_lshl_add_u32 v21, v22, 7, v21")
        I(a, f"v_cmp_gt_u32 vcc, {32*P}, v20"); I(a, "v_mov_b32 v23, 0x7ffffff0"); I(a, "s_nop 0"); I(a, "v_cndmask_b32 v21, v23, v21, vcc")
        I(a, "v_sub_u32 v24, 255, v20")
        I(a, "s_bfe_u32 s58, s2, 0x30005"); I(a, "s_lshl_b32 s58, s58, 3")
        I(a, "v_and_b32 v25, 7, v24"); I(a, "v_add_u32 v25, s58, v25")
        I(a, "v_lshrrev_b32 v26, 4, v24"); I(a, "v_lshl_add_u32 v25, v26, 6, v25")
        I(a, "v_lshlrev_b32 v25, 11, v25"); I(a, "v_bfe_u32 v26, v24, 3, 1"); I(a, "v_lshl_add_u32 v25, v26, 7, v25")
        I(a, f"v_cmp_gt_u32 vcc, {16*P}, v24"); I(a, "s_nop 1"); I(a, "v_cndmask_b32 v25, v23, v25, vcc")
        assert 48*P <= 256
        nst = g.nk - NS
        npf = 2
        def cntpf(i):
            return npf * sum(1 for j in (i-3, i-2, i-1) if j >= 0 and j % P == 0 and active(j))
        def active(j): return j + NS + PFD0 < g.nk
        PFD0 = PFD - NS if PFD >= NS else 0
        for i in range(nst):
            I(a, f"s_waitcnt vmcnt({(NS-2)*PER + cntpf(i)})"); I(a, "s_barrier"); stage_issue(a, g)
            if i % P == 0 and active(i):
                I(a, f"s_add_u32 s58, s{S_QOFF}, {PFD0*128}"); I(a, f"s_add_u32 s59, s{S_POFF}, {PFD0*64*g.ldp}")
                I(a, f"buffer_load_dword v27, v21, s[{S_QSRD}:{S_QSRD+3}], s58 offen")
                I(a, f"buffer_load_dword v27, v25, s[{S_PSRD}:{S_PSRD+3}], s59 offen")
        PFX = sum(npf for j in (nst-3, nst-2, nst-1) if j % P == 0 and active(j))
        assert PFX == 0 or True
    elif fused:
        assert NS == 4 and g.nq == 4 and PER == 8
        I(a, "s_waitcnt vmcnt(8)"); I(a, "s_barrier"); stage_issue(a, g)
        I(a, "s_waitcnt vmcnt(12)"); I(a, "s_barrier"); stage_issue(a, g)
        I(a, f"s_mov_b32 s{S_CNT}, 18")
        a.label("p2_ld_loop")
        I(a, "s_waitcnt vmcnt(16)")
        I(a, f"s_cmp_eq_u32 s{S_CNT}, 14"); I(a, "s_cbranch_scc1 p2_ld_ypub")
        a.label("p2_ld_ypub_r")
        I(a, "s_barrier"); stage_issue(a, g)
        a.label("p2_ld_ypub_r2")
        I(a, f"s_sub_u32 s{S_CNT}, s{S_CNT}, 1"); I(a, f"s_cmp_lg_u32 s{S_CNT}, 0"); I(a, "s_cbranch_scc1 p2_ld_loop")
        ypub = Asm(); ypub.nlabel = a.nlabel + 1000
        ypub.label("p2_ld_ypub")
        I(ypub, "s_cmp_eq_u32 s35, 1"); I(ypub, "s_cbranch_scc0 p2_ld_ypub_r")
        I(ypub, "s_waitcnt vmcnt(0)"); I(ypub, "s_barrier")
        I(ypub, f"s_cmp_eq_u32 s{S_WAVE}, 3"); I(ypub, "s_cbranch_scc0 p2_ld_ypub_n")
        I(ypub, "v_mov_b32 v29, s34")
        I(ypub, f"buffer_store_dword v29, v28, s[{FS}:{FS+3}], 0 offen sc1")
        ypub.label("p2_ld_ypub_n")
        stage_issue(ypub, g)
        I(ypub, "s_branch p2_ld_ypub_r2")
        fused["ypub"] = ypub.lines
        I(a, "s_and_b32 s58, s2, 7"); I(a, "s_lshl_b32 s58, s58, 7"); I(a, "s_add_u32 s58, s58, 65536")
        I(a, "v_lshlrev_b32 v30, 2, v1"); I(a, "v_add_u32 v30, s58, v30"); I(a, "v_mov_b32 v25, 0x7ffffff0")
        I(a, f"s_cmp_eq_u32 s{S_WAVE}, 3"); I(a, "s_cselect_b32 s58, 32, 0"); I(a, "v_cmp_gt_u32 vcc, s58, v1"); I(a, "s_nop 1"); I(a, "v_cndmask_b32 v30, v25, v30, vcc")
        I(a, "s_waitcnt vmcnt(16)"); I(a, "s_barrier"); stage_issue(a, g)
        I(a, f"buffer_load_dword v31, v30, s[{FS}:{FS+3}], 0 offen sc1")
        I(a, "s_waitcnt vmcnt(17)"); I(a, "s_barrier"); stage_issue(a, g)
        I(a, "s_waitcnt vmcnt(17)"); I(a, "s_barrier"); stage_issue(a, g)
        I(a, "s_waitcnt vmcnt(16)")
        labq = a.newlabel("yq"); labl = a.newlabel("yl")
        I(a, f"s_cmp_eq_u32 s{S_WAVE}, 3"); I(a, f"s_cbranch_scc0 {labq}")
        I(a, "s_mov_b32 s59, 0x8000")
        a.label(labl)
        I(a, "v_cmp_ne_u32 vcc, s34, v31"); I(a, "s_nop 4")
        I(a, "s_cmp_eq_u32 vcc_lo, 0"); I(a, f"s_cbranch_scc1 {labq}")
        I(a, "s_sub_u32 s59, s59, 1"); I(a, f"s_cbranch_scc1 {labq}")
        I(a, f"buffer_load_dword v31, v30, s[{FS}:{FS+3}], 0 offen sc1"); I(a, "s_waitcnt vmcnt(0)")
        I(a, f"s_branch {labl}")
        a.label(labq)
        I(a, "s_barrier"); stage_issue(a, g)
    else:
        PFX = 0
        I(a, f"s_mov_b32 s{S_CNT}, {g.nk-NS}")
        if trace:
            I(a, f"s_waitcnt vmcnt({(NS-2)*PER})"); I(a, "s_barrier"); tr(); stage_issue(a, g)
            I(a, f"s_waitcnt vmcnt({(NS-3)*PER + PER+1})"); I(a, "s_barrier"); tr(); stage_issue(a, g)
            I(a, f"s_mov_b32 s{S_CNT}, {g.nk-NS-2}")
        a.label("p2_ld_loop")
        I(a, f"s_waitcnt vmcnt({(NS-2)*(PER+X)})"); I(a, "s_barrier"); tr(); stage_issue(a, g)
        I(a, f"s_sub_u32 s{S_CNT}, s{S_CNT}, 1"); I(a, f"s_cmp_lg_u32 s{S_CNT}, 0"); I(a, "s_cbranch_scc1 p2_ld_loop")
    E = 164
    def extra_rows():
        if not DIST: return
        lab = a.newlabel("r4")
        I(a, "s_cmp_eq_u32 s30, 1024"); I(a, f"s_cbranch_scc0 {lab}")
        I(a, "v_cmp_gt_u32 vcc, 8, v1"); I(a, "v_mov_b32 v45, 0x7ff00000"); I(a, "s_nop 0"); I(a, "v_cndmask_b32 v44, v45, v43, vcc")
        for z in range(1, 4):
            r = E + 8*(z-1)
            I(a, f"s_mov_b32 s58, {(1024+z)*YP}"); I(a, f"s_add_u32 s59, s58, s63")
            I(a, f"buffer_load_dwordx3 v[{r}:{r+2}], v44, s[24:27], s58 offen")
            I(a, f"buffer_load_dwordx2 v[{r+4}:{r+5}], v44, s[24:27], s59 offen")
        a.label(lab)
    if YSPLIT == 9:
        YM = 16384; YX = 49152
        y_loads_pre(a, 30, 31, "p2")
        I(a, "s_lshl_b32 s60, s29, 7"); I(a, "s_sub_u32 s61, 896, s60"); I(a, "s_cmp_eq_u32 s62, 1"); I(a, "s_cselect_b32 s60, s61, s60")
        I(a, f"s_lshr_b32 s58, s{S_WAVE}, 1"); I(a, "s_lshl_b32 s59, s58, 4")
        for q in range(2):
            I(a, f"v_lshrrev_b32 v44, 3, v1"); I(a, f"v_add_u32 v44, s30, v44"); I(a, f"v_add_u32 v44, s59, v44"); I(a, f"v_add_u32 v44, {8*q}, v44")
            I(a, "v_sub_u32 v45, 2048, v44"); I(a, "v_min_u32 v45, v44, v45"); I(a, f"v_mul_u32_u24 v45, {YP}, v45")
            I(a, "v_and_b32 v44, 7, v1"); I(a, f"v_lshl_add_u32 v{20+q}, v44, 4, v45"); I(a, f"v_add_u32 v{20+q}, s60, v{20+q}")
        I(a, f"s_and_b32 s61, s{S_WAVE}, 1"); I(a, "s_lshl_b32 s61, s61, 12"); I(a, "s_lshl_b32 s59, s59, 7"); I(a, "s_add_u32 s61, s61, s59"); I(a, f"s_add_u32 s61, s61, {YM}")
        def ydma(arr):
            so = ["0", "s63", "s64", "s65"][arr]
            for q in range(2):
                I(a, f"s_add_u32 m0, s61, {arr*8192 + q*1024}"); I(a, "s_nop 0")
                I(a, f"buffer_load_dwordx4 v{20+q}, s[24:27], {so} offen lds")
        I(a, "s_lshl_b32 s59, s28, 7"); I(a, "s_lshl_b32 s58, s67, 5"); I(a, "s_add_u32 s59, s59, s58")
        I(a, "v_lshrrev_b32 v44, 5, v1"); I(a, "v_lshlrev_b32 v44, 6, v44"); I(a, "v_and_b32 v45, 31, v1"); I(a, "v_add_u32 v44, v44, v45"); I(a, "v_add_u32 v44, s59, v44")
        I(a, "v_sub_u32 v45, 2048, v44"); I(a, "v_min_u32 v45, v44, v45"); I(a, f"v_mul_u32_u24 v22, {YP}, v45"); I(a, "v_add_u32 v22, s60, v22"); I(a, "v_add_u32 v22, 128, v22")
        ny = 0
        for j, t in enumerate(range(g.nk - NS, g.nk)):
            rem = max(min(t + NS - 1, g.nk - 1) - (t + 1), 0)
            if t + 1 <= g.nk - 1: I(a, f"s_waitcnt vmcnt({rem*(PER+X) + ny})")
            else: I(a, f"s_waitcnt vmcnt({5 if fused else 4})")
            I(a, "s_barrier")
            if j == 0:
                ydma(0); ydma(1); ny += 4
            if j == 1:
                ydma(2); ydma(3); ny += 4
                lab = a.newlabel("yx"); labe = a.newlabel("yxe")
                I(a, "s_cmp_eq_u32 s62, 1"); I(a, f"s_cbranch_scc0 {lab}"); I(a, f"s_cmp_lt_u32 s{S_WAVE}, 2"); I(a, f"s_cbranch_scc0 {lab}")
                I(a, f"s_lshl_b32 s58, s{S_WAVE}, 10"); I(a, f"s_add_u32 m0, s58, {YX}"); I(a, f"s_mul_i32 s58, s{S_WAVE}, {2*YARR}")
                I(a, f"buffer_load_dwordx4 v22, s[24:27], s58 offen lds")
                I(a, f"s_branch {labe}")
                a.label(lab)
                I(a, "v_mov_b32 v23, 0x7ffffff0"); I(a, "buffer_load_dword v24, v23, s[24:27], 0 offen")
                a.label(labe)
                ny += 1
            if j == 2:
                for i in range(4):
                    I(a, f"v_add_u32 v44, {8*i}, v42"); I(a, f"v_lshlrev_b32 v44, 3, v44")
                    I(a, f"buffer_load_dwordx2 v[{32+i*2}:{32+i*2+1}], v44, s[36:39], 0 offen")
                ny += 4
                if fused:
                    srd(a, 92, 20, 2048)
                    I(a, "v_and_b32 v44, 7, v1"); I(a, "v_lshlrev_b32 v44, 4, v44")
                    I(a, "buffer_load_dwordx4 v[188:191], v44, s[92:95], s31 offen")
                    ny += 1
        extra_rows()
        I(a, f"s_and_b32 s61, s{S_WAVE}, 1"); I(a, "s_lshl_b32 s58, s61, 12"); I(a, f"s_add_u32 s58, s58, {YM}")
        I(a, "v_lshrrev_b32 v44, 3, v1"); I(a, "v_lshlrev_b32 v45, 7, v44"); I(a, "v_add_u32 v45, s58, v45")
        I(a, "v_subrev_u32 v46, s60, v43")
        I(a, "v_add_u32 v20, v45, v46")
        I(a, "s_lshl_b32 s58, s61, 9"); I(a, f"s_add_u32 s58, s58, {YX}")
        I(a, "v_lshlrev_b32 v47, 4, v44"); I(a, "v_add_u32 v47, s58, v47")
        I(a, "v_cmp_eq_u32 vcc, 120, v46"); I(a, "v_add_u32 v21, 8, v20")
        labf = a.newlabel("yf"); labd = a.newlabel("yd")
        I(a, "s_cmp_eq_u32 s62, 1"); I(a, f"s_cbranch_scc0 {labf}")
        for i in range(4):
            b = 64 + i*16
            I(a, f"v_add_u32 v48, {i*1024}, v21"); I(a, f"v_add_u32 v49, {i*128}, v47"); I(a, "v_cndmask_b32 v22, v48, v49, vcc")
            I(a, f"v_add_u32 v48, {i*1024 + 2*8192}, v21"); I(a, f"v_add_u32 v49, {i*128 + 1024}, v47"); I(a, "v_cndmask_b32 v23, v48, v49, vcc")
            I(a, f"ds_read_b64 v[{b}:{b+1}], v20 offset:{i*1024}"); I(a, f"ds_read_b32 v{b+2}, v22")
            I(a, f"ds_read_b64 v[{b+4}:{b+5}], v20 offset:{i*1024 + 8192}")
            I(a, f"ds_read_b64 v[{b+8}:{b+9}], v20 offset:{i*1024 + 2*8192}"); I(a, f"ds_read_b32 v{b+10}, v23")
            I(a, f"ds_read_b64 v[{b+12}:{b+13}], v20 offset:{i*1024 + 3*8192}")
            if i % 2 == 1: I(a, "s_waitcnt lgkmcnt(0)")
        I(a, f"s_branch {labd}")
        a.label(labf)
        for i in range(4):
            b = 64 + i*16
            for z in range(4):
                I(a, f"ds_read_b64 v[{b+4*z}:{b+4*z+1}], v20 offset:{i*1024 + z*8192}")
            if i % 2 == 1: I(a, "s_waitcnt lgkmcnt(0)")
        a.label(labd)
    elif YSPLIT == 0:
        y_loads(a, 30, 31, "p2")
        extra_rows()
        for t in range(g.nk - NS, g.nk):
            rem = max(min(t + NS - 1, g.nk - 1) - (t + 1), 0)
            if t + 1 <= g.nk - 1: I(a, f"s_waitcnt vmcnt({rem*(PER+X) + 20})")
            I(a, "s_barrier")
    else:
        y_loads_pre(a, 30, 31, "p2")
        ny = 0
        sched = {1: [[0], [1], [2], [3]], 2: [[], [0, 1], [2, 3], []], 3: [[], [], [], [0, 1, 2, 3]], 4: [[], [0], [1], [2, 3]]}[YSPLIT]
        for j, t in enumerate(range(g.nk - NS, g.nk)):
            rem = max(min(t + NS - 1, g.nk - 1) - (t + 1), 0)
            if t + 1 <= g.nk - 1: I(a, f"s_waitcnt vmcnt({rem*(PER+X) + ny})")
            I(a, "s_barrier")
            for i in sched[j]:
                y_loads_i(a, i); ny += 5
        extra_rows()
    st(5)
    I(a, "s_waitcnt vmcnt(0)")
    if DIST:
        lab = a.newlabel("r5")
        I(a, "s_cmp_eq_u32 s30, 1024"); I(a, f"s_cbranch_scc0 {lab}")
        for off in (0, 1, 2, 4, 5):
            d = 64 + off
            I(a, f"v_lshlrev_b32 v46, 16, v{d}"); I(a, f"v_and_b32 v47, 0xffff0000, v{d}")
            for z in range(1, 4):
                r = E + 8*(z-1) + off
                I(a, f"v_lshlrev_b32 v48, 16, v{r}"); I(a, f"v_and_b32 v49, 0xffff0000, v{r}")
                I(a, "v_pk_add_f32 v[46:47], v[46:47], v[48:49]")
            I(a, f"v_cvt_pk_bf16_f32 v{d}, v46, v47")
        a.label(lab)
    y_precombine(a)
    if fused:
        for q in range(4):
            I(a, f"v_lshlrev_b32 v{192+2*q}, 16, v{188+q}"); I(a, f"v_and_b32 v{193+2*q}, 0xffff0000, v{188+q}")
        for i in range(4):
            og = 33 + 2*i
            I(a, f"v_mov_b32 v46, v{og}"); I(a, f"v_mov_b32 v47, v{og}")
            for p in range(4):
                d = T1 + i*8 + p*2
                I(a, f"v_pk_fma_f32 v[{d}:{d+1}], v[{192+2*p}:{193+2*p}], v[46:47], v[{d}:{d+1}]")
    W = 50
    I(a, f"s_lshl_b32 s66, s{S_WAVE}, 12")
    I(a, f"v_lshrrev_b32 v{W}, 3, v1"); I(a, f"v_and_b32 v{W+2}, 7, v1"); I(a, f"v_xor_b32 v{W+2}, v{W+2}, v{W}")
    I(a, f"v_lshlrev_b32 v{W+3}, 7, v{W}"); I(a, f"v_lshl_add_u32 v{W+3}, v{W+2}, 4, v{W+3}"); I(a, f"v_add_u32 v{W+12}, s66, v{W+3}")
    I(a, f"v_add_u32 v{W}, s30, v{W}"); I(a, f"v_lshlrev_b32 v{W}, 11, v{W}"); I(a, f"v_and_b32 v{W+2}, 7, v1")
    I(a, f"v_lshl_add_u32 v{W}, v{W+2}, 4, v{W}"); I(a, f"v_add_u32 v{W+13}, s31, v{W}")
    st(6)
    if not WFLAG: I(a, "s_barrier"); I(a, "s_barrier")
    I(a, "s_barrier")
    for i in range(4):
        I(a, f"ds_read_b128 v[{64+4*i}:{64+4*i+3}], v{W+12} offset:{i*1024}")
    for i in range(4):
        I(a, f"s_waitcnt lgkmcnt({3-i})")
        og = 33 + 2*i
        I(a, f"v_mov_b32 v46, v{og}"); I(a, f"v_mov_b32 v47, v{og}")
        for p in range(4):
            bb = 64 + 4*i + p; d = T1 + i*8 + p*2
            I(a, f"v_lshlrev_b32 v48, 16, v{bb}"); I(a, f"v_and_b32 v49, 0xffff0000, v{bb}")
            I(a, f"v_pk_fma_f32 v[{d}:{d+1}], v[48:49], v[46:47], v[{d}:{d+1}]")
            I(a, f"v_cvt_pk_bf16_f32 v{bb}, v{d}, v{d+1}")
        I(a, f"s_mov_b32 s{S_TMP2}, {i*8*2048}")
        I(a, f"buffer_store_dwordx4 v[{64+4*i}:{64+4*i+3}], v{W+13}, s[16:19], s{S_TMP2} offen {os.environ.get('OSC', 'sc0 sc1')}")
    if stamps: I(a, "s_waitcnt vmcnt(0)")
    st(7); st.dump(8, 1)
    I(a, "s_endpgm")
    if fused: a.lines += fused["ypub"]
    if fused:
        a.label("f_cp")
        st(1)
        common()
    else:
        a.label("p2_compute")
    compute_setup16(a, g)
    def xs_srds():
        I(a, "s_mov_b32 s6, s4"); I(a, "s_mov_b32 s7, s5"); add64(a, 6, XS_OFF); srd(a, 56, 6, 256*16384)
        I(a, "s_mov_b32 s6, s4"); I(a, "s_mov_b32 s7, s5"); add64(a, 6, FLAG_OFF); srd(a, 8, 6, 1024*128)
    def stg_addrs():
        I(a, f"s_lshl_b32 s66, s{S_WAVE}, 12")
        I(a, "v_and_b32 v18, 15, v1"); I(a, "v_lshlrev_b32 v19, 7, v18"); I(a, f"v_add_u32 v19, s66, v19")
        I(a, "v_bfe_u32 v24, v1, 4, 1"); I(a, "v_lshl_add_u32 v19, v24, 3, v19")
        I(a, "v_and_b32 v18, 7, v18"); I(a, "v_lshrrev_b32 v24, 5, v1")
        for nb in range(4):
            I(a, f"v_add_u32 v25, {2*nb}, v24"); I(a, "v_xor_b32 v25, v25, v18"); I(a, f"v_lshl_add_u32 v{20+nb}, v25, 4, v19")
    if fused:
        for nb in range(4):
            for mb in range(4):
                for r in range(4): I(a, f"v_mov_b32 v{acc16(g,nb,mb)+r}, 0")
        stg_addrs()
        I(a, "s_waitcnt lgkmcnt(0)")
        srd(a, 84 if not stamps else 88, 62, 256)
        NS_ = 84 if not stamps else 88
        I(a, "v_mov_b32 v27, 0"); I(a, f"buffer_load_dword v26, v27, s[{NS_}:{NS_+3}], 0 offen")
        xs_srds()
        I(a, "s_mov_b32 s6, s4"); I(a, "s_mov_b32 s7, s5"); add64(a, 6, HF_OFF)
        I(a, "s_lshr_b32 s64, s28, 1"); I(a, "s_lshl_b32 s64, s64, 9"); I(a, "s_mul_i32 s65, s67, 224"); I(a, "s_add_u32 s64, s64, s65")
        I(a, f"s_mov_b32 s60, s6"); I(a, "s_and_b32 s61, s7, 0xffff"); I(a, "s_mov_b32 s62, 131072"); I(a, "s_mov_b32 s63, 0x00020000")
        I(a, "v_lshlrev_b32 v30, 2, v1"); I(a, "v_add_u32 v30, s64, v30"); I(a, "v_mov_b32 v25, 0x7ffffff0"); I(a, "v_cmp_gt_u32 vcc, 56, v1"); I(a, "s_nop 1"); I(a, "v_cndmask_b32 v30, v25, v30, vcc")
        st(2)
        I(a, "s_barrier")
        I(a, "s_waitcnt vmcnt(0)")
        lp = a.newlabel("np"); lx = a.newlabel("npx")
        I(a, "s_mov_b32 s69, 0x8000")
        a.label(lp)
        I(a, "v_readfirstlane_b32 s68, v26")
        I(a, "s_sub_u32 s69, s69, 1"); I(a, f"s_cbranch_scc1 {lx}")
        I(a, "s_cmp_lg_u32 s68, 0"); I(a, f"s_cbranch_scc1 {lx}")
        I(a, f"buffer_load_dword v26, v27, s[{NS_}:{NS_+3}], 0 offen sc1"); I(a, "s_waitcnt vmcnt(0)")
        I(a, f"s_branch {lp}")
        a.label(lx)
        labl = a.newlabel("hl"); labq = a.newlabel("hq")
        I(a, f"s_cmp_eq_u32 s{S_WAVE}, 0"); I(a, f"s_cbranch_scc0 {labq}")
        I(a, "s_mov_b32 s69, 0x8000")
        a.label(labl)
        I(a, f"buffer_load_dword v31, v30, s[60:63], 0 offen sc1"); I(a, "s_waitcnt vmcnt(0)")
        I(a, "v_cmp_ne_u32 vcc, s68, v31"); I(a, "s_nop 4")
        I(a, "s_and_b32 s64, vcc_hi, 0xffffff"); I(a, "s_or_b32 s64, s64, vcc_lo"); I(a, f"s_cbranch_scc0 {labq}")
        I(a, "s_sub_u32 s69, s69, 1"); I(a, f"s_cbranch_scc1 {labq}")
        if HSLEEP: I(a, f"s_sleep {HSLEEP}")
        I(a, f"s_branch {labl}")
        a.label(labq)
        I(a, "s_barrier")
        st(3)
    else:
        for nb in range(4):
            for mb in (2, 3):
                for r in range(4): I(a, f"v_mov_b32 v{acc16(g,nb,mb)+r}, 0")
        I(a, "s_waitcnt lgkmcnt(0)")
        if not fused: st(1)
        if fused:
            srd(a, 84 if not stamps else 88, 62, 256)
            NS_ = 84 if not stamps else 88
            I(a, "v_mov_b32 v27, 0"); I(a, f"buffer_load_dword v26, v27, s[{NS_}:{NS_+3}], 0 offen")
        srd(a, 32, 20, 2048)
        I(a, "v_lshrrev_b32 v8, 4, v1"); I(a, "v_lshlrev_b32 v8, 3, v8")
        for nb in range(4):
            I(a, f"buffer_load_dwordx2 v[{10+2*nb}:{10+2*nb+1}], v8, s[32:35], s31 offen offset:{nb*32}")
        I(a, "s_mov_b32 s6, s4"); I(a, "s_mov_b32 s7, s5"); add64(a, 6, XS_OFF); srd(a, 56, 6, 256*16384)
        I(a, "s_mov_b32 s6, s4"); I(a, "s_mov_b32 s7, s5"); add64(a, 6, FLAG_OFF); srd(a, 8, 6, 1024*128)
        I(a, f"s_lshl_b32 s66, s{S_WAVE}, 12")
        I(a, "v_and_b32 v18, 15, v1"); I(a, "v_lshlrev_b32 v19, 7, v18"); I(a, f"v_add_u32 v19, s66, v19")
        I(a, "v_bfe_u32 v24, v1, 4, 1"); I(a, "v_lshl_add_u32 v19, v24, 3, v19")
        I(a, "v_and_b32 v18, 7, v18"); I(a, "v_lshrrev_b32 v24, 5, v1")
        for nb in range(4):
            I(a, f"v_add_u32 v25, {2*nb}, v24"); I(a, "v_xor_b32 v25, v25, v18"); I(a, f"v_lshl_add_u32 v{20+nb}, v25, 4, v19")
        I(a, "s_waitcnt vmcnt(0)")
        if fused:
            lp = a.newlabel("np"); lx = a.newlabel("npx")
            I(a, "s_mov_b32 s69, 0x8000")
            a.label(lp)
            I(a, "v_readfirstlane_b32 s68, v26")
            I(a, "s_sub_u32 s69, s69, 1"); I(a, f"s_cbranch_scc1 {lx}")
            I(a, "s_cmp_lg_u32 s68, 0"); I(a, f"s_cbranch_scc1 {lx}")
            I(a, f"buffer_load_dword v26, v27, s[{NS_}:{NS_+3}], 0 offen sc1"); I(a, "s_waitcnt vmcnt(0)")
            I(a, f"s_branch {lp}")
            a.label(lx)
        for nb in range(4):
            for j in range(4):
                src = 10 + 2*nb + j//2
                for mb in (0, 1):
                    d = acc16(g, nb, mb) + j
                    if j % 2 == 0: I(a, f"v_lshlrev_b32 v{d}, 16, v{src}")
                    else: I(a, f"v_and_b32 v{d}, 0xffff0000, v{src}")
        if fused:
            st(2)
            I(a, "s_barrier")
            I(a, "s_barrier")
            st(3)
    compute_loop16(a, g, stamp=(None if fused else f"s_memtime s[78:79]") if stamps else None)
    st(5)
    I(a, "s_nop 7"); I(a, "s_nop 7")
    I(a, "v_lshlrev_b32 v8, 4, v1")
    I(a, f"s_xor_b32 s61, s2, {PX}")
    I(a, f"s_lshl_b32 s60, s61, 14"); I(a, f"s_lshl_b32 s62, s{S_WAVE}, 12"); I(a, "s_add_u32 s60, s60, s62")
    for nb in range(4):
        t = 32 + nb*4
        for z, mb in enumerate((2, 3)):
            c = acc16(g, nb, mb)
            I(a, f"v_cvt_pk_bf16_f32 v{t+2*z}, v{c}, v{c+1}"); I(a, f"v_cvt_pk_bf16_f32 v{t+2*z+1}, v{c+2}, v{c+3}")
        I(a, f"buffer_store_dwordx4 v[{t}:{t+3}], v8, s[56:59], s60 offen offset:{nb*1024} sc1")
    if not fused: st(2)
    I(a, "s_waitcnt vmcnt(0)")
    if not fused: st(3)
    if WFLAG:
        I(a, f"s_lshl_b32 s62, s2, 2"); I(a, f"s_add_u32 s62, s62, s{S_WAVE}"); I(a, "s_lshl_b32 s62, s62, 7"); I(a, "v_mov_b32 v12, s62"); I(a, "v_mov_b32 v13, 1")
        I(a, f"buffer_store_dword v13, v12, s[8:11], 0 offen sc1")
        I(a, f"s_lshl_b32 s62, s61, 2"); I(a, f"s_add_u32 s62, s62, s{S_WAVE}"); I(a, "s_lshl_b32 s62, s62, 7"); I(a, "v_mov_b32 v12, s62")
        I(a, "s_mov_b32 s69, 0x20000")
        a.label("p2_poll")
        I(a, f"buffer_load_dword v13, v12, s[8:11], 0 offen sc1")
        I(a, "s_waitcnt vmcnt(0)")
        I(a, "v_readfirstlane_b32 s62, v13")
        I(a, "s_sub_u32 s69, s69, 1"); I(a, "s_cbranch_scc1 p2_waitb")
        I(a, "s_cmp_eq_u32 s62, 1"); I(a, "s_cbranch_scc0 p2_poll")
        a.label("p2_waitb")
    else:
        I(a, "s_barrier")
        I(a, f"s_cmp_eq_u32 s{S_WAVE}, 0"); I(a, "s_cbranch_scc0 p2_waitb")
        I(a, "s_lshl_b32 s62, s2, 7"); I(a, "v_mov_b32 v12, s62"); I(a, "v_mov_b32 v13, s68" if fused else "v_mov_b32 v13, 1")
        I(a, f"buffer_store_dword v13, v12, s[8:11], 0 offen sc1")
        I(a, "s_lshl_b32 s62, s61, 7"); I(a, "v_mov_b32 v12, s62")
        I(a, "s_mov_b32 s69, 0x20000")
        a.label("p2_poll")
        I(a, f"buffer_load_dword v13, v12, s[8:11], 0 offen sc1")
        I(a, "s_waitcnt vmcnt(0)")
        I(a, "v_readfirstlane_b32 s62, v13")
        I(a, "s_sub_u32 s69, s69, 1"); I(a, "s_cbranch_scc1 p2_waitb")
        I(a, "s_cmp_eq_u32 s62, s68" if fused else "s_cmp_eq_u32 s62, 1"); I(a, "s_cbranch_scc0 p2_poll")
        a.label("p2_waitb")
        I(a, "s_barrier")
    st(6)
    I(a, f"s_lshl_b32 s60, s2, 14"); I(a, f"s_lshl_b32 s62, s{S_WAVE}, 12"); I(a, "s_add_u32 s60, s60, s62")
    for nb in range(4):
        t = 32 + nb*4
        I(a, f"buffer_load_dwordx4 v[{t}:{t+3}], v8, s[56:59], s60 offen offset:{nb*1024} sc1")
    for nb in range(4):
        t = 32 + nb*4
        I(a, f"s_waitcnt vmcnt({3-nb})")
        for z, mb in enumerate((0, 1)):
            c = acc16(g, nb, mb)
            for hh in range(2):
                I(a, f"v_lshlrev_b32 v10, 16, v{t+2*z+hh}"); I(a, f"v_and_b32 v11, 0xffff0000, v{t+2*z+hh}")
                I(a, f"v_pk_add_f32 v[{c+2*hh}:{c+2*hh+1}], v[{c+2*hh}:{c+2*hh+1}], v[10:11]")
            tt = 48 + (nb*2+z)*2
            I(a, f"v_cvt_pk_bf16_f32 v{tt}, v{c}, v{c+1}"); I(a, f"v_cvt_pk_bf16_f32 v{tt+1}, v{c+2}, v{c+3}")
            I(a, f"ds_write_b64 v{20+nb}, v[{tt}:{tt+1}] offset:{mb*2048}")
    I(a, "s_waitcnt lgkmcnt(0)")
    I(a, "s_barrier")
    st(7); st.dump(8, 0)
    a.label("p2_end")
    I(a, "s_endpgm")
    return g
```

```python
from asmgen import *
from gemm2 import S_WAVE, S_TMP, S_TMP2, S_DELTA, S_CNT, S_LEFT, S_STG, S_QOFF, S_POFF, S_MQ, S_MP, S_DN, S_DP, interleave
from p1v2 import load_ptr
from p2 import add64, Y_OFF, YP, YARR
from k0 import XF_OFF, XFP, XFARR
import os
AEXP = int(os.environ.get("AEXP", "0"))
ROT = int(os.environ.get("AROT", "0"))
MDPF = os.environ.get("MDPF", "h1")
MDH1 = os.environ.get("MDH1", "reg")
PFDELAY = int(os.environ.get("PFDELAY", "0"))
MSPF = int(os.environ.get("MSPF", "1"))
MSR = int(os.environ.get("MSR", "1"))
ASTG = int(os.environ.get("ASTG", "0"))
PDBG = int(os.environ.get("PDBG", "0"))
MDLOOP = int(os.environ.get("MDLOOP", "0"))
WARM = int(os.environ.get("WARM", "1"))
PADEV = int(os.environ.get("PADEV", "41"))
MDPRE = int(os.environ.get("MDPRE", "1"))
NWX = int(os.environ.get("NWX", "2"))
NCH = int(os.environ.get("NCH", "6"))
NODOT = int(os.environ.get("NODOT", "1"))
B0T = int(os.environ.get("B0T", "0"))
NPOLL = int(os.environ.get("NPOLL", "1"))
PSLEEP = int(os.environ.get("PSLEEP", "2"))
PSLEEP0 = int(os.environ.get("PSLEEP0", "0"))
EARLYINV = int(os.environ.get("EARLYINV", "1"))
FOLDF_OFF = 34 << 20
QSRD = 8; PSRD = 12; MSRD = 16; YSRD = 20
STG = 53248; QB = 16384
RSZ = 16384
SMALL = 8*RSZ
CV = 153600
CX = CV + 1024
ACC_A = 112; ACC_B = 128
FA = 16
TB = 16

def a_regs(s):
    b = FA + 40*s
    return [b + 4*i for i in range(9)], b + 36
def a_reads(s, kk):
    A, B = a_regs(s)
    out = [f"ds_read_b128 v[{B}:{B+3}], v{3+kk}"]
    for nb in range(9):
        if AEXP == 1 and nb % 2 == 1: continue
        for h in range(2):
            out.append(f"ds_read_b64_tr_b16 v[{A[nb]+2*h}:{A[nb]+2*h+1}], v2 offset:{(16*kk+4*h)*XFP + nb*64}")
    return out
def a_mfmas(s):
    A, B = a_regs(s)
    return [f"v_mfma_f32_32x32x16_bf16 v[{ACC_A+16*nb}:{ACC_A+16*nb+15}], v[{A[nb]}:{A[nb]+3}], v[{B}:{B+3}], v[{ACC_A+16*nb}:{ACC_A+16*nb+15}]" for nb in range(9)]

BF = [[84, 88, 92, 96], [100, 104, 108, 112], [116, 120, 124, 12]]

def sidx_to(a, j, dst):
    if j >= 8: I(a, f"s_mov_b32 s{dst}, 8")
    elif ROT: I(a, f"s_add_u32 s{dst}, s67, {j}"); I(a, f"s_and_b32 s{dst}, s{dst}, 7")
    else: I(a, f"s_mov_b32 s{dst}, {j}")
def a_issue_q(a, s_stg, j):
    sidx_to(a, j, 59); I(a, "s_lshl_b32 s59, s59, 7"); I(a, f"s_add_u32 s59, s59, s{S_QOFF}")
    I(a, f"s_add_u32 m0, s{s_stg}, s{S_MQ}"); I(a, "s_nop 0")
    for i in range(4):
        I(a, f"buffer_load_dwordx4 v{2+i}, s[{QSRD}:{QSRD+3}], s59 offen offset:{i*1024} lds")
def a_issue_p(a, j):
    sidx_to(a, j, 59); I(a, f"s_mul_i32 s{S_TMP}, s59, {64*XFP}"); I(a, f"s_add_u32 s{S_TMP}, s{S_TMP}, s{S_POFF}")
    I(a, f"s_add_u32 m0, s{S_STG}, s{S_MP}"); I(a, "s_nop 0")
    vv = 7 if j >= 8 else 6
    for i in range(9):
        if i and i % 4 == 0:
            I(a, "s_add_u32 m0, m0, 4096"); I(a, f"s_add_u32 s{S_TMP}, s{S_TMP}, 4096"); I(a, "s_nop 0")
        I(a, f"buffer_load_dwordx4 v{vv}, s[{PSRD}:{PSRD+3}], s{S_TMP} offen offset:{(i%4)*1024} lds")
    I(a, f"s_add_u32 s{S_STG}, s{S_STG}, {STG}")
    I(a, f"s_cmp_ge_u32 s{S_STG}, {3*STG}")
    I(a, f"s_cselect_b32 s{S_STG}, 0, s{S_STG}")
def a_stage_issue(a, j):
    a_issue_q(a, S_STG, j); a_issue_p(a, j)

MR = 112
def m_load(a, h, s):
    I(a, f"s_add_u32 s56, s54, {h*128*4096 + s*128}")
    for i in range(4):
        r = MR + ((h*4+s)*4 + i)*4
        I(a, f"buffer_load_dwordx4 v[{r}:{r+3}], v{96+i}, s[{MSRD}:{MSRD+3}], s56 offen offset:{i*1024}")
def m_load_small(a, h):
    I(a, f"s_add_u32 s56, s54, {h*128*4096 + 512}")
    r = MR + 128 + 4*h
    I(a, f"buffer_load_dwordx4 v[{r}:{r+3}], v100, s[{MSRD}:{MSRD+3}], s56 offen")
def m_write(a, h, s):
    slot = h*4 + s
    for i in range(4):
        r = MR + (slot*4 + i)*4
        I(a, f"ds_write_b128 v{8 + slot//4}, v[{r}:{r+3}] offset:{(slot%4)*RSZ + i*1024}")
def m_write_small(a, h):
    r = MR + 128 + 4*h
    I(a, f"ds_write_b128 v10, v[{r}:{r+3}] offset:{h*4096}")

CX2 = CX + 1024
def side_a(a, stage_off_s, tail=False):
    accs = [24, 16, 17, 18]
    R = 32
    end = a.newlabel("sae")
    if tail:
        I(a, f"s_cmp_eq_u32 s{S_WAVE}, 0"); I(a, f"s_cbranch_scc0 {end}")
    I(a, f"v_add_u32 v21, s{stage_off_s}, v20")
    for q in range(4):
        I(a, f"ds_read_b64_tr_b16 v[{R+4+2*q}:{R+4+2*q+1}], v21 offset:{q*4*XFP}")
    lab = a.newlabel("sz")
    I(a, "s_cmp_eq_u32 s61, 0"); I(a, f"s_cbranch_scc0 {lab}")
    I(a, f"v_add_u32 v19, s{stage_off_s}, v23")
    for z in range(2):
        I(a, f"ds_read_b64_tr_b16 v[{R+2*z}:{R+2*z+1}], v19 offset:{z*2*4*XFP}")
    I(a, "s_waitcnt lgkmcnt(0)")
    for z in range(2):
        I(a, f"v_dot2_f32_bf16 v25, v{R+2*z}, v22, v25"); I(a, f"v_dot2_f32_bf16 v12, v{R+2*z+1}, v22, v12")
    a.label(lab)
    I(a, "s_waitcnt lgkmcnt(0)")
    for q in range(4):
        I(a, f"v_dot2_f32_bf16 v{accs[(2*q) % 4]}, v{R+4+2*q}, v22, v{accs[(2*q) % 4]}")
        I(a, f"v_dot2_f32_bf16 v{accs[(2*q+1) % 4]}, v{R+4+2*q+1}, v22, v{accs[(2*q+1) % 4]}")
    a.label(end)

def m_issue(a, h, s):
    I(a, f"s_add_u32 m0, s55, {(h*4+s)*RSZ}")
    I(a, f"s_add_u32 s56, s54, {h*128*4096 + s*128}")
    for i in range(4):
        I(a, f"buffer_load_dwordx4 v{96+i}, s[{MSRD}:{MSRD+3}], s56 offen offset:{i*1024} lds")
def m_issue_small(a, h):
    I(a, f"s_lshl_b32 s56, s{S_WAVE}, 10"); I(a, f"s_add_u32 m0, s56, {SMALL + h*4096}")
    I(a, f"s_add_u32 s56, s54, {h*128*4096 + 512}")
    I(a, f"buffer_load_dwordx4 v100, s[{MSRD}:{MSRD+3}], s56 offen lds")

CR = 176
def side_b_setup(a):
    I(a, f"s_mul_i32 s56, s61, {RSZ}")
    for z in range(4):
        I(a, f"v_lshl_add_u32 v31, v13, 2, {z}")
        I(a, f"v_xor_b32 v11, v31, v27"); I(a, f"v_lshl_add_u32 v{32+z}, v11, 4, v26"); I(a, f"v_add_u32 v{32+z}, s56, v{32+z}"); I(a, f"v_add_u32 v{36+z}, 65536, v{32+z}")
        I(a, f"v_lshl_add_u32 v{40+z}, v31, 4, v30")
    I(a, "v_lshrrev_b32 v44, 2, v26"); I(a, "v_lshl_add_u32 v44, v13, 4, v44"); I(a, f"v_add_u32 v44, {SMALL}, v44")
    I(a, f"v_lshl_add_u32 v45, v13, 4, v30")
    for z in range(4):
        I(a, f"ds_read_b128 v[{CR+4*z}:{CR+4*z+3}], v{40+z}")
    I(a, f"ds_read_b128 v[{CR+16}:{CR+19}], v45 offset:512")
    I(a, "s_waitcnt lgkmcnt(0)")
def side_b_h(a, h):
    accs = (28, 14) if h == 0 else (29, 15)
    R = 112
    base = 32 + 4*h
    for z in range(4):
        I(a, f"ds_read_b128 v[{R+4*z}:{R+4*z+3}], v{base+z}")
    I(a, f"ds_read_b128 v[48:51], v44 offset:{h*4096}")
    for z in range(4):
        I(a, f"s_waitcnt lgkmcnt({4-z})")
        for q in range(4): I(a, f"v_dot2_f32_bf16 v{accs[q % 2]}, v{R+4*z+q}, v{CR+4*z+q}, v{accs[q % 2]}")
    lab = a.newlabel("sb")
    I(a, "s_waitcnt lgkmcnt(0)")
    I(a, "s_cmp_eq_u32 s61, 0"); I(a, f"s_cbranch_scc0 {lab}")
    for q in range(4): I(a, f"v_dot2_f32_bf16 v{accs[q % 2]}, v{48+q}, v{CR+16+q}, v{accs[q % 2]}")
    a.label(lab)

def y_store_setup(a):
    I(a, "s_mov_b32 s6, s4"); I(a, "s_mov_b32 s7, s5"); add64(a, 6, Y_OFF); srd(a, YSRD, 6, 4*YARR)
    I(a, "s_lshl_b32 s56, s62, 1"); I(a, "s_add_u32 s56, s56, s64"); I(a, f"s_mul_i32 s56, s56, {YARR}")
    I(a, f"s_lshl_b32 s57, s{S_WAVE}, 14")
    I(a, "v_lshrrev_b32 v44, 5, v1"); I(a, "v_and_b32 v45, 31, v1")
    I(a, "s_lshl_b32 s58, s61, 8"); I(a, "s_add_u32 s58, s58, s63"); I(a, f"s_lshl_b32 s59, s{S_WAVE}, 6"); I(a, "s_add_u32 s58, s58, s59")
    I(a, "v_lshl_add_u32 v46, v44, 1, s58"); I(a, f"v_mul_u32_u24 v46, {YP}, v46"); I(a, "v_lshl_add_u32 v46, v45, 4, v46")
    for z in range(4):
        I(a, f"v_add_u32 v47, {2*z}, v44"); I(a, "v_xor_b32 v56, v45, v47")
        I(a, "v_lshlrev_b32 v47, 9, v47"); I(a, "v_lshl_add_u32 v47, v56, 4, v47"); I(a, f"v_add_u32 v{104+z}, s57, v47")

def y_store(a, i0, ysc):
    for i in range(i0, i0+8):
        r = 64 + (i - i0)*4
        I(a, f"ds_read_b128 v[{r}:{r+3}], v{104 + (i % 4)} offset:{(i // 4)*4096}")
    for z in range(8):
        ii = i0 + z; rr = 64 + z*4
        I(a, f"s_waitcnt lgkmcnt({7-z})")
        I(a, f"s_add_u32 s59, s56, {ii*4*YP}")
        I(a, f"buffer_store_dwordx4 v[{rr}:{rr+3}], v46, s[{YSRD}:{YSRD+3}], s59 offen {ysc}")

def a_wg(a, stamps=None, pref="aw", pre_compute=None, pre_loader=None, ysc="", fused=None):
    st = stamps or (lambda i: None)
    stl = st
    if ASTG:
        stl = (lambda i: None)
    load_ptr(a, 24, 8, 4); load_ptr(a, 28, 24, 4); load_ptr(a, 4, 104); load_ptr(a, 36, 96)
    I(a, "s_and_b32 s60, s2, 7")
    I(a, "s_sub_u32 s61, s2, 224"); I(a, "s_lshr_b32 s61, s61, 3")
    I(a, "s_lshr_b32 s62, s60, 2"); I(a, "s_bfe_u32 s63, s60, 0x10001"); I(a, "s_and_b32 s64, s60, 1")
    I(a, "s_lshr_b32 s65, s60, 1"); I(a, "s_cmp_eq_u32 s65, 0"); I(a, "s_cselect_b32 s65, 1, 0")
    I(a, f"s_cmp_ge_u32 s{S_WAVE}, 4"); I(a, f"s_cbranch_scc0 {pref}_compute")
    I(a, f"s_sub_u32 s{S_WAVE}, s{S_WAVE}, 4")
    I(a, "v_lshrrev_b32 v40, 3, v1"); I(a, "v_lshrrev_b32 v41, 4, v1"); I(a, "v_and_b32 v42, 7, v1")
    I(a, f"s_mul_i32 s{S_TMP}, s{S_WAVE}, {32*8192}")
    I(a, "v_mul_u32_u24 v43, 8192, v40"); I(a, "v_xor_b32 v42, v42, v41"); I(a, f"v_add_u32 v43, s{S_TMP}, v43"); I(a, "v_lshl_add_u32 v43, v42, 4, v43"); I(a, "v_xor_b32 v44, 64, v43")
    for i in range(4):
        I(a, f"v_add_u32 v{2+i}, {i*8*8192 - i*1024}, v{44 if i & 1 else 43}")
    I(a, "v_lshlrev_b32 v6, 4, v1")
    I(a, f"s_cmp_eq_u32 s{S_WAVE}, 0"); I(a, f"s_cselect_b32 s{S_TMP}, 0, 0x7fff0000"); I(a, f"v_add_u32 v7, s{S_TMP}, v6")
    I(a, "s_lshl_b32 s67, s61, 1")
    I(a, f"s_mul_i32 s{S_TMP}, s{S_WAVE}, {32*4096}")
    I(a, "v_mul_u32_u24 v43, 4096, v40"); I(a, f"v_add_u32 v43, s{S_TMP}, v43"); I(a, "v_lshl_add_u32 v43, v42, 4, v43"); I(a, "v_xor_b32 v44, 64, v43")
    for i in range(4):
        I(a, f"v_add_u32 v{96+i}, {i*8*4096 - i*1024}, v{44 if i & 1 else 43}")
    I(a, "v_lshrrev_b32 v43, 1, v1"); I(a, "v_lshlrev_b32 v43, 12, v43"); I(a, f"v_add_u32 v43, s{S_TMP}, v43"); I(a, "v_and_b32 v44, 1, v1"); I(a, "v_lshl_add_u32 v100, v44, 4, v43")
    I(a, f"s_mul_i32 s{S_MQ}, s{S_WAVE}, 4096")
    I(a, f"s_mul_i32 s{S_MP}, s{S_WAVE}, 9216"); I(a, f"s_add_u32 s{S_MP}, s{S_MP}, {QB}")
    I(a, f"s_mul_i32 s55, s{S_WAVE}, 4096")
    I(a, f"s_mov_b32 s{S_STG}, 0")
    I(a, "s_lshl_b32 s56, s61, 8"); I(a, "s_add_u32 s56, s56, s63"); I(a, f"s_lshl_b32 s{S_QOFF}, s56, 12")
    I(a, f"s_mul_i32 s{S_POFF}, s60, {XFARR}"); I(a, f"s_mul_i32 s56, s{S_WAVE}, 9216"); I(a, f"s_add_u32 s{S_POFF}, s{S_POFF}, s56")
    I(a, "s_lshl_b32 s54, s64, 11")
    I(a, "v_bfe_u32 v40, v1, 2, 2"); I(a, f"v_mul_u32_u24 v40, {XFP}, v40")
    I(a, "v_and_b32 v41, 3, v1"); I(a, "v_lshl_add_u32 v40, v41, 3, v40"); I(a, f"v_add_u32 v40, {QB}, v40")
    I(a, "v_lshrrev_b32 v41, 4, v1")
    I(a, f"s_mul_i32 s56, s{S_WAVE}, {16*XFP}"); I(a, "s_lshl_b32 s57, s61, 7"); I(a, "s_add_u32 s56, s56, s57"); I(a, "v_lshl_add_u32 v20, v41, 5, v40"); I(a, "v_add_u32 v20, s56, v20")
    I(a, "v_and_b32 v41, 1, v41"); I(a, "v_lshl_add_u32 v23, v41, 5, v40"); I(a, "v_add_u32 v23, 512, v23")
    I(a, "v_lshrrev_b32 v41, 5, v1"); I(a, f"s_lshl_b32 s56, s{S_WAVE}, 2"); I(a, "v_add_u32 v41, s56, v41"); I(a, f"v_mul_u32_u24 v41, {4*XFP}, v41"); I(a, "v_add_u32 v23, v23, v41")
    I(a, "v_mov_b32 v22, 0xbf803f80")
    for r in (24, 16, 17, 18, 25, 12, 28, 14, 29, 15, 70, 71, 72, 73, 74, 75): I(a, f"v_mov_b32 v{r}, 0")
    I(a, f"s_lshl_b32 s56, s{S_WAVE}, 5"); I(a, "v_and_b32 v26, 31, v1"); I(a, "v_add_u32 v26, s56, v26"); I(a, "v_bfe_u32 v27, v26, 1, 3"); I(a, "v_lshlrev_b32 v26, 7, v26")
    I(a, "v_lshrrev_b32 v13, 5, v1"); I(a, f"v_mov_b32 v30, {CV}")
    I(a, "s_waitcnt lgkmcnt(0)")
    stl(1)
    I(a, "s_cmp_eq_u32 s62, 1")
    I(a, "s_cselect_b32 s24, s26, s24"); I(a, "s_cselect_b32 s25, s27, s25"); I(a, "s_cselect_b32 s28, s30, s28"); I(a, "s_cselect_b32 s29, s31, s29")
    srd(a, QSRD, 24, 2048*2048*2); srd(a, MSRD, 28, 1024*1024*2)
    I(a, "s_mov_b32 s6, s4"); I(a, "s_mov_b32 s7, s5"); add64(a, 6, XF_OFF); srd(a, PSRD, 6, 8*XFARR)
    lab = a.newlabel("ni")
    I(a, f"s_cmp_eq_u32 s{S_WAVE}, 0"); I(a, f"s_cbranch_scc0 {lab}")
    I(a, "buffer_inv sc1"); I(a, "s_waitcnt vmcnt(0)")
    a.label(lab)
    for s_ in range(3):
        I(a, f"s_mov_b32 s58, {s_*STG}"); a_issue_q(a, 58, s_)
    I(a, "v_lshlrev_b32 v8, 4, v1"); I(a, "v_add_u32 v8, s55, v8"); I(a, "v_add_u32 v9, 65536, v8")
    I(a, f"s_lshl_b32 s56, s{S_WAVE}, 10"); I(a, f"s_add_u32 s56, s56, {SMALL}"); I(a, "v_lshlrev_b32 v10, 4, v1"); I(a, "v_add_u32 v10, s56, v10")
    for h_ in range(MDPRE):
        for s_ in range(4): m_load(a, h_, s_)
        m_load_small(a, h_)
    if fused:
        srd(a, 88, 36, 256)
        I(a, "s_mov_b32 s34, 0"); I(a, "s_mov_b32 s35, 1"); I(a, "v_mov_b32 v11, 0")
        I(a, "buffer_load_dword v31, v11, s[88:91], 0 offen sc1")
    stl(3)
    if WARM:
        I(a, "s_mov_b32 s6, s4"); I(a, "s_mov_b32 s7, s5"); add64(a, 6, Y_OFF); srd(a, YSRD, 6, 4*YARR)
        I(a, f"s_lshl_b32 s58, s61, 2"); I(a, f"s_add_u32 s58, s58, s{S_WAVE}")
        lw_idx = len(a.lines)
        a.label(f"{pref}_lwret"); I(a, "s_mov_b64 exec, -1")
    stl(5)
    I(a, "s_barrier")
    lw0 = len(a.lines)
    stl(2)
    if B0T:
        a_issue_p(a, 0)
        I(a, "s_waitcnt vmcnt(0)"); stl(4); I(a, "s_barrier")
        a_issue_p(a, 1)
    else:
        a_issue_p(a, 0); a_issue_p(a, 1)
        I(a, "s_waitcnt vmcnt(9)"); stl(4); I(a, "s_barrier")
    if fused:
        lp = a.newlabel("np"); lx = a.newlabel("npx")
        I(a, "s_mov_b32 s59, 0x8000")
        a.label(lp)
        I(a, "v_readfirstlane_b32 s34, v31")
        I(a, "s_sub_u32 s59, s59, 1"); I(a, f"s_cbranch_scc1 {lx}")
        I(a, "s_cmp_lg_u32 s34, 0"); I(a, f"s_cbranch_scc1 {lx}")
        I(a, "buffer_load_dword v31, v11, s[88:91], 0 offen sc1"); I(a, "s_waitcnt vmcnt(0)")
        I(a, f"s_branch {lp}")
        a.label(lx)
    I(a, f"s_mov_b32 s57, 0")
    def side(nq):
        lab = a.newlabel("ns")
        I(a, "s_cmp_eq_u32 s65, 1"); I(a, f"s_cbranch_scc0 {lab}")
        side_a(a, 57)
        a.label(lab)
        I(a, f"s_add_u32 s57, s57, {STG}"); I(a, f"s_cmp_ge_u32 s57, {3*STG}"); I(a, "s_cselect_b32 s57, 0, s57")
    a_issue_p(a, 2)
    pieces = []
    for h_ in range(MDPRE, 2 if MDH1 == "reg" else 0):
        for s_ in range(4):
            for i_ in range(4): pieces.append((h_, s_, i_))
        pieces.append((h_, -1, 0))
    def m_piece(p):
        h_, s_, i_ = p
        if s_ < 0: m_load_small(a, h_); return
        I(a, f"s_add_u32 s56, s54, {h_*128*4096 + s_*128}")
        r = MR + ((h_*4+s_)*4 + i_)*4
        I(a, f"buffer_load_dwordx4 v[{r}:{r+3}], v{96+i_}, s[{MSRD}:{MSRD+3}], s56 offen offset:{i_*1024}")
    per = -(-len(pieces) // NCH) if pieces else 0
    chunks = [pieces[i*per:(i+1)*per] for i in range(8)]
    for t in range(8):
        side(16)
        if t + 2 <= 8:
            rem = (9 if t == 0 else 13)
            if t >= 2: rem += len(chunks[t-2])
            if t >= 1: rem += len(chunks[t-1])
        else:
            rem = 0
        I(a, f"s_waitcnt vmcnt({rem})")
        if ASTG == 2 and t < 6: st(t+1)
        I(a, "s_barrier")
        if ASTG == 1 and t < 6: st(t+1)
        if t + 3 <= 8: a_stage_issue(a, t + 3)
        for p in chunks[t]: m_piece(p)
    lab = a.newlabel("ns")
    I(a, "s_cmp_eq_u32 s65, 1"); I(a, f"s_cbranch_scc0 {lab}")
    side_a(a, 57, tail=True)
    I(a, "v_add_f32 v24, v24, v16"); I(a, "v_add_f32 v17, v17, v18"); I(a, "v_add_f32 v24, v24, v17"); I(a, "v_add_f32 v25, v25, v12")
    I(a, f"s_lshl_b32 s56, s{S_WAVE}, 8"); I(a, "v_lshlrev_b32 v41, 2, v1"); I(a, "v_add_u32 v41, s56, v41"); I(a, f"v_add_u32 v41, {CX}, v41")
    I(a, f"ds_write_b32 v41, v25"); I(a, f"ds_write_b32 v41, v24 offset:1024")
    a.label(lab)
    dma1 = (MDH1 == "dma" and MDPRE < 2)
    if dma1: m_issue(a, 1, 0); m_issue(a, 1, 1)
    for sl in range(NWX): m_write(a, 0, sl)
    I(a, "s_barrier")
    for sl in range(NWX, 4): m_write(a, 0, sl)
    m_write_small(a, 0)
    if dma1: m_issue(a, 1, 2); m_issue(a, 1, 3); m_issue_small(a, 1)
    I(a, "s_waitcnt lgkmcnt(0)"); I(a, "s_barrier")
    if MDH1 == "reg" or MDPRE == 2:
        for sl in range(4): m_write(a, 1, sl)
        m_write_small(a, 1)
        I(a, "s_waitcnt lgkmcnt(0)")
    lab = a.newlabel("ns")
    I(a, "s_cmp_eq_u32 s65, 1"); I(a, f"s_cbranch_scc0 {lab}")
    I(a, "v_and_b32 v40, 31, v1"); I(a, "v_lshlrev_b32 v41, 2, v40"); I(a, f"v_add_u32 v41, {CX}, v41")
    for z in range(8): I(a, f"ds_read_b32 v{32+z}, v41 offset:{z*128}")
    I(a, "v_lshlrev_b32 v42, 2, v1"); I(a, f"v_add_u32 v42, {CX2}, v42")
    for z in range(4): I(a, f"ds_read_b32 v{52+z}, v42 offset:{z*256}")
    I(a, "s_waitcnt lgkmcnt(0)")
    for z in range(1, 8): I(a, f"v_add_f32 v32, v32, v{32+z}")
    for z in range(1, 4): I(a, f"v_add_f32 v52, v52, v{52+z}")
    I(a, "v_cvt_pk_bf16_f32 v32, v32, v32"); I(a, "v_lshlrev_b32 v41, 1, v40"); I(a, f"v_add_u32 v41, {CV+512}, v41")
    I(a, "v_cvt_pk_bf16_f32 v52, v52, v52"); I(a, "v_lshlrev_b32 v42, 1, v1"); I(a, f"v_add_u32 v42, {CV}, v42")
    I(a, "ds_write_b16 v41, v32"); I(a, "ds_write_b16 v42, v52"); I(a, "s_waitcnt lgkmcnt(0)")
    side_b_setup(a)
    side_b_h(a, 0)
    a.label(lab)
    if dma1: I(a, "s_waitcnt vmcnt(0)")
    I(a, "s_barrier")
    lab = a.newlabel("ns")
    I(a, "s_cmp_eq_u32 s65, 1"); I(a, f"s_cbranch_scc0 {lab}")
    side_b_h(a, 1)
    a.label(lab)
    I(a, "s_barrier")
    lab = a.newlabel("ns")
    I(a, "s_cmp_eq_u32 s65, 1"); I(a, f"s_cbranch_scc0 {lab}")
    I(a, "v_add_f32 v28, v28, v14"); I(a, "v_add_f32 v29, v29, v15")
    I(a, "v_mov_b32 v32, v28"); I(a, "v_mov_b32 v33, v29"); I(a, "s_nop 1")
    I(a, "v_permlane32_swap_b32 v32, v28"); I(a, "v_permlane32_swap_b32 v33, v29"); I(a, "s_nop 1")
    I(a, "v_add_f32 v28, v28, v32"); I(a, "v_add_f32 v29, v29, v33")
    I(a, "s_mov_b32 s6, s4"); I(a, "s_mov_b32 s7, s5"); add64(a, 6, Y_OFF); srd(a, YSRD, 6, 4*YARR)
    I(a, f"s_mul_i32 s56, s64, {YARR}"); I(a, f"s_add_u32 s56, s56, {1024*YP}"); I(a, f"s_mul_i32 s57, s61, {YP}"); I(a, "s_add_u32 s56, s56, s57")
    I(a, "v_cvt_pk_bf16_f32 v31, v28, v28"); I(a, "v_cvt_pk_bf16_f32 v12, v29, v29")
    I(a, f"s_lshl_b32 s57, s{S_WAVE}, 6"); I(a, "v_and_b32 v40, 31, v1"); I(a, "v_lshlrev_b32 v40, 1, v40"); I(a, "v_add_u32 v40, s57, v40")
    I(a, "v_cmp_gt_u32 vcc, 32, v1"); I(a, "v_mov_b32 v42, 0x7ffffff0"); I(a, "s_nop 0"); I(a, "v_cndmask_b32 v40, v42, v40, vcc")
    I(a, f"buffer_store_short v31, v40, s[{YSRD}:{YSRD+3}], s56 offen {ysc}")
    I(a, f"buffer_store_short v12, v40, s[{YSRD}:{YSRD+3}], s56 offen offset:256 {ysc}")
    I(a, "v_mov_b32 v32, 0")
    I(a, f"v_mov_b32 v41, {CV+544}"); I(a, "ds_read_u16 v33, v41"); I(a, "v_mov_b32 v43, 512")
    I(a, "v_cmp_eq_u32 vcc, 0, v1"); I(a, "s_nop 1"); I(a, "v_cndmask_b32 v43, v42, v43, vcc")
    I(a, "s_waitcnt lgkmcnt(0)")
    lab4 = a.newlabel("ns")
    I(a, "s_cmp_eq_u32 s61, 0"); I(a, f"s_cbranch_scc1 {lab4}")
    I(a, "v_mov_b32 v33, 0")
    a.label(lab4)
    lab3 = a.newlabel("ns")
    I(a, f"s_cmp_eq_u32 s{S_WAVE}, 0"); I(a, f"s_cbranch_scc0 {lab3}")
    I(a, f"buffer_store_short v33, v43, s[{YSRD}:{YSRD+3}], s56 offen {ysc}")
    a.label(lab3)
    lab5 = a.newlabel("ns")
    I(a, "s_cmp_eq_u32 s61, 0"); I(a, f"s_cbranch_scc0 {lab5}")
    I(a, f"s_add_u32 s57, s56, {2*YARR}")
    I(a, f"buffer_store_short v32, v40, s[{YSRD}:{YSRD+3}], s57 offen {ysc}")
    I(a, f"buffer_store_short v32, v40, s[{YSRD}:{YSRD+3}], s57 offen offset:256 {ysc}")
    lab6 = a.newlabel("ns")
    I(a, f"s_cmp_eq_u32 s{S_WAVE}, 0"); I(a, f"s_cbranch_scc0 {lab6}")
    I(a, f"buffer_store_short v32, v43, s[{YSRD}:{YSRD+3}], s57 offen {ysc}")
    a.label(lab6)
    a.label(lab5)
    a.label(lab)
    y_store_setup(a)
    I(a, "s_barrier")
    if fused: y_store(a, 0, ysc)
    y_store(a, 8, ysc)
    if WARM:
        ents, npad = add_pads(a, lw0, len(a.lines), 16, f"{pref}_l", f"{pref}_lwret", every=PADEV)
        tmp = Asm(); warm_dispatch(tmp, 58, ents, None)
        a.lines[lw_idx:lw_idx] = tmp.lines
    if fused:
        I(a, "s_sub_u32 s58, s2, 224"); I(a, "s_lshl_b32 s58, s58, 2"); I(a, "s_add_u32 s58, s58, 65536")
        I(a, "v_lshlrev_b32 v28, 7, v1"); I(a, "v_add_u32 v28, s58, v28"); I(a, "v_mov_b32 v25, 0x7ffffff0"); I(a, "v_cmp_gt_u32 vcc, 8, v1"); I(a, "s_nop 1"); I(a, "v_cndmask_b32 v28, v25, v28, vcc")
        I(a, "s_branch f_ld")
    else:
        st(7)
        if stamps: stamps.dump(8, 1)
        I(a, "s_endpgm")
    a.label(f"{pref}_compute")
    I(a, "v_bfe_u32 v40, v1, 2, 2"); I(a, "v_lshrrev_b32 v41, 5, v1"); I(a, "v_lshl_add_u32 v41, v41, 3, v40")
    I(a, f"v_mul_u32_u24 v41, {XFP}, v41"); I(a, f"v_add_u32 v41, {QB}, v41")
    I(a, "v_bfe_u32 v42, v1, 4, 1"); I(a, "v_lshl_add_u32 v41, v42, 5, v41")
    I(a, "v_and_b32 v42, 3, v1"); I(a, "v_lshl_add_u32 v2, v42, 3, v41")
    I(a, "v_and_b32 v40, 31, v1"); I(a, f"s_lshl_b32 s{S_DELTA}, s{S_WAVE}, 12"); I(a, "v_lshlrev_b32 v43, 7, v40"); I(a, f"v_add_u32 v43, s{S_DELTA}, v43")
    I(a, "v_lshrrev_b32 v41, 5, v1"); I(a, "v_bfe_u32 v42, v1, 1, 3"); I(a, "v_xor_b32 v41, v41, v42")
    for kk in range(4):
        I(a, f"v_xor_b32 v44, {2*kk}, v41"); I(a, f"v_lshl_add_u32 v{3+kk}, v44, 4, v43")
    I(a, "v_lshlrev_b32 v43, 7, v40")
    for kk in range(4):
        I(a, f"v_xor_b32 v44, {2*kk}, v41"); I(a, f"v_lshl_add_u32 v{8+kk}, v44, 4, v43")
    I(a, "v_lshlrev_b32 v43, 5, v40"); I(a, "v_lshrrev_b32 v44, 5, v1"); I(a, "v_lshl_add_u32 v7, v44, 4, v43"); I(a, f"v_add_u32 v7, {SMALL}, v7")
    if pre_compute: pre_compute(a)
    for r in range(144): I(a, f"v_mov_b32 v{ACC_A+r}, 0")
    I(a, f"s_mov_b32 s{S_DN}, {(-2*STG) & 0xffffffff}"); I(a, f"s_mov_b32 s{S_DP}, {STG}")
    I(a, "s_lshl_b32 s56, s61, 8"); I(a, "s_add_u32 s56, s56, s63"); I(a, f"s_lshl_b32 s{S_QOFF}, s56, 12")
    I(a, "s_lshl_b32 s54, s64, 11")
    I(a, "s_mov_b32 s68, 0")
    I(a, "s_waitcnt lgkmcnt(0)")
    st(1)
    I(a, "s_cmp_eq_u32 s62, 1")
    I(a, "s_cselect_b32 s24, s26, s24"); I(a, "s_cselect_b32 s25, s27, s25"); I(a, "s_cselect_b32 s28, s30, s28"); I(a, "s_cselect_b32 s29, s31, s29")
    srd(a, QSRD, 24, 2048*2048*2); srd(a, MSRD, 28, 1024*1024*2)
    srd(a, 88, 36, 256)
    I(a, "s_mov_b32 s6, s4"); I(a, "s_mov_b32 s7, s5"); add64(a, 6, FOLDF_OFF); srd(a, 92, 6, 33*128)
    I(a, "v_lshlrev_b32 v101, 7, v1"); I(a, "v_cmp_gt_u32 vcc, 33, v1"); I(a, "v_mov_b32 v102, 0x7ffffff0"); I(a, "s_nop 0"); I(a, "v_cndmask_b32 v101, v102, v101, vcc")
    I(a, "s_mov_b32 s66, 0"); I(a, "s_mov_b32 s69, 0x10000"); I(a, "s_mov_b64 s[56:57], -1")
    if MDLOOP:
        I(a, "v_mul_u32_u24 v103, 52, v1"); I(a, "v_lshrrev_b32 v103, 8, v103")
        I(a, "v_mul_u32_u24 v104, 5, v103"); I(a, "v_sub_u32 v104, v1, v104")
        I(a, f"s_lshl_b32 s58, s61, 6"); I(a, f"s_lshl_b32 s59, s{S_WAVE}, 2"); I(a, "s_add_u32 s58, s58, s59")
        I(a, "v_add_u32 v103, s58, v103"); I(a, "v_lshlrev_b32 v103, 12, v103"); I(a, "v_lshl_add_u32 v103, v104, 7, v103")
        I(a, "v_cmp_gt_u32 vcc, 20, v1"); I(a, "s_mov_b32 s67, s54"); I(a, "v_cndmask_b32 v103, v102, v103, vcc")
    labp = a.newlabel("pp"); labf = a.newlabel("pf0")
    I(a, f"s_cmp_eq_u32 s{S_WAVE}, 0"); I(a, f"s_cbranch_scc1 {labp}")
    if PFDELAY: I(a, f"s_sleep {PFDELAY}")
    I(a, "v_lshlrev_b32 v102, 13, v1")
    for r_ in range(2):
        I(a, f"s_lshl_b32 s58, s{S_WAVE}, 1"); I(a, f"s_add_u32 s58, s58, {1 + r_}")
        I(a, "s_lshl_b32 s58, s58, 7"); I(a, f"s_add_u32 s58, s58, s{S_QOFF}")
        for hf in range(2):
            I(a, f"buffer_load_dword v100, v102, s[{QSRD}:{QSRD+3}], s58 offen")
            if hf == 0: I(a, f"s_add_u32 s58, s58, {64*8192}")
    labw_ = a.newlabel("pfe")
    if MDPF == "pre":
        I(a, "s_lshl_b32 s58, s61, 6"); I(a, "v_add_u32 v102, s58, v1"); I(a, "v_lshlrev_b32 v102, 12, v102")
        I(a, f"s_sub_u32 s58, s{S_WAVE}, 1"); I(a, "s_lshl_b32 s58, s58, 8"); I(a, "s_add_u32 s58, s58, s54")
        I(a, f"buffer_load_dword v100, v102, s[{MSRD}:{MSRD+3}], s58 offen")
        I(a, f"s_cmp_eq_u32 s{S_WAVE}, 3"); I(a, f"s_cbranch_scc1 {labw_}")
        I(a, f"buffer_load_dword v100, v102, s[{MSRD}:{MSRD+3}], s58 offen offset:128")
    a.label(labw_)
    if MDPF == "h1":
        I(a, "s_lshl_b32 s58, s61, 5"); I(a, "s_add_u32 s58, s58, 128"); I(a, "v_and_b32 v102, 31, v1"); I(a, "v_add_u32 v102, s58, v102"); I(a, "v_lshlrev_b32 v102, 12, v102")
        I(a, "v_lshrrev_b32 v104, 5, v1"); I(a, "v_lshl_add_u32 v102, v104, 7, v102")
        I(a, f"s_sub_u32 s58, s{S_WAVE}, 1"); I(a, "s_lshl_b32 s58, s58, 8"); I(a, "s_add_u32 s58, s58, s54")
        I(a, f"buffer_load_dword v100, v102, s[{MSRD}:{MSRD+3}], s58 offen")
    if WARM:
        I(a, "s_mov_b32 s6, s4"); I(a, "s_mov_b32 s7, s5"); add64(a, 6, Y_OFF); srd(a, YSRD, 6, 4*YARR)
        I(a, f"s_mul_i32 s58, s61, 3"); I(a, f"s_add_u32 s58, s58, s{S_WAVE}"); I(a, "s_sub_u32 s58, s58, 1")
        cw_idx = len(a.lines)
        a.label(f"{pref}_cwret"); I(a, "s_mov_b64 exec, -1")
    I(a, f"s_branch {labf}")
    a.label(labp)
    lab = a.newlabel("np"); labx = a.newlabel("npx")
    I(a, "v_mov_b32 v102, 0")
    a.label(lab)
    I(a, "buffer_load_dword v96, v102, s[88:91], 0 offen sc1"); I(a, "s_waitcnt vmcnt(0)")
    I(a, "v_readfirstlane_b32 s66, v96")
    I(a, "s_sub_u32 s69, s69, 1"); I(a, f"s_cbranch_scc1 {labx}")
    I(a, "s_cmp_lg_u32 s66, 0"); I(a, f"s_cbranch_scc1 {labx}")
    I(a, "s_sleep 8"); I(a, f"s_branch {lab}")
    a.label(labx)
    I(a, "s_mov_b32 s69, 0x10000"); I(a, "s_mov_b32 s68, 1")
    def poll_eval():
        for q in range(4): I(a, f"v_xor_b32 v{96+q}, s66, v{96+q}")
        I(a, "v_or_b32 v96, v96, v97"); I(a, "v_or_b32 v98, v98, v99"); I(a, "v_or_b32 v96, v96, v98")
        I(a, "v_cmp_ne_u32 s[56:57], 0, v96"); I(a, "s_nop 4")
    def poll_test(mask):
        if mask == "all":
            I(a, "s_and_b32 s58, s57, 1"); I(a, "s_or_b32 s58, s58, s56")
        else:
            I(a, f"s_and_b32 s58, s56, {mask}")
    def poll(mask):
        lc = a.newlabel("pc"); ld = a.newlabel("pd")
        I(a, "s_mov_b32 s69, 0x8000")
        a.label(lc)
        poll_test(mask); I(a, f"s_cbranch_scc0 {ld}")
        I(a, "s_sub_u32 s69, s69, 1"); I(a, f"s_cbranch_scc1 {ld}")
        I(a, "buffer_load_dwordx4 v[96:99], v101, s[92:95], 0 offen sc1"); I(a, "s_waitcnt vmcnt(0)")
        poll_eval()
        if PSLEEP:
            poll_test(mask); I(a, f"s_cbranch_scc0 {ld}")
            I(a, f"s_sleep {PSLEEP}")
        I(a, f"s_branch {lc}")
        a.label(ld)
    if PDBG:
        I(a, "buffer_load_dwordx4 v[96:99], v101, s[92:95], 0 offen sc1"); I(a, "s_waitcnt vmcnt(0)"); st(6)
    poll("0xff")
    if PDBG: st(3)
    a.label(labf)
    if PDBG: st(5)
    for r in range(144): I(a, f"v_mov_b32 v{ACC_A+r}, 0") if False else None
    I(a, "s_barrier")
    labq = a.newlabel("pq")
    I(a, "s_cmp_eq_u32 s68, 1"); I(a, f"s_cbranch_scc0 {labq}")
    poll("0xfff")
    poll_test("all"); I(a, "s_cselect_b32 s68, 1, 0")
    I(a, "buffer_load_dwordx4 v[96:99], v101, s[92:95], 0 offen sc1")
    a.label(labq)
    I(a, "s_barrier")
    st(4)
    for r in a_reads(0, 0): I(a, r)
    I(a, f"s_mov_b32 s{S_CNT}, 8"); I(a, f"s_mov_b32 s{S_LEFT}, 0")
    a(".p2align 6")
    a.label(f"{pref}_aloop")
    for kk in range(3):
        I(a, "s_waitcnt lgkmcnt(0)")
        interleave(a, a_mfmas(kk & 1), a_reads((kk+1) & 1, kk+1), 3)
    I(a, "s_cmp_eq_u32 s68, 1"); I(a, f"s_cbranch_scc1 {pref}_chk")
    a.label(f"{pref}_chkret")
    I(a, "s_waitcnt lgkmcnt(0)"); I(a, "s_barrier")
    mf = a_mfmas(1)
    I(a, mf[0])
    I(a, f"s_add_u32 s{S_LEFT}, s{S_LEFT}, {STG}"); I(a, f"s_cmp_ge_u32 s{S_LEFT}, {3*STG}")
    I(a, f"s_cselect_b32 s{S_DELTA}, s{S_DN}, s{S_DP}"); I(a, f"s_cselect_b32 s{S_LEFT}, 0, s{S_LEFT}")
    for i in range(2, 7): I(a, f"v_add_u32 v{i}, s{S_DELTA}, v{i}")
    if MDLOOP:
        lsk = a.newlabel("mp")
        I(a, f"s_sub_u32 s58, s{S_CNT}, {MDLOOP}"); I(a, "s_cmp_lt_u32 s58, 4"); I(a, f"s_cbranch_scc0 {lsk}")
        I(a, f"buffer_load_dword v100, v103, s[{MSRD}:{MSRD+3}], s67 offen"); I(a, f"s_add_u32 s67, s67, {16*4096}")
        a.label(lsk)
    interleave(a, mf[1:], a_reads(0, 0) + [f"s_sub_u32 s{S_CNT}, s{S_CNT}, 1", f"s_cmp_lg_u32 s{S_CNT}, 0"], 3)
    I(a, f"s_cbranch_scc1 {pref}_aloop")
    I(a, "s_waitcnt lgkmcnt(0)")
    for m in a_mfmas(0): I(a, m)
    cw0 = len(a.lines)
    I(a, "s_barrier")
    st(2)
    I(a, "s_waitcnt vmcnt(0)")
    I(a, "s_nop 7"); I(a, "s_nop 3")
    I(a, f"v_cvt_pk_bf16_f32 v2, v{ACC_A+128+8}, v{ACC_A+128+8}")
    I(a, "s_mov_b32 s6, s4"); I(a, "s_mov_b32 s7, s5"); add64(a, 6, Y_OFF); srd(a, YSRD, 6, 4*YARR)
    I(a, "s_lshl_b32 s56, s62, 1"); I(a, "s_add_u32 s56, s56, s64"); I(a, f"s_mul_i32 s56, s56, {YARR}")
    I(a, "v_and_b32 v40, 31, v1"); I(a, f"s_lshl_b32 s{S_DELTA}, s{S_WAVE}, 5"); I(a, f"v_add_u32 v41, s{S_DELTA}, v40")
    I(a, "s_lshl_b32 s57, s61, 8"); I(a, "s_add_u32 s57, s57, s63")
    I(a, "v_lshlrev_b32 v41, 1, v41"); I(a, "v_add_u32 v41, s57, v41"); I(a, f"v_mul_u32_u24 v41, {YP}, v41"); I(a, "v_add_u32 v41, 512, v41")
    I(a, "v_cmp_gt_u32 vcc, 32, v1"); I(a, "v_mov_b32 v42, 0x7ffffff0"); I(a, "s_nop 0"); I(a, "v_cndmask_b32 v41, v42, v41, vcc")
    I(a, f"buffer_store_short v2, v41, s[{YSRD}:{YSRD+3}], s56 offen {ysc}")
    for kap in range(17):
        nb, k2 = kap // 2, kap % 2
        c = ACC_A + 16*nb + 8*k2; t = TB + 4*kap
        for z in range(4): I(a, f"v_cvt_pk_bf16_f32 v{t+z}, v{c+2*z}, v{c+2*z+1}")
        if kap > 0:
            tp = TB + 4*(kap-1)
            I(a, f"v_permlane32_swap_b32 v{tp}, v{tp+2}"); I(a, f"v_permlane32_swap_b32 v{tp+1}, v{tp+3}")
    I(a, "s_nop 1")
    tp = TB + 4*16
    I(a, f"v_permlane32_swap_b32 v{tp}, v{tp+2}"); I(a, f"v_permlane32_swap_b32 v{tp+1}, v{tp+3}")
    I(a, "s_barrier")
    if not PDBG: st(3)
    subs = [(h, kap) for h in range(2) for kap in range(17)]
    cur_base = [0]
    def rd(idx):
        h, kap = subs[idx]; s, kk = kap // 4, kap % 4
        F = BF[idx % 3]
        out = []
        if kap == 16:
            for nb in range(4): out.append(f"ds_read_b128 v[{F[nb]}:{F[nb]+3}], v7 offset:{h*4096 + nb*1024}")
            return out
        slot = h*4 + s
        base = (slot // 3)*3
        if base != cur_base[0]:
            d = (base - cur_base[0])*RSZ
            for i in range(8, 12): out.append(f"v_add_u32 v{i}, {d}, v{i}")
            cur_base[0] = base
        for nb in range(4): out.append(f"ds_read_b128 v[{F[nb]}:{F[nb]+3}], v{8+kk} offset:{(slot-base)*RSZ + nb*4096}")
        return out
    def need_barrier(idx):
        h, kap = subs[idx]
        return (h, kap) in ((1, 0), (1, 8))
    I(a, "v_and_b32 v4, 31, v1"); I(a, f"s_lshl_b32 s57, s{S_WAVE}, 14"); I(a, "v_lshlrev_b32 v3, 9, v4"); I(a, "v_add_u32 v3, s57, v3")
    I(a, "v_lshrrev_b32 v5, 5, v1"); I(a, "v_lshl_add_u32 v3, v5, 3, v3"); I(a, "v_and_b32 v4, 7, v4"); I(a, "v_lshl_add_u32 v3, v4, 4, v3")
    def epi_fill(h):
        out = []
        for nb in range(4):
            for q in range(4):
                c = ACC_B + 16*(4*h+nb) + 4*q; ch = (4*h+nb)*4 + q
                out += [f"v_cvt_pk_bf16_f32 v4, v{c}, v{c+1}", f"v_cvt_pk_bf16_f32 v5, v{c+2}, v{c+3}", f"v_xor_b32 v6, {(ch & 7) << 4}, v3",
                        f"ds_write_b64 v6, v[4:5] offset:{(ch >> 3)*128}"]
        return out
    pend = epi_fill(0)
    q = []
    def emit(ins_list, tag):
        for ins in ins_list:
            I(a, ins)
            if ins.startswith("ds_"): q.append(tag if ins.startswith("ds_read") else "w")
    emit(rd(0), 0); emit(rd(1), 1)
    for idx, (h, kap) in enumerate(subs):
        nxt = idx + 2
        last = max(i for i, t in enumerate(q) if t == idx)
        n_after = len(q) - 1 - last
        I(a, f"s_waitcnt lgkmcnt({min(n_after, 15)})")
        del q[:last+1]
        if nxt < len(subs) and need_barrier(nxt): I(a, "s_barrier")
        F = BF[idx % 3]
        mf = []
        for nb in range(4):
            c = ACC_B + 16*(4*h + nb)
            src = "0" if kap == 0 else f"v[{c}:{c+15}]"
            mf.append(f"v_mfma_f32_32x32x16_bf16 v[{c}:{c+15}], v[{F[nb]}:{F[nb]+3}], v[{TB+4*kap}:{TB+4*kap+3}], {src}")
        fill = rd(nxt) if nxt < len(subs) else []
        per = 2
        if h == 1 and kap >= 8:
            take = 8 if kap < 16 else len(pend)
            fill = fill + pend[:take]; pend = pend[take:]; per = 4
        fl = list(fill)
        for m in mf:
            I(a, m)
            emit(fl[:per], nxt); fl = fl[per:]
        emit(fl, nxt)
    assert not pend
    I(a, "s_nop 7"); I(a, "s_nop 3")
    if not PDBG: st(5)
    for ins in epi_fill(1): I(a, ins)
    if not fused: y_store_setup(a)
    I(a, "s_waitcnt lgkmcnt(0)"); I(a, "s_barrier")
    if not fused: y_store(a, 0, ysc)
    if WARM:
        ents, npad = add_pads(a, cw0, len(a.lines), 12, f"{pref}_c", f"{pref}_cwret", every=PADEV)
        tmp = Asm(); warm_dispatch(tmp, 58, ents, None)
        a.lines[cw_idx:cw_idx] = tmp.lines
    if not PDBG: st(6)
    if stamps: I(a, "s_waitcnt vmcnt(0)")
    st(7)
    if fused: I(a, "s_branch f_cp")
    else:
        if stamps: stamps.dump(8, 0)
        I(a, "s_endpgm")
    a.label(f"{pref}_chk")
    I(a, "s_mov_b32 s68, 0")
    I(a, "s_waitcnt vmcnt(0)")
    poll_eval()
    poll("all")
    I(a, f"s_branch {pref}_chkret")
```

```python
from asmgen import *
from gemm2 import *
import gemm3
from gemm3 import acc16, fr16, reads16, mfma16, nblk16, V_QA as QA16
from p1v2 import load_ptr, epi_addrs_read, wave_origin
from p2 import StampsAt, add64, FLAG_OFF, G_OFF
from k0 import XF_OFF, XFP, XFARR
import fold2, awg9 as awg3
FOLDF_OFF = 34 << 20
import os
TWICE = int(os.environ.get('TWICE', '0'))
BX = int(os.environ.get('BX', '0'))
LFLAG = 147456
W2T = int(os.environ.get('W2T', '1'))
PSTAMP = int(os.environ.get('PSTAMP', '0'))
NONCE_SC = os.environ.get('NONCE_SC', '')
S_PFS = 56; S_PFOFF = 60; S_PFSTEP = 61; V_PF = 30

def compute_loop16p(a, g, bias_base, hook_label=None, hook_cnt=None, stamp=None):
    p = g.pref; NB, MB = nblk16(g); naddr = 2 + NB
    I(a, "s_barrier")
    if stamp: I(a, stamp); I(a, "s_waitcnt lgkmcnt(0)")
    for r in reads16(g, 0, 0): I(a, r)
    I(a, f"s_mov_b32 s{S_CNT}, {g.nk}"); I(a, f"s_mov_b32 s{S_LEFT}, 0")
    A, B = fr16(g, 0)
    first = [f"v_mfma_f32_16x16x32_bf16 v[{acc16(g,nb,mb)}:{acc16(g,nb,mb)+3}], v[{A[nb]}:{A[nb]+3}], v[{B[mb]}:{B[mb]+3}], v[{bias_base+4*nb}:{bias_base+4*nb+3}]" for nb in range(NB) for mb in range(MB)]
    I(a, "s_waitcnt lgkmcnt(0)")
    interleave(a, first, reads16(g, 1, 1), 1)
    if hook_label:
        I(a, f"s_branch {hook_label}")
    else:
        I(a, f"s_branch {p}_c_mid")
    a(".p2align 6")
    a.label(f"{p}_c_loop")
    I(a, "s_waitcnt lgkmcnt(0)")
    interleave(a, mfma16(g, 0), reads16(g, 1, 1), 1)
    a.label(f"{p}_c_mid")
    I(a, "s_waitcnt lgkmcnt(0)"); I(a, "s_barrier")
    mf = mfma16(g, 1)
    I(a, mf[0])
    I(a, f"s_add_u32 s{S_LEFT}, s{S_LEFT}, {g.STAGE}"); I(a, f"s_cmp_ge_u32 s{S_LEFT}, {g.LDS}")
    I(a, mf[1])
    I(a, f"s_cselect_b32 s{S_DELTA}, s{S_DN}, s{S_DP}"); I(a, f"s_cselect_b32 s{S_LEFT}, 0, s{S_LEFT}")
    vupd = [f"v_add_u32 v{QA16+i}, s{S_DELTA}, v{QA16+i}" for i in range(naddr)]
    fill = vupd + reads16(g, 0, 0) + [f"s_sub_u32 s{S_CNT}, s{S_CNT}, 1", f"s_cmp_lg_u32 s{S_CNT}, 0"]
    interleave(a, mf[2:], fill, 1)
    I(a, f"s_cbranch_scc1 {p}_c_loop")
    I(a, "s_waitcnt lgkmcnt(0)")

def k_k1(a, name, fused=None, stamps=False, hsc="", astamp=False, npf0=3, w3pf=False, steppf=True, trace=False, pf_after=True, fstamp=False):
    g = G(BM=256, BN=128, WM=2, WN=2, NS=3, ldq=2048, ldp=7168, nk=16, pref="p1")
    st = StampsAt(a, stamps, 70)
    kernel_begin(a, name)
    st(0)
    if fused and fused.get("st0"): fused["st0"]()
    I(a, "s_cmp_ge_u32 s2, 256"); I(a, "s_cbranch_scc1 p1_end")
    lane_wave(a)
    I(a, "s_cmp_ge_u32 s2, 224"); I(a, "s_cbranch_scc1 aw_entry")
    load_ptr(a, 4, 0); load_ptr(a, 20, 48, 4); load_ptr(a, 24, 104); load_ptr(a, 36, 64); load_ptr(a, 38, 80); load_ptr(a, 62, 96)
    I(a, "s_and_b32 s26, s2, 7"); I(a, "s_lshr_b32 s27, s2, 3")
    I(a, "s_mul_i32 s28, s27, 37"); I(a, "s_lshr_b32 s28, s28, 8")
    I(a, "s_mul_i32 s29, s28, 7"); I(a, "s_sub_u32 s27, s27, s29")
    I(a, "s_lshr_b32 s29, s26, 2"); I(a, "s_and_b32 s26, s26, 3")
    I(a, "s_lshl_b32 s29, s29, 2"); I(a, "s_add_u32 s28, s28, s29")
    I(a, "s_mul_i32 s26, s26, 7"); I(a, "s_add_u32 s29, s26, s27")
    I(a, f"s_mul_i32 s{S_QOFF}, s28, {256*2048}")
    I(a, f"s_mul_i32 s{S_POFF}, s29, {128*2}")
    I(a, f"s_mov_b32 s{S_QSRD+2}, {2048*1024*2}"); I(a, f"s_mov_b32 s{S_QSRD+3}, 0x00020000")
    I(a, f"s_mov_b32 s{S_PSRD+2}, {1024*3584*2}"); I(a, f"s_mov_b32 s{S_PSRD+3}, 0x00020000")
    I(a, f"s_cmp_ge_u32 s{S_WAVE}, 4"); I(a, "s_cbranch_scc0 p1_compute")
    I(a, f"s_sub_u32 s{S_WAVE}, s{S_WAVE}, 4")
    gemm3.loader_voffsets16(a, g)
    I(a, f"s_cmp_eq_u32 s{S_WAVE}, 0"); I(a, f"s_cselect_b32 s{S_TMP}, 16, 0")
    I(a, f"s_mul_i32 s{S_DELTA}, s2, 16"); I(a, f"v_add_u32 v{V_PF}, s{S_DELTA}, v1"); I(a, f"v_lshlrev_b32 v{V_PF}, 7, v{V_PF}")
    I(a, f"v_cmp_gt_u32 vcc, s{S_TMP}, v1"); I(a, f"v_mov_b32 v46, 0x7ffffff0"); I(a, "s_nop 0"); I(a, f"v_cndmask_b32 v{V_PF}, v46, v{V_PF}, vcc")
    I(a, "s_waitcnt lgkmcnt(0)")
    st(1)
    I(a, f"s_mov_b32 s{S_QSRD}, s4"); I(a, f"s_and_b32 s{S_QSRD+1}, s5, 0xffff")
    I(a, f"s_mov_b32 s{S_PSRD}, s20"); I(a, f"s_and_b32 s{S_PSRD+1}, s21, 0xffff")
    I(a, f"s_mov_b32 s{S_PFOFF}, {64*7168}")
    I(a, "s_mov_b32 s34, 0"); I(a, "s_mov_b32 s35, 0")
    srd(a, 88, 62, 256)
    I(a, "s_cmp_eq_u32 s2, 0"); I(a, "s_cbranch_scc0 p1_nn"); I(a, f"s_cmp_eq_u32 s{S_WAVE}, 3"); I(a, "s_cbranch_scc0 p1_nn")
    I(a, "s_memrealtime s[58:59]"); I(a, "s_waitcnt lgkmcnt(0)"); I(a, "s_or_b32 s58, s58, 1")
    I(a, "v_mov_b32 v26, 0"); I(a, "v_mov_b32 v27, s58")
    I(a, "buffer_store_dword v27, v26, s[88:91], 0 offen sc1")
    a.label("p1_nn")
    X = 1 if steppf else 0
    def pf():
        if not steppf: return
        I(a, f"buffer_load_dword v47, v{V_PF}, s[{S_PSRD}:{S_PSRD+3}], s{S_PFOFF} offen")
        I(a, f"s_add_u32 s{S_PFOFF}, s{S_PFOFF}, {64*7168}")
    if trace:
        I(a, "s_add_u32 s64, s24, 0x6400000"); I(a, "s_addc_u32 s65, s25, 0"); srd(a, 84, 64, 1<<22)
        I(a, "s_lshl_b32 s62, s2, 12"); I(a, f"s_lshl_b32 s68, s{S_WAVE}, 10"); I(a, "s_add_u32 s68, s68, s62"); I(a, "v_mov_b32 v31, 0")
    def tr():
        if not trace: return
        I(a, "s_memrealtime s[72:73]"); I(a, "s_memtime s[74:75]"); I(a, "s_waitcnt lgkmcnt(0)")
        I(a, "v_mov_b32 v28, s72"); I(a, "v_mov_b32 v29, s74")
        I(a, "buffer_store_dwordx2 v[28:29], v31, s[84:87], s68 offen"); I(a, "s_add_u32 s68, s68, 8")
    if trace: X += 1
    st(2)
    PER = g.PER
    if not pf_after:
        for i in range(npf0): pf()
    if BX == 3:
        I(a, f"v_mov_b32 v24, {LFLAG}")
        lab = a.newlabel("bi")
        I(a, "s_cmp_lt_u32 s2, 132"); I(a, f"s_cbranch_scc0 {lab}")
        I(a, "v_mov_b32 v20, 0"); I(a, "v_mov_b32 v21, 0"); I(a, "v_mov_b32 v22, 0"); I(a, "v_mov_b32 v23, 0")
        I(a, "ds_write_b128 v24, v[20:23]"); I(a, "s_waitcnt lgkmcnt(0)"); I(a, "s_barrier")
        a.label(lab)
    stage_issue(a, g)
    if not PSTAMP: st(3)
    npa = (npf0 if (pf_after and steppf) else 0)
    if BX == 2:
        for i in range(npa): pf()
        I(a, "s_barrier")
        stage_issue(a, g); stage_issue(a, g)
        I(a, f"s_waitcnt vmcnt({2*PER+npa})")
        npa = 0
    else:
        stage_issue(a, g)
        if pf_after:
            for i in range(npf0): pf()
        if BX == 3:
            lab = a.newlabel("lf"); labx = a.newlabel("lfx")
            I(a, "s_cmp_lt_u32 s2, 132"); I(a, f"s_cbranch_scc0 {labx}")
            I(a, "s_mov_b32 s59, 0x40000")
            a.label(lab)
            I(a, "ds_read_b128 v[20:23], v24"); I(a, "s_waitcnt lgkmcnt(0)")
            I(a, "v_and_b32 v20, v20, v21"); I(a, "v_and_b32 v22, v22, v23"); I(a, "v_and_b32 v20, v20, v22"); I(a, "s_nop 0")
            I(a, "v_readfirstlane_b32 s58, v20")
            I(a, "s_sub_u32 s59, s59, 1"); I(a, f"s_cbranch_scc1 {labx}")
            I(a, "s_cmp_eq_u32 s58, 1"); I(a, f"s_cbranch_scc1 {labx}")
            I(a, "s_sleep 1"); I(a, f"s_branch {lab}")
            a.label(labx)
            stage_issue(a, g)
            I(a, f"s_waitcnt vmcnt({2*PER+npa})")
        elif BX:
            I(a, "s_barrier")
            stage_issue(a, g)
            I(a, f"s_waitcnt vmcnt({2*PER+npa})")
        else:
            I(a, f"s_waitcnt vmcnt({PER+npa})")
    st(4)
    I(a, "s_barrier"); tr()
    I(a, "s_mov_b32 s6, s24"); I(a, "s_mov_b32 s7, s25"); add64(a, 6, FOLDF_OFF); srd(a, 92, 6, 33*128)
    I(a, "v_mov_b32 v27, 0")
    if not fused: I(a, f"s_cmp_eq_u32 s{S_WAVE}, 3"); I(a, "s_cbranch_scc0 p1_nonl")
    I(a, f"buffer_load_dword v26, v27, s[88:91], 0 offen {NONCE_SC}")
    a.label("p1_nonl")
    if BX:
        pf()
        lab = a.newlabel("bw")
        I(a, f"s_cmp_eq_u32 s{S_WAVE}, 3"); I(a, f"s_cbranch_scc0 {lab}")
        I(a, f"s_cmp_lt_u32 s2, 132"); I(a, f"s_cbranch_scc0 {lab}")
        I(a, f"s_waitcnt vmcnt({1 if steppf else 0})")
        a.label(lab)
        I(a, f"s_waitcnt vmcnt({npa + PER + X})"); I(a, "s_barrier")
    else:
        stage_issue(a, g); pf()
        I(a, f"s_waitcnt vmcnt({PER + (1 if steppf else 0)})"); I(a, "s_barrier")
    if not fused:
        I(a, f"s_cmp_eq_u32 s{S_WAVE}, 3"); I(a, "s_cbranch_scc0 p1_nopub")
        I(a, "s_cmp_lt_u32 s2, 132"); I(a, "s_cbranch_scc0 p1_nopub")
    I(a, "s_mov_b32 s59, 0x10000")
    a.label("p1_npoll")
    I(a, "v_readfirstlane_b32 s58, v26")
    I(a, "s_sub_u32 s59, s59, 1"); I(a, "s_cbranch_scc1 p1_ngo")
    I(a, "s_cmp_lg_u32 s58, 0"); I(a, "s_cbranch_scc1 p1_ngo")
    I(a, "buffer_load_dword v26, v27, s[88:91], 0 offen sc1"); I(a, "s_waitcnt vmcnt(0)")
    I(a, "s_branch p1_npoll")
    a.label("p1_ngo")
    if fused:
        I(a, "s_mov_b32 s34, s58")
        I(a, f"s_cmp_eq_u32 s{S_WAVE}, 3"); I(a, "s_cbranch_scc0 p1_nopub")
        I(a, "s_cmp_lt_u32 s2, 132"); I(a, "s_cbranch_scc0 p1_nopub")
    I(a, "s_lshr_b32 s58, s2, 2"); I(a, "s_lshl_b32 s58, s58, 7"); I(a, "s_and_b32 s59, s2, 3"); I(a, "s_lshl_b32 s59, s59, 2"); I(a, "s_add_u32 s58, s58, s59")
    I(a, "v_mov_b32 v25, 0x7ffffff0"); I(a, "v_mov_b32 v27, s58"); I(a, "v_cmp_eq_u32 vcc, 0, v1"); I(a, "s_nop 1"); I(a, "v_cndmask_b32 v27, v25, v27, vcc")
    I(a, "buffer_store_dword v26, v27, s[92:95], 0 offen sc1")
    a.label("p1_nopub")
    if PSTAMP: st(3)
    tr(); stage_issue(a, g); pf()
    I(a, f"s_mov_b32 s{S_CNT}, {g.nk-3-1}")
    a.label("p1_ld_loop")
    I(a, f"s_waitcnt vmcnt({PER + X + (1 if steppf else 0)})"); I(a, "s_barrier"); tr(); stage_issue(a, g); pf()
    I(a, f"s_sub_u32 s{S_CNT}, s{S_CNT}, 1"); I(a, f"s_cmp_lg_u32 s{S_CNT}, 0"); I(a, "s_cbranch_scc1 p1_ld_loop")
    NT = 2 if W2T else 0
    if W2T:
        I(a, "s_bfe_u32 s60, s2, 0x10001"); I(a, f"s_mul_i32 s60, s60, {1792*2048}")
        I(a, "s_and_b32 s61, s2, 1"); I(a, "s_lshl_b32 s61, s61, 10"); I(a, "s_add_u32 s60, s60, s61")
        I(a, "s_lshr_b32 s61, s2, 3"); I(a, f"s_mul_i32 s61, s61, {64*2048}"); I(a, "s_add_u32 s60, s60, s61")
        I(a, f"s_mul_i32 s61, s{S_WAVE}, {16*2048}"); I(a, "s_add_u32 s60, s60, s61")
        srd(a, S_PFS, 36, 3584*1024*2)
        I(a, "v_lshrrev_b32 v46, 3, v1"); I(a, "v_lshlrev_b32 v46, 11, v46"); I(a, "v_and_b32 v45, 7, v1"); I(a, "v_lshl_add_u32 v46, v45, 7, v46")
        I(a, f"buffer_load_dword v47, v46, s[{S_PFS}:{S_PFS+3}], s60 offen")
        I(a, f"s_add_u32 s60, s60, {8*2048}")
        I(a, f"buffer_load_dword v47, v46, s[{S_PFS}:{S_PFS+3}], s60 offen")
    I(a, f"s_waitcnt vmcnt({PER + X + (1 if steppf else 0) + NT})"); I(a, "s_barrier")
    I(a, f"s_waitcnt vmcnt({(1 if steppf else 0) + NT})"); I(a, "s_barrier")
    I(a, f"s_barrier")
    st(5)
    srd(a, 16, 24, 2048*3584*2)
    wave_origin(a, g, 28, 29, 30, 31)
    epi_addrs_read(a, g, 7168, 30, 31)
    if not fused:
        I(a, f"s_cmp_eq_u32 s{S_WAVE}, 3"); I(a, "s_cbranch_scc0 p1_noflag")
        I(a, "s_mov_b32 s6, s24"); I(a, "s_mov_b32 s7, s25"); add64(a, 6, FLAG_OFF); srd(a, 32, 6, 1024*128)
        I(a, "v_min_u32 v40, 16, v1"); I(a, "v_mul_u32_u24 v40, 224, v40"); I(a, "v_add_u32 v40, s2, v40"); I(a, "v_lshlrev_b32 v40, 7, v40"); I(a, "v_mov_b32 v42, 0"); I(a, "v_mov_b32 v43, 0")
        I(a, "buffer_store_dwordx2 v[42:43], v40, s[32:35], 0 offen")
        a.label("p1_noflag")
    for mb in range(4):
        I(a, "s_barrier")
        for i in range(4):
            r = 64 + mb*16 + i*4
            I(a, f"ds_read_b128 v[{r}:{r+3}], v62 offset:{mb*4096 + i*1024}")
        for i in range(4):
            r = 64 + mb*16 + i*4
            I(a, f"s_mov_b32 s{S_TMP2}, {(mb*32 + i*8) * 7168}")
            I(a, f"s_waitcnt lgkmcnt({3-i})")
            I(a, f"buffer_store_dwordx4 v[{r}:{r+3}], v63, s[16:19], s{S_TMP2} offen {hsc}")
    st(6)
    if stamps: I(a, "s_waitcnt vmcnt(0)")
    if fused:
        I(a, "s_lshl_b32 s58, s28, 9"); I(a, "s_lshl_b32 s59, s29, 4"); I(a, "s_add_u32 s58, s58, s59"); I(a, f"s_lshl_b32 s59, s{S_WAVE}, 2"); I(a, "s_add_u32 s58, s58, s59")
        I(a, "v_mov_b32 v28, s58"); I(a, "v_mov_b32 v25, 0x7ffffff0"); I(a, "v_cmp_eq_u32 vcc, 0, v1"); I(a, "s_nop 1"); I(a, "v_cndmask_b32 v28, v25, v28, vcc")
        I(a, "s_mov_b32 s6, s24"); I(a, "s_mov_b32 s7, s25"); add64(a, 6, 35 << 20); srd(a, 52, 6, 128*1024)
        I(a, "v_mov_b32 v29, s34")
        I(a, "s_waitcnt vmcnt(0)")
        I(a, "buffer_store_dword v29, v28, s[52:55], 0 offen sc1")
        I(a, "s_branch f_ld")
    else:
        st(7); st.dump(8, 1)
        I(a, "s_endpgm")
    a.label("p1_compute")
    I(a, "s_setprio 3")
    I(a, f"s_lshl_b32 s69, s2, 2"); I(a, f"s_add_u32 s69, s69, s{S_WAVE}")
    fold2.fold_pre(a, 69)
    I(a, f"s_mul_i32 s68, s{S_WAVE}, 10240"); I(a, f"s_add_u32 s68, s68, {2*g.STAGE}")
    I(a, "s_mov_b32 s14, 2048"); I(a, "s_mov_b32 s15, 0x00020000")
    wave_origin(a, g, 28, 29, 30, 31)
    I(a, "v_lshrrev_b32 v8, 4, v1"); I(a, "v_lshlrev_b32 v8, 3, v8")
    I(a, "s_waitcnt lgkmcnt(0)")
    st(1)
    I(a, f"s_mov_b32 s{S_QSRD}, s4"); I(a, f"s_and_b32 s{S_QSRD+1}, s5, 0xffff")
    I(a, "s_mov_b32 s12, s38"); I(a, "s_and_b32 s13, s39, 0xffff")
    I(a, "s_cmp_gt_u32 s69, 512"); I(a, "s_cbranch_scc1 p1_skipload")
    fold2.fold_loads(a, S_QSRD, 12, 68)
    a.label("p1_skipload")
    if fstamp == 2: st(2)
    srd(a, 32, 22, 3584*2)
    I(a, "s_mov_b32 s6, s24"); I(a, "s_mov_b32 s7, s25"); add64(a, 6, XF_OFF); srd(a, 16, 6, 8*XFARR)
    I(a, "s_mov_b32 s6, s24"); I(a, "s_mov_b32 s7, s25"); add64(a, 6, G_OFF); srd(a, 40, 6, 2048*8)
    I(a, "s_cmp_gt_u32 s69, 527"); I(a, "s_cbranch_scc1 p1_nofold")
    I(a, "s_cmp_gt_u32 s69, 512"); I(a, "s_cbranch_scc1 p1_zero")
    for nb in range(4):
        I(a, f"buffer_load_dwordx2 v[{184+2*nb}:{184+2*nb+1}], v8, s[32:35], s31 offen offset:{nb*32}")
    if fstamp == 2: st(3)
    def setflag():
        I(a, f"s_lshl_b32 s58, s{S_WAVE}, 2"); I(a, f"s_add_u32 s58, s58, {LFLAG}"); I(a, "v_mov_b32 v193, s58"); I(a, "v_mov_b32 v194, 1")
        I(a, "ds_write_b32 v193, v194")
    after_reads = None
    if BX in (1, 2): after_reads = lambda: I(a, "s_barrier")
    if BX == 3:
        after_reads = setflag
        I(a, "s_barrier")
    if TWICE:
        I(a, "s_mov_b32 s86, s68"); I(a, "s_mov_b32 s87, 0")
        a.label("p1_fold_again")
        I(a, "s_mov_b32 s68, s86")
    fold2.fold_lds_reads(a, 68, (st if fstamp == 1 else ((lambda i: st(4)) if fstamp == 2 else None)), nyounger=4)
    fold2.fold_compute(a, 69, 16, 40, st=st if fstamp == 1 else None, after_reads=after_reads)
    if TWICE:
        I(a, "s_add_u32 s87, s87, 1"); I(a, "s_cmp_eq_u32 s87, 1"); I(a, "s_cbranch_scc1 p1_fold_again")
    if fstamp:
        st(5); I(a, 's_waitcnt vmcnt(0)'); st(6)
    I(a, "s_waitcnt vmcnt(10)")
    I(a, "s_branch p1_folded")
    a.label("p1_zero")
    for nb in range(4):
        I(a, f"buffer_load_dwordx2 v[{184+2*nb}:{184+2*nb+1}], v8, s[32:35], s31 offen offset:{nb*32}")
    if BX in (1, 2): I(a, "s_barrier")
    if BX == 3: I(a, "s_barrier"); setflag()
    fold2.fold_zero(a, 69, 16)
    I(a, "s_waitcnt vmcnt(8)")
    I(a, "s_branch p1_folded")
    a.label("p1_nofold")
    for nb in range(4):
        I(a, f"buffer_load_dwordx2 v[{184+2*nb}:{184+2*nb+1}], v8, s[32:35], s31 offen offset:{nb*32}")
    if BX in (1, 2): I(a, "s_barrier")
    I(a, f"s_cmp_eq_u32 s{S_WAVE}, {3 if w3pf else 99}"); I(a, "s_cbranch_scc0 p1_nopf")
    load_ptr(a, 52, 8, 4); load_ptr(a, 64, 24, 4)
    I(a, "s_lshl_b32 s58, s2, 6"); I(a, "v_add_u32 v4, s58, v1")
    I(a, f"s_mov_b32 s59, {(1<<32)//9+1}"); I(a, "v_mul_hi_u32 v5, v4, s59"); I(a, "v_mul_u32_u24 v6, 9, v5"); I(a, "v_sub_u32 v6, v4, v6")
    I(a, "v_lshlrev_b32 v7, 12, v5"); I(a, "v_lshl_add_u32 v7, v6, 7, v7")
    I(a, "v_cmp_ge_u32 vcc, 1024, v5"); I(a, "v_mov_b32 v9, 0x7ffffff0"); I(a, "s_waitcnt lgkmcnt(0)"); I(a, "v_cndmask_b32 v7, v9, v7, vcc")
    srd(a, 12, 52, 2048*2048*2); srd(a, 16, 54, 2048*2048*2)
    I(a, "buffer_load_dword v25, v7, s[12:15], 0 offen"); I(a, "buffer_load_dword v25, v7, s[16:19], 0 offen")
    I(a, f"s_mov_b32 s59, {(1<<32)//5+1}"); I(a, "v_mul_hi_u32 v5, v4, s59"); I(a, "v_mul_u32_u24 v6, 5, v5"); I(a, "v_sub_u32 v6, v4, v6")
    I(a, "v_lshlrev_b32 v7, 11, v5"); I(a, "v_lshl_add_u32 v7, v6, 7, v7")
    I(a, "v_cmp_ge_u32 vcc, 512, v5"); I(a, "v_mov_b32 v9, 0x7ffffff0"); I(a, "s_nop 0"); I(a, "v_cndmask_b32 v7, v9, v7, vcc")
    srd(a, 12, 64, 1024*1024*2); srd(a, 16, 66, 1024*1024*2)
    I(a, "buffer_load_dword v25, v7, s[12:15], 0 offen"); I(a, "buffer_load_dword v25, v7, s[16:19], 0 offen")
    I(a, "s_waitcnt vmcnt(4)")
    I(a, "s_branch p1_folded")
    a.label("p1_nopf")
    I(a, "s_waitcnt vmcnt(0)")
    a.label("p1_folded")
    if fstamp:
        st(7); st0 = st; st = (lambda i: None)
    st(2)
    for nb in range(4):
        for j in range(4):
            src = 184 + 2*nb + j//2; d = 8 + 4*nb + j
            if j % 2 == 0: I(a, f"v_lshlrev_b32 v{d}, 16, v{src}")
            else: I(a, f"v_and_b32 v{d}, 0xffff0000, v{src}")
    setup16_noclobber(a, g)
    st(3)
    compute_loop16p(a, g, 8, hook_label="p1_hook", hook_cnt=g.nk, stamp="s_memtime s[78:79]" if (stamps and not fstamp) else None)
    st(5)
    I(a, f"s_mul_i32 s{S_TMP}, s{S_WAVE}, {g.wm*128}")
    I(a, "v_and_b32 v18, 15, v1"); I(a, "v_lshlrev_b32 v19, 7, v18"); I(a, f"v_add_u32 v19, s{S_TMP}, v19")
    I(a, "v_bfe_u32 v24, v1, 4, 1"); I(a, "v_lshl_add_u32 v19, v24, 3, v19")
    I(a, "v_and_b32 v18, 7, v18"); I(a, "v_lshrrev_b32 v24, 5, v1")
    for nb in range(4):
        I(a, f"v_add_u32 v25, {2*nb}, v24"); I(a, "v_xor_b32 v25, v25, v18"); I(a, f"v_lshl_add_u32 v{20+nb}, v25, 4, v19")
    k = 0
    for mb2 in range(4):
        for mb in (2*mb2, 2*mb2+1):
            for nb in range(4):
                cc = acc16(g, nb, mb); t = 8 + (k % 4) * 2; k += 1
                for r in range(4): I(a, f"v_max_f32 v{cc+r}, 0, v{cc+r}")
                for r in (0, 2): I(a, f"v_pk_mul_f32 v[{cc+r}:{cc+r+1}], v[{cc+r}:{cc+r+1}], v[{cc+r}:{cc+r+1}]")
                I(a, f"v_cvt_pk_bf16_f32 v{t}, v{cc}, v{cc+1}"); I(a, f"v_cvt_pk_bf16_f32 v{t+1}, v{cc+2}, v{cc+3}")
                I(a, f"ds_write_b64 v{20+nb}, v[{t}:{t+1}] offset:{mb*2048}")
        I(a, "s_waitcnt lgkmcnt(0)"); I(a, "s_barrier")
    st(6); st(7)
    if fused: I(a, "s_branch f_cp")
    elif fstamp: st0.dump(8, 0)
    else: st.dump(8, 0)
    a.label("p1_end")
    I(a, "s_endpgm")
    a.label("p1_hook")
    I(a, "s_cmp_gt_u32 s69, 527"); I(a, "s_cbranch_scc1 p1_c_mid")
    I(a, "s_waitcnt vmcnt(0)")
    I(a, "s_branch p1_c_mid")
    a.label("aw_entry")
    sa = StampsAt(a, astamp, 70)
    if astamp: sa(0)
    awg3.a_wg(a, stamps=sa if astamp else None, ysc=('sc0 sc1' if fused else os.environ.get('YSC', '')), fused=fused)
    return g

def setup16_noclobber(a, g):
    import math
    lw = int(math.log2(g.WM)); V_QA = gemm3.V_QA; V_PA = gemm3.V_PA
    I(a, f"s_and_b32 s{S_TMP}, s{S_WAVE}, {g.WM-1}"); I(a, f"s_lshr_b32 s{S_TMP2}, s{S_WAVE}, {lw}")
    I(a, "v_and_b32 v27, 15, v1"); I(a, f"s_mul_i32 s{S_DELTA}, s{S_TMP}, {g.wm*128}"); I(a, "v_lshlrev_b32 v27, 7, v27"); I(a, f"v_add_u32 v27, s{S_DELTA}, v27")
    I(a, "v_lshrrev_b32 v28, 4, v1"); I(a, "v_bfe_u32 v29, v1, 1, 3"); I(a, "v_xor_b32 v28, v28, v29")
    for ks in range(2):
        I(a, f"v_xor_b32 v30, {4*ks}, v28"); I(a, f"v_lshl_add_u32 v{V_QA+ks}, v30, 4, v27")
    I(a, "v_bfe_u32 v27, v1, 2, 2"); I(a, "v_lshrrev_b32 v28, 4, v1"); I(a, "v_lshl_add_u32 v29, v28, 3, v27")
    I(a, f"v_lshlrev_b32 v29, 8, v29"); I(a, f"v_add_u32 v29, {g.QB}, v29")
    I(a, "v_and_b32 v30, 1, v1"); I(a, "v_lshl_add_u32 v29, v30, 3, v29")
    I(a, "v_bfe_u32 v30, v1, 1, 1")
    I(a, f"s_mul_i32 s{S_DELTA}, s{S_TMP2}, {g.wn//8}"); I(a, f"v_add_u32 v30, s{S_DELTA}, v30")
    I(a, "v_lshlrev_b32 v27, 2, v27"); I(a, "v_and_b32 v28, 1, v28"); I(a, "v_lshlrev_b32 v28, 1, v28"); I(a, "v_xor_b32 v27, v27, v28")
    NB, MB = nblk16(g)
    for nb in range(NB):
        I(a, f"v_add_u32 v31, {2*nb}, v30"); I(a, "v_xor_b32 v31, v31, v27"); I(a, f"v_lshl_add_u32 v{V_PA+nb}, v31, 4, v29")
    I(a, f"s_mov_b32 s{S_DN}, {(-(g.NS-1)*g.STAGE) & 0xffffffff}"); I(a, f"s_mov_b32 s{S_DP}, {g.STAGE}")
```

```python
class Asm:
    def __init__(self):
        self.lines = []
        self.nlabel = 0
    def __call__(self, s=""):
        for l in s.split("\n"):
            self.lines.append(l)
    def c(self, s):
        self.lines.append("    ; " + s)
    def label(self, name):
        self.lines.append(name + ":")
    def newlabel(self, p="L"):
        self.nlabel += 1
        return f"{p}_{self.nlabel}"
    def text(self):
        return "\n".join(self.lines) + "\n"

def I(a, s):
    a.lines.append("    " + s)

def kernel_begin(a, name):
    a(f".globl {name}")
    a(".p2align 8")
    a(f".type {name},@function")
    a(f"{name}:")

def kernel_desc(a, name, vgpr, sgpr, accum, wgy=False):
    a(f".amdhsa_kernel {name}")
    a(f"  .amdhsa_next_free_vgpr {vgpr}")
    a(f"  .amdhsa_next_free_sgpr {sgpr}")
    a(f"  .amdhsa_accum_offset {accum}")
    a(f"  .amdhsa_group_segment_fixed_size 0")
    a(f"  .amdhsa_kernarg_size 112")
    a(f"  .amdhsa_user_sgpr_count 2")
    a(f"  .amdhsa_user_sgpr_kernarg_segment_ptr 1")
    a(f"  .amdhsa_system_sgpr_workgroup_id_x 1")
    if wgy:
        a(f"  .amdhsa_system_sgpr_workgroup_id_y 1")
    a(f"  .amdhsa_float_denorm_mode_32 3")
    a(f"  .amdhsa_float_denorm_mode_16_64 3")
    a(".end_amdhsa_kernel")

def srd(a, s, ptr, nbytes):
    I(a, f"s_mov_b32 s{s}, s{ptr}")
    I(a, f"s_and_b32 s{s+1}, s{ptr+1}, 0xffff")
    I(a, f"s_mov_b32 s{s+2}, {nbytes}")
    I(a, f"s_mov_b32 s{s+3}, 0x00020000")

def add_pads(a, i0, i1, nch, pref, ret, every=13):
    seg = a.lines[i0:i1]
    out = []; n = 0; pads = []
    pos = []
    cnt = every
    for k, l in enumerate(seg):
        isins = l.startswith("    ") and not l.strip().startswith(";")
        if isins:
            if cnt >= every:
                pos.append(k); cnt = 0
            cnt += 1
    npad = len(pos)
    names = [f"{pref}_pad{j}" for j in range(npad)]
    pset = {k: j for j, k in enumerate(pos)}
    for k, l in enumerate(seg):
        if k in pset:
            j = pset[k]
            out.append(names[j] + ":")
            tgt = names[j + nch] if j + nch < npad else ret
            out.append(f"    s_cbranch_execz {tgt}")
        out.append(l)
    a.lines[i0:i1] = out
    return names[:nch], npad

def warm_dispatch(a, s_idx, entries, ret):
    I(a, "s_mov_b64 exec, 0")
    for k, e in enumerate(entries):
        I(a, f"s_cmp_eq_u32 s{s_idx}, {k}"); I(a, f"s_cbranch_scc1 {e}")

def add_pads_multi(a, regions, nch, pref, ret, every=41):
    pos = []
    for (i0, i1) in regions:
        cnt = every
        for k in range(i0, i1):
            l = a.lines[k]
            isins = l.startswith("    ") and not l.strip().startswith(";")
            if isins:
                if cnt >= every:
                    pos.append(k); cnt = 0
                cnt += 1
    npad = len(pos)
    names = [f"{pref}_pad{j}" for j in range(npad)]
    for j in range(npad - 1, -1, -1):
        tgt = names[j + nch] if j + nch < npad else ret
        a.lines[pos[j]:pos[j]] = [names[j] + ":", f"    s_cbranch_execz {tgt}"]
    return names[:min(nch, npad)], npad
```

```python
from asmgen import *
from gemm2 import *
import gemm3
from gemm3 import acc16, fr16, reads16, mfma16, nblk16, V_QA as QA16
from p1v2 import load_ptr, epi_addrs_read, wave_origin
from p2 import StampsAt, add64, FLAG_OFF, G_OFF
from k0 import XF_OFF, XFP, XFARR
import fold2, awg9 as awg3
FOLDF_OFF = 34 << 20
import os
TWICE = int(os.environ.get('TWICE', '0'))
BX = int(os.environ.get('BX', '0'))
LFLAG = 147456
W2T = int(os.environ.get('W2T', '1'))
W2PF = int(os.environ.get('W2PF', '0'))
W2PF0 = int(os.environ.get('W2PF0', '0'))
KWARM = int(os.environ.get('KWARM', '0'))
WBL2 = int(os.environ.get('WBL2', '0'))
LOCF = int(os.environ.get('LOCF', '1'))
PSTAMP = int(os.environ.get('PSTAMP', '0'))
NONCE_SC = os.environ.get('NONCE_SC', '')
S_PFS = 56; S_PFOFF = 60; S_PFSTEP = 61; V_PF = 30

def compute_loop16p(a, g, bias_base, hook_label=None, hook_cnt=None, stamp=None):
    p = g.pref; NB, MB = nblk16(g); naddr = 2 + NB
    I(a, "s_barrier")
    if stamp: I(a, stamp); I(a, "s_waitcnt lgkmcnt(0)")
    for r in reads16(g, 0, 0): I(a, r)
    I(a, f"s_mov_b32 s{S_CNT}, {g.nk}"); I(a, f"s_mov_b32 s{S_LEFT}, 0")
    A, B = fr16(g, 0)
    first = [f"v_mfma_f32_16x16x32_bf16 v[{acc16(g,nb,mb)}:{acc16(g,nb,mb)+3}], v[{A[nb]}:{A[nb]+3}], v[{B[mb]}:{B[mb]+3}], v[{bias_base+4*nb}:{bias_base+4*nb+3}]" for nb in range(NB) for mb in range(MB)]
    I(a, "s_waitcnt lgkmcnt(0)")
    interleave(a, first, reads16(g, 1, 1), 1)
    if hook_label:
        I(a, f"s_branch {hook_label}")
    else:
        I(a, f"s_branch {p}_c_mid")
    a(".p2align 6")
    a.label(f"{p}_c_loop")
    I(a, "s_waitcnt lgkmcnt(0)")
    interleave(a, mfma16(g, 0), reads16(g, 1, 1), 1)
    a.label(f"{p}_c_mid")
    I(a, "s_waitcnt lgkmcnt(0)"); I(a, "s_barrier")
    mf = mfma16(g, 1)
    I(a, mf[0])
    I(a, f"s_add_u32 s{S_LEFT}, s{S_LEFT}, {g.STAGE}"); I(a, f"s_cmp_ge_u32 s{S_LEFT}, {g.LDS}")
    I(a, mf[1])
    I(a, f"s_cselect_b32 s{S_DELTA}, s{S_DN}, s{S_DP}"); I(a, f"s_cselect_b32 s{S_LEFT}, 0, s{S_LEFT}")
    vupd = [f"v_add_u32 v{QA16+i}, s{S_DELTA}, v{QA16+i}" for i in range(naddr)]
    fill = vupd + reads16(g, 0, 0) + [f"s_sub_u32 s{S_CNT}, s{S_CNT}, 1", f"s_cmp_lg_u32 s{S_CNT}, 0"]
    interleave(a, mf[2:], fill, 1)
    I(a, f"s_cbranch_scc1 {p}_c_loop")
    I(a, "s_waitcnt lgkmcnt(0)")

def k_k1(a, name, fused=None, stamps=False, hsc="", astamp=False, npf0=3, w3pf=False, steppf=True, trace=False, pf_after=True, fstamp=False):
    g = G(BM=256, BN=128, WM=2, WN=2, NS=3, ldq=2048, ldp=7168, nk=16, pref="p1")
    st = StampsAt(a, stamps, 70)
    kernel_begin(a, name)
    st(0)
    if fused and fused.get("st0"): fused["st0"]()
    I(a, "s_cmp_ge_u32 s2, 256"); I(a, "s_cbranch_scc1 p1_end")
    lane_wave(a)
    I(a, "s_cmp_ge_u32 s2, 224"); I(a, "s_cbranch_scc1 aw_entry")
    load_ptr(a, 4, 0); load_ptr(a, 20, 48, 4); load_ptr(a, 24, 104); load_ptr(a, 36, 64); load_ptr(a, 38, 80); load_ptr(a, 62, 96)
    I(a, "s_and_b32 s26, s2, 7"); I(a, "s_lshr_b32 s27, s2, 3")
    I(a, "s_mul_i32 s28, s27, 37"); I(a, "s_lshr_b32 s28, s28, 8")
    I(a, "s_mul_i32 s29, s28, 7"); I(a, "s_sub_u32 s27, s27, s29")
    I(a, "s_lshr_b32 s29, s26, 2"); I(a, "s_and_b32 s26, s26, 3")
    I(a, "s_lshl_b32 s29, s29, 2"); I(a, "s_add_u32 s28, s28, s29")
    I(a, "s_mul_i32 s26, s26, 7"); I(a, "s_add_u32 s29, s26, s27")
    I(a, f"s_mul_i32 s{S_QOFF}, s28, {256*2048}")
    I(a, f"s_mul_i32 s{S_POFF}, s29, {128*2}")
    I(a, f"s_mov_b32 s{S_QSRD+2}, {2048*1024*2}"); I(a, f"s_mov_b32 s{S_QSRD+3}, 0x00020000")
    I(a, f"s_mov_b32 s{S_PSRD+2}, {1024*3584*2}"); I(a, f"s_mov_b32 s{S_PSRD+3}, 0x00020000")
    I(a, f"s_cmp_ge_u32 s{S_WAVE}, 4"); I(a, "s_cbranch_scc0 p1_compute")
    I(a, f"s_sub_u32 s{S_WAVE}, s{S_WAVE}, 4")
    gemm3.loader_voffsets16(a, g)
    I(a, f"s_cmp_eq_u32 s{S_WAVE}, 0"); I(a, f"s_cselect_b32 s{S_TMP}, 16, 0")
    I(a, f"s_mul_i32 s{S_DELTA}, s2, 16"); I(a, f"v_add_u32 v{V_PF}, s{S_DELTA}, v1"); I(a, f"v_lshlrev_b32 v{V_PF}, 7, v{V_PF}")
    I(a, f"v_cmp_gt_u32 vcc, s{S_TMP}, v1"); I(a, f"v_mov_b32 v46, 0x7ffffff0"); I(a, "s_nop 0"); I(a, f"v_cndmask_b32 v{V_PF}, v46, v{V_PF}, vcc")
    if W2PF:
        I(a, f"s_cmp_lt_u32 s{S_WAVE}, {1 + W2PF}"); I(a, f"s_cselect_b32 s{S_TMP}, 16, 0")
        I(a, f"v_add_u32 v32, s{S_DELTA}, v1"); I(a, "v_lshlrev_b32 v32, 7, v32")
        I(a, f"v_cmp_gt_u32 vcc, s{S_TMP}, v1"); I(a, "s_nop 1"); I(a, "v_cndmask_b32 v32, v46, v32, vcc")
    I(a, "s_waitcnt lgkmcnt(0)")
    st(1)
    I(a, f"s_mov_b32 s{S_QSRD}, s4"); I(a, f"s_and_b32 s{S_QSRD+1}, s5, 0xffff")
    I(a, f"s_mov_b32 s{S_PSRD}, s20"); I(a, f"s_and_b32 s{S_PSRD+1}, s21, 0xffff")
    if W2PF:
        I(a, f"s_cmp_eq_u32 s{S_WAVE}, 0"); I(a, "s_cselect_b32 s64, s20, s36"); I(a, "s_cselect_b32 s65, s21, s37")
        I(a, "s_and_b32 s65, s65, 0xffff"); I(a, f"s_mov_b32 s66, {1024*3584*2}"); I(a, "s_mov_b32 s67, 0x00020000")
    I(a, f"s_mov_b32 s{S_PFOFF}, {64*7168}")
    I(a, "s_mov_b32 s34, 0"); I(a, "s_mov_b32 s35, 0")
    srd(a, 88, 62, 256)
    I(a, "s_cmp_eq_u32 s2, 0"); I(a, "s_cbranch_scc0 p1_nn"); I(a, f"s_cmp_eq_u32 s{S_WAVE}, 3"); I(a, "s_cbranch_scc0 p1_nn")
    I(a, "s_memrealtime s[58:59]"); I(a, "s_waitcnt lgkmcnt(0)"); I(a, "s_or_b32 s58, s58, 1")
    I(a, "v_mov_b32 v26, 0"); I(a, "v_mov_b32 v27, s58")
    I(a, "buffer_store_dword v27, v26, s[88:91], 0 offen sc1")
    a.label("p1_nn")
    X = 1 if steppf else 0
    def pf():
        if not steppf: return
        PS = 64 if W2PF else S_PSRD
        I(a, f"buffer_load_dword v47, v{V_PF}, s[{PS}:{PS+3}], s{S_PFOFF} offen")
        I(a, f"s_add_u32 s{S_PFOFF}, s{S_PFOFF}, {64*7168}")
    if trace:
        I(a, "s_add_u32 s64, s24, 0x6400000"); I(a, "s_addc_u32 s65, s25, 0"); srd(a, 84, 64, 1<<22)
        I(a, "s_lshl_b32 s62, s2, 12"); I(a, f"s_lshl_b32 s68, s{S_WAVE}, 10"); I(a, "s_add_u32 s68, s68, s62"); I(a, "v_mov_b32 v31, 0")
    def tr():
        if not trace: return
        I(a, "s_memrealtime s[72:73]"); I(a, "s_memtime s[74:75]"); I(a, "s_waitcnt lgkmcnt(0)")
        I(a, "v_mov_b32 v28, s72"); I(a, "v_mov_b32 v29, s74")
        I(a, "buffer_store_dwordx2 v[28:29], v31, s[84:87], s68 offen"); I(a, "s_add_u32 s68, s68, 8")
    if trace: X += 1
    st(2)
    PER = g.PER
    if not pf_after:
        for i in range(npf0): pf()
    if BX == 3:
        I(a, f"v_mov_b32 v24, {LFLAG}")
        lab = a.newlabel("bi")
        I(a, "s_cmp_lt_u32 s2, 132"); I(a, f"s_cbranch_scc0 {lab}")
        I(a, "v_mov_b32 v20, 0"); I(a, "v_mov_b32 v21, 0"); I(a, "v_mov_b32 v22, 0"); I(a, "v_mov_b32 v23, 0")
        I(a, "ds_write_b128 v24, v[20:23]"); I(a, "s_waitcnt lgkmcnt(0)"); I(a, "s_barrier")
        a.label(lab)
    stage_issue(a, g)
    if not PSTAMP: st(3)
    npa = (npf0 if (pf_after and steppf) else 0)
    if BX == 2:
        for i in range(npa): pf()
        I(a, "s_barrier")
        stage_issue(a, g); stage_issue(a, g)
        I(a, f"s_waitcnt vmcnt({2*PER+npa})")
        npa = 0
    else:
        stage_issue(a, g)
        if pf_after:
            for i in range(npf0): pf()
        if BX == 3:
            lab = a.newlabel("lf"); labx = a.newlabel("lfx")
            I(a, "s_cmp_lt_u32 s2, 132"); I(a, f"s_cbranch_scc0 {labx}")
            I(a, "s_mov_b32 s59, 0x40000")
            a.label(lab)
            I(a, "ds_read_b128 v[20:23], v24"); I(a, "s_waitcnt lgkmcnt(0)")
            I(a, "v_and_b32 v20, v20, v21"); I(a, "v_and_b32 v22, v22, v23"); I(a, "v_and_b32 v20, v20, v22"); I(a, "s_nop 0")
            I(a, "v_readfirstlane_b32 s58, v20")
            I(a, "s_sub_u32 s59, s59, 1"); I(a, f"s_cbranch_scc1 {labx}")
            I(a, "s_cmp_eq_u32 s58, 1"); I(a, f"s_cbranch_scc1 {labx}")
            I(a, "s_sleep 1"); I(a, f"s_branch {lab}")
            a.label(labx)
            stage_issue(a, g)
            I(a, f"s_waitcnt vmcnt({2*PER+npa})")
        elif BX:
            I(a, "s_barrier")
            stage_issue(a, g)
            I(a, f"s_waitcnt vmcnt({2*PER+npa})")
        else:
            I(a, f"s_waitcnt vmcnt({PER+npa})")
    st(4)
    I(a, "s_barrier"); tr()
    I(a, "s_mov_b32 s6, s24"); I(a, "s_mov_b32 s7, s25"); add64(a, 6, FOLDF_OFF); srd(a, 92, 6, 33*128)
    I(a, "v_mov_b32 v27, 0")
    if not fused: I(a, f"s_cmp_eq_u32 s{S_WAVE}, 3"); I(a, "s_cbranch_scc0 p1_nonl")
    I(a, f"buffer_load_dword v26, v27, s[88:91], 0 offen {NONCE_SC}")
    a.label("p1_nonl")
    if BX:
        pf()
        lab = a.newlabel("bw")
        I(a, f"s_cmp_eq_u32 s{S_WAVE}, 3"); I(a, f"s_cbranch_scc0 {lab}")
        I(a, f"s_cmp_lt_u32 s2, 132"); I(a, f"s_cbranch_scc0 {lab}")
        I(a, f"s_waitcnt vmcnt({1 if steppf else 0})")
        a.label(lab)
        I(a, f"s_waitcnt vmcnt({npa + PER + X})"); I(a, "s_barrier")
    else:
        stage_issue(a, g); pf()
        I(a, f"s_waitcnt vmcnt({PER + (1 if steppf else 0)})"); I(a, "s_barrier")
    if not fused:
        I(a, f"s_cmp_eq_u32 s{S_WAVE}, 3"); I(a, "s_cbranch_scc0 p1_nopub")
        I(a, "s_cmp_lt_u32 s2, 132"); I(a, "s_cbranch_scc0 p1_nopub")
    I(a, "s_mov_b32 s59, 0x10000")
    a.label("p1_npoll")
    I(a, "v_readfirstlane_b32 s58, v26")
    I(a, "s_sub_u32 s59, s59, 1"); I(a, "s_cbranch_scc1 p1_ngo")
    I(a, "s_cmp_lg_u32 s58, 0"); I(a, "s_cbranch_scc1 p1_ngo")
    I(a, "buffer_load_dword v26, v27, s[88:91], 0 offen sc1"); I(a, "s_waitcnt vmcnt(0)")
    I(a, "s_branch p1_npoll")
    a.label("p1_ngo")
    if fused:
        I(a, "s_mov_b32 s34, s58")
        I(a, f"s_cmp_eq_u32 s{S_WAVE}, 3"); I(a, "s_cbranch_scc0 p1_nopub")
        I(a, "s_cmp_lt_u32 s2, 132"); I(a, "s_cbranch_scc0 p1_nopub")
    I(a, "s_lshr_b32 s58, s2, 2"); I(a, "s_lshl_b32 s58, s58, 7"); I(a, "s_and_b32 s59, s2, 3"); I(a, "s_lshl_b32 s59, s59, 2"); I(a, "s_add_u32 s58, s58, s59")
    I(a, "v_mov_b32 v25, 0x7ffffff0"); I(a, "v_mov_b32 v27, s58"); I(a, "v_cmp_eq_u32 vcc, 0, v1"); I(a, "s_nop 1"); I(a, "v_cndmask_b32 v27, v25, v27, vcc")
    I(a, "buffer_store_dword v26, v27, s[92:95], 0 offen sc1")
    a.label("p1_nopub")
    if PSTAMP: st(3)
    if W2PF:
        I(a, f"v_mov_b32 v{V_PF}, v32")
        I(a, f"s_cmp_eq_u32 s{S_WAVE}, 0"); I(a, f"s_cselect_b32 s{S_PFOFF}, s{S_PFOFF}, {W2PF0*64*7168}")
    tr(); stage_issue(a, g); pf()
    I(a, f"s_mov_b32 s{S_CNT}, {g.nk-3-1}")
    a.label("p1_ld_loop")
    I(a, f"s_waitcnt vmcnt({PER + X + (1 if steppf else 0)})"); I(a, "s_barrier"); tr(); stage_issue(a, g); pf()
    I(a, f"s_sub_u32 s{S_CNT}, s{S_CNT}, 1"); I(a, f"s_cmp_lg_u32 s{S_CNT}, 0"); I(a, "s_cbranch_scc1 p1_ld_loop")
    NT = 2 if W2T else 0
    if W2T:
        I(a, "s_bfe_u32 s60, s2, 0x10001"); I(a, f"s_mul_i32 s60, s60, {1792*2048}")
        I(a, "s_and_b32 s61, s2, 1"); I(a, "s_lshl_b32 s61, s61, 10"); I(a, "s_add_u32 s60, s60, s61")
        I(a, "s_lshr_b32 s61, s2, 3"); I(a, f"s_mul_i32 s61, s61, {64*2048}"); I(a, "s_add_u32 s60, s60, s61")
        I(a, f"s_mul_i32 s61, s{S_WAVE}, {16*2048}"); I(a, "s_add_u32 s60, s60, s61")
        srd(a, S_PFS, 36, 3584*1024*2)
        I(a, "v_lshrrev_b32 v46, 3, v1"); I(a, "v_lshlrev_b32 v46, 11, v46"); I(a, "v_and_b32 v45, 7, v1"); I(a, "v_lshl_add_u32 v46, v45, 7, v46")
        I(a, f"buffer_load_dword v47, v46, s[{S_PFS}:{S_PFS+3}], s60 offen")
        I(a, f"s_add_u32 s60, s60, {8*2048}")
        I(a, f"buffer_load_dword v47, v46, s[{S_PFS}:{S_PFS+3}], s60 offen")
    I(a, f"s_waitcnt vmcnt({PER + X + (1 if steppf else 0) + NT})"); I(a, "s_barrier")
    I(a, f"s_waitcnt vmcnt({(1 if steppf else 0) + NT})"); I(a, "s_barrier")
    I(a, f"s_barrier")
    st(5)
    if fused: fused["r_ld0"] = len(a.lines)
    srd(a, 16, 24, 2048*3584*2)
    wave_origin(a, g, 28, 29, 30, 31)
    epi_addrs_read(a, g, 7168, 30, 31)
    if not fused:
        I(a, f"s_cmp_eq_u32 s{S_WAVE}, 3"); I(a, "s_cbranch_scc0 p1_noflag")
        I(a, "s_mov_b32 s6, s24"); I(a, "s_mov_b32 s7, s25"); add64(a, 6, FLAG_OFF); srd(a, 32, 6, 1024*128)
        I(a, "v_min_u32 v40, 16, v1"); I(a, "v_mul_u32_u24 v40, 224, v40"); I(a, "v_add_u32 v40, s2, v40"); I(a, "v_lshlrev_b32 v40, 7, v40"); I(a, "v_mov_b32 v42, 0"); I(a, "v_mov_b32 v43, 0")
        I(a, "buffer_store_dwordx2 v[42:43], v40, s[32:35], 0 offen")
        a.label("p1_noflag")
    for mb in range(4):
        I(a, "s_barrier")
        for i in range(4):
            r = 64 + mb*16 + i*4
            I(a, f"ds_read_b128 v[{r}:{r+3}], v62 offset:{mb*4096 + i*1024}")
        for i in range(4):
            r = 64 + mb*16 + i*4
            I(a, f"s_mov_b32 s{S_TMP2}, {(mb*32 + i*8) * 7168}")
            I(a, f"s_waitcnt lgkmcnt({3-i})")
            I(a, f"buffer_store_dwordx4 v[{r}:{r+3}], v63, s[16:19], s{S_TMP2} offen {hsc}")
    st(6)
    if stamps: I(a, "s_waitcnt vmcnt(0)")
    if fused:
        I(a, "s_lshl_b32 s58, s28, 9"); I(a, "s_lshl_b32 s59, s29, 4"); I(a, "s_add_u32 s58, s58, s59"); I(a, f"s_lshl_b32 s59, s{S_WAVE}, 2"); I(a, "s_add_u32 s58, s58, s59")
        I(a, "v_mov_b32 v28, s58"); I(a, "v_mov_b32 v25, 0x7ffffff0"); I(a, "v_cmp_eq_u32 vcc, 0, v1"); I(a, "s_nop 1"); I(a, "v_cndmask_b32 v28, v25, v28, vcc")
        I(a, "s_mov_b32 s6, s24"); I(a, "s_mov_b32 s7, s25"); add64(a, 6, 35 << 20); srd(a, 52, 6, 128*1024)
        I(a, "v_mov_b32 v29, s34")
        I(a, "s_waitcnt vmcnt(0)")
        if WBL2 == 1:
            I(a, "buffer_wbl2 sc1"); I(a, "s_waitcnt vmcnt(0)")
        if WBL2 == 2:
            lab = a.newlabel("wb")
            I(a, "buffer_wbl2 sc1"); I(a, "s_waitcnt vmcnt(0)")
        I(a, "buffer_store_dword v29, v28, s[52:55], 0 offen sc1")
        if LOCF:
            I(a, "s_getreg_b32 s58, hwreg(HW_REG_XCC_ID)"); I(a, "s_add_u32 s58, s58, 1"); I(a, "s_lshl_b32 s58, s58, 1"); I(a, "s_add_u32 s58, s58, s34")
            I(a, "v_mov_b32 v29, s58")
            I(a, "s_and_b32 s59, s2, 3"); I(a, "s_lshl_b32 s60, s28, 2"); I(a, "s_add_u32 s60, s60, s59"); I(a, "s_lshl_b32 s60, s60, 7")
            I(a, "s_mul_i32 s59, s59, 7"); I(a, "s_sub_u32 s59, s29, s59"); I(a, "s_lshl_b32 s59, s59, 4"); I(a, "s_add_u32 s60, s60, s59")
            I(a, f"s_lshl_b32 s59, s{S_WAVE}, 2"); I(a, "s_add_u32 s60, s60, s59"); I(a, "s_add_u32 s60, s60, 8192")
            I(a, "v_mov_b32 v27, s60"); I(a, "v_cmp_eq_u32 vcc, 0, v1"); I(a, "s_nop 1"); I(a, "v_cndmask_b32 v27, v25, v27, vcc")
            I(a, "buffer_store_dword v29, v27, s[52:55], 0 offen")
        I(a, "s_branch f_ld")
        fused["r_ld1"] = len(a.lines)
    else:
        st(7); st.dump(8, 1)
        I(a, "s_endpgm")
    a.label("p1_compute")
    I(a, "s_setprio 3")
    I(a, f"s_lshl_b32 s69, s2, 2"); I(a, f"s_add_u32 s69, s69, s{S_WAVE}")
    fold2.fold_pre(a, 69)
    I(a, f"s_mul_i32 s68, s{S_WAVE}, 10240"); I(a, f"s_add_u32 s68, s68, {2*g.STAGE}")
    I(a, "s_mov_b32 s14, 2048"); I(a, "s_mov_b32 s15, 0x00020000")
    wave_origin(a, g, 28, 29, 30, 31)
    I(a, "v_lshrrev_b32 v8, 4, v1"); I(a, "v_lshlrev_b32 v8, 3, v8")
    I(a, "s_waitcnt lgkmcnt(0)")
    st(1)
    I(a, f"s_mov_b32 s{S_QSRD}, s4"); I(a, f"s_and_b32 s{S_QSRD+1}, s5, 0xffff")
    I(a, "s_mov_b32 s12, s38"); I(a, "s_and_b32 s13, s39, 0xffff")
    I(a, "s_cmp_gt_u32 s69, 512"); I(a, "s_cbranch_scc1 p1_skipload")
    fold2.fold_loads(a, S_QSRD, 12, 68)
    a.label("p1_skipload")
    if fstamp == 2: st(2)
    srd(a, 32, 22, 3584*2)
    I(a, "s_mov_b32 s6, s24"); I(a, "s_mov_b32 s7, s25"); add64(a, 6, XF_OFF); srd(a, 16, 6, 8*XFARR)
    I(a, "s_mov_b32 s6, s24"); I(a, "s_mov_b32 s7, s25"); add64(a, 6, G_OFF); srd(a, 40, 6, 2048*8)
    I(a, "s_cmp_gt_u32 s69, 527"); I(a, "s_cbranch_scc1 p1_nofold")
    I(a, "s_cmp_gt_u32 s69, 512"); I(a, "s_cbranch_scc1 p1_zero")
    for nb in range(4):
        I(a, f"buffer_load_dwordx2 v[{184+2*nb}:{184+2*nb+1}], v8, s[32:35], s31 offen offset:{nb*32}")
    if fstamp == 2: st(3)
    def setflag():
        I(a, f"s_lshl_b32 s58, s{S_WAVE}, 2"); I(a, f"s_add_u32 s58, s58, {LFLAG}"); I(a, "v_mov_b32 v193, s58"); I(a, "v_mov_b32 v194, 1")
        I(a, "ds_write_b32 v193, v194")
    after_reads = None
    if BX in (1, 2): after_reads = lambda: I(a, "s_barrier")
    if BX == 3:
        after_reads = setflag
        I(a, "s_barrier")
    if TWICE:
        I(a, "s_mov_b32 s86, s68"); I(a, "s_mov_b32 s87, 0")
        a.label("p1_fold_again")
        I(a, "s_mov_b32 s68, s86")
    fold2.fold_lds_reads(a, 68, (st if fstamp == 1 else ((lambda i: st(4)) if fstamp == 2 else None)), nyounger=4)
    fold2.fold_compute(a, 69, 16, 40, st=st if fstamp == 1 else None, after_reads=after_reads)
    if TWICE:
        I(a, "s_add_u32 s87, s87, 1"); I(a, "s_cmp_eq_u32 s87, 1"); I(a, "s_cbranch_scc1 p1_fold_again")
    if fstamp:
        st(5); I(a, 's_waitcnt vmcnt(0)'); st(6)
    I(a, "s_waitcnt vmcnt(10)")
    I(a, "s_branch p1_folded")
    a.label("p1_zero")
    for nb in range(4):
        I(a, f"buffer_load_dwordx2 v[{184+2*nb}:{184+2*nb+1}], v8, s[32:35], s31 offen offset:{nb*32}")
    if BX in (1, 2): I(a, "s_barrier")
    if BX == 3: I(a, "s_barrier"); setflag()
    fold2.fold_zero(a, 69, 16)
    I(a, "s_waitcnt vmcnt(8)")
    I(a, "s_branch p1_folded")
    a.label("p1_nofold")
    for nb in range(4):
        I(a, f"buffer_load_dwordx2 v[{184+2*nb}:{184+2*nb+1}], v8, s[32:35], s31 offen offset:{nb*32}")
    if BX in (1, 2): I(a, "s_barrier")
    I(a, f"s_cmp_eq_u32 s{S_WAVE}, {3 if w3pf else 99}"); I(a, "s_cbranch_scc0 p1_nopf")
    load_ptr(a, 52, 8, 4); load_ptr(a, 64, 24, 4)
    I(a, "s_lshl_b32 s58, s2, 6"); I(a, "v_add_u32 v4, s58, v1")
    I(a, f"s_mov_b32 s59, {(1<<32)//9+1}"); I(a, "v_mul_hi_u32 v5, v4, s59"); I(a, "v_mul_u32_u24 v6, 9, v5"); I(a, "v_sub_u32 v6, v4, v6")
    I(a, "v_lshlrev_b32 v7, 12, v5"); I(a, "v_lshl_add_u32 v7, v6, 7, v7")
    I(a, "v_cmp_ge_u32 vcc, 1024, v5"); I(a, "v_mov_b32 v9, 0x7ffffff0"); I(a, "s_waitcnt lgkmcnt(0)"); I(a, "v_cndmask_b32 v7, v9, v7, vcc")
    srd(a, 12, 52, 2048*2048*2); srd(a, 16, 54, 2048*2048*2)
    I(a, "buffer_load_dword v25, v7, s[12:15], 0 offen"); I(a, "buffer_load_dword v25, v7, s[16:19], 0 offen")
    I(a, f"s_mov_b32 s59, {(1<<32)//5+1}"); I(a, "v_mul_hi_u32 v5, v4, s59"); I(a, "v_mul_u32_u24 v6, 5, v5"); I(a, "v_sub_u32 v6, v4, v6")
    I(a, "v_lshlrev_b32 v7, 11, v5"); I(a, "v_lshl_add_u32 v7, v6, 7, v7")
    I(a, "v_cmp_ge_u32 vcc, 512, v5"); I(a, "v_mov_b32 v9, 0x7ffffff0"); I(a, "s_nop 0"); I(a, "v_cndmask_b32 v7, v9, v7, vcc")
    srd(a, 12, 64, 1024*1024*2); srd(a, 16, 66, 1024*1024*2)
    I(a, "buffer_load_dword v25, v7, s[12:15], 0 offen"); I(a, "buffer_load_dword v25, v7, s[16:19], 0 offen")
    I(a, "s_waitcnt vmcnt(4)")
    I(a, "s_branch p1_folded")
    a.label("p1_nopf")
    if fused and KWARM:
        for q in (8, 12, 16, 20, 24, 36, 52, 56, 60, 84, 88, 92):
            I(a, f"s_mov_b32 s{q}, s4"); I(a, f"s_and_b32 s{q+1}, s5, 0xffff"); I(a, f"s_mov_b32 s{q+2}, 0"); I(a, f"s_mov_b32 s{q+3}, 0x00020000")
        I(a, "s_lshr_b32 s64, s2, 3"); I(a, "s_sub_u32 s64, s64, 16"); I(a, "s_lshl_b32 s64, s64, 2"); I(a, f"s_add_u32 s64, s64, s{S_WAVE}")
        fused["disp"] = len(a.lines)
        a.label("kw_ret"); I(a, "s_mov_b64 exec, -1")
    I(a, "s_waitcnt vmcnt(0)")
    a.label("p1_folded")
    if fstamp:
        st(7); st0 = st; st = (lambda i: None)
    st(2)
    for nb in range(4):
        for j in range(4):
            src = 184 + 2*nb + j//2; d = 8 + 4*nb + j
            if j % 2 == 0: I(a, f"v_lshlrev_b32 v{d}, 16, v{src}")
            else: I(a, f"v_and_b32 v{d}, 0xffff0000, v{src}")
    setup16_noclobber(a, g)
    st(3)
    compute_loop16p(a, g, 8, hook_label="p1_hook", hook_cnt=g.nk, stamp="s_memtime s[78:79]" if (stamps and not fstamp) else None)
    st(5)
    if fused: fused["r_cp0"] = len(a.lines)
    I(a, f"s_mul_i32 s{S_TMP}, s{S_WAVE}, {g.wm*128}")
    I(a, "v_and_b32 v18, 15, v1"); I(a, "v_lshlrev_b32 v19, 7, v18"); I(a, f"v_add_u32 v19, s{S_TMP}, v19")
    I(a, "v_bfe_u32 v24, v1, 4, 1"); I(a, "v_lshl_add_u32 v19, v24, 3, v19")
    I(a, "v_and_b32 v18, 7, v18"); I(a, "v_lshrrev_b32 v24, 5, v1")
    for nb in range(4):
        I(a, f"v_add_u32 v25, {2*nb}, v24"); I(a, "v_xor_b32 v25, v25, v18"); I(a, f"v_lshl_add_u32 v{20+nb}, v25, 4, v19")
    k = 0
    for mb2 in range(4):
        for mb in (2*mb2, 2*mb2+1):
            for nb in range(4):
                cc = acc16(g, nb, mb); t = 8 + (k % 4) * 2; k += 1
                for r in range(4): I(a, f"v_max_f32 v{cc+r}, 0, v{cc+r}")
                for r in (0, 2): I(a, f"v_pk_mul_f32 v[{cc+r}:{cc+r+1}], v[{cc+r}:{cc+r+1}], v[{cc+r}:{cc+r+1}]")
                I(a, f"v_cvt_pk_bf16_f32 v{t}, v{cc}, v{cc+1}"); I(a, f"v_cvt_pk_bf16_f32 v{t+1}, v{cc+2}, v{cc+3}")
                I(a, f"ds_write_b64 v{20+nb}, v[{t}:{t+1}] offset:{mb*2048}")
        I(a, "s_waitcnt lgkmcnt(0)"); I(a, "s_barrier")
    st(6); st(7)
    if fused:
        I(a, "s_branch f_cp")
        fused["r_cp1"] = len(a.lines)
    elif fstamp: st0.dump(8, 0)
    else: st.dump(8, 0)
    a.label("p1_end")
    I(a, "s_endpgm")
    a.label("p1_hook")
    I(a, "s_cmp_gt_u32 s69, 527"); I(a, "s_cbranch_scc1 p1_c_mid")
    I(a, "s_waitcnt vmcnt(0)")
    I(a, "s_branch p1_c_mid")
    a.label("aw_entry")
    sa = StampsAt(a, astamp, 70)
    if astamp: sa(0)
    awg3.a_wg(a, stamps=sa if astamp else None, ysc=('sc0 sc1' if fused else os.environ.get('YSC', '')), fused=fused)
    return g

def setup16_noclobber(a, g):
    import math
    lw = int(math.log2(g.WM)); V_QA = gemm3.V_QA; V_PA = gemm3.V_PA
    I(a, f"s_and_b32 s{S_TMP}, s{S_WAVE}, {g.WM-1}"); I(a, f"s_lshr_b32 s{S_TMP2}, s{S_WAVE}, {lw}")
    I(a, "v_and_b32 v27, 15, v1"); I(a, f"s_mul_i32 s{S_DELTA}, s{S_TMP}, {g.wm*128}"); I(a, "v_lshlrev_b32 v27, 7, v27"); I(a, f"v_add_u32 v27, s{S_DELTA}, v27")
    I(a, "v_lshrrev_b32 v28, 4, v1"); I(a, "v_bfe_u32 v29, v1, 1, 3"); I(a, "v_xor_b32 v28, v28, v29")
    for ks in range(2):
        I(a, f"v_xor_b32 v30, {4*ks}, v28"); I(a, f"v_lshl_add_u32 v{V_QA+ks}, v30, 4, v27")
    I(a, "v_bfe_u32 v27, v1, 2, 2"); I(a, "v_lshrrev_b32 v28, 4, v1"); I(a, "v_lshl_add_u32 v29, v28, 3, v27")
    I(a, f"v_lshlrev_b32 v29, 8, v29"); I(a, f"v_add_u32 v29, {g.QB}, v29")
    I(a, "v_and_b32 v30, 1, v1"); I(a, "v_lshl_add_u32 v29, v30, 3, v29")
    I(a, "v_bfe_u32 v30, v1, 1, 1")
    I(a, f"s_mul_i32 s{S_DELTA}, s{S_TMP2}, {g.wn//8}"); I(a, f"v_add_u32 v30, s{S_DELTA}, v30")
    I(a, "v_lshlrev_b32 v27, 2, v27"); I(a, "v_and_b32 v28, 1, v28"); I(a, "v_lshlrev_b32 v28, 1, v28"); I(a, "v_xor_b32 v27, v27, v28")
    NB, MB = nblk16(g)
    for nb in range(NB):
        I(a, f"v_add_u32 v31, {2*nb}, v30"); I(a, "v_xor_b32 v31, v31, v27"); I(a, f"v_lshl_add_u32 v{V_PA+nb}, v31, 4, v29")
    I(a, f"s_mov_b32 s{S_DN}, {(-(g.NS-1)*g.STAGE) & 0xffffffff}"); I(a, f"s_mov_b32 s{S_DP}, {g.STAGE}")
```

```python
from asmgen import *
from gemm2 import *
import gemm3
from gemm3 import acc16, loader_voffsets16, compute_setup16, compute_loop16
from p1v2 import load_ptr
from p2 import StampsAt, add64, Y_OFF, YP, YARR, G_OFF, FLAG_OFF
from p2b import y_loads, y_loads_pre, y_loads_i, y_precombine, T1
XS_OFF = 40 << 20

import os
YSPLIT = int(os.environ.get("YSPLIT", "9"))
WFLAG = int(os.environ.get("WFLAG", "0"))
HSLEEP = int(os.environ.get("HSLEEP", "2"))
PRL = int(os.environ.get("PRL", "-1"))
PRC = int(os.environ.get("PRC", "-1"))
LOCF = int(os.environ.get("LOCF", "1"))
LOCN = int(os.environ.get("LOCN", "6"))
DIST = int(os.environ.get("DIST", "1"))
PFP = int(os.environ.get("PFP", "0")); PFD = int(os.environ.get("PFD", "6"))
HF_OFF = 35 << 20
def k_k2(a, name, stamps=False, NS=4, trace=False, fused=None):
    g = G(BM=128, BN=128, WM=2, WN=2, NS=NS, ldq=7168, ldp=2048, nk=28, pref="p2")
    st = StampsAt(a, stamps, 70)
    def common():
        load_ptr(a, 6, 64); load_ptr(a, 20, 72); load_ptr(a, 22, 88); load_ptr(a, 4, 104)
        if fused: load_ptr(a, 62, 96)
        else: lane_wave(a)
        I(a, "s_lshr_b32 s27, s2, 3")
        I(a, "s_bfe_u32 s67, s2, 0x10001")
        I(a, "s_bfe_u32 s28, s2, 0x10002"); I(a, "s_lshl_b32 s28, s28, 3"); I(a, "s_lshr_b32 s30, s27, 2"); I(a, "s_add_u32 s28, s28, s30")
        I(a, "s_and_b32 s29, s2, 1"); I(a, "s_lshl_b32 s29, s29, 2"); I(a, "s_and_b32 s30, s27, 3"); I(a, "s_add_u32 s29, s29, s30")
        I(a, f"s_mul_i32 s{S_QOFF}, s28, {128*7168}")
        I(a, f"s_mul_i32 s30, s67, {1792*2}"); I(a, f"s_add_u32 s{S_QOFF}, s{S_QOFF}, s30")
        I(a, f"s_mul_i32 s{S_POFF}, s29, {128*2}")
        I(a, f"s_mul_i32 s30, s67, {1792*2048}"); I(a, f"s_add_u32 s{S_POFF}, s{S_POFF}, s30")
        if fused and LOCF:
            I(a, "s_and_b32 s30, s2, 1"); I(a, f"s_mul_i32 s31, s30, {14*128}"); I(a, f"s_add_u32 s{S_QOFF}, s{S_QOFF}, s31")
            I(a, f"s_mul_i32 s31, s30, {14*64*2048}"); I(a, f"s_add_u32 s{S_POFF}, s{S_POFF}, s31")
        I(a, f"s_and_b32 s31, s{S_WAVE}, 1"); I(a, "s_lshl_b32 s31, s31, 6"); I(a, "s_lshl_b32 s30, s28, 7"); I(a, "s_add_u32 s30, s30, s31")
        I(a, "s_lshl_b32 s31, s67, 5"); I(a, "s_add_u32 s30, s30, s31")
        I(a, f"s_bfe_u32 s31, s{S_WAVE}, 0x10001"); I(a, "s_lshl_b32 s31, s31, 7"); I(a, "s_lshl_b32 s66, s29, 8"); I(a, "s_add_u32 s31, s31, s66")
    PX = 2
    PER = g.PER
    if not fused:
        kernel_begin(a, name)
        st(0)
        I(a, "s_cmp_ge_u32 s2, 256"); I(a, "s_cbranch_scc1 p2_end")
        common()
        I(a, f"s_cmp_ge_u32 s{S_WAVE}, 4"); I(a, "s_cbranch_scc0 p2_compute")
        I(a, f"s_sub_u32 s{S_WAVE}, s{S_WAVE}, 4")
    else:
        a.label("f_ld")
        if PRL >= 0: I(a, f"s_setprio {PRL}")
        st(1)
        common()
    loader_voffsets16(a, g, s_perm=67, nblk=2)
    I(a, "s_waitcnt lgkmcnt(0)")
    if not fused: st(1)
    srd(a, S_PSRD, 6, 3584*1024*2); srd(a, S_QSRD, 4, 2048*3584*2)
    if fused:
        FS = 52
        I(a, "s_mov_b32 s6, s4"); I(a, "s_mov_b32 s7, s5"); add64(a, 6, HF_OFF); srd(a, FS, 6, 128*1024)
        st(2)
        I(a, "s_barrier")
        def p_part(s_):
            I(a, f"s_add_u32 m0, s{S_MP}, {s_*g.STAGE}"); I(a, f"s_add_u32 s58, s{S_POFF}, {s_*64*g.ldp}")
            for i in range(g.np_):
                I(a, f"buffer_load_dwordx4 v{VL+g.nq+i}, s[{S_PSRD}:{S_PSRD+3}], s58 offen offset:{(i&3)*1024} lds")
        def q_part(s_):
            I(a, f"s_add_u32 m0, s{S_MQ}, {s_*g.STAGE}"); I(a, f"s_add_u32 s58, s{S_QOFF}, {s_*128}")
            for i in range(g.nq):
                I(a, f"buffer_load_dwordx4 v{VL+i}, s[{S_QSRD}:{S_QSRD+3}], s58 offen offset:{(i&3)*1024} lds")
        for s_ in range(NS): p_part(s_)
        st(3)
        I(a, "s_barrier")
        for s_ in range(NS): q_part(s_)
        I(a, f"s_add_u32 s{S_QOFF}, s{S_QOFF}, {NS*128}"); I(a, f"s_add_u32 s{S_POFF}, s{S_POFF}, {NS*64*g.ldp}")
        I(a, f"s_waitcnt vmcnt({(NS-1)*g.nq})")
        st(4)
        I(a, "s_barrier")
    else:
        st(2)
    if not fused:
        stage_issue(a, g)
        st(3)
        stage_issue(a, g)
        I(a, f"s_waitcnt vmcnt({PER})")
        st(4)
        I(a, "s_barrier")
        for s in range(2, NS): stage_issue(a, g)
    srd(a, 16, 22, 2048*1024*2)
    I(a, "s_mov_b32 s6, s4"); I(a, "s_mov_b32 s7, s5"); add64(a, 6, Y_OFF); srd(a, 24, 6, 4*YARR)
    I(a, "s_mov_b32 s6, s4"); I(a, "s_mov_b32 s7, s5"); add64(a, 6, G_OFF); srd(a, 36, 6, 2048*8)
    I(a, f"s_mov_b32 s63, {YARR}"); I(a, f"s_mov_b32 s64, {2*YARR}"); I(a, f"s_mov_b32 s65, {3*YARR}")
    X = 0
    if trace:
        X = 1
        I(a, "s_add_u32 s60, s4, 0x6400000"); I(a, "s_addc_u32 s61, s5, 0"); srd(a, 56, 60, 1<<22)
        I(a, "s_lshl_b32 s62, s2, 12"); I(a, f"s_lshl_b32 s68, s{S_WAVE}, 10"); I(a, "s_add_u32 s68, s68, s62"); I(a, "v_mov_b32 v30, 0")
    def tr():
        if not trace: return
        I(a, "s_memrealtime s[90:91]"); I(a, "s_memtime s[92:93]"); I(a, "s_waitcnt lgkmcnt(0)")
        I(a, "v_mov_b32 v28, s90"); I(a, "v_mov_b32 v29, s92")
        I(a, "buffer_store_dwordx2 v[28:29], v30, s[56:59], s68 offen"); I(a, "s_add_u32 s68, s68, 8")
    if PFP and not trace:
        P = PFP
        I(a, f"s_lshl_b32 s58, s{S_WAVE}, 6"); I(a, "v_add_u32 v20, s58, v1")
        I(a, "s_bfe_u32 s58, s2, 0x20003"); I(a, "s_lshl_b32 s58, s58, 5")
        I(a, "v_and_b32 v21, 31, v20"); I(a, "v_add_u32 v21, s58, v21"); I(a, f"v_mul_u32_u24 v21, {g.ldq}, v21")
        I(a, "v_lshrrev_b32 v22, 5, v20"); I(a, "v_lshl_add_u32 v21, v22, 7, v21")
        I(a, f"v_cmp_gt_u32 vcc, {32*P}, v20"); I(a, "v_mov_b32 v23, 0x7ffffff0"); I(a, "s_nop 0"); I(a, "v_cndmask_b32 v21, v23, v21, vcc")
        I(a, "v_sub_u32 v24, 255, v20")
        I(a, "s_bfe_u32 s58, s2, 0x30005"); I(a, "s_lshl_b32 s58, s58, 3")
        I(a, "v_and_b32 v25, 7, v24"); I(a, "v_add_u32 v25, s58, v25")
        I(a, "v_lshrrev_b32 v26, 4, v24"); I(a, "v_lshl_add_u32 v25, v26, 6, v25")
        I(a, "v_lshlrev_b32 v25, 11, v25"); I(a, "v_bfe_u32 v26, v24, 3, 1"); I(a, "v_lshl_add_u32 v25, v26, 7, v25")
        I(a, f"v_cmp_gt_u32 vcc, {16*P}, v24"); I(a, "s_nop 1"); I(a, "v_cndmask_b32 v25, v23, v25, vcc")
        assert 48*P <= 256
        nst = g.nk - NS
        npf = 2
        def cntpf(i):
            return npf * sum(1 for j in (i-3, i-2, i-1) if j >= 0 and j % P == 0 and active(j))
        def active(j): return j + NS + PFD0 < g.nk
        PFD0 = PFD - NS if PFD >= NS else 0
        for i in range(nst):
            I(a, f"s_waitcnt vmcnt({(NS-2)*PER + cntpf(i)})"); I(a, "s_barrier"); stage_issue(a, g)
            if i % P == 0 and active(i):
                I(a, f"s_add_u32 s58, s{S_QOFF}, {PFD0*128}"); I(a, f"s_add_u32 s59, s{S_POFF}, {PFD0*64*g.ldp}")
                I(a, f"buffer_load_dword v27, v21, s[{S_QSRD}:{S_QSRD+3}], s58 offen")
                I(a, f"buffer_load_dword v27, v25, s[{S_PSRD}:{S_PSRD+3}], s59 offen")
        PFX = sum(npf for j in (nst-3, nst-2, nst-1) if j % P == 0 and active(j))
        assert PFX == 0 or True
    elif fused:
        assert NS == 4 and g.nq == 4 and PER == 8
        I(a, "s_waitcnt vmcnt(8)"); I(a, "s_barrier"); stage_issue(a, g)
        I(a, "s_waitcnt vmcnt(12)"); I(a, "s_barrier"); stage_issue(a, g)
        nA = 5 if LOCF else 18
        I(a, f"s_mov_b32 s{S_CNT}, 18")
        a.label("p2_ld_loop")
        I(a, "s_waitcnt vmcnt(16)")
        I(a, f"s_cmp_eq_u32 s{S_CNT}, 14"); I(a, "s_cbranch_scc1 p2_ld_ypub")
        a.label("p2_ld_ypub_r")
        I(a, "s_barrier"); stage_issue(a, g)
        a.label("p2_ld_ypub_r2")
        I(a, f"s_sub_u32 s{S_CNT}, s{S_CNT}, 1"); I(a, f"s_cmp_lg_u32 s{S_CNT}, {18 - nA}"); I(a, "s_cbranch_scc1 p2_ld_loop")
        if LOCF:
            I(a, "s_lshr_b32 s58, s28, 1"); I(a, "s_lshl_b32 s58, s58, 9"); I(a, "s_and_b32 s59, s2, 3"); I(a, "s_xor_b32 s59, s59, 1"); I(a, "s_mul_i32 s59, s59, 112"); I(a, "s_add_u32 s58, s58, s59")
            I(a, "v_lshlrev_b32 v30, 2, v1"); I(a, "v_add_u32 v30, s58, v30"); I(a, "v_mov_b32 v25, 0x7ffffff0")
            I(a, f"s_cmp_eq_u32 s{S_WAVE}, 3"); I(a, "s_cselect_b32 s58, 28, 0"); I(a, "v_cmp_gt_u32 vcc, s58, v1"); I(a, "s_nop 1"); I(a, "v_cndmask_b32 v30, v25, v30, vcc")
            I(a, "s_waitcnt vmcnt(16)"); I(a, "s_barrier"); stage_issue(a, g)
            I(a, f"buffer_load_dword v31, v30, s[{FS}:{FS+3}], 0 offen sc1")
            I(a, "s_waitcnt vmcnt(17)"); I(a, "s_barrier"); stage_issue(a, g)
            I(a, "s_waitcnt vmcnt(17)"); I(a, "s_barrier"); stage_issue(a, g)
            I(a, "s_waitcnt vmcnt(16)")
            labq = a.newlabel("rq"); labl = a.newlabel("rl")
            I(a, f"s_cmp_eq_u32 s{S_WAVE}, 3"); I(a, f"s_cbranch_scc0 {labq}")
            I(a, "s_mov_b32 s59, 0x8000")
            a.label(labl)
            I(a, "v_cmp_ne_u32 vcc, s34, v31"); I(a, "s_nop 4")
            I(a, "s_and_b32 s58, vcc_lo, 0xfffffff"); I(a, f"s_cbranch_scc0 {labq}")
            I(a, "s_sub_u32 s59, s59, 1"); I(a, f"s_cbranch_scc1 {labq}")
            I(a, f"buffer_load_dword v31, v30, s[{FS}:{FS+3}], 0 offen sc1"); I(a, "s_waitcnt vmcnt(0)")
            I(a, f"s_branch {labl}")
            a.label(labq)
            I(a, "s_barrier")
            I(a, "s_and_b32 s58, s2, 1"); I(a, f"s_mul_i32 s59, s58, {28*128}"); I(a, f"s_sub_u32 s{S_QOFF}, s{S_QOFF}, s59")
            I(a, f"s_mul_i32 s59, s58, {28*64*2048}"); I(a, f"s_sub_u32 s{S_POFF}, s{S_POFF}, s59")
            stage_issue(a, g)
            I(a, f"s_mov_b32 s{S_CNT}, 9")
            a.label("p2_ld_loopb")
            I(a, "s_waitcnt vmcnt(16)"); I(a, "s_barrier"); stage_issue(a, g)
            I(a, f"s_sub_u32 s{S_CNT}, s{S_CNT}, 1"); I(a, f"s_cmp_lg_u32 s{S_CNT}, 0"); I(a, "s_cbranch_scc1 p2_ld_loopb")
        ypub = Asm(); ypub.nlabel = a.nlabel + 1000
        ypub.label("p2_ld_ypub")
        I(ypub, "s_cmp_eq_u32 s35, 1"); I(ypub, "s_cbranch_scc0 p2_ld_ypub_r")
        I(ypub, "s_waitcnt vmcnt(0)"); I(ypub, "s_barrier")
        I(ypub, f"s_cmp_eq_u32 s{S_WAVE}, 3"); I(ypub, "s_cbranch_scc0 p2_ld_ypub_n")
        I(ypub, "v_mov_b32 v29, s34")
        I(ypub, f"buffer_store_dword v29, v28, s[{FS}:{FS+3}], 0 offen sc1")
        ypub.label("p2_ld_ypub_n")
        stage_issue(ypub, g)
        I(ypub, "s_branch p2_ld_ypub_r2")
        fused["ypub"] = ypub.lines
        I(a, "s_and_b32 s58, s2, 7"); I(a, "s_lshl_b32 s58, s58, 7"); I(a, "s_add_u32 s58, s58, 65536")
        I(a, "v_lshlrev_b32 v30, 2, v1"); I(a, "v_add_u32 v30, s58, v30"); I(a, "v_mov_b32 v25, 0x7ffffff0")
        I(a, f"s_cmp_eq_u32 s{S_WAVE}, 3"); I(a, "s_cselect_b32 s58, 32, 0"); I(a, "v_cmp_gt_u32 vcc, s58, v1"); I(a, "s_nop 1"); I(a, "v_cndmask_b32 v30, v25, v30, vcc")
        I(a, "s_waitcnt vmcnt(16)"); I(a, "s_barrier"); stage_issue(a, g)
        I(a, f"buffer_load_dword v31, v30, s[{FS}:{FS+3}], 0 offen sc1")
        I(a, "s_waitcnt vmcnt(17)"); I(a, "s_barrier"); stage_issue(a, g)
        I(a, "s_waitcnt vmcnt(17)"); I(a, "s_barrier"); stage_issue(a, g)
        I(a, "s_waitcnt vmcnt(16)")
        labq = a.newlabel("yq"); labl = a.newlabel("yl")
        I(a, f"s_cmp_eq_u32 s{S_WAVE}, 3"); I(a, f"s_cbranch_scc0 {labq}")
        I(a, "s_mov_b32 s59, 0x8000")
        a.label(labl)
        I(a, "v_cmp_ne_u32 vcc, s34, v31"); I(a, "s_nop 4")
        I(a, "s_cmp_eq_u32 vcc_lo, 0"); I(a, f"s_cbranch_scc1 {labq}")
        I(a, "s_sub_u32 s59, s59, 1"); I(a, f"s_cbranch_scc1 {labq}")
        I(a, f"buffer_load_dword v31, v30, s[{FS}:{FS+3}], 0 offen sc1"); I(a, "s_waitcnt vmcnt(0)")
        I(a, f"s_branch {labl}")
        a.label(labq)
        I(a, "s_barrier"); stage_issue(a, g)
    else:
        PFX = 0
        I(a, f"s_mov_b32 s{S_CNT}, {g.nk-NS}")
        if trace:
            I(a, f"s_waitcnt vmcnt({(NS-2)*PER})"); I(a, "s_barrier"); tr(); stage_issue(a, g)
            I(a, f"s_waitcnt vmcnt({(NS-3)*PER + PER+1})"); I(a, "s_barrier"); tr(); stage_issue(a, g)
            I(a, f"s_mov_b32 s{S_CNT}, {g.nk-NS-2}")
        a.label("p2_ld_loop")
        I(a, f"s_waitcnt vmcnt({(NS-2)*(PER+X)})"); I(a, "s_barrier"); tr(); stage_issue(a, g)
        I(a, f"s_sub_u32 s{S_CNT}, s{S_CNT}, 1"); I(a, f"s_cmp_lg_u32 s{S_CNT}, 0"); I(a, "s_cbranch_scc1 p2_ld_loop")
    E = 164
    def extra_rows():
        if not DIST: return
        lab = a.newlabel("r4")
        I(a, "s_cmp_eq_u32 s30, 1024"); I(a, f"s_cbranch_scc0 {lab}")
        I(a, "v_cmp_gt_u32 vcc, 8, v1"); I(a, "v_mov_b32 v45, 0x7ff00000"); I(a, "s_nop 0"); I(a, "v_cndmask_b32 v44, v45, v43, vcc")
        for z in range(1, 4):
            r = E + 8*(z-1)
            I(a, f"s_mov_b32 s58, {(1024+z)*YP}"); I(a, f"s_add_u32 s59, s58, s63")
            I(a, f"buffer_load_dwordx3 v[{r}:{r+2}], v44, s[24:27], s58 offen")
            I(a, f"buffer_load_dwordx2 v[{r+4}:{r+5}], v44, s[24:27], s59 offen")
        a.label(lab)
    if YSPLIT == 9:
        YM = 16384; YX = 49152
        y_loads_pre(a, 30, 31, "p2")
        I(a, "s_lshl_b32 s60, s29, 7"); I(a, "s_sub_u32 s61, 896, s60"); I(a, "s_cmp_eq_u32 s62, 1"); I(a, "s_cselect_b32 s60, s61, s60")
        I(a, f"s_lshr_b32 s58, s{S_WAVE}, 1"); I(a, "s_lshl_b32 s59, s58, 4")
        for q in range(2):
            I(a, f"v_lshrrev_b32 v44, 3, v1"); I(a, f"v_add_u32 v44, s30, v44"); I(a, f"v_add_u32 v44, s59, v44"); I(a, f"v_add_u32 v44, {8*q}, v44")
            I(a, "v_sub_u32 v45, 2048, v44"); I(a, "v_min_u32 v45, v44, v45"); I(a, f"v_mul_u32_u24 v45, {YP}, v45")
            I(a, "v_and_b32 v44, 7, v1"); I(a, f"v_lshl_add_u32 v{20+q}, v44, 4, v45"); I(a, f"v_add_u32 v{20+q}, s60, v{20+q}")
        I(a, f"s_and_b32 s61, s{S_WAVE}, 1"); I(a, "s_lshl_b32 s61, s61, 12"); I(a, "s_lshl_b32 s59, s59, 7"); I(a, "s_add_u32 s61, s61, s59"); I(a, f"s_add_u32 s61, s61, {YM}")
        def ydma(arr):
            so = ["0", "s63", "s64", "s65"][arr]
            for q in range(2):
                I(a, f"s_add_u32 m0, s61, {arr*8192 + q*1024}"); I(a, "s_nop 0")
                I(a, f"buffer_load_dwordx4 v{20+q}, s[24:27], {so} offen lds")
        I(a, "s_lshl_b32 s59, s28, 7"); I(a, "s_lshl_b32 s58, s67, 5"); I(a, "s_add_u32 s59, s59, s58")
        I(a, "v_lshrrev_b32 v44, 5, v1"); I(a, "v_lshlrev_b32 v44, 6, v44"); I(a, "v_and_b32 v45, 31, v1"); I(a, "v_add_u32 v44, v44, v45"); I(a, "v_add_u32 v44, s59, v44")
        I(a, "v_sub_u32 v45, 2048, v44"); I(a, "v_min_u32 v45, v44, v45"); I(a, f"v_mul_u32_u24 v22, {YP}, v45"); I(a, "v_add_u32 v22, s60, v22"); I(a, "v_add_u32 v22, 128, v22")
        ny = 0
        for j, t in enumerate(range(g.nk - NS, g.nk)):
            rem = max(min(t + NS - 1, g.nk - 1) - (t + 1), 0)
            if t + 1 <= g.nk - 1: I(a, f"s_waitcnt vmcnt({rem*(PER+X) + ny})")
            else: I(a, f"s_waitcnt vmcnt({5 if fused else 4})")
            I(a, "s_barrier")
            if j == 0:
                ydma(0); ydma(1); ny += 4
            if j == 1:
                ydma(2); ydma(3); ny += 4
                lab = a.newlabel("yx"); labe = a.newlabel("yxe")
                I(a, "s_cmp_eq_u32 s62, 1"); I(a, f"s_cbranch_scc0 {lab}"); I(a, f"s_cmp_lt_u32 s{S_WAVE}, 2"); I(a, f"s_cbranch_scc0 {lab}")
                I(a, f"s_lshl_b32 s58, s{S_WAVE}, 10"); I(a, f"s_add_u32 m0, s58, {YX}"); I(a, f"s_mul_i32 s58, s{S_WAVE}, {2*YARR}")
                I(a, f"buffer_load_dwordx4 v22, s[24:27], s58 offen lds")
                I(a, f"s_branch {labe}")
                a.label(lab)
                I(a, "v_mov_b32 v23, 0x7ffffff0"); I(a, "buffer_load_dword v24, v23, s[24:27], 0 offen")
                a.label(labe)
                ny += 1
            if j == 2:
                for i in range(4):
                    I(a, f"v_add_u32 v44, {8*i}, v42"); I(a, f"v_lshlrev_b32 v44, 3, v44")
                    I(a, f"buffer_load_dwordx2 v[{32+i*2}:{32+i*2+1}], v44, s[36:39], 0 offen")
                ny += 4
                if fused:
                    srd(a, 92, 20, 2048)
                    I(a, "v_and_b32 v44, 7, v1"); I(a, "v_lshlrev_b32 v44, 4, v44")
                    I(a, "buffer_load_dwordx4 v[188:191], v44, s[92:95], s31 offen")
                    ny += 1
        extra_rows()
        I(a, f"s_and_b32 s61, s{S_WAVE}, 1"); I(a, "s_lshl_b32 s58, s61, 12"); I(a, f"s_add_u32 s58, s58, {YM}")
        I(a, "v_lshrrev_b32 v44, 3, v1"); I(a, "v_lshlrev_b32 v45, 7, v44"); I(a, "v_add_u32 v45, s58, v45")
        I(a, "v_subrev_u32 v46, s60, v43")
        I(a, "v_add_u32 v20, v45, v46")
        I(a, "s_lshl_b32 s58, s61, 9"); I(a, f"s_add_u32 s58, s58, {YX}")
        I(a, "v_lshlrev_b32 v47, 4, v44"); I(a, "v_add_u32 v47, s58, v47")
        I(a, "v_cmp_eq_u32 vcc, 120, v46"); I(a, "v_add_u32 v21, 8, v20")
        labf = a.newlabel("yf"); labd = a.newlabel("yd")
        I(a, "s_cmp_eq_u32 s62, 1"); I(a, f"s_cbranch_scc0 {labf}")
        for i in range(4):
            b = 64 + i*16
            I(a, f"v_add_u32 v48, {i*1024}, v21"); I(a, f"v_add_u32 v49, {i*128}, v47"); I(a, "v_cndmask_b32 v22, v48, v49, vcc")
            I(a, f"v_add_u32 v48, {i*1024 + 2*8192}, v21"); I(a, f"v_add_u32 v49, {i*128 + 1024}, v47"); I(a, "v_cndmask_b32 v23, v48, v49, vcc")
            I(a, f"ds_read_b64 v[{b}:{b+1}], v20 offset:{i*1024}"); I(a, f"ds_read_b32 v{b+2}, v22")
            I(a, f"ds_read_b64 v[{b+4}:{b+5}], v20 offset:{i*1024 + 8192}")
            I(a, f"ds_read_b64 v[{b+8}:{b+9}], v20 offset:{i*1024 + 2*8192}"); I(a, f"ds_read_b32 v{b+10}, v23")
            I(a, f"ds_read_b64 v[{b+12}:{b+13}], v20 offset:{i*1024 + 3*8192}")
            if i % 2 == 1: I(a, "s_waitcnt lgkmcnt(0)")
        I(a, f"s_branch {labd}")
        a.label(labf)
        for i in range(4):
            b = 64 + i*16
            for z in range(4):
                I(a, f"ds_read_b64 v[{b+4*z}:{b+4*z+1}], v20 offset:{i*1024 + z*8192}")
            if i % 2 == 1: I(a, "s_waitcnt lgkmcnt(0)")
        a.label(labd)
    elif YSPLIT == 0:
        y_loads(a, 30, 31, "p2")
        extra_rows()
        for t in range(g.nk - NS, g.nk):
            rem = max(min(t + NS - 1, g.nk - 1) - (t + 1), 0)
            if t + 1 <= g.nk - 1: I(a, f"s_waitcnt vmcnt({rem*(PER+X) + 20})")
            I(a, "s_barrier")
    else:
        y_loads_pre(a, 30, 31, "p2")
        ny = 0
        sched = {1: [[0], [1], [2], [3]], 2: [[], [0, 1], [2, 3], []], 3: [[], [], [], [0, 1, 2, 3]], 4: [[], [0], [1], [2, 3]]}[YSPLIT]
        for j, t in enumerate(range(g.nk - NS, g.nk)):
            rem = max(min(t + NS - 1, g.nk - 1) - (t + 1), 0)
            if t + 1 <= g.nk - 1: I(a, f"s_waitcnt vmcnt({rem*(PER+X) + ny})")
            I(a, "s_barrier")
            for i in sched[j]:
                y_loads_i(a, i); ny += 5
        extra_rows()
    st(5)
    I(a, "s_waitcnt vmcnt(0)")
    if DIST:
        lab = a.newlabel("r5")
        I(a, "s_cmp_eq_u32 s30, 1024"); I(a, f"s_cbranch_scc0 {lab}")
        for off in (0, 1, 2, 4, 5):
            d = 64 + off
            I(a, f"v_lshlrev_b32 v46, 16, v{d}"); I(a, f"v_and_b32 v47, 0xffff0000, v{d}")
            for z in range(1, 4):
                r = E + 8*(z-1) + off
                I(a, f"v_lshlrev_b32 v48, 16, v{r}"); I(a, f"v_and_b32 v49, 0xffff0000, v{r}")
                I(a, "v_pk_add_f32 v[46:47], v[46:47], v[48:49]")
            I(a, f"v_cvt_pk_bf16_f32 v{d}, v46, v47")
        a.label(lab)
    y_precombine(a)
    if fused:
        for q in range(4):
            I(a, f"v_lshlrev_b32 v{192+2*q}, 16, v{188+q}"); I(a, f"v_and_b32 v{193+2*q}, 0xffff0000, v{188+q}")
        for i in range(4):
            og = 33 + 2*i
            I(a, f"v_mov_b32 v46, v{og}"); I(a, f"v_mov_b32 v47, v{og}")
            for p in range(4):
                d = T1 + i*8 + p*2
                I(a, f"v_pk_fma_f32 v[{d}:{d+1}], v[{192+2*p}:{193+2*p}], v[46:47], v[{d}:{d+1}]")
    W = 50
    I(a, f"s_lshl_b32 s66, s{S_WAVE}, 12")
    I(a, f"v_lshrrev_b32 v{W}, 3, v1"); I(a, f"v_and_b32 v{W+2}, 7, v1"); I(a, f"v_xor_b32 v{W+2}, v{W+2}, v{W}")
    I(a, f"v_lshlrev_b32 v{W+3}, 7, v{W}"); I(a, f"v_lshl_add_u32 v{W+3}, v{W+2}, 4, v{W+3}"); I(a, f"v_add_u32 v{W+12}, s66, v{W+3}")
    I(a, f"v_add_u32 v{W}, s30, v{W}"); I(a, f"v_lshlrev_b32 v{W}, 11, v{W}"); I(a, f"v_and_b32 v{W+2}, 7, v1")
    I(a, f"v_lshl_add_u32 v{W}, v{W+2}, 4, v{W}"); I(a, f"v_add_u32 v{W+13}, s31, v{W}")
    st(6)
    if not WFLAG: I(a, "s_barrier"); I(a, "s_barrier")
    I(a, "s_barrier")
    for i in range(4):
        I(a, f"ds_read_b128 v[{64+4*i}:{64+4*i+3}], v{W+12} offset:{i*1024}")
    for i in range(4):
        I(a, f"s_waitcnt lgkmcnt({3-i})")
        og = 33 + 2*i
        I(a, f"v_mov_b32 v46, v{og}"); I(a, f"v_mov_b32 v47, v{og}")
        for p in range(4):
            bb = 64 + 4*i + p; d = T1 + i*8 + p*2
            I(a, f"v_lshlrev_b32 v48, 16, v{bb}"); I(a, f"v_and_b32 v49, 0xffff0000, v{bb}")
            I(a, f"v_pk_fma_f32 v[{d}:{d+1}], v[48:49], v[46:47], v[{d}:{d+1}]")
            I(a, f"v_cvt_pk_bf16_f32 v{bb}, v{d}, v{d+1}")
        I(a, f"s_mov_b32 s{S_TMP2}, {i*8*2048}")
        I(a, f"buffer_store_dwordx4 v[{64+4*i}:{64+4*i+3}], v{W+13}, s[16:19], s{S_TMP2} offen {os.environ.get('OSC', 'sc0 sc1')}")
    if stamps: I(a, "s_waitcnt vmcnt(0)")
    st(7); st.dump(8, 1)
    I(a, "s_endpgm")
    if fused: a.lines += fused["ypub"]
    if fused:
        a.label("f_cp")
        if PRC >= 0: I(a, f"s_setprio {PRC}")
        st(1)
        common()
    else:
        a.label("p2_compute")
    compute_setup16(a, g)
    def xs_srds():
        I(a, "s_mov_b32 s6, s4"); I(a, "s_mov_b32 s7, s5"); add64(a, 6, XS_OFF); srd(a, 56, 6, 256*16384)
        I(a, "s_mov_b32 s6, s4"); I(a, "s_mov_b32 s7, s5"); add64(a, 6, FLAG_OFF); srd(a, 8, 6, 1024*128)
    def stg_addrs():
        I(a, f"s_lshl_b32 s66, s{S_WAVE}, 12")
        I(a, "v_and_b32 v18, 15, v1"); I(a, "v_lshlrev_b32 v19, 7, v18"); I(a, f"v_add_u32 v19, s66, v19")
        I(a, "v_bfe_u32 v24, v1, 4, 1"); I(a, "v_lshl_add_u32 v19, v24, 3, v19")
        I(a, "v_and_b32 v18, 7, v18"); I(a, "v_lshrrev_b32 v24, 5, v1")
        for nb in range(4):
            I(a, f"v_add_u32 v25, {2*nb}, v24"); I(a, "v_xor_b32 v25, v25, v18"); I(a, f"v_lshl_add_u32 v{20+nb}, v25, 4, v19")
    if fused:
        for nb in range(4):
            for mb in range(4):
                for r in range(4): I(a, f"v_mov_b32 v{acc16(g,nb,mb)+r}, 0")
        stg_addrs()
        I(a, "s_waitcnt lgkmcnt(0)")
        srd(a, 84 if not stamps else 88, 62, 256)
        NS_ = 84 if not stamps else 88
        I(a, "v_mov_b32 v27, 0"); I(a, f"buffer_load_dword v26, v27, s[{NS_}:{NS_+3}], 0 offen")
        xs_srds()
        I(a, "s_mov_b32 s6, s4"); I(a, "s_mov_b32 s7, s5"); add64(a, 6, HF_OFF)
        I(a, f"s_mov_b32 s60, s6"); I(a, "s_and_b32 s61, s7, 0xffff"); I(a, "s_mov_b32 s62, 131072"); I(a, "s_mov_b32 s63, 0x00020000")
        I(a, "v_mov_b32 v25, 0x7ffffff0")
        if LOCF:
            I(a, "s_lshr_b32 s64, s28, 1"); I(a, "s_and_b32 s65, s2, 3"); I(a, "s_lshl_b32 s66, s64, 2"); I(a, "s_add_u32 s66, s66, s65"); I(a, "s_lshl_b32 s66, s66, 7"); I(a, "s_add_u32 s66, s66, 8192")
            I(a, "s_lshl_b32 s64, s64, 9"); I(a, "s_mul_i32 s65, s65, 112"); I(a, "s_add_u32 s64, s64, s65")
            I(a, "v_lshlrev_b32 v28, 2, v1"); I(a, "v_add_u32 v30, s64, v28"); I(a, "v_add_u32 v29, s66, v28")
            I(a, "v_cmp_gt_u32 vcc, 28, v1"); I(a, "s_nop 1"); I(a, "v_cndmask_b32 v30, v25, v30, vcc"); I(a, "v_cndmask_b32 v29, v25, v29, vcc")
        else:
            I(a, "s_lshr_b32 s64, s28, 1"); I(a, "s_lshl_b32 s64, s64, 9"); I(a, "s_mul_i32 s65, s67, 224"); I(a, "s_add_u32 s64, s64, s65")
            I(a, "v_lshlrev_b32 v30, 2, v1"); I(a, "v_add_u32 v30, s64, v30"); I(a, "v_cmp_gt_u32 vcc, 56, v1"); I(a, "s_nop 1"); I(a, "v_cndmask_b32 v30, v25, v30, vcc")
        st(2)
        I(a, "s_barrier")
        I(a, "s_waitcnt vmcnt(0)")
        lp = a.newlabel("np"); lx = a.newlabel("npx")
        I(a, "s_mov_b32 s69, 0x8000")
        a.label(lp)
        I(a, "v_readfirstlane_b32 s68, v26")
        I(a, "s_sub_u32 s69, s69, 1"); I(a, f"s_cbranch_scc1 {lx}")
        I(a, "s_cmp_lg_u32 s68, 0"); I(a, f"s_cbranch_scc1 {lx}")
        I(a, f"buffer_load_dword v26, v27, s[{NS_}:{NS_+3}], 0 offen sc1"); I(a, "s_waitcnt vmcnt(0)")
        I(a, f"s_branch {lp}")
        a.label(lx)
        labl = a.newlabel("hl"); labq = a.newlabel("hq")
        I(a, f"s_cmp_eq_u32 s{S_WAVE}, 0"); I(a, f"s_cbranch_scc0 {labq}")
        I(a, "s_mov_b32 s69, 0x8000")
        if LOCF:
            I(a, "s_getreg_b32 s65, hwreg(HW_REG_XCC_ID)"); I(a, "s_add_u32 s65, s65, 1"); I(a, "s_lshl_b32 s65, s65, 1"); I(a, "s_add_u32 s65, s65, s68")
            a.label(labl)
            for z in range(LOCN):
                I(a, f"buffer_load_dword v31, v29, s[60:63], 0 offen sc0"); I(a, "s_waitcnt vmcnt(0)")
                I(a, "v_cmp_ne_u32 vcc, s65, v31"); I(a, "s_nop 4")
                I(a, "s_and_b32 s64, vcc_lo, 0xfffffff"); I(a, f"s_cbranch_scc0 {labq}")
                I(a, "s_sleep 1")
            I(a, f"buffer_load_dword v31, v30, s[60:63], 0 offen sc1"); I(a, "s_waitcnt vmcnt(0)")
            I(a, "v_cmp_ne_u32 vcc, s68, v31"); I(a, "s_nop 4")
            I(a, "s_and_b32 s64, vcc_lo, 0xfffffff"); I(a, f"s_cbranch_scc0 {labq}")
            I(a, "s_sub_u32 s69, s69, 1"); I(a, f"s_cbranch_scc1 {labq}")
            I(a, f"s_branch {labl}")
        else:
            a.label(labl)
            I(a, f"buffer_load_dword v31, v30, s[60:63], 0 offen sc1"); I(a, "s_waitcnt vmcnt(0)")
            I(a, "v_cmp_ne_u32 vcc, s68, v31"); I(a, "s_nop 4")
            I(a, "s_and_b32 s64, vcc_hi, 0xffffff"); I(a, "s_or_b32 s64, s64, vcc_lo"); I(a, f"s_cbranch_scc0 {labq}")
            I(a, "s_sub_u32 s69, s69, 1"); I(a, f"s_cbranch_scc1 {labq}")
            if HSLEEP: I(a, f"s_sleep {HSLEEP}")
            I(a, f"s_branch {labl}")
        a.label(labq)
        I(a, "s_barrier")
        st(3)
    else:
        for nb in range(4):
            for mb in (2, 3):
                for r in range(4): I(a, f"v_mov_b32 v{acc16(g,nb,mb)+r}, 0")
        I(a, "s_waitcnt lgkmcnt(0)")
        if not fused: st(1)
        if fused:
            srd(a, 84 if not stamps else 88, 62, 256)
            NS_ = 84 if not stamps else 88
            I(a, "v_mov_b32 v27, 0"); I(a, f"buffer_load_dword v26, v27, s[{NS_}:{NS_+3}], 0 offen")
        srd(a, 32, 20, 2048)
        I(a, "v_lshrrev_b32 v8, 4, v1"); I(a, "v_lshlrev_b32 v8, 3, v8")
        for nb in range(4):
            I(a, f"buffer_load_dwordx2 v[{10+2*nb}:{10+2*nb+1}], v8, s[32:35], s31 offen offset:{nb*32}")
        I(a, "s_mov_b32 s6, s4"); I(a, "s_mov_b32 s7, s5"); add64(a, 6, XS_OFF); srd(a, 56, 6, 256*16384)
        I(a, "s_mov_b32 s6, s4"); I(a, "s_mov_b32 s7, s5"); add64(a, 6, FLAG_OFF); srd(a, 8, 6, 1024*128)
        I(a, f"s_lshl_b32 s66, s{S_WAVE}, 12")
        I(a, "v_and_b32 v18, 15, v1"); I(a, "v_lshlrev_b32 v19, 7, v18"); I(a, f"v_add_u32 v19, s66, v19")
        I(a, "v_bfe_u32 v24, v1, 4, 1"); I(a, "v_lshl_add_u32 v19, v24, 3, v19")
        I(a, "v_and_b32 v18, 7, v18"); I(a, "v_lshrrev_b32 v24, 5, v1")
        for nb in range(4):
            I(a, f"v_add_u32 v25, {2*nb}, v24"); I(a, "v_xor_b32 v25, v25, v18"); I(a, f"v_lshl_add_u32 v{20+nb}, v25, 4, v19")
        I(a, "s_waitcnt vmcnt(0)")
        if fused:
            lp = a.newlabel("np"); lx = a.newlabel("npx")
            I(a, "s_mov_b32 s69, 0x8000")
            a.label(lp)
            I(a, "v_readfirstlane_b32 s68, v26")
            I(a, "s_sub_u32 s69, s69, 1"); I(a, f"s_cbranch_scc1 {lx}")
            I(a, "s_cmp_lg_u32 s68, 0"); I(a, f"s_cbranch_scc1 {lx}")
            I(a, f"buffer_load_dword v26, v27, s[{NS_}:{NS_+3}], 0 offen sc1"); I(a, "s_waitcnt vmcnt(0)")
            I(a, f"s_branch {lp}")
            a.label(lx)
        for nb in range(4):
            for j in range(4):
                src = 10 + 2*nb + j//2
                for mb in (0, 1):
                    d = acc16(g, nb, mb) + j
                    if j % 2 == 0: I(a, f"v_lshlrev_b32 v{d}, 16, v{src}")
                    else: I(a, f"v_and_b32 v{d}, 0xffff0000, v{src}")
        if fused:
            st(2)
            I(a, "s_barrier")
            I(a, "s_barrier")
            st(3)
    compute_loop16(a, g, stamp=(None if fused else f"s_memtime s[78:79]") if stamps else None)
    st(5)
    I(a, "s_nop 7"); I(a, "s_nop 7")
    I(a, "v_lshlrev_b32 v8, 4, v1")
    I(a, f"s_xor_b32 s61, s2, {PX}")
    I(a, f"s_lshl_b32 s60, s61, 14"); I(a, f"s_lshl_b32 s62, s{S_WAVE}, 12"); I(a, "s_add_u32 s60, s60, s62")
    for nb in range(4):
        t = 32 + nb*4
        for z, mb in enumerate((2, 3)):
            c = acc16(g, nb, mb)
            I(a, f"v_cvt_pk_bf16_f32 v{t+2*z}, v{c}, v{c+1}"); I(a, f"v_cvt_pk_bf16_f32 v{t+2*z+1}, v{c+2}, v{c+3}")
        I(a, f"buffer_store_dwordx4 v[{t}:{t+3}], v8, s[56:59], s60 offen offset:{nb*1024} sc1")
    if not fused: st(2)
    I(a, "s_waitcnt vmcnt(0)")
    if not fused: st(3)
    if WFLAG:
        I(a, f"s_lshl_b32 s62, s2, 2"); I(a, f"s_add_u32 s62, s62, s{S_WAVE}"); I(a, "s_lshl_b32 s62, s62, 7"); I(a, "v_mov_b32 v12, s62"); I(a, "v_mov_b32 v13, 1")
        I(a, f"buffer_store_dword v13, v12, s[8:11], 0 offen sc1")
        I(a, f"s_lshl_b32 s62, s61, 2"); I(a, f"s_add_u32 s62, s62, s{S_WAVE}"); I(a, "s_lshl_b32 s62, s62, 7"); I(a, "v_mov_b32 v12, s62")
        I(a, "s_mov_b32 s69, 0x20000")
        a.label("p2_poll")
        I(a, f"buffer_load_dword v13, v12, s[8:11], 0 offen sc1")
        I(a, "s_waitcnt vmcnt(0)")
        I(a, "v_readfirstlane_b32 s62, v13")
        I(a, "s_sub_u32 s69, s69, 1"); I(a, "s_cbranch_scc1 p2_waitb")
        I(a, "s_cmp_eq_u32 s62, 1"); I(a, "s_cbranch_scc0 p2_poll")
        a.label("p2_waitb")
    else:
        I(a, "s_barrier")
        I(a, f"s_cmp_eq_u32 s{S_WAVE}, 0"); I(a, "s_cbranch_scc0 p2_waitb")
        I(a, "s_lshl_b32 s62, s2, 7"); I(a, "v_mov_b32 v12, s62"); I(a, "v_mov_b32 v13, s68" if fused else "v_mov_b32 v13, 1")
        I(a, f"buffer_store_dword v13, v12, s[8:11], 0 offen sc1")
        I(a, "s_lshl_b32 s62, s61, 7"); I(a, "v_mov_b32 v12, s62")
        I(a, "s_mov_b32 s69, 0x20000")
        a.label("p2_poll")
        I(a, f"buffer_load_dword v13, v12, s[8:11], 0 offen sc1")
        I(a, "s_waitcnt vmcnt(0)")
        I(a, "v_readfirstlane_b32 s62, v13")
        I(a, "s_sub_u32 s69, s69, 1"); I(a, "s_cbranch_scc1 p2_waitb")
        I(a, "s_cmp_eq_u32 s62, s68" if fused else "s_cmp_eq_u32 s62, 1"); I(a, "s_cbranch_scc0 p2_poll")
        a.label("p2_waitb")
        I(a, "s_barrier")
    st(6)
    I(a, f"s_lshl_b32 s60, s2, 14"); I(a, f"s_lshl_b32 s62, s{S_WAVE}, 12"); I(a, "s_add_u32 s60, s60, s62")
    for nb in range(4):
        t = 32 + nb*4
        I(a, f"buffer_load_dwordx4 v[{t}:{t+3}], v8, s[56:59], s60 offen offset:{nb*1024} sc1")
    for nb in range(4):
        t = 32 + nb*4
        I(a, f"s_waitcnt vmcnt({3-nb})")
        for z, mb in enumerate((0, 1)):
            c = acc16(g, nb, mb)
            for hh in range(2):
                I(a, f"v_lshlrev_b32 v10, 16, v{t+2*z+hh}"); I(a, f"v_and_b32 v11, 0xffff0000, v{t+2*z+hh}")
                I(a, f"v_pk_add_f32 v[{c+2*hh}:{c+2*hh+1}], v[{c+2*hh}:{c+2*hh+1}], v[10:11]")
            tt = 48 + (nb*2+z)*2
            I(a, f"v_cvt_pk_bf16_f32 v{tt}, v{c}, v{c+1}"); I(a, f"v_cvt_pk_bf16_f32 v{tt+1}, v{c+2}, v{c+3}")
            I(a, f"ds_write_b64 v{20+nb}, v[{tt}:{tt+1}] offset:{mb*2048}")
    I(a, "s_waitcnt lgkmcnt(0)")
    I(a, "s_barrier")
    st(7); st.dump(8, 0)
    a.label("p2_end")
    I(a, "s_endpgm")
    return g
```

```python
import sys, os
from asmgen import *
import k1n, k2n, rtstamp
from p2 import StampsAt
PFX = "gated_mix__spectral_fnet__dense_activation_squared_relu__prompt"
HEADER = open("cdna_kernels/" + PFX + ".s.ref").read().split("; Override launch")[0]
def gen(stamp=0, hsc=os.environ.get("HSC", "sc0 sc1"), **kw):
    a = Asm()
    a(HEADER.rstrip())
    a(f"; @launch kernel=f_kernel grid=(256,1,1) block=(512,1,1) lds=163840")
    a('.amdgcn_target "amdgcn-amd-amdhsa--gfx950"')
    a(".text")
    st0 = StampsAt(a, stamp == 2, 70)
    fused = {"st0": (lambda: st0(0))}
    k1n.k_k1(a, "f_kernel", fused=fused, hsc=hsc, **kw)
    k2_0 = len(a.lines)
    k2n.k_k2(a, "f_kernel", stamps=(stamp == 2), fused=fused)
    if k1n.KWARM:
        regions = [(fused["r_ld0"], fused["r_ld1"]), (fused["r_cp0"], fused["r_cp1"]), (k2_0, len(a.lines))]
        regions.sort()
        d = fused["disp"]
        ents, npad = add_pads_multi(a, regions, 48, "kw", "kw_ret", every=int(os.environ.get("KPADEV", "41")))
        shift = sum(2 for l in a.lines[:d + 2*npad] if False)
        idx = a.lines.index("kw_ret:")
        tmp = Asm(); warm_dispatch(tmp, 64, ents, None)
        a.lines[idx:idx] = tmp.lines
        print("kw pads", npad, file=sys.stderr)
    a('.section .rodata,"a"')
    a(".p2align 6"); kernel_desc(a, "f_kernel", 256, 96, 256)
    return a.text()
if __name__ == "__main__":
    if os.environ.get("RTSTAMP"): open("f4_r2.s", "w").write(gen(stamp=2))
    else: open("f4.s", "w").write(gen())
```

```python
from asmgen import *
from gemm2 import *
import gemm3
from gemm3 import acc16, fr16, reads16, mfma16, nblk16, V_QA as QA16
from p1v2 import load_ptr, epi_addrs_read, wave_origin
from p2 import StampsAt, add64, FLAG_OFF, G_OFF
from k0 import XF_OFF, XFP, XFARR
import fold2, awg9 as awg3
FOLDF_OFF = 34 << 20
import os
TWICE = int(os.environ.get('TWICE', '0'))
BX = int(os.environ.get('BX', '0'))
LFLAG = 147456
W2T = int(os.environ.get('W2T', '1'))
W2PF = int(os.environ.get('W2PF', '0'))
W2PF0 = int(os.environ.get('W2PF0', '0'))
KWARM = int(os.environ.get('KWARM', '0'))
WBL2 = int(os.environ.get('WBL2', '0'))
LOCF = int(os.environ.get('LOCF', '1'))
HP = int(os.environ.get('HP', '7424'))
P1PRIO = int(os.environ.get('P1PRIO', '3'))
PSTAMP = int(os.environ.get('PSTAMP', '0'))
NONCE_SC = os.environ.get('NONCE_SC', '')
S_PFS = 56; S_PFOFF = 60; S_PFSTEP = 61; V_PF = 30

def compute_loop16p(a, g, bias_base, hook_label=None, hook_cnt=None, stamp=None):
    p = g.pref; NB, MB = nblk16(g); naddr = 2 + NB
    I(a, "s_barrier")
    if stamp: I(a, stamp); I(a, "s_waitcnt lgkmcnt(0)")
    for r in reads16(g, 0, 0): I(a, r)
    I(a, f"s_mov_b32 s{S_CNT}, {g.nk}"); I(a, f"s_mov_b32 s{S_LEFT}, 0")
    A, B = fr16(g, 0)
    first = [f"v_mfma_f32_16x16x32_bf16 v[{acc16(g,nb,mb)}:{acc16(g,nb,mb)+3}], v[{A[nb]}:{A[nb]+3}], v[{B[mb]}:{B[mb]+3}], v[{bias_base+4*nb}:{bias_base+4*nb+3}]" for nb in range(NB) for mb in range(MB)]
    I(a, "s_waitcnt lgkmcnt(0)")
    interleave(a, first, reads16(g, 1, 1), 1)
    if hook_label:
        I(a, f"s_branch {hook_label}")
    else:
        I(a, f"s_branch {p}_c_mid")
    a(".p2align 6")
    a.label(f"{p}_c_loop")
    I(a, "s_waitcnt lgkmcnt(0)")
    interleave(a, mfma16(g, 0), reads16(g, 1, 1), 1)
    a.label(f"{p}_c_mid")
    I(a, "s_waitcnt lgkmcnt(0)"); I(a, "s_barrier")
    mf = mfma16(g, 1)
    I(a, mf[0])
    I(a, f"s_add_u32 s{S_LEFT}, s{S_LEFT}, {g.STAGE}"); I(a, f"s_cmp_ge_u32 s{S_LEFT}, {g.LDS}")
    I(a, mf[1])
    I(a, f"s_cselect_b32 s{S_DELTA}, s{S_DN}, s{S_DP}"); I(a, f"s_cselect_b32 s{S_LEFT}, 0, s{S_LEFT}")
    vupd = [f"v_add_u32 v{QA16+i}, s{S_DELTA}, v{QA16+i}" for i in range(naddr)]
    fill = vupd + reads16(g, 0, 0) + [f"s_sub_u32 s{S_CNT}, s{S_CNT}, 1", f"s_cmp_lg_u32 s{S_CNT}, 0"]
    interleave(a, mf[2:], fill, 1)
    I(a, f"s_cbranch_scc1 {p}_c_loop")
    I(a, "s_waitcnt lgkmcnt(0)")

def k_k1(a, name, fused=None, stamps=False, hsc="", astamp=False, npf0=3, w3pf=False, steppf=True, trace=False, pf_after=True, fstamp=False):
    g = G(BM=256, BN=128, WM=2, WN=2, NS=3, ldq=2048, ldp=7168, nk=16, pref="p1")
    st = StampsAt(a, stamps, 70)
    kernel_begin(a, name)
    st(0)
    if fused and fused.get("st0"): fused["st0"]()
    I(a, "s_cmp_ge_u32 s2, 256"); I(a, "s_cbranch_scc1 p1_end")
    lane_wave(a)
    I(a, "s_cmp_ge_u32 s2, 224"); I(a, "s_cbranch_scc1 aw_entry")
    load_ptr(a, 4, 0); load_ptr(a, 20, 48, 4); load_ptr(a, 24, 104); load_ptr(a, 36, 64); load_ptr(a, 38, 80); load_ptr(a, 62, 96)
    I(a, "s_and_b32 s26, s2, 7"); I(a, "s_lshr_b32 s27, s2, 3")
    I(a, "s_mul_i32 s28, s27, 37"); I(a, "s_lshr_b32 s28, s28, 8")
    I(a, "s_mul_i32 s29, s28, 7"); I(a, "s_sub_u32 s27, s27, s29")
    I(a, "s_lshr_b32 s29, s26, 2"); I(a, "s_and_b32 s26, s26, 3")
    I(a, "s_lshl_b32 s29, s29, 2"); I(a, "s_add_u32 s28, s28, s29")
    I(a, "s_mul_i32 s26, s26, 7"); I(a, "s_add_u32 s29, s26, s27")
    I(a, f"s_mul_i32 s{S_QOFF}, s28, {256*2048}")
    I(a, f"s_mul_i32 s{S_POFF}, s29, {128*2}")
    I(a, f"s_mov_b32 s{S_QSRD+2}, {2048*1024*2}"); I(a, f"s_mov_b32 s{S_QSRD+3}, 0x00020000")
    I(a, f"s_mov_b32 s{S_PSRD+2}, {1024*3584*2}"); I(a, f"s_mov_b32 s{S_PSRD+3}, 0x00020000")
    I(a, f"s_cmp_ge_u32 s{S_WAVE}, 4"); I(a, "s_cbranch_scc0 p1_compute")
    I(a, f"s_sub_u32 s{S_WAVE}, s{S_WAVE}, 4")
    gemm3.loader_voffsets16(a, g)
    I(a, f"s_cmp_eq_u32 s{S_WAVE}, 0"); I(a, f"s_cselect_b32 s{S_TMP}, 16, 0")
    I(a, f"s_mul_i32 s{S_DELTA}, s2, 16"); I(a, f"v_add_u32 v{V_PF}, s{S_DELTA}, v1"); I(a, f"v_lshlrev_b32 v{V_PF}, 7, v{V_PF}")
    I(a, f"v_cmp_gt_u32 vcc, s{S_TMP}, v1"); I(a, f"v_mov_b32 v46, 0x7ffffff0"); I(a, "s_nop 0"); I(a, f"v_cndmask_b32 v{V_PF}, v46, v{V_PF}, vcc")
    if W2PF:
        I(a, f"s_cmp_lt_u32 s{S_WAVE}, {1 + W2PF}"); I(a, f"s_cselect_b32 s{S_TMP}, 16, 0")
        I(a, f"v_add_u32 v32, s{S_DELTA}, v1"); I(a, "v_lshlrev_b32 v32, 7, v32")
        I(a, f"v_cmp_gt_u32 vcc, s{S_TMP}, v1"); I(a, "s_nop 1"); I(a, "v_cndmask_b32 v32, v46, v32, vcc")
    I(a, "s_waitcnt lgkmcnt(0)")
    st(1)
    I(a, f"s_mov_b32 s{S_QSRD}, s4"); I(a, f"s_and_b32 s{S_QSRD+1}, s5, 0xffff")
    I(a, f"s_mov_b32 s{S_PSRD}, s20"); I(a, f"s_and_b32 s{S_PSRD+1}, s21, 0xffff")
    if W2PF:
        I(a, f"s_cmp_eq_u32 s{S_WAVE}, 0"); I(a, "s_cselect_b32 s64, s20, s36"); I(a, "s_cselect_b32 s65, s21, s37")
        I(a, "s_and_b32 s65, s65, 0xffff"); I(a, f"s_mov_b32 s66, {1024*3584*2}"); I(a, "s_mov_b32 s67, 0x00020000")
    I(a, f"s_mov_b32 s{S_PFOFF}, {64*7168}")
    I(a, "s_mov_b32 s34, 0"); I(a, "s_mov_b32 s35, 0")
    srd(a, 88, 62, 256)
    I(a, "s_cmp_eq_u32 s2, 0"); I(a, "s_cbranch_scc0 p1_nn"); I(a, f"s_cmp_eq_u32 s{S_WAVE}, 3"); I(a, "s_cbranch_scc0 p1_nn")
    I(a, "s_memrealtime s[58:59]"); I(a, "s_waitcnt lgkmcnt(0)"); I(a, "s_or_b32 s58, s58, 1")
    I(a, "v_mov_b32 v26, 0"); I(a, "v_mov_b32 v27, s58")
    I(a, "buffer_store_dword v27, v26, s[88:91], 0 offen sc1")
    a.label("p1_nn")
    X = 1 if steppf else 0
    def pf():
        if not steppf: return
        PS = 64 if W2PF else S_PSRD
        I(a, f"buffer_load_dword v47, v{V_PF}, s[{PS}:{PS+3}], s{S_PFOFF} offen")
        I(a, f"s_add_u32 s{S_PFOFF}, s{S_PFOFF}, {64*7168}")
    if trace:
        I(a, "s_add_u32 s64, s24, 0x6400000"); I(a, "s_addc_u32 s65, s25, 0"); srd(a, 84, 64, 1<<22)
        I(a, "s_lshl_b32 s62, s2, 12"); I(a, f"s_lshl_b32 s68, s{S_WAVE}, 10"); I(a, "s_add_u32 s68, s68, s62"); I(a, "v_mov_b32 v31, 0")
    def tr():
        if not trace: return
        I(a, "s_memrealtime s[72:73]"); I(a, "s_memtime s[74:75]"); I(a, "s_waitcnt lgkmcnt(0)")
        I(a, "v_mov_b32 v28, s72"); I(a, "v_mov_b32 v29, s74")
        I(a, "buffer_store_dwordx2 v[28:29], v31, s[84:87], s68 offen"); I(a, "s_add_u32 s68, s68, 8")
    if trace: X += 1
    st(2)
    PER = g.PER
    if not pf_after:
        for i in range(npf0): pf()
    if BX == 3:
        I(a, f"v_mov_b32 v24, {LFLAG}")
        lab = a.newlabel("bi")
        I(a, "s_cmp_lt_u32 s2, 132"); I(a, f"s_cbranch_scc0 {lab}")
        I(a, "v_mov_b32 v20, 0"); I(a, "v_mov_b32 v21, 0"); I(a, "v_mov_b32 v22, 0"); I(a, "v_mov_b32 v23, 0")
        I(a, "ds_write_b128 v24, v[20:23]"); I(a, "s_waitcnt lgkmcnt(0)"); I(a, "s_barrier")
        a.label(lab)
    stage_issue(a, g)
    if not PSTAMP: st(3)
    npa = (npf0 if (pf_after and steppf) else 0)
    if BX == 2:
        for i in range(npa): pf()
        I(a, "s_barrier")
        stage_issue(a, g); stage_issue(a, g)
        I(a, f"s_waitcnt vmcnt({2*PER+npa})")
        npa = 0
    else:
        stage_issue(a, g)
        if pf_after:
            for i in range(npf0): pf()
        if BX == 3:
            lab = a.newlabel("lf"); labx = a.newlabel("lfx")
            I(a, "s_cmp_lt_u32 s2, 132"); I(a, f"s_cbranch_scc0 {labx}")
            I(a, "s_mov_b32 s59, 0x40000")
            a.label(lab)
            I(a, "ds_read_b128 v[20:23], v24"); I(a, "s_waitcnt lgkmcnt(0)")
            I(a, "v_and_b32 v20, v20, v21"); I(a, "v_and_b32 v22, v22, v23"); I(a, "v_and_b32 v20, v20, v22"); I(a, "s_nop 0")
            I(a, "v_readfirstlane_b32 s58, v20")
            I(a, "s_sub_u32 s59, s59, 1"); I(a, f"s_cbranch_scc1 {labx}")
            I(a, "s_cmp_eq_u32 s58, 1"); I(a, f"s_cbranch_scc1 {labx}")
            I(a, "s_sleep 1"); I(a, f"s_branch {lab}")
            a.label(labx)
            stage_issue(a, g)
            I(a, f"s_waitcnt vmcnt({2*PER+npa})")
        elif BX:
            I(a, "s_barrier")
            stage_issue(a, g)
            I(a, f"s_waitcnt vmcnt({2*PER+npa})")
        else:
            I(a, f"s_waitcnt vmcnt({PER+npa})")
    st(4)
    I(a, "s_barrier"); tr()
    I(a, "s_mov_b32 s6, s24"); I(a, "s_mov_b32 s7, s25"); add64(a, 6, FOLDF_OFF); srd(a, 92, 6, 33*128)
    I(a, "v_mov_b32 v27, 0")
    if not fused: I(a, f"s_cmp_eq_u32 s{S_WAVE}, 3"); I(a, "s_cbranch_scc0 p1_nonl")
    I(a, f"buffer_load_dword v26, v27, s[88:91], 0 offen {NONCE_SC}")
    a.label("p1_nonl")
    if BX:
        pf()
        lab = a.newlabel("bw")
        I(a, f"s_cmp_eq_u32 s{S_WAVE}, 3"); I(a, f"s_cbranch_scc0 {lab}")
        I(a, f"s_cmp_lt_u32 s2, 132"); I(a, f"s_cbranch_scc0 {lab}")
        I(a, f"s_waitcnt vmcnt({1 if steppf else 0})")
        a.label(lab)
        I(a, f"s_waitcnt vmcnt({npa + PER + X})"); I(a, "s_barrier")
    else:
        stage_issue(a, g); pf()
        I(a, f"s_waitcnt vmcnt({PER + (1 if steppf else 0)})"); I(a, "s_barrier")
    if not fused:
        I(a, f"s_cmp_eq_u32 s{S_WAVE}, 3"); I(a, "s_cbranch_scc0 p1_nopub")
        I(a, "s_cmp_lt_u32 s2, 132"); I(a, "s_cbranch_scc0 p1_nopub")
    I(a, "s_mov_b32 s59, 0x10000")
    a.label("p1_npoll")
    I(a, "v_readfirstlane_b32 s58, v26")
    I(a, "s_sub_u32 s59, s59, 1"); I(a, "s_cbranch_scc1 p1_ngo")
    I(a, "s_cmp_lg_u32 s58, 0"); I(a, "s_cbranch_scc1 p1_ngo")
    I(a, "buffer_load_dword v26, v27, s[88:91], 0 offen sc1"); I(a, "s_waitcnt vmcnt(0)")
    I(a, "s_branch p1_npoll")
    a.label("p1_ngo")
    if fused:
        I(a, "s_mov_b32 s34, s58")
        I(a, f"s_cmp_eq_u32 s{S_WAVE}, 3"); I(a, "s_cbranch_scc0 p1_nopub")
        I(a, "s_cmp_lt_u32 s2, 132"); I(a, "s_cbranch_scc0 p1_nopub")
    I(a, "s_lshr_b32 s58, s2, 2"); I(a, "s_lshl_b32 s58, s58, 7"); I(a, "s_and_b32 s59, s2, 3"); I(a, "s_lshl_b32 s59, s59, 2"); I(a, "s_add_u32 s58, s58, s59")
    I(a, "v_mov_b32 v25, 0x7ffffff0"); I(a, "v_mov_b32 v27, s58"); I(a, "v_cmp_eq_u32 vcc, 0, v1"); I(a, "s_nop 1"); I(a, "v_cndmask_b32 v27, v25, v27, vcc")
    I(a, "buffer_store_dword v26, v27, s[92:95], 0 offen sc1")
    a.label("p1_nopub")
    if PSTAMP: st(3)
    if W2PF:
        I(a, f"v_mov_b32 v{V_PF}, v32")
        I(a, f"s_cmp_eq_u32 s{S_WAVE}, 0"); I(a, f"s_cselect_b32 s{S_PFOFF}, s{S_PFOFF}, {W2PF0*64*7168}")
    tr(); stage_issue(a, g); pf()
    I(a, f"s_mov_b32 s{S_CNT}, {g.nk-3-1}")
    a.label("p1_ld_loop")
    I(a, f"s_waitcnt vmcnt({PER + X + (1 if steppf else 0)})"); I(a, "s_barrier"); tr(); stage_issue(a, g); pf()
    I(a, f"s_sub_u32 s{S_CNT}, s{S_CNT}, 1"); I(a, f"s_cmp_lg_u32 s{S_CNT}, 0"); I(a, "s_cbranch_scc1 p1_ld_loop")
    NT = 2 if W2T else 0
    if W2T:
        I(a, "s_bfe_u32 s60, s2, 0x10001"); I(a, f"s_mul_i32 s60, s60, {1792*2048}")
        I(a, "s_and_b32 s61, s2, 1"); I(a, "s_lshl_b32 s61, s61, 10"); I(a, "s_add_u32 s60, s60, s61")
        I(a, "s_lshr_b32 s61, s2, 3"); I(a, f"s_mul_i32 s61, s61, {64*2048}"); I(a, "s_add_u32 s60, s60, s61")
        I(a, f"s_mul_i32 s61, s{S_WAVE}, {16*2048}"); I(a, "s_add_u32 s60, s60, s61")
        srd(a, S_PFS, 36, 3584*1024*2)
        I(a, "v_lshrrev_b32 v46, 3, v1"); I(a, "v_lshlrev_b32 v46, 11, v46"); I(a, "v_and_b32 v45, 7, v1"); I(a, "v_lshl_add_u32 v46, v45, 7, v46")
        I(a, f"buffer_load_dword v47, v46, s[{S_PFS}:{S_PFS+3}], s60 offen")
        I(a, f"s_add_u32 s60, s60, {8*2048}")
        I(a, f"buffer_load_dword v47, v46, s[{S_PFS}:{S_PFS+3}], s60 offen")
    I(a, f"s_waitcnt vmcnt({PER + X + (1 if steppf else 0) + NT})"); I(a, "s_barrier")
    I(a, f"s_waitcnt vmcnt({(1 if steppf else 0) + NT})"); I(a, "s_barrier")
    I(a, f"s_barrier")
    st(5)
    if fused: fused["r_ld0"] = len(a.lines)
    srd(a, 16, 24, 2048*HP)
    wave_origin(a, g, 28, 29, 30, 31)
    epi_addrs_read(a, g, HP, 30, 31)
    if not fused:
        I(a, f"s_cmp_eq_u32 s{S_WAVE}, 3"); I(a, "s_cbranch_scc0 p1_noflag")
        I(a, "s_mov_b32 s6, s24"); I(a, "s_mov_b32 s7, s25"); add64(a, 6, FLAG_OFF); srd(a, 32, 6, 1024*128)
        I(a, "v_min_u32 v40, 16, v1"); I(a, "v_mul_u32_u24 v40, 224, v40"); I(a, "v_add_u32 v40, s2, v40"); I(a, "v_lshlrev_b32 v40, 7, v40"); I(a, "v_mov_b32 v42, 0"); I(a, "v_mov_b32 v43, 0")
        I(a, "buffer_store_dwordx2 v[42:43], v40, s[32:35], 0 offen")
        a.label("p1_noflag")
    for mb in range(4):
        I(a, "s_barrier")
        for i in range(4):
            r = 64 + mb*16 + i*4
            I(a, f"ds_read_b128 v[{r}:{r+3}], v62 offset:{mb*4096 + i*1024}")
        for i in range(4):
            r = 64 + mb*16 + i*4
            I(a, f"s_mov_b32 s{S_TMP2}, {(mb*32 + i*8) * HP}")
            I(a, f"s_waitcnt lgkmcnt({3-i})")
            I(a, f"buffer_store_dwordx4 v[{r}:{r+3}], v63, s[16:19], s{S_TMP2} offen {hsc}")
    st(6)
    if stamps: I(a, "s_waitcnt vmcnt(0)")
    if fused:
        I(a, "s_lshl_b32 s58, s28, 9"); I(a, "s_lshl_b32 s59, s29, 4"); I(a, "s_add_u32 s58, s58, s59"); I(a, f"s_lshl_b32 s59, s{S_WAVE}, 2"); I(a, "s_add_u32 s58, s58, s59")
        I(a, "v_mov_b32 v28, s58"); I(a, "v_mov_b32 v25, 0x7ffffff0"); I(a, "v_cmp_eq_u32 vcc, 0, v1"); I(a, "s_nop 1"); I(a, "v_cndmask_b32 v28, v25, v28, vcc")
        I(a, "s_mov_b32 s6, s24"); I(a, "s_mov_b32 s7, s25"); add64(a, 6, 35 << 20); srd(a, 52, 6, 128*1024)
        I(a, "v_mov_b32 v29, s34")
        I(a, "s_waitcnt vmcnt(0)")
        if WBL2 == 1:
            I(a, "buffer_wbl2 sc1"); I(a, "s_waitcnt vmcnt(0)")
        if WBL2 == 2:
            lab = a.newlabel("wb")
            I(a, "buffer_wbl2 sc1"); I(a, "s_waitcnt vmcnt(0)")
        I(a, "buffer_store_dword v29, v28, s[52:55], 0 offen sc1")
        if LOCF:
            I(a, "s_getreg_b32 s58, hwreg(HW_REG_XCC_ID)"); I(a, "s_add_u32 s58, s58, 1"); I(a, "s_lshl_b32 s58, s58, 1"); I(a, "s_add_u32 s58, s58, s34")
            I(a, "v_mov_b32 v29, s58")
            I(a, "s_and_b32 s59, s2, 3"); I(a, "s_lshl_b32 s60, s28, 2"); I(a, "s_add_u32 s60, s60, s59"); I(a, "s_lshl_b32 s60, s60, 7")
            I(a, "s_mul_i32 s59, s59, 7"); I(a, "s_sub_u32 s59, s29, s59"); I(a, "s_lshl_b32 s59, s59, 4"); I(a, "s_add_u32 s60, s60, s59")
            I(a, f"s_lshl_b32 s59, s{S_WAVE}, 2"); I(a, "s_add_u32 s60, s60, s59"); I(a, "s_add_u32 s60, s60, 8192")
            I(a, "v_mov_b32 v27, s60"); I(a, "v_cmp_eq_u32 vcc, 0, v1"); I(a, "s_nop 1"); I(a, "v_cndmask_b32 v27, v25, v27, vcc")
            I(a, "buffer_store_dword v29, v27, s[52:55], 0 offen")
        I(a, "s_branch f_ld")
        fused["r_ld1"] = len(a.lines)
    else:
        st(7); st.dump(8, 1)
        I(a, "s_endpgm")
    a.label("p1_compute")
    if P1PRIO >= 0: I(a, f"s_setprio {P1PRIO}")
    I(a, f"s_lshl_b32 s69, s2, 2"); I(a, f"s_add_u32 s69, s69, s{S_WAVE}")
    fold2.fold_pre(a, 69)
    I(a, f"s_mul_i32 s68, s{S_WAVE}, 10240"); I(a, f"s_add_u32 s68, s68, {2*g.STAGE}")
    I(a, "s_mov_b32 s14, 2048"); I(a, "s_mov_b32 s15, 0x00020000")
    wave_origin(a, g, 28, 29, 30, 31)
    I(a, "v_lshrrev_b32 v8, 4, v1"); I(a, "v_lshlrev_b32 v8, 3, v8")
    I(a, "s_waitcnt lgkmcnt(0)")
    st(1)
    I(a, f"s_mov_b32 s{S_QSRD}, s4"); I(a, f"s_and_b32 s{S_QSRD+1}, s5, 0xffff")
    I(a, "s_mov_b32 s12, s38"); I(a, "s_and_b32 s13, s39, 0xffff")
    I(a, "s_cmp_gt_u32 s69, 512"); I(a, "s_cbranch_scc1 p1_skipload")
    fold2.fold_loads(a, S_QSRD, 12, 68)
    a.label("p1_skipload")
    if fstamp == 2: st(2)
    srd(a, 32, 22, 3584*2)
    I(a, "s_mov_b32 s6, s24"); I(a, "s_mov_b32 s7, s25"); add64(a, 6, XF_OFF); srd(a, 16, 6, 8*XFARR)
    I(a, "s_mov_b32 s6, s24"); I(a, "s_mov_b32 s7, s25"); add64(a, 6, G_OFF); srd(a, 40, 6, 2048*8)
    I(a, "s_cmp_gt_u32 s69, 527"); I(a, "s_cbranch_scc1 p1_nofold")
    I(a, "s_cmp_gt_u32 s69, 512"); I(a, "s_cbranch_scc1 p1_zero")
    for nb in range(4):
        I(a, f"buffer_load_dwordx2 v[{184+2*nb}:{184+2*nb+1}], v8, s[32:35], s31 offen offset:{nb*32}")
    if fstamp == 2: st(3)
    def setflag():
        I(a, f"s_lshl_b32 s58, s{S_WAVE}, 2"); I(a, f"s_add_u32 s58, s58, {LFLAG}"); I(a, "v_mov_b32 v193, s58"); I(a, "v_mov_b32 v194, 1")
        I(a, "ds_write_b32 v193, v194")
    after_reads = None
    if BX in (1, 2): after_reads = lambda: I(a, "s_barrier")
    if BX == 3:
        after_reads = setflag
        I(a, "s_barrier")
    if TWICE:
        I(a, "s_mov_b32 s86, s68"); I(a, "s_mov_b32 s87, 0")
        a.label("p1_fold_again")
        I(a, "s_mov_b32 s68, s86")
    fold2.fold_lds_reads(a, 68, (st if fstamp == 1 else ((lambda i: st(4)) if fstamp == 2 else None)), nyounger=4)
    fold2.fold_compute(a, 69, 16, 40, st=st if fstamp == 1 else None, after_reads=after_reads)
    if TWICE:
        I(a, "s_add_u32 s87, s87, 1"); I(a, "s_cmp_eq_u32 s87, 1"); I(a, "s_cbranch_scc1 p1_fold_again")
    if fstamp:
        st(5); I(a, 's_waitcnt vmcnt(0)'); st(6)
    I(a, "s_waitcnt vmcnt(10)")
    I(a, "s_branch p1_folded")
    a.label("p1_zero")
    for nb in range(4):
        I(a, f"buffer_load_dwordx2 v[{184+2*nb}:{184+2*nb+1}], v8, s[32:35], s31 offen offset:{nb*32}")
    if BX in (1, 2): I(a, "s_barrier")
    if BX == 3: I(a, "s_barrier"); setflag()
    fold2.fold_zero(a, 69, 16)
    I(a, "s_waitcnt vmcnt(8)")
    I(a, "s_branch p1_folded")
    a.label("p1_nofold")
    for nb in range(4):
        I(a, f"buffer_load_dwordx2 v[{184+2*nb}:{184+2*nb+1}], v8, s[32:35], s31 offen offset:{nb*32}")
    if BX in (1, 2): I(a, "s_barrier")
    I(a, f"s_cmp_eq_u32 s{S_WAVE}, {3 if w3pf else 99}"); I(a, "s_cbranch_scc0 p1_nopf")
    load_ptr(a, 52, 8, 4); load_ptr(a, 64, 24, 4)
    I(a, "s_lshl_b32 s58, s2, 6"); I(a, "v_add_u32 v4, s58, v1")
    I(a, f"s_mov_b32 s59, {(1<<32)//9+1}"); I(a, "v_mul_hi_u32 v5, v4, s59"); I(a, "v_mul_u32_u24 v6, 9, v5"); I(a, "v_sub_u32 v6, v4, v6")
    I(a, "v_lshlrev_b32 v7, 12, v5"); I(a, "v_lshl_add_u32 v7, v6, 7, v7")
    I(a, "v_cmp_ge_u32 vcc, 1024, v5"); I(a, "v_mov_b32 v9, 0x7ffffff0"); I(a, "s_waitcnt lgkmcnt(0)"); I(a, "v_cndmask_b32 v7, v9, v7, vcc")
    srd(a, 12, 52, 2048*2048*2); srd(a, 16, 54, 2048*2048*2)
    I(a, "buffer_load_dword v25, v7, s[12:15], 0 offen"); I(a, "buffer_load_dword v25, v7, s[16:19], 0 offen")
    I(a, f"s_mov_b32 s59, {(1<<32)//5+1}"); I(a, "v_mul_hi_u32 v5, v4, s59"); I(a, "v_mul_u32_u24 v6, 5, v5"); I(a, "v_sub_u32 v6, v4, v6")
    I(a, "v_lshlrev_b32 v7, 11, v5"); I(a, "v_lshl_add_u32 v7, v6, 7, v7")
    I(a, "v_cmp_ge_u32 vcc, 512, v5"); I(a, "v_mov_b32 v9, 0x7ffffff0"); I(a, "s_nop 0"); I(a, "v_cndmask_b32 v7, v9, v7, vcc")
    srd(a, 12, 64, 1024*1024*2); srd(a, 16, 66, 1024*1024*2)
    I(a, "buffer_load_dword v25, v7, s[12:15], 0 offen"); I(a, "buffer_load_dword v25, v7, s[16:19], 0 offen")
    I(a, "s_waitcnt vmcnt(4)")
    I(a, "s_branch p1_folded")
    a.label("p1_nopf")
    if fused and KWARM:
        for q in (8, 12, 16, 20, 24, 36, 52, 56, 60, 84, 88, 92):
            I(a, f"s_mov_b32 s{q}, s4"); I(a, f"s_and_b32 s{q+1}, s5, 0xffff"); I(a, f"s_mov_b32 s{q+2}, 0"); I(a, f"s_mov_b32 s{q+3}, 0x00020000")
        I(a, "s_lshr_b32 s64, s2, 3"); I(a, "s_sub_u32 s64, s64, 16"); I(a, "s_lshl_b32 s64, s64, 2"); I(a, f"s_add_u32 s64, s64, s{S_WAVE}")
        fused["disp"] = len(a.lines)
        a.label("kw_ret"); I(a, "s_mov_b64 exec, -1")
    I(a, "s_waitcnt vmcnt(0)")
    a.label("p1_folded")
    if fstamp:
        st(7); st0 = st; st = (lambda i: None)
    st(2)
    for nb in range(4):
        for j in range(4):
            src = 184 + 2*nb + j//2; d = 8 + 4*nb + j
            if j % 2 == 0: I(a, f"v_lshlrev_b32 v{d}, 16, v{src}")
            else: I(a, f"v_and_b32 v{d}, 0xffff0000, v{src}")
    setup16_noclobber(a, g)
    st(3)
    compute_loop16p(a, g, 8, hook_label="p1_hook", hook_cnt=g.nk, stamp="s_memtime s[78:79]" if (stamps and not fstamp) else None)
    st(5)
    if fused: fused["r_cp0"] = len(a.lines)
    I(a, f"s_mul_i32 s{S_TMP}, s{S_WAVE}, {g.wm*128}")
    I(a, "v_and_b32 v18, 15, v1"); I(a, "v_lshlrev_b32 v19, 7, v18"); I(a, f"v_add_u32 v19, s{S_TMP}, v19")
    I(a, "v_bfe_u32 v24, v1, 4, 1"); I(a, "v_lshl_add_u32 v19, v24, 3, v19")
    I(a, "v_and_b32 v18, 7, v18"); I(a, "v_lshrrev_b32 v24, 5, v1")
    for nb in range(4):
        I(a, f"v_add_u32 v25, {2*nb}, v24"); I(a, "v_xor_b32 v25, v25, v18"); I(a, f"v_lshl_add_u32 v{20+nb}, v25, 4, v19")
    k = 0
    for mb2 in range(4):
        for mb in (2*mb2, 2*mb2+1):
            for nb in range(4):
                cc = acc16(g, nb, mb); t = 8 + (k % 4) * 2; k += 1
                for r in range(4): I(a, f"v_max_f32 v{cc+r}, 0, v{cc+r}")
                for r in (0, 2): I(a, f"v_pk_mul_f32 v[{cc+r}:{cc+r+1}], v[{cc+r}:{cc+r+1}], v[{cc+r}:{cc+r+1}]")
                I(a, f"v_cvt_pk_bf16_f32 v{t}, v{cc}, v{cc+1}"); I(a, f"v_cvt_pk_bf16_f32 v{t+1}, v{cc+2}, v{cc+3}")
                I(a, f"ds_write_b64 v{20+nb}, v[{t}:{t+1}] offset:{mb*2048}")
        I(a, "s_waitcnt lgkmcnt(0)"); I(a, "s_barrier")
    st(6); st(7)
    if fused:
        I(a, "s_branch f_cp")
        fused["r_cp1"] = len(a.lines)
    elif fstamp: st0.dump(8, 0)
    else: st.dump(8, 0)
    a.label("p1_end")
    I(a, "s_endpgm")
    a.label("p1_hook")
    I(a, "s_cmp_gt_u32 s69, 527"); I(a, "s_cbranch_scc1 p1_c_mid")
    I(a, "s_waitcnt vmcnt(0)")
    I(a, "s_branch p1_c_mid")
    a.label("aw_entry")
    sa = StampsAt(a, astamp, 70)
    if astamp: sa(0)
    awg3.a_wg(a, stamps=sa if astamp else None, ysc=(os.environ.get('YSCF', 'sc0 sc1') if fused else os.environ.get('YSC', '')), fused=fused)
    return g

def setup16_noclobber(a, g):
    import math
    lw = int(math.log2(g.WM)); V_QA = gemm3.V_QA; V_PA = gemm3.V_PA
    I(a, f"s_and_b32 s{S_TMP}, s{S_WAVE}, {g.WM-1}"); I(a, f"s_lshr_b32 s{S_TMP2}, s{S_WAVE}, {lw}")
    I(a, "v_and_b32 v27, 15, v1"); I(a, f"s_mul_i32 s{S_DELTA}, s{S_TMP}, {g.wm*128}"); I(a, "v_lshlrev_b32 v27, 7, v27"); I(a, f"v_add_u32 v27, s{S_DELTA}, v27")
    I(a, "v_lshrrev_b32 v28, 4, v1"); I(a, "v_bfe_u32 v29, v1, 1, 3"); I(a, "v_xor_b32 v28, v28, v29")
    for ks in range(2):
        I(a, f"v_xor_b32 v30, {4*ks}, v28"); I(a, f"v_lshl_add_u32 v{V_QA+ks}, v30, 4, v27")
    I(a, "v_bfe_u32 v27, v1, 2, 2"); I(a, "v_lshrrev_b32 v28, 4, v1"); I(a, "v_lshl_add_u32 v29, v28, 3, v27")
    I(a, f"v_lshlrev_b32 v29, 8, v29"); I(a, f"v_add_u32 v29, {g.QB}, v29")
    I(a, "v_and_b32 v30, 1, v1"); I(a, "v_lshl_add_u32 v29, v30, 3, v29")
    I(a, "v_bfe_u32 v30, v1, 1, 1")
    I(a, f"s_mul_i32 s{S_DELTA}, s{S_TMP2}, {g.wn//8}"); I(a, f"v_add_u32 v30, s{S_DELTA}, v30")
    I(a, "v_lshlrev_b32 v27, 2, v27"); I(a, "v_and_b32 v28, 1, v28"); I(a, "v_lshlrev_b32 v28, 1, v28"); I(a, "v_xor_b32 v27, v27, v28")
    NB, MB = nblk16(g)
    for nb in range(NB):
        I(a, f"v_add_u32 v31, {2*nb}, v30"); I(a, "v_xor_b32 v31, v31, v27"); I(a, f"v_lshl_add_u32 v{V_PA+nb}, v31, 4, v29")
    I(a, f"s_mov_b32 s{S_DN}, {(-(g.NS-1)*g.STAGE) & 0xffffffff}"); I(a, f"s_mov_b32 s{S_DP}, {g.STAGE}")
```

```python
from asmgen import *
from gemm2 import *
import gemm3
from gemm3 import acc16, loader_voffsets16, compute_setup16, compute_loop16
from p1v2 import load_ptr
from p2 import StampsAt, add64, Y_OFF, YP, YARR, G_OFF, FLAG_OFF
from p2b import y_loads, y_loads_pre, y_loads_i, y_precombine, T1
XS_OFF = 40 << 20

import os
YSPLIT = int(os.environ.get("YSPLIT", "9"))
WFLAG = int(os.environ.get("WFLAG", "0"))
HSLEEP = int(os.environ.get("HSLEEP", "2"))
PRL = int(os.environ.get("PRL", "-1"))
PRC = int(os.environ.get("PRC", "-1"))
LOCF = int(os.environ.get("LOCF", "1"))
LOCN = int(os.environ.get("LOCN", "6"))
MERGE = int(os.environ.get("MERGE", "0"))
AFAST = int(os.environ.get("AFAST", "0"))
HP = int(os.environ.get('HP', '7424'))
DIST = int(os.environ.get("DIST", "1"))
PFP = int(os.environ.get("PFP", "0")); PFD = int(os.environ.get("PFD", "6"))
HF_OFF = 35 << 20
def k_k2(a, name, stamps=False, NS=4, trace=False, fused=None):
    g = G(BM=128, BN=128, WM=2, WN=2, NS=NS, ldq=HP, ldp=2048, nk=28, pref="p2")
    st = StampsAt(a, stamps, 70)
    def common():
        load_ptr(a, 6, 64); load_ptr(a, 20, 72); load_ptr(a, 22, 88); load_ptr(a, 4, 104)
        if fused: load_ptr(a, 62, 96)
        else: lane_wave(a)
        I(a, "s_lshr_b32 s27, s2, 3")
        I(a, "s_bfe_u32 s67, s2, 0x10001")
        I(a, "s_bfe_u32 s28, s2, 0x10002"); I(a, "s_lshl_b32 s28, s28, 3"); I(a, "s_lshr_b32 s30, s27, 2"); I(a, "s_add_u32 s28, s28, s30")
        I(a, "s_and_b32 s29, s2, 1"); I(a, "s_lshl_b32 s29, s29, 2"); I(a, "s_and_b32 s30, s27, 3"); I(a, "s_add_u32 s29, s29, s30")
        I(a, f"s_mul_i32 s{S_QOFF}, s28, {128*HP}")
        I(a, f"s_mul_i32 s30, s67, {1792*2}"); I(a, f"s_add_u32 s{S_QOFF}, s{S_QOFF}, s30")
        I(a, f"s_mul_i32 s{S_POFF}, s29, {128*2}")
        I(a, f"s_mul_i32 s30, s67, {1792*2048}"); I(a, f"s_add_u32 s{S_POFF}, s{S_POFF}, s30")
        if fused and LOCF:
            I(a, "s_and_b32 s30, s2, 1"); I(a, f"s_mul_i32 s31, s30, {14*128}"); I(a, f"s_add_u32 s{S_QOFF}, s{S_QOFF}, s31")
            I(a, f"s_mul_i32 s31, s30, {14*64*2048}"); I(a, f"s_add_u32 s{S_POFF}, s{S_POFF}, s31")
        I(a, f"s_and_b32 s31, s{S_WAVE}, 1"); I(a, "s_lshl_b32 s31, s31, 6"); I(a, "s_lshl_b32 s30, s28, 7"); I(a, "s_add_u32 s30, s30, s31")
        I(a, "s_lshl_b32 s31, s67, 5"); I(a, "s_add_u32 s30, s30, s31")
        I(a, f"s_bfe_u32 s31, s{S_WAVE}, 0x10001"); I(a, "s_lshl_b32 s31, s31, 7"); I(a, "s_lshl_b32 s66, s29, 8"); I(a, "s_add_u32 s31, s31, s66")
    PX = 2
    PER = g.PER
    if not fused:
        kernel_begin(a, name)
        st(0)
        I(a, "s_cmp_ge_u32 s2, 256"); I(a, "s_cbranch_scc1 p2_end")
        common()
        I(a, f"s_cmp_ge_u32 s{S_WAVE}, 4"); I(a, "s_cbranch_scc0 p2_compute")
        I(a, f"s_sub_u32 s{S_WAVE}, s{S_WAVE}, 4")
    else:
        a.label("f_ld")
        if PRL >= 0: I(a, f"s_setprio {PRL}")
        st(1)
        common()
    loader_voffsets16(a, g, s_perm=67, nblk=2)
    I(a, "s_waitcnt lgkmcnt(0)")
    if not fused: st(1)
    srd(a, S_PSRD, 6, 3584*1024*2); srd(a, S_QSRD, 4, 2048*HP)
    if fused:
        FS = 52
        I(a, "s_mov_b32 s6, s4"); I(a, "s_mov_b32 s7, s5"); add64(a, 6, HF_OFF); srd(a, FS, 6, 128*1024)
        st(2)
        I(a, "s_barrier")
        if AFAST:
            I(a, "s_cmp_eq_u32 s35, 1"); I(a, "s_cbranch_scc1 f_ld_a")
        if MERGE:
            stage_issue(a, g); stage_issue(a, g)
            st(3)
            I(a, f"s_waitcnt vmcnt({PER})")
        else:
            def p_part(s_):
                I(a, f"s_add_u32 m0, s{S_MP}, {s_*g.STAGE}"); I(a, f"s_add_u32 s58, s{S_POFF}, {s_*64*g.ldp}")
                for i in range(g.np_):
                    I(a, f"buffer_load_dwordx4 v{VL+g.nq+i}, s[{S_PSRD}:{S_PSRD+3}], s58 offen offset:{(i&3)*1024} lds")
            def q_part(s_):
                I(a, f"s_add_u32 m0, s{S_MQ}, {s_*g.STAGE}"); I(a, f"s_add_u32 s58, s{S_QOFF}, {s_*128}")
                for i in range(g.nq):
                    I(a, f"buffer_load_dwordx4 v{VL+i}, s[{S_QSRD}:{S_QSRD+3}], s58 offen offset:{(i&3)*1024} lds")
            for s_ in range(NS): p_part(s_)
            st(3)
            I(a, "s_barrier")
            for s_ in range(NS): q_part(s_)
            I(a, f"s_add_u32 s{S_QOFF}, s{S_QOFF}, {NS*128}"); I(a, f"s_add_u32 s{S_POFF}, s{S_POFF}, {NS*64*g.ldp}")
            I(a, f"s_waitcnt vmcnt({(NS-1)*g.nq})")
        st(4)
        I(a, "s_barrier")
        if MERGE: stage_issue(a, g); stage_issue(a, g)
    else:
        st(2)
    if not fused:
        stage_issue(a, g)
        st(3)
        stage_issue(a, g)
        I(a, f"s_waitcnt vmcnt({PER})")
        st(4)
        I(a, "s_barrier")
        for s in range(2, NS): stage_issue(a, g)
    if fused and AFAST: a.label("f_ld_a2")
    srd(a, 16, 22, 2048*1024*2)
    I(a, "s_mov_b32 s6, s4"); I(a, "s_mov_b32 s7, s5"); add64(a, 6, Y_OFF); srd(a, 24, 6, 4*YARR)
    I(a, "s_mov_b32 s6, s4"); I(a, "s_mov_b32 s7, s5"); add64(a, 6, G_OFF); srd(a, 36, 6, 2048*8)
    I(a, f"s_mov_b32 s63, {YARR}"); I(a, f"s_mov_b32 s64, {2*YARR}"); I(a, f"s_mov_b32 s65, {3*YARR}")
    X = 0
    if trace:
        X = 1
        I(a, "s_add_u32 s60, s4, 0x6400000"); I(a, "s_addc_u32 s61, s5, 0"); srd(a, 56, 60, 1<<22)
        I(a, "s_lshl_b32 s62, s2, 12"); I(a, f"s_lshl_b32 s68, s{S_WAVE}, 10"); I(a, "s_add_u32 s68, s68, s62"); I(a, "v_mov_b32 v30, 0")
    def tr():
        if not trace: return
        I(a, "s_memrealtime s[90:91]"); I(a, "s_memtime s[92:93]"); I(a, "s_waitcnt lgkmcnt(0)")
        I(a, "v_mov_b32 v28, s90"); I(a, "v_mov_b32 v29, s92")
        I(a, "buffer_store_dwordx2 v[28:29], v30, s[56:59], s68 offen"); I(a, "s_add_u32 s68, s68, 8")
    if PFP and not trace:
        P = PFP
        I(a, f"s_lshl_b32 s58, s{S_WAVE}, 6"); I(a, "v_add_u32 v20, s58, v1")
        I(a, "s_bfe_u32 s58, s2, 0x20003"); I(a, "s_lshl_b32 s58, s58, 5")
        I(a, "v_and_b32 v21, 31, v20"); I(a, "v_add_u32 v21, s58, v21"); I(a, f"v_mul_u32_u24 v21, {g.ldq}, v21")
        I(a, "v_lshrrev_b32 v22, 5, v20"); I(a, "v_lshl_add_u32 v21, v22, 7, v21")
        I(a, f"v_cmp_gt_u32 vcc, {32*P}, v20"); I(a, "v_mov_b32 v23, 0x7ffffff0"); I(a, "s_nop 0"); I(a, "v_cndmask_b32 v21, v23, v21, vcc")
        I(a, "v_sub_u32 v24, 255, v20")
        I(a, "s_bfe_u32 s58, s2, 0x30005"); I(a, "s_lshl_b32 s58, s58, 3")
        I(a, "v_and_b32 v25, 7, v24"); I(a, "v_add_u32 v25, s58, v25")
        I(a, "v_lshrrev_b32 v26, 4, v24"); I(a, "v_lshl_add_u32 v25, v26, 6, v25")
        I(a, "v_lshlrev_b32 v25, 11, v25"); I(a, "v_bfe_u32 v26, v24, 3, 1"); I(a, "v_lshl_add_u32 v25, v26, 7, v25")
        I(a, f"v_cmp_gt_u32 vcc, {16*P}, v24"); I(a, "s_nop 1"); I(a, "v_cndmask_b32 v25, v23, v25, vcc")
        assert 48*P <= 256
        nst = g.nk - NS
        npf = 2
        def cntpf(i):
            return npf * sum(1 for j in (i-3, i-2, i-1) if j >= 0 and j % P == 0 and active(j))
        def active(j): return j + NS + PFD0 < g.nk
        PFD0 = PFD - NS if PFD >= NS else 0
        for i in range(nst):
            I(a, f"s_waitcnt vmcnt({(NS-2)*PER + cntpf(i)})"); I(a, "s_barrier"); stage_issue(a, g)
            if i % P == 0 and active(i):
                I(a, f"s_add_u32 s58, s{S_QOFF}, {PFD0*128}"); I(a, f"s_add_u32 s59, s{S_POFF}, {PFD0*64*g.ldp}")
                I(a, f"buffer_load_dword v27, v21, s[{S_QSRD}:{S_QSRD+3}], s58 offen")
                I(a, f"buffer_load_dword v27, v25, s[{S_PSRD}:{S_PSRD+3}], s59 offen")
        PFX = sum(npf for j in (nst-3, nst-2, nst-1) if j % P == 0 and active(j))
        assert PFX == 0 or True
    elif fused:
        assert NS == 4 and g.nq == 4 and PER == 8
        if AFAST: I(a, "s_cmp_eq_u32 s35, 1"); I(a, "s_cbranch_scc1 f_ld_a3")
        I(a, f"s_waitcnt vmcnt({16 if MERGE else 8})"); I(a, "s_barrier"); stage_issue(a, g)
        I(a, f"s_waitcnt vmcnt({16 if MERGE else 12})"); I(a, "s_barrier"); stage_issue(a, g)
        if AFAST:
            a.label("f_ld_join")
            fa = Asm(); fa.nlabel = a.nlabel + 2000
            fa.label("f_ld_a")
            for _ in range(AFAST): stage_issue(fa, g)
            I(fa, f"s_waitcnt vmcnt({(AFAST-1)*PER})"); I(fa, "s_barrier")
            for _ in range(NS - AFAST): stage_issue(fa, g)
            I(fa, "s_branch f_ld_a2")
            fused["fa"] = fa.lines
            fb = Asm(); fb.nlabel = a.nlabel + 3000
            fb.label("f_ld_a3")
            I(fb, "s_waitcnt vmcnt(16)"); I(fb, "s_barrier"); stage_issue(fb, g)
            I(fb, "s_waitcnt vmcnt(16)"); I(fb, "s_barrier"); stage_issue(fb, g)
            I(fb, "s_branch f_ld_join")
            fused["fb"] = fb.lines
        nA = 5 if LOCF else 18
        I(a, f"s_mov_b32 s{S_CNT}, 18")
        a.label("p2_ld_loop")
        I(a, "s_waitcnt vmcnt(16)")
        I(a, f"s_cmp_eq_u32 s{S_CNT}, 14"); I(a, "s_cbranch_scc1 p2_ld_ypub")
        a.label("p2_ld_ypub_r")
        I(a, "s_barrier"); stage_issue(a, g)
        a.label("p2_ld_ypub_r2")
        I(a, f"s_sub_u32 s{S_CNT}, s{S_CNT}, 1"); I(a, f"s_cmp_lg_u32 s{S_CNT}, {18 - nA}"); I(a, "s_cbranch_scc1 p2_ld_loop")
        if LOCF:
            I(a, "s_lshr_b32 s58, s28, 1"); I(a, "s_lshl_b32 s58, s58, 9"); I(a, "s_and_b32 s59, s2, 3"); I(a, "s_xor_b32 s59, s59, 1"); I(a, "s_mul_i32 s59, s59, 112"); I(a, "s_add_u32 s58, s58, s59")
            I(a, "v_lshlrev_b32 v30, 2, v1"); I(a, "v_add_u32 v30, s58, v30"); I(a, "v_mov_b32 v25, 0x7ffffff0")
            I(a, f"s_cmp_eq_u32 s{S_WAVE}, 3"); I(a, "s_cselect_b32 s58, 28, 0"); I(a, "v_cmp_gt_u32 vcc, s58, v1"); I(a, "s_nop 1"); I(a, "v_cndmask_b32 v30, v25, v30, vcc")
            I(a, "s_waitcnt vmcnt(16)"); I(a, "s_barrier"); stage_issue(a, g)
            I(a, f"buffer_load_dword v31, v30, s[{FS}:{FS+3}], 0 offen sc1")
            I(a, "s_waitcnt vmcnt(17)"); I(a, "s_barrier"); stage_issue(a, g)
            I(a, "s_waitcnt vmcnt(17)"); I(a, "s_barrier"); stage_issue(a, g)
            I(a, "s_waitcnt vmcnt(16)")
            labq = a.newlabel("rq"); labl = a.newlabel("rl")
            I(a, f"s_cmp_eq_u32 s{S_WAVE}, 3"); I(a, f"s_cbranch_scc0 {labq}")
            I(a, "s_mov_b32 s59, 0x8000")
            a.label(labl)
            I(a, "v_cmp_ne_u32 vcc, s34, v31"); I(a, "s_nop 4")
            I(a, "s_and_b32 s58, vcc_lo, 0xfffffff"); I(a, f"s_cbranch_scc0 {labq}")
            I(a, "s_sub_u32 s59, s59, 1"); I(a, f"s_cbranch_scc1 {labq}")
            I(a, f"buffer_load_dword v31, v30, s[{FS}:{FS+3}], 0 offen sc1"); I(a, "s_waitcnt vmcnt(0)")
            I(a, f"s_branch {labl}")
            a.label(labq)
            I(a, "s_barrier")
            I(a, "s_and_b32 s58, s2, 1"); I(a, f"s_mul_i32 s59, s58, {28*128}"); I(a, f"s_sub_u32 s{S_QOFF}, s{S_QOFF}, s59")
            I(a, f"s_mul_i32 s59, s58, {28*64*2048}"); I(a, f"s_sub_u32 s{S_POFF}, s{S_POFF}, s59")
            stage_issue(a, g)
            I(a, f"s_mov_b32 s{S_CNT}, 9")
            a.label("p2_ld_loopb")
            I(a, "s_waitcnt vmcnt(16)"); I(a, "s_barrier"); stage_issue(a, g)
            I(a, f"s_sub_u32 s{S_CNT}, s{S_CNT}, 1"); I(a, f"s_cmp_lg_u32 s{S_CNT}, 0"); I(a, "s_cbranch_scc1 p2_ld_loopb")
        ypub = Asm(); ypub.nlabel = a.nlabel + 1000
        ypub.label("p2_ld_ypub")
        I(ypub, "s_cmp_eq_u32 s35, 1"); I(ypub, "s_cbranch_scc0 p2_ld_ypub_r")
        I(ypub, "s_waitcnt vmcnt(0)"); I(ypub, "s_barrier")
        I(ypub, f"s_cmp_eq_u32 s{S_WAVE}, 3"); I(ypub, "s_cbranch_scc0 p2_ld_ypub_n")
        I(ypub, "v_mov_b32 v29, s34")
        I(ypub, f"buffer_store_dword v29, v28, s[{FS}:{FS+3}], 0 offen sc1")
        ypub.label("p2_ld_ypub_n")
        stage_issue(ypub, g)
        I(ypub, "s_branch p2_ld_ypub_r2")
        fused["ypub"] = ypub.lines
        I(a, "s_and_b32 s58, s2, 7"); I(a, "s_lshl_b32 s58, s58, 7"); I(a, "s_add_u32 s58, s58, 65536")
        I(a, "v_lshlrev_b32 v30, 2, v1"); I(a, "v_add_u32 v30, s58, v30"); I(a, "v_mov_b32 v25, 0x7ffffff0")
        I(a, f"s_cmp_eq_u32 s{S_WAVE}, 3"); I(a, "s_cselect_b32 s58, 32, 0"); I(a, "v_cmp_gt_u32 vcc, s58, v1"); I(a, "s_nop 1"); I(a, "v_cndmask_b32 v30, v25, v30, vcc")
        I(a, "s_waitcnt vmcnt(16)"); I(a, "s_barrier"); stage_issue(a, g)
        I(a, f"buffer_load_dword v31, v30, s[{FS}:{FS+3}], 0 offen sc1")
        I(a, "s_waitcnt vmcnt(17)"); I(a, "s_barrier"); stage_issue(a, g)
        I(a, "s_waitcnt vmcnt(17)"); I(a, "s_barrier"); stage_issue(a, g)
        I(a, "s_waitcnt vmcnt(16)")
        labq = a.newlabel("yq"); labl = a.newlabel("yl")
        I(a, f"s_cmp_eq_u32 s{S_WAVE}, 3"); I(a, f"s_cbranch_scc0 {labq}")
        I(a, "s_mov_b32 s59, 0x8000")
        a.label(labl)
        I(a, "v_cmp_ne_u32 vcc, s34, v31"); I(a, "s_nop 4")
        I(a, "s_cmp_eq_u32 vcc_lo, 0"); I(a, f"s_cbranch_scc1 {labq}")
        I(a, "s_sub_u32 s59, s59, 1"); I(a, f"s_cbranch_scc1 {labq}")
        I(a, f"buffer_load_dword v31, v30, s[{FS}:{FS+3}], 0 offen sc1"); I(a, "s_waitcnt vmcnt(0)")
        I(a, f"s_branch {labl}")
        a.label(labq)
        I(a, "s_barrier"); stage_issue(a, g)
    else:
        PFX = 0
        I(a, f"s_mov_b32 s{S_CNT}, {g.nk-NS}")
        if trace:
            I(a, f"s_waitcnt vmcnt({(NS-2)*PER})"); I(a, "s_barrier"); tr(); stage_issue(a, g)
            I(a, f"s_waitcnt vmcnt({(NS-3)*PER + PER+1})"); I(a, "s_barrier"); tr(); stage_issue(a, g)
            I(a, f"s_mov_b32 s{S_CNT}, {g.nk-NS-2}")
        a.label("p2_ld_loop")
        I(a, f"s_waitcnt vmcnt({(NS-2)*(PER+X)})"); I(a, "s_barrier"); tr(); stage_issue(a, g)
        I(a, f"s_sub_u32 s{S_CNT}, s{S_CNT}, 1"); I(a, f"s_cmp_lg_u32 s{S_CNT}, 0"); I(a, "s_cbranch_scc1 p2_ld_loop")
    E = 164
    def extra_rows():
        if not DIST: return
        lab = a.newlabel("r4")
        I(a, "s_cmp_eq_u32 s30, 1024"); I(a, f"s_cbranch_scc0 {lab}")
        I(a, "v_cmp_gt_u32 vcc, 8, v1"); I(a, "v_mov_b32 v45, 0x7ff00000"); I(a, "s_nop 0"); I(a, "v_cndmask_b32 v44, v45, v43, vcc")
        for z in range(1, 4):
            r = E + 8*(z-1)
            I(a, f"s_mov_b32 s58, {(1024+z)*YP}"); I(a, f"s_add_u32 s59, s58, s63")
            I(a, f"buffer_load_dwordx3 v[{r}:{r+2}], v44, s[24:27], s58 offen")
            I(a, f"buffer_load_dwordx2 v[{r+4}:{r+5}], v44, s[24:27], s59 offen")
        a.label(lab)
    if YSPLIT == 9:
        YM = 16384; YX = 49152
        y_loads_pre(a, 30, 31, "p2")
        I(a, "s_lshl_b32 s60, s29, 7"); I(a, "s_sub_u32 s61, 896, s60"); I(a, "s_cmp_eq_u32 s62, 1"); I(a, "s_cselect_b32 s60, s61, s60")
        I(a, f"s_lshr_b32 s58, s{S_WAVE}, 1"); I(a, "s_lshl_b32 s59, s58, 4")
        for q in range(2):
            I(a, f"v_lshrrev_b32 v44, 3, v1"); I(a, f"v_add_u32 v44, s30, v44"); I(a, f"v_add_u32 v44, s59, v44"); I(a, f"v_add_u32 v44, {8*q}, v44")
            I(a, "v_sub_u32 v45, 2048, v44"); I(a, "v_min_u32 v45, v44, v45"); I(a, f"v_mul_u32_u24 v45, {YP}, v45")
            I(a, "v_and_b32 v44, 7, v1"); I(a, f"v_lshl_add_u32 v{20+q}, v44, 4, v45"); I(a, f"v_add_u32 v{20+q}, s60, v{20+q}")
        I(a, f"s_and_b32 s61, s{S_WAVE}, 1"); I(a, "s_lshl_b32 s61, s61, 12"); I(a, "s_lshl_b32 s59, s59, 7"); I(a, "s_add_u32 s61, s61, s59"); I(a, f"s_add_u32 s61, s61, {YM}")
        def ydma(arr):
            so = ["0", "s63", "s64", "s65"][arr]
            for q in range(2):
                I(a, f"s_add_u32 m0, s61, {arr*8192 + q*1024}"); I(a, "s_nop 0")
                I(a, f"buffer_load_dwordx4 v{20+q}, s[24:27], {so} offen lds")
        I(a, "s_lshl_b32 s59, s28, 7"); I(a, "s_lshl_b32 s58, s67, 5"); I(a, "s_add_u32 s59, s59, s58")
        I(a, "v_lshrrev_b32 v44, 5, v1"); I(a, "v_lshlrev_b32 v44, 6, v44"); I(a, "v_and_b32 v45, 31, v1"); I(a, "v_add_u32 v44, v44, v45"); I(a, "v_add_u32 v44, s59, v44")
        I(a, "v_sub_u32 v45, 2048, v44"); I(a, "v_min_u32 v45, v44, v45"); I(a, f"v_mul_u32_u24 v22, {YP}, v45"); I(a, "v_add_u32 v22, s60, v22"); I(a, "v_add_u32 v22, 128, v22")
        ny = 0
        for j, t in enumerate(range(g.nk - NS, g.nk)):
            rem = max(min(t + NS - 1, g.nk - 1) - (t + 1), 0)
            if t + 1 <= g.nk - 1: I(a, f"s_waitcnt vmcnt({rem*(PER+X) + ny})")
            else: I(a, f"s_waitcnt vmcnt({5 if fused else 4})")
            I(a, "s_barrier")
            if j == 0:
                ydma(0); ydma(1); ny += 4
            if j == 1:
                ydma(2); ydma(3); ny += 4
                lab = a.newlabel("yx"); labe = a.newlabel("yxe")
                I(a, "s_cmp_eq_u32 s62, 1"); I(a, f"s_cbranch_scc0 {lab}"); I(a, f"s_cmp_lt_u32 s{S_WAVE}, 2"); I(a, f"s_cbranch_scc0 {lab}")
                I(a, f"s_lshl_b32 s58, s{S_WAVE}, 10"); I(a, f"s_add_u32 m0, s58, {YX}"); I(a, f"s_mul_i32 s58, s{S_WAVE}, {2*YARR}")
                I(a, f"buffer_load_dwordx4 v22, s[24:27], s58 offen lds")
                I(a, f"s_branch {labe}")
                a.label(lab)
                I(a, "v_mov_b32 v23, 0x7ffffff0"); I(a, "buffer_load_dword v24, v23, s[24:27], 0 offen")
                a.label(labe)
                ny += 1
            if j == 2:
                for i in range(4):
                    I(a, f"v_add_u32 v44, {8*i}, v42"); I(a, f"v_lshlrev_b32 v44, 3, v44")
                    I(a, f"buffer_load_dwordx2 v[{32+i*2}:{32+i*2+1}], v44, s[36:39], 0 offen")
                ny += 4
                if fused:
                    srd(a, 92, 20, 2048)
                    I(a, "v_and_b32 v44, 7, v1"); I(a, "v_lshlrev_b32 v44, 4, v44")
                    I(a, "buffer_load_dwordx4 v[188:191], v44, s[92:95], s31 offen")
                    ny += 1
        extra_rows()
        I(a, f"s_and_b32 s61, s{S_WAVE}, 1"); I(a, "s_lshl_b32 s58, s61, 12"); I(a, f"s_add_u32 s58, s58, {YM}")
        I(a, "v_lshrrev_b32 v44, 3, v1"); I(a, "v_lshlrev_b32 v45, 7, v44"); I(a, "v_add_u32 v45, s58, v45")
        I(a, "v_subrev_u32 v46, s60, v43")
        I(a, "v_add_u32 v20, v45, v46")
        I(a, "s_lshl_b32 s58, s61, 9"); I(a, f"s_add_u32 s58, s58, {YX}")
        I(a, "v_lshlrev_b32 v47, 4, v44"); I(a, "v_add_u32 v47, s58, v47")
        I(a, "v_cmp_eq_u32 vcc, 120, v46"); I(a, "v_add_u32 v21, 8, v20")
        labf = a.newlabel("yf"); labd = a.newlabel("yd")
        I(a, "s_cmp_eq_u32 s62, 1"); I(a, f"s_cbranch_scc0 {labf}")
        for i in range(4):
            b = 64 + i*16
            I(a, f"v_add_u32 v48, {i*1024}, v21"); I(a, f"v_add_u32 v49, {i*128}, v47"); I(a, "v_cndmask_b32 v22, v48, v49, vcc")
            I(a, f"v_add_u32 v48, {i*1024 + 2*8192}, v21"); I(a, f"v_add_u32 v49, {i*128 + 1024}, v47"); I(a, "v_cndmask_b32 v23, v48, v49, vcc")
            I(a, f"ds_read_b64 v[{b}:{b+1}], v20 offset:{i*1024}"); I(a, f"ds_read_b32 v{b+2}, v22")
            I(a, f"ds_read_b64 v[{b+4}:{b+5}], v20 offset:{i*1024 + 8192}")
            I(a, f"ds_read_b64 v[{b+8}:{b+9}], v20 offset:{i*1024 + 2*8192}"); I(a, f"ds_read_b32 v{b+10}, v23")
            I(a, f"ds_read_b64 v[{b+12}:{b+13}], v20 offset:{i*1024 + 3*8192}")
            if i % 2 == 1: I(a, "s_waitcnt lgkmcnt(0)")
        I(a, f"s_branch {labd}")
        a.label(labf)
        for i in range(4):
            b = 64 + i*16
            for z in range(4):
                I(a, f"ds_read_b64 v[{b+4*z}:{b+4*z+1}], v20 offset:{i*1024 + z*8192}")
            if i % 2 == 1: I(a, "s_waitcnt lgkmcnt(0)")
        a.label(labd)
    elif YSPLIT == 0:
        y_loads(a, 30, 31, "p2")
        extra_rows()
        for t in range(g.nk - NS, g.nk):
            rem = max(min(t + NS - 1, g.nk - 1) - (t + 1), 0)
            if t + 1 <= g.nk - 1: I(a, f"s_waitcnt vmcnt({rem*(PER+X) + 20})")
            I(a, "s_barrier")
    else:
        y_loads_pre(a, 30, 31, "p2")
        ny = 0
        sched = {1: [[0], [1], [2], [3]], 2: [[], [0, 1], [2, 3], []], 3: [[], [], [], [0, 1, 2, 3]], 4: [[], [0], [1], [2, 3]]}[YSPLIT]
        for j, t in enumerate(range(g.nk - NS, g.nk)):
            rem = max(min(t + NS - 1, g.nk - 1) - (t + 1), 0)
            if t + 1 <= g.nk - 1: I(a, f"s_waitcnt vmcnt({rem*(PER+X) + ny})")
            I(a, "s_barrier")
            for i in sched[j]:
                y_loads_i(a, i); ny += 5
        extra_rows()
    st(5)
    I(a, "s_waitcnt vmcnt(0)")
    if DIST:
        lab = a.newlabel("r5")
        I(a, "s_cmp_eq_u32 s30, 1024"); I(a, f"s_cbranch_scc0 {lab}")
        for off in (0, 1, 2, 4, 5):
            d = 64 + off
            I(a, f"v_lshlrev_b32 v46, 16, v{d}"); I(a, f"v_and_b32 v47, 0xffff0000, v{d}")
            for z in range(1, 4):
                r = E + 8*(z-1) + off
                I(a, f"v_lshlrev_b32 v48, 16, v{r}"); I(a, f"v_and_b32 v49, 0xffff0000, v{r}")
                I(a, "v_pk_add_f32 v[46:47], v[46:47], v[48:49]")
            I(a, f"v_cvt_pk_bf16_f32 v{d}, v46, v47")
        a.label(lab)
    y_precombine(a)
    if fused:
        for q in range(4):
            I(a, f"v_lshlrev_b32 v{192+2*q}, 16, v{188+q}"); I(a, f"v_and_b32 v{193+2*q}, 0xffff0000, v{188+q}")
        for i in range(4):
            og = 33 + 2*i
            I(a, f"v_mov_b32 v46, v{og}"); I(a, f"v_mov_b32 v47, v{og}")
            for p in range(4):
                d = T1 + i*8 + p*2
                I(a, f"v_pk_fma_f32 v[{d}:{d+1}], v[{192+2*p}:{193+2*p}], v[46:47], v[{d}:{d+1}]")
    W = 50
    I(a, f"s_lshl_b32 s66, s{S_WAVE}, 12")
    I(a, f"v_lshrrev_b32 v{W}, 3, v1"); I(a, f"v_and_b32 v{W+2}, 7, v1"); I(a, f"v_xor_b32 v{W+2}, v{W+2}, v{W}")
    I(a, f"v_lshlrev_b32 v{W+3}, 7, v{W}"); I(a, f"v_lshl_add_u32 v{W+3}, v{W+2}, 4, v{W+3}"); I(a, f"v_add_u32 v{W+12}, s66, v{W+3}")
    I(a, f"v_add_u32 v{W}, s30, v{W}"); I(a, f"v_lshlrev_b32 v{W}, 11, v{W}"); I(a, f"v_and_b32 v{W+2}, 7, v1")
    I(a, f"v_lshl_add_u32 v{W}, v{W+2}, 4, v{W}"); I(a, f"v_add_u32 v{W+13}, s31, v{W}")
    st(6)
    if not WFLAG: I(a, "s_barrier"); I(a, "s_barrier")
    I(a, "s_barrier")
    for i in range(4):
        I(a, f"ds_read_b128 v[{64+4*i}:{64+4*i+3}], v{W+12} offset:{i*1024}")
    for i in range(4):
        I(a, f"s_waitcnt lgkmcnt({3-i})")
        og = 33 + 2*i
        I(a, f"v_mov_b32 v46, v{og}"); I(a, f"v_mov_b32 v47, v{og}")
        for p in range(4):
            bb = 64 + 4*i + p; d = T1 + i*8 + p*2
            I(a, f"v_lshlrev_b32 v48, 16, v{bb}"); I(a, f"v_and_b32 v49, 0xffff0000, v{bb}")
            I(a, f"v_pk_fma_f32 v[{d}:{d+1}], v[48:49], v[46:47], v[{d}:{d+1}]")
            I(a, f"v_cvt_pk_bf16_f32 v{bb}, v{d}, v{d+1}")
        I(a, f"s_mov_b32 s{S_TMP2}, {i*8*2048}")
        I(a, f"buffer_store_dwordx4 v[{64+4*i}:{64+4*i+3}], v{W+13}, s[16:19], s{S_TMP2} offen {os.environ.get('OSC', 'sc0 sc1')}")
    if stamps: I(a, "s_waitcnt vmcnt(0)")
    st(7); st.dump(8, 1)
    I(a, "s_endpgm")
    if fused: a.lines += fused["ypub"] + fused.get("fa", []) + fused.get("fb", [])
    if fused:
        a.label("f_cp")
        if PRC >= 0: I(a, f"s_setprio {PRC}")
        st(1)
        common()
    else:
        a.label("p2_compute")
    compute_setup16(a, g)
    def xs_srds():
        I(a, "s_mov_b32 s6, s4"); I(a, "s_mov_b32 s7, s5"); add64(a, 6, XS_OFF); srd(a, 56, 6, 256*16384)
        I(a, "s_mov_b32 s6, s4"); I(a, "s_mov_b32 s7, s5"); add64(a, 6, FLAG_OFF); srd(a, 8, 6, 1024*128)
    def stg_addrs():
        I(a, f"s_lshl_b32 s66, s{S_WAVE}, 12")
        I(a, "v_and_b32 v18, 15, v1"); I(a, "v_lshlrev_b32 v19, 7, v18"); I(a, f"v_add_u32 v19, s66, v19")
        I(a, "v_bfe_u32 v24, v1, 4, 1"); I(a, "v_lshl_add_u32 v19, v24, 3, v19")
        I(a, "v_and_b32 v18, 7, v18"); I(a, "v_lshrrev_b32 v24, 5, v1")
        for nb in range(4):
            I(a, f"v_add_u32 v25, {2*nb}, v24"); I(a, "v_xor_b32 v25, v25, v18"); I(a, f"v_lshl_add_u32 v{20+nb}, v25, 4, v19")
    if fused:
        for nb in range(4):
            for mb in range(4):
                for r in range(4): I(a, f"v_mov_b32 v{acc16(g,nb,mb)+r}, 0")
        stg_addrs()
        I(a, "s_waitcnt lgkmcnt(0)")
        srd(a, 84 if not stamps else 88, 62, 256)
        NS_ = 84 if not stamps else 88
        I(a, "v_mov_b32 v27, 0"); I(a, f"buffer_load_dword v26, v27, s[{NS_}:{NS_+3}], 0 offen")
        xs_srds()
        I(a, "s_mov_b32 s6, s4"); I(a, "s_mov_b32 s7, s5"); add64(a, 6, HF_OFF)
        I(a, f"s_mov_b32 s60, s6"); I(a, "s_and_b32 s61, s7, 0xffff"); I(a, "s_mov_b32 s62, 131072"); I(a, "s_mov_b32 s63, 0x00020000")
        I(a, "v_mov_b32 v25, 0x7ffffff0")
        if LOCF:
            I(a, "s_lshr_b32 s64, s28, 1"); I(a, "s_and_b32 s65, s2, 3"); I(a, "s_lshl_b32 s66, s64, 2"); I(a, "s_add_u32 s66, s66, s65"); I(a, "s_lshl_b32 s66, s66, 7"); I(a, "s_add_u32 s66, s66, 8192")
            I(a, "s_lshl_b32 s64, s64, 9"); I(a, "s_mul_i32 s65, s65, 112"); I(a, "s_add_u32 s64, s64, s65")
            I(a, "v_lshlrev_b32 v28, 2, v1"); I(a, "v_add_u32 v30, s64, v28"); I(a, "v_add_u32 v29, s66, v28")
            I(a, "v_cmp_gt_u32 vcc, 28, v1"); I(a, "s_nop 1"); I(a, "v_cndmask_b32 v30, v25, v30, vcc"); I(a, "v_cndmask_b32 v29, v25, v29, vcc")
        else:
            I(a, "s_lshr_b32 s64, s28, 1"); I(a, "s_lshl_b32 s64, s64, 9"); I(a, "s_mul_i32 s65, s67, 224"); I(a, "s_add_u32 s64, s64, s65")
            I(a, "v_lshlrev_b32 v30, 2, v1"); I(a, "v_add_u32 v30, s64, v30"); I(a, "v_cmp_gt_u32 vcc, 56, v1"); I(a, "s_nop 1"); I(a, "v_cndmask_b32 v30, v25, v30, vcc")
        st(2)
        if AFAST:
            lab_np = a.newlabel("ap"); I(a, "s_cmp_ge_u32 s2, 224"); I(a, f"s_cbranch_scc1 {lab_np}")
            I(a, "s_barrier")
            a.label(lab_np)
        elif not MERGE: I(a, "s_barrier")
        I(a, "s_waitcnt vmcnt(0)")
        lp = a.newlabel("np"); lx = a.newlabel("npx")
        I(a, "s_mov_b32 s69, 0x8000")
        a.label(lp)
        I(a, "v_readfirstlane_b32 s68, v26")
        I(a, "s_sub_u32 s69, s69, 1"); I(a, f"s_cbranch_scc1 {lx}")
        I(a, "s_cmp_lg_u32 s68, 0"); I(a, f"s_cbranch_scc1 {lx}")
        I(a, f"buffer_load_dword v26, v27, s[{NS_}:{NS_+3}], 0 offen sc1"); I(a, "s_waitcnt vmcnt(0)")
        I(a, f"s_branch {lp}")
        a.label(lx)
        labl = a.newlabel("hl"); labq = a.newlabel("hq")
        I(a, f"s_cmp_eq_u32 s{S_WAVE}, 0"); I(a, f"s_cbranch_scc0 {labq}")
        I(a, "s_mov_b32 s69, 0x8000")
        if LOCF:
            I(a, "s_getreg_b32 s65, hwreg(HW_REG_XCC_ID)"); I(a, "s_add_u32 s65, s65, 1"); I(a, "s_lshl_b32 s65, s65, 1"); I(a, "s_add_u32 s65, s65, s68")
            a.label(labl)
            for z in range(LOCN):
                I(a, f"buffer_load_dword v31, v29, s[60:63], 0 offen sc0"); I(a, "s_waitcnt vmcnt(0)")
                I(a, "v_cmp_ne_u32 vcc, s65, v31"); I(a, "s_nop 4")
                I(a, "s_and_b32 s64, vcc_lo, 0xfffffff"); I(a, f"s_cbranch_scc0 {labq}")
                I(a, "s_sleep 1")
            I(a, f"buffer_load_dword v31, v30, s[60:63], 0 offen sc1"); I(a, "s_waitcnt vmcnt(0)")
            I(a, "v_cmp_ne_u32 vcc, s68, v31"); I(a, "s_nop 4")
            I(a, "s_and_b32 s64, vcc_lo, 0xfffffff"); I(a, f"s_cbranch_scc0 {labq}")
            I(a, "s_sub_u32 s69, s69, 1"); I(a, f"s_cbranch_scc1 {labq}")
            I(a, f"s_branch {labl}")
        else:
            a.label(labl)
            I(a, f"buffer_load_dword v31, v30, s[60:63], 0 offen sc1"); I(a, "s_waitcnt vmcnt(0)")
            I(a, "v_cmp_ne_u32 vcc, s68, v31"); I(a, "s_nop 4")
            I(a, "s_and_b32 s64, vcc_hi, 0xffffff"); I(a, "s_or_b32 s64, s64, vcc_lo"); I(a, f"s_cbranch_scc0 {labq}")
            I(a, "s_sub_u32 s69, s69, 1"); I(a, f"s_cbranch_scc1 {labq}")
            if HSLEEP: I(a, f"s_sleep {HSLEEP}")
            I(a, f"s_branch {labl}")
        a.label(labq)
        I(a, "s_barrier")
        st(3)
    else:
        for nb in range(4):
            for mb in (2, 3):
                for r in range(4): I(a, f"v_mov_b32 v{acc16(g,nb,mb)+r}, 0")
        I(a, "s_waitcnt lgkmcnt(0)")
        if not fused: st(1)
        if fused:
            srd(a, 84 if not stamps else 88, 62, 256)
            NS_ = 84 if not stamps else 88
            I(a, "v_mov_b32 v27, 0"); I(a, f"buffer_load_dword v26, v27, s[{NS_}:{NS_+3}], 0 offen")
        srd(a, 32, 20, 2048)
        I(a, "v_lshrrev_b32 v8, 4, v1"); I(a, "v_lshlrev_b32 v8, 3, v8")
        for nb in range(4):
            I(a, f"buffer_load_dwordx2 v[{10+2*nb}:{10+2*nb+1}], v8, s[32:35], s31 offen offset:{nb*32}")
        I(a, "s_mov_b32 s6, s4"); I(a, "s_mov_b32 s7, s5"); add64(a, 6, XS_OFF); srd(a, 56, 6, 256*16384)
        I(a, "s_mov_b32 s6, s4"); I(a, "s_mov_b32 s7, s5"); add64(a, 6, FLAG_OFF); srd(a, 8, 6, 1024*128)
        I(a, f"s_lshl_b32 s66, s{S_WAVE}, 12")
        I(a, "v_and_b32 v18, 15, v1"); I(a, "v_lshlrev_b32 v19, 7, v18"); I(a, f"v_add_u32 v19, s66, v19")
        I(a, "v_bfe_u32 v24, v1, 4, 1"); I(a, "v_lshl_add_u32 v19, v24, 3, v19")
        I(a, "v_and_b32 v18, 7, v18"); I(a, "v_lshrrev_b32 v24, 5, v1")
        for nb in range(4):
            I(a, f"v_add_u32 v25, {2*nb}, v24"); I(a, "v_xor_b32 v25, v25, v18"); I(a, f"v_lshl_add_u32 v{20+nb}, v25, 4, v19")
        I(a, "s_waitcnt vmcnt(0)")
        if fused:
            lp = a.newlabel("np"); lx = a.newlabel("npx")
            I(a, "s_mov_b32 s69, 0x8000")
            a.label(lp)
            I(a, "v_readfirstlane_b32 s68, v26")
            I(a, "s_sub_u32 s69, s69, 1"); I(a, f"s_cbranch_scc1 {lx}")
            I(a, "s_cmp_lg_u32 s68, 0"); I(a, f"s_cbranch_scc1 {lx}")
            I(a, f"buffer_load_dword v26, v27, s[{NS_}:{NS_+3}], 0 offen sc1"); I(a, "s_waitcnt vmcnt(0)")
            I(a, f"s_branch {lp}")
            a.label(lx)
        for nb in range(4):
            for j in range(4):
                src = 10 + 2*nb + j//2
                for mb in (0, 1):
                    d = acc16(g, nb, mb) + j
                    if j % 2 == 0: I(a, f"v_lshlrev_b32 v{d}, 16, v{src}")
                    else: I(a, f"v_and_b32 v{d}, 0xffff0000, v{src}")
        if fused:
            st(2)
            I(a, "s_barrier")
            I(a, "s_barrier")
            st(3)
    compute_loop16(a, g, stamp=(None if fused else f"s_memtime s[78:79]") if stamps else None)
    st(5)
    I(a, "s_nop 7"); I(a, "s_nop 7")
    I(a, "v_lshlrev_b32 v8, 4, v1")
    I(a, f"s_xor_b32 s61, s2, {PX}")
    I(a, f"s_lshl_b32 s60, s61, 14"); I(a, f"s_lshl_b32 s62, s{S_WAVE}, 12"); I(a, "s_add_u32 s60, s60, s62")
    for nb in range(4):
        t = 32 + nb*4
        for z, mb in enumerate((2, 3)):
            c = acc16(g, nb, mb)
            I(a, f"v_cvt_pk_bf16_f32 v{t+2*z}, v{c}, v{c+1}"); I(a, f"v_cvt_pk_bf16_f32 v{t+2*z+1}, v{c+2}, v{c+3}")
        I(a, f"buffer_store_dwordx4 v[{t}:{t+3}], v8, s[56:59], s60 offen offset:{nb*1024} sc1")
    if not fused: st(2)
    I(a, "s_waitcnt vmcnt(0)")
    if not fused: st(3)
    if WFLAG:
        I(a, f"s_lshl_b32 s62, s2, 2"); I(a, f"s_add_u32 s62, s62, s{S_WAVE}"); I(a, "s_lshl_b32 s62, s62, 7"); I(a, "v_mov_b32 v12, s62"); I(a, "v_mov_b32 v13, 1")
        I(a, f"buffer_store_dword v13, v12, s[8:11], 0 offen sc1")
        I(a, f"s_lshl_b32 s62, s61, 2"); I(a, f"s_add_u32 s62, s62, s{S_WAVE}"); I(a, "s_lshl_b32 s62, s62, 7"); I(a, "v_mov_b32 v12, s62")
        I(a, "s_mov_b32 s69, 0x20000")
        a.label("p2_poll")
        I(a, f"buffer_load_dword v13, v12, s[8:11], 0 offen sc1")
        I(a, "s_waitcnt vmcnt(0)")
        I(a, "v_readfirstlane_b32 s62, v13")
        I(a, "s_sub_u32 s69, s69, 1"); I(a, "s_cbranch_scc1 p2_waitb")
        I(a, "s_cmp_eq_u32 s62, 1"); I(a, "s_cbranch_scc0 p2_poll")
        a.label("p2_waitb")
    else:
        I(a, "s_barrier")
        I(a, f"s_cmp_eq_u32 s{S_WAVE}, 0"); I(a, "s_cbranch_scc0 p2_waitb")
        I(a, "s_lshl_b32 s62, s2, 7"); I(a, "v_mov_b32 v12, s62"); I(a, "v_mov_b32 v13, s68" if fused else "v_mov_b32 v13, 1")
        I(a, f"buffer_store_dword v13, v12, s[8:11], 0 offen sc1")
        I(a, "s_lshl_b32 s62, s61, 7"); I(a, "v_mov_b32 v12, s62")
        I(a, "s_mov_b32 s69, 0x20000")
        a.label("p2_poll")
        I(a, f"buffer_load_dword v13, v12, s[8:11], 0 offen sc1")
        I(a, "s_waitcnt vmcnt(0)")
        I(a, "v_readfirstlane_b32 s62, v13")
        I(a, "s_sub_u32 s69, s69, 1"); I(a, "s_cbranch_scc1 p2_waitb")
        I(a, "s_cmp_eq_u32 s62, s68" if fused else "s_cmp_eq_u32 s62, 1"); I(a, "s_cbranch_scc0 p2_poll")
        a.label("p2_waitb")
        I(a, "s_barrier")
    st(6)
    I(a, f"s_lshl_b32 s60, s2, 14"); I(a, f"s_lshl_b32 s62, s{S_WAVE}, 12"); I(a, "s_add_u32 s60, s60, s62")
    for nb in range(4):
        t = 32 + nb*4
        I(a, f"buffer_load_dwordx4 v[{t}:{t+3}], v8, s[56:59], s60 offen offset:{nb*1024} sc1")
    for nb in range(4):
        t = 32 + nb*4
        I(a, f"s_waitcnt vmcnt({3-nb})")
        for z, mb in enumerate((0, 1)):
            c = acc16(g, nb, mb)
            for hh in range(2):
                I(a, f"v_lshlrev_b32 v10, 16, v{t+2*z+hh}"); I(a, f"v_and_b32 v11, 0xffff0000, v{t+2*z+hh}")
                I(a, f"v_pk_add_f32 v[{c+2*hh}:{c+2*hh+1}], v[{c+2*hh}:{c+2*hh+1}], v[10:11]")
            tt = 48 + (nb*2+z)*2
            I(a, f"v_cvt_pk_bf16_f32 v{tt}, v{c}, v{c+1}"); I(a, f"v_cvt_pk_bf16_f32 v{tt+1}, v{c+2}, v{c+3}")
            I(a, f"ds_write_b64 v{20+nb}, v[{tt}:{tt+1}] offset:{mb*2048}")
    I(a, "s_waitcnt lgkmcnt(0)")
    I(a, "s_barrier")
    st(7); st.dump(8, 0)
    a.label("p2_end")
    I(a, "s_endpgm")
    return g
```

```python
from asmgen import *
from gemm2 import S_WAVE, S_TMP, S_TMP2, S_DELTA, S_CNT, S_LEFT, S_STG, S_QOFF, S_POFF, S_MQ, S_MP, S_DN, S_DP, interleave
from p1v2 import load_ptr
from p2 import add64, Y_OFF, YP, YARR
from k0 import XF_OFF, XFP, XFARR
import os
AEXP = int(os.environ.get("AEXP", "0"))
ROT = int(os.environ.get("AROT", "0"))
MDPF = os.environ.get("MDPF", "h1")
MDH1 = os.environ.get("MDH1", "reg")
PFDELAY = int(os.environ.get("PFDELAY", "0"))
MSPF = int(os.environ.get("MSPF", "1"))
MSR = int(os.environ.get("MSR", "1"))
ASTG = int(os.environ.get("ASTG", "0"))
PDBG = int(os.environ.get("PDBG", "0"))
MDLOOP = int(os.environ.get("MDLOOP", "0"))
WARM = int(os.environ.get("WARM", "1"))
PADEV = int(os.environ.get("PADEV", "41"))
MDPRE = int(os.environ.get("MDPRE", "1"))
NWX = int(os.environ.get("NWX", "2"))
NCH = int(os.environ.get("NCH", "6"))
NODOT = int(os.environ.get("NODOT", "1"))
B0T = int(os.environ.get("B0T", "0"))
YDEF = int(os.environ.get("YDEF", "0"))
APRIO = int(os.environ.get("APRIO", "0"))
YEARLY = int(os.environ.get("YEARLY", "1"))
NPOLL = int(os.environ.get("NPOLL", "1"))
PSLEEP = int(os.environ.get("PSLEEP", "0"))
PSLEEP0 = int(os.environ.get("PSLEEP0", "0"))
EARLYINV = int(os.environ.get("EARLYINV", "1"))
FOLDF_OFF = 34 << 20
QSRD = 8; PSRD = 12; MSRD = 16; YSRD = 20
STG = 53248; QB = 16384
RSZ = 16384
SMALL = 8*RSZ
CV = 153600
CX = CV + 1024
ACC_A = 112; ACC_B = 128
FA = 16
TB = 16

def a_regs(s):
    b = FA + 40*s
    return [b + 4*i for i in range(9)], b + 36
def a_reads(s, kk):
    A, B = a_regs(s)
    out = [f"ds_read_b128 v[{B}:{B+3}], v{3+kk}"]
    for nb in range(9):
        if AEXP == 1 and nb % 2 == 1: continue
        for h in range(2):
            out.append(f"ds_read_b64_tr_b16 v[{A[nb]+2*h}:{A[nb]+2*h+1}], v2 offset:{(16*kk+4*h)*XFP + nb*64}")
    return out
def a_mfmas(s):
    A, B = a_regs(s)
    return [f"v_mfma_f32_32x32x16_bf16 v[{ACC_A+16*nb}:{ACC_A+16*nb+15}], v[{A[nb]}:{A[nb]+3}], v[{B}:{B+3}], v[{ACC_A+16*nb}:{ACC_A+16*nb+15}]" for nb in range(9)]

BF = [[84, 88, 92, 96], [100, 104, 108, 112], [116, 120, 124, 12]]

def sidx_to(a, j, dst):
    if j >= 8: I(a, f"s_mov_b32 s{dst}, 8")
    elif ROT: I(a, f"s_add_u32 s{dst}, s67, {j}"); I(a, f"s_and_b32 s{dst}, s{dst}, 7")
    else: I(a, f"s_mov_b32 s{dst}, {j}")
def a_issue_q(a, s_stg, j):
    sidx_to(a, j, 59); I(a, "s_lshl_b32 s59, s59, 7"); I(a, f"s_add_u32 s59, s59, s{S_QOFF}")
    I(a, f"s_add_u32 m0, s{s_stg}, s{S_MQ}"); I(a, "s_nop 0")
    for i in range(4):
        I(a, f"buffer_load_dwordx4 v{2+i}, s[{QSRD}:{QSRD+3}], s59 offen offset:{i*1024} lds")
def a_issue_p(a, j):
    sidx_to(a, j, 59); I(a, f"s_mul_i32 s{S_TMP}, s59, {64*XFP}"); I(a, f"s_add_u32 s{S_TMP}, s{S_TMP}, s{S_POFF}")
    I(a, f"s_add_u32 m0, s{S_STG}, s{S_MP}"); I(a, "s_nop 0")
    vv = 7 if j >= 8 else 6
    for i in range(9):
        if i and i % 4 == 0:
            I(a, "s_add_u32 m0, m0, 4096"); I(a, f"s_add_u32 s{S_TMP}, s{S_TMP}, 4096"); I(a, "s_nop 0")
        I(a, f"buffer_load_dwordx4 v{vv}, s[{PSRD}:{PSRD+3}], s{S_TMP} offen offset:{(i%4)*1024} lds")
    I(a, f"s_add_u32 s{S_STG}, s{S_STG}, {STG}")
    I(a, f"s_cmp_ge_u32 s{S_STG}, {3*STG}")
    I(a, f"s_cselect_b32 s{S_STG}, 0, s{S_STG}")
def a_stage_issue(a, j):
    a_issue_q(a, S_STG, j); a_issue_p(a, j)

MR = 112
def m_load(a, h, s):
    I(a, f"s_add_u32 s56, s54, {h*128*4096 + s*128}")
    for i in range(4):
        r = MR + ((h*4+s)*4 + i)*4
        I(a, f"buffer_load_dwordx4 v[{r}:{r+3}], v{96+i}, s[{MSRD}:{MSRD+3}], s56 offen offset:{i*1024}")
def m_load_small(a, h):
    I(a, f"s_add_u32 s56, s54, {h*128*4096 + 512}")
    r = MR + 128 + 4*h
    I(a, f"buffer_load_dwordx4 v[{r}:{r+3}], v100, s[{MSRD}:{MSRD+3}], s56 offen")
def m_write(a, h, s):
    slot = h*4 + s
    for i in range(4):
        r = MR + (slot*4 + i)*4
        I(a, f"ds_write_b128 v{8 + slot//4}, v[{r}:{r+3}] offset:{(slot%4)*RSZ + i*1024}")
def m_write_small(a, h):
    r = MR + 128 + 4*h
    I(a, f"ds_write_b128 v10, v[{r}:{r+3}] offset:{h*4096}")

CX2 = CX + 1024
def side_a(a, stage_off_s, tail=False):
    accs = [24, 16, 17, 18]
    R = 32
    end = a.newlabel("sae")
    if tail:
        I(a, f"s_cmp_eq_u32 s{S_WAVE}, 0"); I(a, f"s_cbranch_scc0 {end}")
    I(a, f"v_add_u32 v21, s{stage_off_s}, v20")
    for q in range(4):
        I(a, f"ds_read_b64_tr_b16 v[{R+4+2*q}:{R+4+2*q+1}], v21 offset:{q*4*XFP}")
    lab = a.newlabel("sz")
    I(a, "s_cmp_eq_u32 s61, 0"); I(a, f"s_cbranch_scc0 {lab}")
    I(a, f"v_add_u32 v19, s{stage_off_s}, v23")
    for z in range(2):
        I(a, f"ds_read_b64_tr_b16 v[{R+2*z}:{R+2*z+1}], v19 offset:{z*2*4*XFP}")
    I(a, "s_waitcnt lgkmcnt(0)")
    for z in range(2):
        I(a, f"v_dot2_f32_bf16 v25, v{R+2*z}, v22, v25"); I(a, f"v_dot2_f32_bf16 v12, v{R+2*z+1}, v22, v12")
    a.label(lab)
    I(a, "s_waitcnt lgkmcnt(0)")
    for q in range(4):
        I(a, f"v_dot2_f32_bf16 v{accs[(2*q) % 4]}, v{R+4+2*q}, v22, v{accs[(2*q) % 4]}")
        I(a, f"v_dot2_f32_bf16 v{accs[(2*q+1) % 4]}, v{R+4+2*q+1}, v22, v{accs[(2*q+1) % 4]}")
    a.label(end)

def m_issue(a, h, s):
    I(a, f"s_add_u32 m0, s55, {(h*4+s)*RSZ}")
    I(a, f"s_add_u32 s56, s54, {h*128*4096 + s*128}")
    for i in range(4):
        I(a, f"buffer_load_dwordx4 v{96+i}, s[{MSRD}:{MSRD+3}], s56 offen offset:{i*1024} lds")
def m_issue_small(a, h):
    I(a, f"s_lshl_b32 s56, s{S_WAVE}, 10"); I(a, f"s_add_u32 m0, s56, {SMALL + h*4096}")
    I(a, f"s_add_u32 s56, s54, {h*128*4096 + 512}")
    I(a, f"buffer_load_dwordx4 v100, s[{MSRD}:{MSRD+3}], s56 offen lds")

CR = 176
def side_b_setup(a):
    I(a, f"s_mul_i32 s56, s61, {RSZ}")
    for z in range(4):
        I(a, f"v_lshl_add_u32 v31, v13, 2, {z}")
        I(a, f"v_xor_b32 v11, v31, v27"); I(a, f"v_lshl_add_u32 v{32+z}, v11, 4, v26"); I(a, f"v_add_u32 v{32+z}, s56, v{32+z}"); I(a, f"v_add_u32 v{36+z}, 65536, v{32+z}")
        I(a, f"v_lshl_add_u32 v{40+z}, v31, 4, v30")
    I(a, "v_lshrrev_b32 v44, 2, v26"); I(a, "v_lshl_add_u32 v44, v13, 4, v44"); I(a, f"v_add_u32 v44, {SMALL}, v44")
    I(a, f"v_lshl_add_u32 v45, v13, 4, v30")
    for z in range(4):
        I(a, f"ds_read_b128 v[{CR+4*z}:{CR+4*z+3}], v{40+z}")
    I(a, f"ds_read_b128 v[{CR+16}:{CR+19}], v45 offset:512")
    I(a, "s_waitcnt lgkmcnt(0)")
def side_b_h(a, h):
    accs = (28, 14) if h == 0 else (29, 15)
    R = 112
    base = 32 + 4*h
    for z in range(4):
        I(a, f"ds_read_b128 v[{R+4*z}:{R+4*z+3}], v{base+z}")
    I(a, f"ds_read_b128 v[48:51], v44 offset:{h*4096}")
    for z in range(4):
        I(a, f"s_waitcnt lgkmcnt({4-z})")
        for q in range(4): I(a, f"v_dot2_f32_bf16 v{accs[q % 2]}, v{R+4*z+q}, v{CR+4*z+q}, v{accs[q % 2]}")
    lab = a.newlabel("sb")
    I(a, "s_waitcnt lgkmcnt(0)")
    I(a, "s_cmp_eq_u32 s61, 0"); I(a, f"s_cbranch_scc0 {lab}")
    for q in range(4): I(a, f"v_dot2_f32_bf16 v{accs[q % 2]}, v{48+q}, v{CR+16+q}, v{accs[q % 2]}")
    a.label(lab)

def y_store_setup(a):
    I(a, "s_mov_b32 s6, s4"); I(a, "s_mov_b32 s7, s5"); add64(a, 6, Y_OFF); srd(a, YSRD, 6, 4*YARR)
    I(a, "s_lshl_b32 s56, s62, 1"); I(a, "s_add_u32 s56, s56, s64"); I(a, f"s_mul_i32 s56, s56, {YARR}")
    I(a, f"s_lshl_b32 s57, s{S_WAVE}, 14")
    I(a, "v_lshrrev_b32 v44, 5, v1"); I(a, "v_and_b32 v45, 31, v1")
    I(a, "s_lshl_b32 s58, s61, 8"); I(a, "s_add_u32 s58, s58, s63"); I(a, f"s_lshl_b32 s59, s{S_WAVE}, 6"); I(a, "s_add_u32 s58, s58, s59")
    I(a, "v_lshl_add_u32 v46, v44, 1, s58"); I(a, f"v_mul_u32_u24 v46, {YP}, v46"); I(a, "v_lshl_add_u32 v46, v45, 4, v46")
    for z in range(4):
        I(a, f"v_add_u32 v47, {2*z}, v44"); I(a, "v_xor_b32 v56, v45, v47")
        I(a, "v_lshlrev_b32 v47, 9, v47"); I(a, "v_lshl_add_u32 v47, v56, 4, v47"); I(a, f"v_add_u32 v{104+z}, s57, v47")

def y_store(a, i0, ysc):
    for i in range(i0, i0+8):
        r = 64 + (i - i0)*4
        I(a, f"ds_read_b128 v[{r}:{r+3}], v{104 + (i % 4)} offset:{(i // 4)*4096}")
    for z in range(8):
        ii = i0 + z; rr = 64 + z*4
        I(a, f"s_waitcnt lgkmcnt({7-z})")
        I(a, f"s_add_u32 s59, s56, {ii*4*YP}")
        I(a, f"buffer_store_dwordx4 v[{rr}:{rr+3}], v46, s[{YSRD}:{YSRD+3}], s59 offen {ysc}")

def y_half_setup(a):
    I(a, "v_lshrrev_b32 v44, 4, v1"); I(a, "v_and_b32 v45, 15, v1")
    I(a, "v_lshl_add_u32 v48, v44, 1, s58"); I(a, f"v_mul_u32_u24 v48, {YP}, v48"); I(a, "v_lshl_add_u32 v48, v45, 4, v48")
    I(a, "v_and_b32 v47, 7, v45"); I(a, "v_and_b32 v51, 8, v45")
    for z in range(2):
        I(a, f"v_add_u32 v52, {4*z}, v44")
        I(a, "v_xor_b32 v53, v47, v52"); I(a, "v_or_b32 v53, v51, v53")
        I(a, "v_lshlrev_b32 v52, 9, v52"); I(a, "v_lshl_add_u32 v52, v53, 4, v52"); I(a, f"v_add_u32 v{49+z}, s57, v52")
def y_half(a, h, ysc):
    for i in range(8):
        r = 64 + i*4
        I(a, f"ds_read_b128 v[{r}:{r+3}], v{49 + (i % 2)} offset:{(i // 2)*4096 + h*256}")
    for i in range(8):
        r = 64 + i*4
        I(a, f"s_waitcnt lgkmcnt({7-i})")
        I(a, f"s_add_u32 s59, s56, {i*8*YP + h*256}")
        I(a, f"buffer_store_dwordx4 v[{r}:{r+3}], v48, s[{YSRD}:{YSRD+3}], s59 offen {ysc}")

def a_wg(a, stamps=None, pref="aw", pre_compute=None, pre_loader=None, ysc="", fused=None):
    st = stamps or (lambda i: None)
    stl = st
    if ASTG:
        stl = (lambda i: None)
    load_ptr(a, 24, 8, 4); load_ptr(a, 28, 24, 4); load_ptr(a, 4, 104); load_ptr(a, 36, 96)
    I(a, "s_and_b32 s60, s2, 7")
    I(a, "s_sub_u32 s61, s2, 224"); I(a, "s_lshr_b32 s61, s61, 3")
    I(a, "s_lshr_b32 s62, s60, 2"); I(a, "s_bfe_u32 s63, s60, 0x10001"); I(a, "s_and_b32 s64, s60, 1")
    I(a, "s_lshr_b32 s65, s60, 1"); I(a, "s_cmp_eq_u32 s65, 0"); I(a, "s_cselect_b32 s65, 1, 0")
    I(a, f"s_cmp_ge_u32 s{S_WAVE}, 4"); I(a, f"s_cbranch_scc0 {pref}_compute")
    I(a, f"s_sub_u32 s{S_WAVE}, s{S_WAVE}, 4")
    I(a, "v_lshrrev_b32 v40, 3, v1"); I(a, "v_lshrrev_b32 v41, 4, v1"); I(a, "v_and_b32 v42, 7, v1")
    I(a, f"s_mul_i32 s{S_TMP}, s{S_WAVE}, {32*8192}")
    I(a, "v_mul_u32_u24 v43, 8192, v40"); I(a, "v_xor_b32 v42, v42, v41"); I(a, f"v_add_u32 v43, s{S_TMP}, v43"); I(a, "v_lshl_add_u32 v43, v42, 4, v43"); I(a, "v_xor_b32 v44, 64, v43")
    for i in range(4):
        I(a, f"v_add_u32 v{2+i}, {i*8*8192 - i*1024}, v{44 if i & 1 else 43}")
    I(a, "v_lshlrev_b32 v6, 4, v1")
    I(a, f"s_cmp_eq_u32 s{S_WAVE}, 0"); I(a, f"s_cselect_b32 s{S_TMP}, 0, 0x7fff0000"); I(a, f"v_add_u32 v7, s{S_TMP}, v6")
    I(a, "s_lshl_b32 s67, s61, 1")
    I(a, f"s_mul_i32 s{S_TMP}, s{S_WAVE}, {32*4096}")
    I(a, "v_mul_u32_u24 v43, 4096, v40"); I(a, f"v_add_u32 v43, s{S_TMP}, v43"); I(a, "v_lshl_add_u32 v43, v42, 4, v43"); I(a, "v_xor_b32 v44, 64, v43")
    for i in range(4):
        I(a, f"v_add_u32 v{96+i}, {i*8*4096 - i*1024}, v{44 if i & 1 else 43}")
    I(a, "v_lshrrev_b32 v43, 1, v1"); I(a, "v_lshlrev_b32 v43, 12, v43"); I(a, f"v_add_u32 v43, s{S_TMP}, v43"); I(a, "v_and_b32 v44, 1, v1"); I(a, "v_lshl_add_u32 v100, v44, 4, v43")
    I(a, f"s_mul_i32 s{S_MQ}, s{S_WAVE}, 4096")
    I(a, f"s_mul_i32 s{S_MP}, s{S_WAVE}, 9216"); I(a, f"s_add_u32 s{S_MP}, s{S_MP}, {QB}")
    I(a, f"s_mul_i32 s55, s{S_WAVE}, 4096")
    I(a, f"s_mov_b32 s{S_STG}, 0")
    I(a, "s_lshl_b32 s56, s61, 8"); I(a, "s_add_u32 s56, s56, s63"); I(a, f"s_lshl_b32 s{S_QOFF}, s56, 12")
    I(a, f"s_mul_i32 s{S_POFF}, s60, {XFARR}"); I(a, f"s_mul_i32 s56, s{S_WAVE}, 9216"); I(a, f"s_add_u32 s{S_POFF}, s{S_POFF}, s56")
    I(a, "s_lshl_b32 s54, s64, 11")
    I(a, "v_bfe_u32 v40, v1, 2, 2"); I(a, f"v_mul_u32_u24 v40, {XFP}, v40")
    I(a, "v_and_b32 v41, 3, v1"); I(a, "v_lshl_add_u32 v40, v41, 3, v40"); I(a, f"v_add_u32 v40, {QB}, v40")
    I(a, "v_lshrrev_b32 v41, 4, v1")
    I(a, f"s_mul_i32 s56, s{S_WAVE}, {16*XFP}"); I(a, "s_lshl_b32 s57, s61, 7"); I(a, "s_add_u32 s56, s56, s57"); I(a, "v_lshl_add_u32 v20, v41, 5, v40"); I(a, "v_add_u32 v20, s56, v20")
    I(a, "v_and_b32 v41, 1, v41"); I(a, "v_lshl_add_u32 v23, v41, 5, v40"); I(a, "v_add_u32 v23, 512, v23")
    I(a, "v_lshrrev_b32 v41, 5, v1"); I(a, f"s_lshl_b32 s56, s{S_WAVE}, 2"); I(a, "v_add_u32 v41, s56, v41"); I(a, f"v_mul_u32_u24 v41, {4*XFP}, v41"); I(a, "v_add_u32 v23, v23, v41")
    I(a, "v_mov_b32 v22, 0xbf803f80")
    for r in (24, 16, 17, 18, 25, 12, 28, 14, 29, 15, 70, 71, 72, 73, 74, 75): I(a, f"v_mov_b32 v{r}, 0")
    I(a, f"s_lshl_b32 s56, s{S_WAVE}, 5"); I(a, "v_and_b32 v26, 31, v1"); I(a, "v_add_u32 v26, s56, v26"); I(a, "v_bfe_u32 v27, v26, 1, 3"); I(a, "v_lshlrev_b32 v26, 7, v26")
    I(a, "v_lshrrev_b32 v13, 5, v1"); I(a, f"v_mov_b32 v30, {CV}")
    I(a, "s_waitcnt lgkmcnt(0)")
    stl(1)
    I(a, "s_cmp_eq_u32 s62, 1")
    I(a, "s_cselect_b32 s24, s26, s24"); I(a, "s_cselect_b32 s25, s27, s25"); I(a, "s_cselect_b32 s28, s30, s28"); I(a, "s_cselect_b32 s29, s31, s29")
    srd(a, QSRD, 24, 2048*2048*2); srd(a, MSRD, 28, 1024*1024*2)
    I(a, "s_mov_b32 s6, s4"); I(a, "s_mov_b32 s7, s5"); add64(a, 6, XF_OFF); srd(a, PSRD, 6, 8*XFARR)
    lab = a.newlabel("ni")
    I(a, f"s_cmp_eq_u32 s{S_WAVE}, 0"); I(a, f"s_cbranch_scc0 {lab}")
    I(a, "buffer_inv sc1"); I(a, "s_waitcnt vmcnt(0)")
    a.label(lab)
    for s_ in range(3):
        I(a, f"s_mov_b32 s58, {s_*STG}"); a_issue_q(a, 58, s_)
    I(a, "v_lshlrev_b32 v8, 4, v1"); I(a, "v_add_u32 v8, s55, v8"); I(a, "v_add_u32 v9, 65536, v8")
    I(a, f"s_lshl_b32 s56, s{S_WAVE}, 10"); I(a, f"s_add_u32 s56, s56, {SMALL}"); I(a, "v_lshlrev_b32 v10, 4, v1"); I(a, "v_add_u32 v10, s56, v10")
    for h_ in range(MDPRE):
        for s_ in range(4): m_load(a, h_, s_)
        m_load_small(a, h_)
    if fused:
        srd(a, 88, 36, 256)
        I(a, "s_mov_b32 s34, 0"); I(a, "s_mov_b32 s35, 1"); I(a, "v_mov_b32 v11, 0")
        I(a, "buffer_load_dword v31, v11, s[88:91], 0 offen sc1")
    stl(3)
    if WARM:
        I(a, "s_mov_b32 s6, s4"); I(a, "s_mov_b32 s7, s5"); add64(a, 6, Y_OFF); srd(a, YSRD, 6, 4*YARR)
        I(a, f"s_lshl_b32 s58, s61, 2"); I(a, f"s_add_u32 s58, s58, s{S_WAVE}")
        lw_idx = len(a.lines)
        a.label(f"{pref}_lwret"); I(a, "s_mov_b64 exec, -1")
    stl(5)
    I(a, "s_barrier")
    lw0 = len(a.lines)
    stl(2)
    if B0T:
        a_issue_p(a, 0)
        I(a, "s_waitcnt vmcnt(0)"); stl(4); I(a, "s_barrier")
        a_issue_p(a, 1)
    else:
        a_issue_p(a, 0); a_issue_p(a, 1)
        I(a, "s_waitcnt vmcnt(9)"); stl(4); I(a, "s_barrier")
    if fused:
        lp = a.newlabel("np"); lx = a.newlabel("npx")
        I(a, "s_mov_b32 s59, 0x8000")
        a.label(lp)
        I(a, "v_readfirstlane_b32 s34, v31")
        I(a, "s_sub_u32 s59, s59, 1"); I(a, f"s_cbranch_scc1 {lx}")
        I(a, "s_cmp_lg_u32 s34, 0"); I(a, f"s_cbranch_scc1 {lx}")
        I(a, "buffer_load_dword v31, v11, s[88:91], 0 offen sc1"); I(a, "s_waitcnt vmcnt(0)")
        I(a, f"s_branch {lp}")
        a.label(lx)
    I(a, f"s_mov_b32 s57, 0")
    def side(nq):
        lab = a.newlabel("ns")
        I(a, "s_cmp_eq_u32 s65, 1"); I(a, f"s_cbranch_scc0 {lab}")
        side_a(a, 57)
        a.label(lab)
        I(a, f"s_add_u32 s57, s57, {STG}"); I(a, f"s_cmp_ge_u32 s57, {3*STG}"); I(a, "s_cselect_b32 s57, 0, s57")
    a_issue_p(a, 2)
    pieces = []
    for h_ in range(MDPRE, 2 if MDH1 == "reg" else 0):
        for s_ in range(4):
            for i_ in range(4): pieces.append((h_, s_, i_))
        pieces.append((h_, -1, 0))
    def m_piece(p):
        h_, s_, i_ = p
        if s_ < 0: m_load_small(a, h_); return
        I(a, f"s_add_u32 s56, s54, {h_*128*4096 + s_*128}")
        r = MR + ((h_*4+s_)*4 + i_)*4
        I(a, f"buffer_load_dwordx4 v[{r}:{r+3}], v{96+i_}, s[{MSRD}:{MSRD+3}], s56 offen offset:{i_*1024}")
    per = -(-len(pieces) // NCH) if pieces else 0
    chunks = [pieces[i*per:(i+1)*per] for i in range(8)]
    for t in range(8):
        side(16)
        if t + 2 <= 8:
            rem = (9 if t == 0 else 13)
            if t >= 2: rem += len(chunks[t-2])
            if t >= 1: rem += len(chunks[t-1])
        else:
            rem = 0
        I(a, f"s_waitcnt vmcnt({rem})")
        if ASTG == 2 and t < 6: st(t+1)
        I(a, "s_barrier")
        if ASTG == 1 and t < 6: st(t+1)
        if t + 3 <= 8: a_stage_issue(a, t + 3)
        for p in chunks[t]: m_piece(p)
    lab = a.newlabel("ns")
    I(a, "s_cmp_eq_u32 s65, 1"); I(a, f"s_cbranch_scc0 {lab}")
    side_a(a, 57, tail=True)
    I(a, "v_add_f32 v24, v24, v16"); I(a, "v_add_f32 v17, v17, v18"); I(a, "v_add_f32 v24, v24, v17"); I(a, "v_add_f32 v25, v25, v12")
    I(a, f"s_lshl_b32 s56, s{S_WAVE}, 8"); I(a, "v_lshlrev_b32 v41, 2, v1"); I(a, "v_add_u32 v41, s56, v41"); I(a, f"v_add_u32 v41, {CX}, v41")
    I(a, f"ds_write_b32 v41, v25"); I(a, f"ds_write_b32 v41, v24 offset:1024")
    a.label(lab)
    dma1 = (MDH1 == "dma" and MDPRE < 2)
    if dma1: m_issue(a, 1, 0); m_issue(a, 1, 1)
    for sl in range(NWX): m_write(a, 0, sl)
    I(a, "s_barrier")
    for sl in range(NWX, 4): m_write(a, 0, sl)
    m_write_small(a, 0)
    if dma1: m_issue(a, 1, 2); m_issue(a, 1, 3); m_issue_small(a, 1)
    I(a, "s_waitcnt lgkmcnt(0)"); I(a, "s_barrier")
    if MDH1 == "reg" or MDPRE == 2:
        for sl in range(4): m_write(a, 1, sl)
        m_write_small(a, 1)
        I(a, "s_waitcnt lgkmcnt(0)")
    lab = a.newlabel("ns")
    I(a, "s_cmp_eq_u32 s65, 1"); I(a, f"s_cbranch_scc0 {lab}")
    I(a, "v_and_b32 v40, 31, v1"); I(a, "v_lshlrev_b32 v41, 2, v40"); I(a, f"v_add_u32 v41, {CX}, v41")
    for z in range(8): I(a, f"ds_read_b32 v{32+z}, v41 offset:{z*128}")
    I(a, "v_lshlrev_b32 v42, 2, v1"); I(a, f"v_add_u32 v42, {CX2}, v42")
    for z in range(4): I(a, f"ds_read_b32 v{52+z}, v42 offset:{z*256}")
    I(a, "s_waitcnt lgkmcnt(0)")
    for z in range(1, 8): I(a, f"v_add_f32 v32, v32, v{32+z}")
    for z in range(1, 4): I(a, f"v_add_f32 v52, v52, v{52+z}")
    I(a, "v_cvt_pk_bf16_f32 v32, v32, v32"); I(a, "v_lshlrev_b32 v41, 1, v40"); I(a, f"v_add_u32 v41, {CV+512}, v41")
    I(a, "v_cvt_pk_bf16_f32 v52, v52, v52"); I(a, "v_lshlrev_b32 v42, 1, v1"); I(a, f"v_add_u32 v42, {CV}, v42")
    I(a, "ds_write_b16 v41, v32"); I(a, "ds_write_b16 v42, v52"); I(a, "s_waitcnt lgkmcnt(0)")
    side_b_setup(a)
    side_b_h(a, 0)
    a.label(lab)
    if dma1: I(a, "s_waitcnt vmcnt(0)")
    I(a, "s_barrier")
    lab = a.newlabel("ns")
    I(a, "s_cmp_eq_u32 s65, 1"); I(a, f"s_cbranch_scc0 {lab}")
    side_b_h(a, 1)
    a.label(lab)
    I(a, "s_barrier")
    lab = a.newlabel("ns")
    I(a, "s_cmp_eq_u32 s65, 1"); I(a, f"s_cbranch_scc0 {lab}")
    I(a, "v_add_f32 v28, v28, v14"); I(a, "v_add_f32 v29, v29, v15")
    I(a, "v_mov_b32 v32, v28"); I(a, "v_mov_b32 v33, v29"); I(a, "s_nop 1")
    I(a, "v_permlane32_swap_b32 v32, v28"); I(a, "v_permlane32_swap_b32 v33, v29"); I(a, "s_nop 1")
    I(a, "v_add_f32 v28, v28, v32"); I(a, "v_add_f32 v29, v29, v33")
    I(a, "s_mov_b32 s6, s4"); I(a, "s_mov_b32 s7, s5"); add64(a, 6, Y_OFF); srd(a, YSRD, 6, 4*YARR)
    I(a, f"s_mul_i32 s56, s64, {YARR}"); I(a, f"s_add_u32 s56, s56, {1024*YP}"); I(a, f"s_mul_i32 s57, s61, {YP}"); I(a, "s_add_u32 s56, s56, s57")
    I(a, "v_cvt_pk_bf16_f32 v31, v28, v28"); I(a, "v_cvt_pk_bf16_f32 v12, v29, v29")
    I(a, f"s_lshl_b32 s57, s{S_WAVE}, 6"); I(a, "v_and_b32 v40, 31, v1"); I(a, "v_lshlrev_b32 v40, 1, v40"); I(a, "v_add_u32 v40, s57, v40")
    I(a, "v_cmp_gt_u32 vcc, 32, v1"); I(a, "v_mov_b32 v42, 0x7ffffff0"); I(a, "s_nop 0"); I(a, "v_cndmask_b32 v40, v42, v40, vcc")
    I(a, f"buffer_store_short v31, v40, s[{YSRD}:{YSRD+3}], s56 offen {ysc}")
    I(a, f"buffer_store_short v12, v40, s[{YSRD}:{YSRD+3}], s56 offen offset:256 {ysc}")
    I(a, "v_mov_b32 v32, 0")
    I(a, f"v_mov_b32 v41, {CV+544}"); I(a, "ds_read_u16 v33, v41"); I(a, "v_mov_b32 v43, 512")
    I(a, "v_cmp_eq_u32 vcc, 0, v1"); I(a, "s_nop 1"); I(a, "v_cndmask_b32 v43, v42, v43, vcc")
    I(a, "s_waitcnt lgkmcnt(0)")
    lab4 = a.newlabel("ns")
    I(a, "s_cmp_eq_u32 s61, 0"); I(a, f"s_cbranch_scc1 {lab4}")
    I(a, "v_mov_b32 v33, 0")
    a.label(lab4)
    lab3 = a.newlabel("ns")
    I(a, f"s_cmp_eq_u32 s{S_WAVE}, 0"); I(a, f"s_cbranch_scc0 {lab3}")
    I(a, f"buffer_store_short v33, v43, s[{YSRD}:{YSRD+3}], s56 offen {ysc}")
    a.label(lab3)
    lab5 = a.newlabel("ns")
    I(a, "s_cmp_eq_u32 s61, 0"); I(a, f"s_cbranch_scc0 {lab5}")
    I(a, f"s_add_u32 s57, s56, {2*YARR}")
    I(a, f"buffer_store_short v32, v40, s[{YSRD}:{YSRD+3}], s57 offen {ysc}")
    I(a, f"buffer_store_short v32, v40, s[{YSRD}:{YSRD+3}], s57 offen offset:256 {ysc}")
    lab6 = a.newlabel("ns")
    I(a, f"s_cmp_eq_u32 s{S_WAVE}, 0"); I(a, f"s_cbranch_scc0 {lab6}")
    I(a, f"buffer_store_short v32, v43, s[{YSRD}:{YSRD+3}], s57 offen {ysc}")
    a.label(lab6)
    a.label(lab5)
    a.label(lab)
    y_store_setup(a)
    if fused and YEARLY:
        y_half_setup(a); y_half(a, 0, ysc)
    I(a, "s_barrier")
    if fused and YEARLY:
        y_half(a, 1, ysc)
    elif fused and YDEF:
        for i in range(16):
            if i == 12: I(a, "s_waitcnt lgkmcnt(4)")
            I(a, f"ds_read_b128 v[{128+4*i}:{128+4*i+3}], v{104 + (i % 4)} offset:{(i // 4)*4096}")
        I(a, "v_mov_b32 v34, v46"); I(a, "s_mov_b32 s33, s56")
        I(a, "s_waitcnt lgkmcnt(0)")
    else:
        if fused: y_store(a, 0, ysc)
        y_store(a, 8, ysc)
    if WARM:
        ents, npad = add_pads(a, lw0, len(a.lines), 16, f"{pref}_l", f"{pref}_lwret", every=PADEV)
        tmp = Asm(); warm_dispatch(tmp, 58, ents, None)
        a.lines[lw_idx:lw_idx] = tmp.lines
    if fused:
        I(a, "s_sub_u32 s58, s2, 224"); I(a, "s_lshl_b32 s58, s58, 2"); I(a, "s_add_u32 s58, s58, 65536")
        I(a, "v_lshlrev_b32 v28, 7, v1"); I(a, "v_add_u32 v28, s58, v28"); I(a, "v_mov_b32 v25, 0x7ffffff0"); I(a, "v_cmp_gt_u32 vcc, 8, v1"); I(a, "s_nop 1"); I(a, "v_cndmask_b32 v28, v25, v28, vcc")
        I(a, "s_branch f_ld")
    else:
        st(7)
        if stamps: stamps.dump(8, 1)
        I(a, "s_endpgm")
    a.label(f"{pref}_compute")
    if APRIO: I(a, f"s_setprio {APRIO}")
    I(a, "v_bfe_u32 v40, v1, 2, 2"); I(a, "v_lshrrev_b32 v41, 5, v1"); I(a, "v_lshl_add_u32 v41, v41, 3, v40")
    I(a, f"v_mul_u32_u24 v41, {XFP}, v41"); I(a, f"v_add_u32 v41, {QB}, v41")
    I(a, "v_bfe_u32 v42, v1, 4, 1"); I(a, "v_lshl_add_u32 v41, v42, 5, v41")
    I(a, "v_and_b32 v42, 3, v1"); I(a, "v_lshl_add_u32 v2, v42, 3, v41")
    I(a, "v_and_b32 v40, 31, v1"); I(a, f"s_lshl_b32 s{S_DELTA}, s{S_WAVE}, 12"); I(a, "v_lshlrev_b32 v43, 7, v40"); I(a, f"v_add_u32 v43, s{S_DELTA}, v43")
    I(a, "v_lshrrev_b32 v41, 5, v1"); I(a, "v_bfe_u32 v42, v1, 1, 3"); I(a, "v_xor_b32 v41, v41, v42")
    for kk in range(4):
        I(a, f"v_xor_b32 v44, {2*kk}, v41"); I(a, f"v_lshl_add_u32 v{3+kk}, v44, 4, v43")
    I(a, "v_lshlrev_b32 v43, 7, v40")
    for kk in range(4):
        I(a, f"v_xor_b32 v44, {2*kk}, v41"); I(a, f"v_lshl_add_u32 v{8+kk}, v44, 4, v43")
    I(a, "v_lshlrev_b32 v43, 5, v40"); I(a, "v_lshrrev_b32 v44, 5, v1"); I(a, "v_lshl_add_u32 v7, v44, 4, v43"); I(a, f"v_add_u32 v7, {SMALL}, v7")
    if pre_compute: pre_compute(a)
    for r in range(144): I(a, f"v_mov_b32 v{ACC_A+r}, 0")
    I(a, f"s_mov_b32 s{S_DN}, {(-2*STG) & 0xffffffff}"); I(a, f"s_mov_b32 s{S_DP}, {STG}")
    I(a, "s_lshl_b32 s56, s61, 8"); I(a, "s_add_u32 s56, s56, s63"); I(a, f"s_lshl_b32 s{S_QOFF}, s56, 12")
    I(a, "s_lshl_b32 s54, s64, 11")
    I(a, "s_mov_b32 s68, 0")
    I(a, "s_waitcnt lgkmcnt(0)")
    st(1)
    I(a, "s_cmp_eq_u32 s62, 1")
    I(a, "s_cselect_b32 s24, s26, s24"); I(a, "s_cselect_b32 s25, s27, s25"); I(a, "s_cselect_b32 s28, s30, s28"); I(a, "s_cselect_b32 s29, s31, s29")
    srd(a, QSRD, 24, 2048*2048*2); srd(a, MSRD, 28, 1024*1024*2)
    srd(a, 88, 36, 256)
    I(a, "s_mov_b32 s6, s4"); I(a, "s_mov_b32 s7, s5"); add64(a, 6, FOLDF_OFF); srd(a, 92, 6, 33*128)
    I(a, "v_lshlrev_b32 v101, 7, v1"); I(a, "v_cmp_gt_u32 vcc, 33, v1"); I(a, "v_mov_b32 v102, 0x7ffffff0"); I(a, "s_nop 0"); I(a, "v_cndmask_b32 v101, v102, v101, vcc")
    I(a, "s_mov_b32 s66, 0"); I(a, "s_mov_b32 s69, 0x10000"); I(a, "s_mov_b64 s[56:57], -1")
    if MDLOOP:
        I(a, "v_mul_u32_u24 v103, 52, v1"); I(a, "v_lshrrev_b32 v103, 8, v103")
        I(a, "v_mul_u32_u24 v104, 5, v103"); I(a, "v_sub_u32 v104, v1, v104")
        I(a, f"s_lshl_b32 s58, s61, 6"); I(a, f"s_lshl_b32 s59, s{S_WAVE}, 2"); I(a, "s_add_u32 s58, s58, s59")
        I(a, "v_add_u32 v103, s58, v103"); I(a, "v_lshlrev_b32 v103, 12, v103"); I(a, "v_lshl_add_u32 v103, v104, 7, v103")
        I(a, "v_cmp_gt_u32 vcc, 20, v1"); I(a, "s_mov_b32 s67, s54"); I(a, "v_cndmask_b32 v103, v102, v103, vcc")
    labp = a.newlabel("pp"); labf = a.newlabel("pf0")
    I(a, f"s_cmp_eq_u32 s{S_WAVE}, 0"); I(a, f"s_cbranch_scc1 {labp}")
    if PFDELAY: I(a, f"s_sleep {PFDELAY}")
    I(a, "v_lshlrev_b32 v102, 13, v1")
    for r_ in range(2):
        I(a, f"s_lshl_b32 s58, s{S_WAVE}, 1"); I(a, f"s_add_u32 s58, s58, {1 + r_}")
        I(a, "s_lshl_b32 s58, s58, 7"); I(a, f"s_add_u32 s58, s58, s{S_QOFF}")
        for hf in range(2):
            I(a, f"buffer_load_dword v100, v102, s[{QSRD}:{QSRD+3}], s58 offen")
            if hf == 0: I(a, f"s_add_u32 s58, s58, {64*8192}")
    labw_ = a.newlabel("pfe")
    if MDPF == "pre":
        I(a, "s_lshl_b32 s58, s61, 6"); I(a, "v_add_u32 v102, s58, v1"); I(a, "v_lshlrev_b32 v102, 12, v102")
        I(a, f"s_sub_u32 s58, s{S_WAVE}, 1"); I(a, "s_lshl_b32 s58, s58, 8"); I(a, "s_add_u32 s58, s58, s54")
        I(a, f"buffer_load_dword v100, v102, s[{MSRD}:{MSRD+3}], s58 offen")
        I(a, f"s_cmp_eq_u32 s{S_WAVE}, 3"); I(a, f"s_cbranch_scc1 {labw_}")
        I(a, f"buffer_load_dword v100, v102, s[{MSRD}:{MSRD+3}], s58 offen offset:128")
    a.label(labw_)
    if MDPF == "h1":
        I(a, "s_lshl_b32 s58, s61, 5"); I(a, "s_add_u32 s58, s58, 128"); I(a, "v_and_b32 v102, 31, v1"); I(a, "v_add_u32 v102, s58, v102"); I(a, "v_lshlrev_b32 v102, 12, v102")
        I(a, "v_lshrrev_b32 v104, 5, v1"); I(a, "v_lshl_add_u32 v102, v104, 7, v102")
        I(a, f"s_sub_u32 s58, s{S_WAVE}, 1"); I(a, "s_lshl_b32 s58, s58, 8"); I(a, "s_add_u32 s58, s58, s54")
        I(a, f"buffer_load_dword v100, v102, s[{MSRD}:{MSRD+3}], s58 offen")
    if WARM:
        I(a, "s_mov_b32 s6, s4"); I(a, "s_mov_b32 s7, s5"); add64(a, 6, Y_OFF); srd(a, YSRD, 6, 4*YARR)
        I(a, f"s_mul_i32 s58, s61, 3"); I(a, f"s_add_u32 s58, s58, s{S_WAVE}"); I(a, "s_sub_u32 s58, s58, 1")
        cw_idx = len(a.lines)
        a.label(f"{pref}_cwret"); I(a, "s_mov_b64 exec, -1")
    I(a, f"s_branch {labf}")
    a.label(labp)
    lab = a.newlabel("np"); labx = a.newlabel("npx")
    I(a, "v_mov_b32 v102, 0")
    a.label(lab)
    I(a, "buffer_load_dword v96, v102, s[88:91], 0 offen sc1"); I(a, "s_waitcnt vmcnt(0)")
    I(a, "v_readfirstlane_b32 s66, v96")
    I(a, "s_sub_u32 s69, s69, 1"); I(a, f"s_cbranch_scc1 {labx}")
    I(a, "s_cmp_lg_u32 s66, 0"); I(a, f"s_cbranch_scc1 {labx}")
    I(a, "s_sleep 8"); I(a, f"s_branch {lab}")
    a.label(labx)
    I(a, "s_mov_b32 s69, 0x10000"); I(a, "s_mov_b32 s68, 1")
    def poll_eval():
        for q in range(4): I(a, f"v_xor_b32 v{96+q}, s66, v{96+q}")
        I(a, "v_or_b32 v96, v96, v97"); I(a, "v_or_b32 v98, v98, v99"); I(a, "v_or_b32 v96, v96, v98")
        I(a, "v_cmp_ne_u32 s[56:57], 0, v96"); I(a, "s_nop 4")
    def poll_test(mask):
        if mask == "all":
            I(a, "s_and_b32 s58, s57, 1"); I(a, "s_or_b32 s58, s58, s56")
        else:
            I(a, f"s_and_b32 s58, s56, {mask}")
    def poll(mask):
        lc = a.newlabel("pc"); ld = a.newlabel("pd")
        I(a, "s_mov_b32 s69, 0x8000")
        a.label(lc)
        poll_test(mask); I(a, f"s_cbranch_scc0 {ld}")
        I(a, "s_sub_u32 s69, s69, 1"); I(a, f"s_cbranch_scc1 {ld}")
        I(a, "buffer_load_dwordx4 v[96:99], v101, s[92:95], 0 offen sc1"); I(a, "s_waitcnt vmcnt(0)")
        poll_eval()
        if PSLEEP:
            poll_test(mask); I(a, f"s_cbranch_scc0 {ld}")
            I(a, f"s_sleep {PSLEEP}")
        I(a, f"s_branch {lc}")
        a.label(ld)
    if PDBG:
        I(a, "buffer_load_dwordx4 v[96:99], v101, s[92:95], 0 offen sc1"); I(a, "s_waitcnt vmcnt(0)"); st(6)
    poll("0xff")
    if PDBG: st(3)
    a.label(labf)
    if PDBG: st(5)
    for r in range(144): I(a, f"v_mov_b32 v{ACC_A+r}, 0") if False else None
    I(a, "s_barrier")
    labq = a.newlabel("pq")
    I(a, "s_cmp_eq_u32 s68, 1"); I(a, f"s_cbranch_scc0 {labq}")
    poll("0xfff")
    poll_test("all"); I(a, "s_cselect_b32 s68, 1, 0")
    I(a, "buffer_load_dwordx4 v[96:99], v101, s[92:95], 0 offen sc1")
    a.label(labq)
    I(a, "s_barrier")
    st(4)
    for r in a_reads(0, 0): I(a, r)
    I(a, f"s_mov_b32 s{S_CNT}, 8"); I(a, f"s_mov_b32 s{S_LEFT}, 0")
    a(".p2align 6")
    a.label(f"{pref}_aloop")
    for kk in range(3):
        I(a, "s_waitcnt lgkmcnt(0)")
        interleave(a, a_mfmas(kk & 1), a_reads((kk+1) & 1, kk+1), 3)
    I(a, "s_cmp_eq_u32 s68, 1"); I(a, f"s_cbranch_scc1 {pref}_chk")
    a.label(f"{pref}_chkret")
    I(a, "s_waitcnt lgkmcnt(0)"); I(a, "s_barrier")
    mf = a_mfmas(1)
    I(a, mf[0])
    I(a, f"s_add_u32 s{S_LEFT}, s{S_LEFT}, {STG}"); I(a, f"s_cmp_ge_u32 s{S_LEFT}, {3*STG}")
    I(a, f"s_cselect_b32 s{S_DELTA}, s{S_DN}, s{S_DP}"); I(a, f"s_cselect_b32 s{S_LEFT}, 0, s{S_LEFT}")
    for i in range(2, 7): I(a, f"v_add_u32 v{i}, s{S_DELTA}, v{i}")
    if MDLOOP:
        lsk = a.newlabel("mp")
        I(a, f"s_sub_u32 s58, s{S_CNT}, {MDLOOP}"); I(a, "s_cmp_lt_u32 s58, 4"); I(a, f"s_cbranch_scc0 {lsk}")
        I(a, f"buffer_load_dword v100, v103, s[{MSRD}:{MSRD+3}], s67 offen"); I(a, f"s_add_u32 s67, s67, {16*4096}")
        a.label(lsk)
    interleave(a, mf[1:], a_reads(0, 0) + [f"s_sub_u32 s{S_CNT}, s{S_CNT}, 1", f"s_cmp_lg_u32 s{S_CNT}, 0"], 3)
    I(a, f"s_cbranch_scc1 {pref}_aloop")
    I(a, "s_waitcnt lgkmcnt(0)")
    for m in a_mfmas(0): I(a, m)
    cw0 = len(a.lines)
    I(a, "s_barrier")
    st(2)
    I(a, "s_waitcnt vmcnt(0)")
    I(a, "s_nop 7"); I(a, "s_nop 3")
    I(a, f"v_cvt_pk_bf16_f32 v2, v{ACC_A+128+8}, v{ACC_A+128+8}")
    I(a, "s_mov_b32 s6, s4"); I(a, "s_mov_b32 s7, s5"); add64(a, 6, Y_OFF); srd(a, YSRD, 6, 4*YARR)
    I(a, "s_lshl_b32 s56, s62, 1"); I(a, "s_add_u32 s56, s56, s64"); I(a, f"s_mul_i32 s56, s56, {YARR}")
    I(a, "v_and_b32 v40, 31, v1"); I(a, f"s_lshl_b32 s{S_DELTA}, s{S_WAVE}, 5"); I(a, f"v_add_u32 v41, s{S_DELTA}, v40")
    I(a, "s_lshl_b32 s57, s61, 8"); I(a, "s_add_u32 s57, s57, s63")
    I(a, "v_lshlrev_b32 v41, 1, v41"); I(a, "v_add_u32 v41, s57, v41"); I(a, f"v_mul_u32_u24 v41, {YP}, v41"); I(a, "v_add_u32 v41, 512, v41")
    I(a, "v_cmp_gt_u32 vcc, 32, v1"); I(a, "v_mov_b32 v42, 0x7ffffff0"); I(a, "s_nop 0"); I(a, "v_cndmask_b32 v41, v42, v41, vcc")
    I(a, f"buffer_store_short v2, v41, s[{YSRD}:{YSRD+3}], s56 offen {ysc}")
    for kap in range(17):
        nb, k2 = kap // 2, kap % 2
        c = ACC_A + 16*nb + 8*k2; t = TB + 4*kap
        for z in range(4): I(a, f"v_cvt_pk_bf16_f32 v{t+z}, v{c+2*z}, v{c+2*z+1}")
        if kap > 0:
            tp = TB + 4*(kap-1)
            I(a, f"v_permlane32_swap_b32 v{tp}, v{tp+2}"); I(a, f"v_permlane32_swap_b32 v{tp+1}, v{tp+3}")
    I(a, "s_nop 1")
    tp = TB + 4*16
    I(a, f"v_permlane32_swap_b32 v{tp}, v{tp+2}"); I(a, f"v_permlane32_swap_b32 v{tp+1}, v{tp+3}")
    I(a, "s_barrier")
    if not PDBG: st(3)
    subs = [(h, kap) for h in range(2) for kap in range(17)]
    cur_base = [0]
    def rd(idx):
        h, kap = subs[idx]; s, kk = kap // 4, kap % 4
        F = BF[idx % 3]
        out = []
        if kap == 16:
            for nb in range(4): out.append(f"ds_read_b128 v[{F[nb]}:{F[nb]+3}], v7 offset:{h*4096 + nb*1024}")
            return out
        slot = h*4 + s
        base = (slot // 3)*3
        if base != cur_base[0]:
            d = (base - cur_base[0])*RSZ
            for i in range(8, 12): out.append(f"v_add_u32 v{i}, {d}, v{i}")
            cur_base[0] = base
        for nb in range(4): out.append(f"ds_read_b128 v[{F[nb]}:{F[nb]+3}], v{8+kk} offset:{(slot-base)*RSZ + nb*4096}")
        return out
    def need_barrier(idx):
        h, kap = subs[idx]
        return (h, kap) in (((1, 0), (1, 10)) if (fused and YEARLY) else ((1, 0), (1, 8)))
    I(a, "v_and_b32 v4, 31, v1"); I(a, f"s_lshl_b32 s57, s{S_WAVE}, 14"); I(a, "v_lshlrev_b32 v3, 9, v4"); I(a, "v_add_u32 v3, s57, v3")
    I(a, "v_lshrrev_b32 v5, 5, v1"); I(a, "v_lshl_add_u32 v3, v5, 3, v3"); I(a, "v_and_b32 v4, 7, v4"); I(a, "v_lshl_add_u32 v3, v4, 4, v3")
    def epi_fill(h):
        out = []
        for nb in range(4):
            for q in range(4):
                c = ACC_B + 16*(4*h+nb) + 4*q; ch = (4*h+nb)*4 + q
                out += [f"v_cvt_pk_bf16_f32 v4, v{c}, v{c+1}", f"v_cvt_pk_bf16_f32 v5, v{c+2}, v{c+3}", f"v_xor_b32 v6, {(ch & 7) << 4}, v3",
                        f"ds_write_b64 v6, v[4:5] offset:{(ch >> 3)*128}"]
        return out
    pend = epi_fill(0)
    q = []
    def emit(ins_list, tag):
        for ins in ins_list:
            I(a, ins)
            if ins.startswith("ds_"): q.append(tag if ins.startswith("ds_read") else "w")
    emit(rd(0), 0); emit(rd(1), 1)
    for idx, (h, kap) in enumerate(subs):
        nxt = idx + 2
        hits = [i for i, t in enumerate(q) if t == idx]
        if hits:
            last = max(hits)
            n_after = len(q) - 1 - last
            I(a, f"s_waitcnt lgkmcnt({min(n_after, 15)})")
            del q[:last+1]
        if nxt < len(subs) and need_barrier(nxt):
            if fused and YEARLY and subs[nxt] == (1, 10):
                I(a, "s_waitcnt lgkmcnt(0)"); q.clear()
            I(a, "s_barrier")
        F = BF[idx % 3]
        mf = []
        for nb in range(4):
            c = ACC_B + 16*(4*h + nb)
            src = "0" if kap == 0 else f"v[{c}:{c+15}]"
            mf.append(f"v_mfma_f32_32x32x16_bf16 v[{c}:{c+15}], v[{F[nb]}:{F[nb]+3}], v[{TB+4*kap}:{TB+4*kap+3}], {src}")
        fill = rd(nxt) if nxt < len(subs) else []
        per = 2
        if h == 1 and ((kap < 8) if (fused and YEARLY) else (kap >= 8)):
            take = 8 if kap < 16 else len(pend)
            fill = fill + pend[:take]; pend = pend[take:]; per = 4
        fl = list(fill)
        for m in mf:
            I(a, m)
            emit(fl[:per], nxt); fl = fl[per:]
        emit(fl, nxt)
    assert not pend
    I(a, "s_nop 7"); I(a, "s_nop 3")
    if not PDBG: st(5)
    for ins in epi_fill(1): I(a, ins)
    if not fused: y_store_setup(a)
    I(a, "s_waitcnt lgkmcnt(0)"); I(a, "s_barrier")
    if not fused: y_store(a, 0, ysc)
    if WARM:
        ents, npad = add_pads(a, cw0, len(a.lines), 12, f"{pref}_c", f"{pref}_cwret", every=PADEV)
        tmp = Asm(); warm_dispatch(tmp, 58, ents, None)
        a.lines[cw_idx:cw_idx] = tmp.lines
    if not PDBG: st(6)
    if stamps: I(a, "s_waitcnt vmcnt(0)")
    st(7)
    if fused: I(a, "s_branch f_cp")
    else:
        if stamps: stamps.dump(8, 0)
        I(a, "s_endpgm")
    a.label(f"{pref}_chk")
    I(a, "s_mov_b32 s68, 0")
    I(a, "s_waitcnt vmcnt(0)")
    poll_eval()
    poll("all")
    I(a, f"s_branch {pref}_chkret")
```

```python
from asmgen import *
from gemm2 import *
import gemm3
from gemm3 import acc16, loader_voffsets16, compute_setup16, compute_loop16
from p1v2 import load_ptr
from p2 import StampsAt, add64, Y_OFF, YP, YARR, G_OFF, FLAG_OFF
from p2b import y_loads, y_loads_pre, y_loads_i, y_precombine, T1
XS_OFF = 40 << 20

import os
YSPLIT = int(os.environ.get("YSPLIT", "9"))
WFLAG = int(os.environ.get("WFLAG", "0"))
HSLEEP = int(os.environ.get("HSLEEP", "2"))
PRL = int(os.environ.get("PRL", "-1"))
PRC = int(os.environ.get("PRC", "-1"))
LOCF = int(os.environ.get("LOCF", "1"))
LOCN = int(os.environ.get("LOCN", "6"))
MERGE = int(os.environ.get("MERGE", "0"))
AFAST = int(os.environ.get("AFAST", "0"))
HP = int(os.environ.get('HP', '7424'))
YDEF = int(os.environ.get("YDEF", "0"))
YSCF = os.environ.get("YSCF", "sc0 sc1")
LOCS = int(os.environ.get("LOCS", "1"))
DIST = int(os.environ.get("DIST", "1"))
PFP = int(os.environ.get("PFP", "0")); PFD = int(os.environ.get("PFD", "6"))
HF_OFF = 35 << 20
def k_k2(a, name, stamps=False, NS=4, trace=False, fused=None):
    g = G(BM=128, BN=128, WM=2, WN=2, NS=NS, ldq=HP, ldp=2048, nk=28, pref="p2")
    st = StampsAt(a, stamps, 70)
    def common():
        load_ptr(a, 6, 64); load_ptr(a, 20, 72); load_ptr(a, 22, 88); load_ptr(a, 4, 104)
        if fused: load_ptr(a, 62, 96)
        else: lane_wave(a)
        I(a, "s_lshr_b32 s27, s2, 3")
        I(a, "s_bfe_u32 s67, s2, 0x10001")
        I(a, "s_bfe_u32 s28, s2, 0x10002"); I(a, "s_lshl_b32 s28, s28, 3"); I(a, "s_lshr_b32 s30, s27, 2"); I(a, "s_add_u32 s28, s28, s30")
        I(a, "s_and_b32 s29, s2, 1"); I(a, "s_lshl_b32 s29, s29, 2"); I(a, "s_and_b32 s30, s27, 3"); I(a, "s_add_u32 s29, s29, s30")
        I(a, f"s_mul_i32 s{S_QOFF}, s28, {128*HP}")
        I(a, f"s_mul_i32 s30, s67, {1792*2}"); I(a, f"s_add_u32 s{S_QOFF}, s{S_QOFF}, s30")
        I(a, f"s_mul_i32 s{S_POFF}, s29, {128*2}")
        I(a, f"s_mul_i32 s30, s67, {1792*2048}"); I(a, f"s_add_u32 s{S_POFF}, s{S_POFF}, s30")
        if fused and LOCF:
            I(a, "s_and_b32 s30, s2, 1"); I(a, f"s_mul_i32 s31, s30, {14*128}"); I(a, f"s_add_u32 s{S_QOFF}, s{S_QOFF}, s31")
            I(a, f"s_mul_i32 s31, s30, {14*64*2048}"); I(a, f"s_add_u32 s{S_POFF}, s{S_POFF}, s31")
        I(a, f"s_and_b32 s31, s{S_WAVE}, 1"); I(a, "s_lshl_b32 s31, s31, 6"); I(a, "s_lshl_b32 s30, s28, 7"); I(a, "s_add_u32 s30, s30, s31")
        I(a, "s_lshl_b32 s31, s67, 5"); I(a, "s_add_u32 s30, s30, s31")
        I(a, f"s_bfe_u32 s31, s{S_WAVE}, 0x10001"); I(a, "s_lshl_b32 s31, s31, 7"); I(a, "s_lshl_b32 s66, s29, 8"); I(a, "s_add_u32 s31, s31, s66")
    PX = 2
    PER = g.PER
    if not fused:
        kernel_begin(a, name)
        st(0)
        I(a, "s_cmp_ge_u32 s2, 256"); I(a, "s_cbranch_scc1 p2_end")
        common()
        I(a, f"s_cmp_ge_u32 s{S_WAVE}, 4"); I(a, "s_cbranch_scc0 p2_compute")
        I(a, f"s_sub_u32 s{S_WAVE}, s{S_WAVE}, 4")
    else:
        a.label("f_ld")
        if PRL >= 0: I(a, f"s_setprio {PRL}")
        st(1)
        common()
    loader_voffsets16(a, g, s_perm=67, nblk=2)
    I(a, "s_waitcnt lgkmcnt(0)")
    if not fused: st(1)
    srd(a, S_PSRD, 6, 3584*1024*2); srd(a, S_QSRD, 4, 2048*HP)
    if fused:
        FS = 52
        I(a, "s_mov_b32 s6, s4"); I(a, "s_mov_b32 s7, s5"); add64(a, 6, HF_OFF); srd(a, FS, 6, 128*1024)
        st(2)
        I(a, "s_barrier")
        if AFAST:
            I(a, "s_cmp_eq_u32 s35, 1"); I(a, "s_cbranch_scc1 f_ld_a")
        if MERGE:
            stage_issue(a, g); stage_issue(a, g)
            st(3)
            I(a, f"s_waitcnt vmcnt({PER})")
        else:
            def p_part(s_):
                I(a, f"s_add_u32 m0, s{S_MP}, {s_*g.STAGE}"); I(a, f"s_add_u32 s58, s{S_POFF}, {s_*64*g.ldp}")
                for i in range(g.np_):
                    I(a, f"buffer_load_dwordx4 v{VL+g.nq+i}, s[{S_PSRD}:{S_PSRD+3}], s58 offen offset:{(i&3)*1024} lds")
            def q_part(s_):
                I(a, f"s_add_u32 m0, s{S_MQ}, {s_*g.STAGE}"); I(a, f"s_add_u32 s58, s{S_QOFF}, {s_*128}")
                for i in range(g.nq):
                    I(a, f"buffer_load_dwordx4 v{VL+i}, s[{S_QSRD}:{S_QSRD+3}], s58 offen offset:{(i&3)*1024} lds")
            for s_ in range(NS): p_part(s_)
            st(3)
            I(a, "s_barrier")
            for s_ in range(NS): q_part(s_)
            I(a, f"s_add_u32 s{S_QOFF}, s{S_QOFF}, {NS*128}"); I(a, f"s_add_u32 s{S_POFF}, s{S_POFF}, {NS*64*g.ldp}")
            I(a, f"s_waitcnt vmcnt({(NS-1)*g.nq})")
        st(4)
        I(a, "s_barrier")
        if MERGE: stage_issue(a, g); stage_issue(a, g)
    else:
        st(2)
    if not fused:
        stage_issue(a, g)
        st(3)
        stage_issue(a, g)
        I(a, f"s_waitcnt vmcnt({PER})")
        st(4)
        I(a, "s_barrier")
        for s in range(2, NS): stage_issue(a, g)
    if fused and AFAST: a.label("f_ld_a2")
    srd(a, 16, 22, 2048*1024*2)
    I(a, "s_mov_b32 s6, s4"); I(a, "s_mov_b32 s7, s5"); add64(a, 6, Y_OFF); srd(a, 24, 6, 4*YARR)
    I(a, "s_mov_b32 s6, s4"); I(a, "s_mov_b32 s7, s5"); add64(a, 6, G_OFF); srd(a, 36, 6, 2048*8)
    I(a, f"s_mov_b32 s63, {YARR}"); I(a, f"s_mov_b32 s64, {2*YARR}"); I(a, f"s_mov_b32 s65, {3*YARR}")
    X = 0
    if trace:
        X = 1
        I(a, "s_add_u32 s60, s4, 0x6400000"); I(a, "s_addc_u32 s61, s5, 0"); srd(a, 56, 60, 1<<22)
        I(a, "s_lshl_b32 s62, s2, 12"); I(a, f"s_lshl_b32 s68, s{S_WAVE}, 10"); I(a, "s_add_u32 s68, s68, s62"); I(a, "v_mov_b32 v30, 0")
    def tr():
        if not trace: return
        I(a, "s_memrealtime s[90:91]"); I(a, "s_memtime s[92:93]"); I(a, "s_waitcnt lgkmcnt(0)")
        I(a, "v_mov_b32 v28, s90"); I(a, "v_mov_b32 v29, s92")
        I(a, "buffer_store_dwordx2 v[28:29], v30, s[56:59], s68 offen"); I(a, "s_add_u32 s68, s68, 8")
    if PFP and not trace:
        P = PFP
        I(a, f"s_lshl_b32 s58, s{S_WAVE}, 6"); I(a, "v_add_u32 v20, s58, v1")
        I(a, "s_bfe_u32 s58, s2, 0x20003"); I(a, "s_lshl_b32 s58, s58, 5")
        I(a, "v_and_b32 v21, 31, v20"); I(a, "v_add_u32 v21, s58, v21"); I(a, f"v_mul_u32_u24 v21, {g.ldq}, v21")
        I(a, "v_lshrrev_b32 v22, 5, v20"); I(a, "v_lshl_add_u32 v21, v22, 7, v21")
        I(a, f"v_cmp_gt_u32 vcc, {32*P}, v20"); I(a, "v_mov_b32 v23, 0x7ffffff0"); I(a, "s_nop 0"); I(a, "v_cndmask_b32 v21, v23, v21, vcc")
        I(a, "v_sub_u32 v24, 255, v20")
        I(a, "s_bfe_u32 s58, s2, 0x30005"); I(a, "s_lshl_b32 s58, s58, 3")
        I(a, "v_and_b32 v25, 7, v24"); I(a, "v_add_u32 v25, s58, v25")
        I(a, "v_lshrrev_b32 v26, 4, v24"); I(a, "v_lshl_add_u32 v25, v26, 6, v25")
        I(a, "v_lshlrev_b32 v25, 11, v25"); I(a, "v_bfe_u32 v26, v24, 3, 1"); I(a, "v_lshl_add_u32 v25, v26, 7, v25")
        I(a, f"v_cmp_gt_u32 vcc, {16*P}, v24"); I(a, "s_nop 1"); I(a, "v_cndmask_b32 v25, v23, v25, vcc")
        assert 48*P <= 256
        nst = g.nk - NS
        npf = 2
        def cntpf(i):
            return npf * sum(1 for j in (i-3, i-2, i-1) if j >= 0 and j % P == 0 and active(j))
        def active(j): return j + NS + PFD0 < g.nk
        PFD0 = PFD - NS if PFD >= NS else 0
        for i in range(nst):
            I(a, f"s_waitcnt vmcnt({(NS-2)*PER + cntpf(i)})"); I(a, "s_barrier"); stage_issue(a, g)
            if i % P == 0 and active(i):
                I(a, f"s_add_u32 s58, s{S_QOFF}, {PFD0*128}"); I(a, f"s_add_u32 s59, s{S_POFF}, {PFD0*64*g.ldp}")
                I(a, f"buffer_load_dword v27, v21, s[{S_QSRD}:{S_QSRD+3}], s58 offen")
                I(a, f"buffer_load_dword v27, v25, s[{S_PSRD}:{S_PSRD+3}], s59 offen")
        PFX = sum(npf for j in (nst-3, nst-2, nst-1) if j % P == 0 and active(j))
        assert PFX == 0 or True
    elif fused:
        assert NS == 4 and g.nq == 4 and PER == 8
        if AFAST: I(a, "s_cmp_eq_u32 s35, 1"); I(a, "s_cbranch_scc1 f_ld_a3")
        I(a, f"s_waitcnt vmcnt({16 if MERGE else 8})"); I(a, "s_barrier"); stage_issue(a, g)
        I(a, f"s_waitcnt vmcnt({16 if MERGE else 12})"); I(a, "s_barrier"); stage_issue(a, g)
        if AFAST:
            a.label("f_ld_join")
            fa = Asm(); fa.nlabel = a.nlabel + 2000
            fa.label("f_ld_a")
            for _ in range(AFAST): stage_issue(fa, g)
            I(fa, f"s_waitcnt vmcnt({(AFAST-1)*PER})"); I(fa, "s_barrier")
            for _ in range(NS - AFAST): stage_issue(fa, g)
            I(fa, "s_branch f_ld_a2")
            fused["fa"] = fa.lines
            fb = Asm(); fb.nlabel = a.nlabel + 3000
            fb.label("f_ld_a3")
            I(fb, "s_waitcnt vmcnt(16)"); I(fb, "s_barrier"); stage_issue(fb, g)
            I(fb, "s_waitcnt vmcnt(16)"); I(fb, "s_barrier"); stage_issue(fb, g)
            I(fb, "s_branch f_ld_join")
            fused["fb"] = fb.lines
        nA = 5 if LOCF else 18
        assert LOCF or not YDEF
        I(a, f"s_mov_b32 s{S_CNT}, 18")
        if YDEF:
            I(a, "s_mov_b32 s6, s4"); I(a, "s_mov_b32 s7, s5"); add64(a, 6, Y_OFF); srd(a, 88, 6, 4*YARR)
            I(a, "s_cmp_eq_u32 s35, 1"); I(a, "s_cbranch_scc1 p2_ld_ya")
            ya = Asm(); ya.nlabel = a.nlabel + 4000
            ya.label("p2_ld_ya")
            for j in range(4):
                I(ya, f"s_waitcnt vmcnt({16 + 4*j})"); I(ya, "s_barrier"); stage_issue(ya, g)
                for z in range(4):
                    ii = 4*j + z
                    I(ya, f"s_add_u32 s59, s33, {ii*4*YP}")
                    I(ya, f"buffer_store_dwordx4 v[{128+4*ii}:{128+4*ii+3}], v34, s[88:91], s59 offen {YSCF}")
            I(ya, f"s_mov_b32 s{S_CNT}, 14"); I(ya, "s_branch p2_ld_loop")
            fused["ya"] = ya.lines
        a.label("p2_ld_loop")
        I(a, "s_waitcnt vmcnt(16)")
        if not YDEF:
            I(a, f"s_cmp_eq_u32 s{S_CNT}, 14"); I(a, "s_cbranch_scc1 p2_ld_ypub")
            a.label("p2_ld_ypub_r")
        I(a, "s_barrier"); stage_issue(a, g)
        if not YDEF: a.label("p2_ld_ypub_r2")
        I(a, f"s_sub_u32 s{S_CNT}, s{S_CNT}, 1"); I(a, f"s_cmp_lg_u32 s{S_CNT}, {18 - nA}"); I(a, "s_cbranch_scc1 p2_ld_loop")
        if LOCF:
            I(a, "s_lshr_b32 s58, s28, 1"); I(a, "s_lshl_b32 s58, s58, 9"); I(a, "s_and_b32 s59, s2, 3"); I(a, "s_xor_b32 s59, s59, 1"); I(a, "s_mul_i32 s59, s59, 112"); I(a, "s_add_u32 s58, s58, s59")
            I(a, "v_lshlrev_b32 v30, 2, v1"); I(a, "v_add_u32 v30, s58, v30"); I(a, "v_mov_b32 v25, 0x7ffffff0")
            I(a, f"s_cmp_eq_u32 s{S_WAVE}, 3"); I(a, "s_cselect_b32 s58, 28, 0"); I(a, "v_cmp_gt_u32 vcc, s58, v1"); I(a, "s_nop 1"); I(a, "v_cndmask_b32 v30, v25, v30, vcc")
            I(a, "s_waitcnt vmcnt(16)"); I(a, "s_barrier"); stage_issue(a, g)
            I(a, f"buffer_load_dword v31, v30, s[{FS}:{FS+3}], 0 offen sc1")
            I(a, "s_waitcnt vmcnt(17)"); I(a, "s_barrier"); stage_issue(a, g)
            I(a, "s_waitcnt vmcnt(17)"); I(a, "s_barrier"); stage_issue(a, g)
            I(a, "s_waitcnt vmcnt(16)")
            labq = a.newlabel("rq"); labl = a.newlabel("rl")
            I(a, f"s_cmp_eq_u32 s{S_WAVE}, 3"); I(a, f"s_cbranch_scc0 {labq}")
            I(a, "s_mov_b32 s59, 0x8000")
            a.label(labl)
            I(a, "v_cmp_ne_u32 vcc, s34, v31"); I(a, "s_nop 4")
            I(a, "s_and_b32 s58, vcc_lo, 0xfffffff"); I(a, f"s_cbranch_scc0 {labq}")
            I(a, "s_sub_u32 s59, s59, 1"); I(a, f"s_cbranch_scc1 {labq}")
            I(a, f"buffer_load_dword v31, v30, s[{FS}:{FS+3}], 0 offen sc1"); I(a, "s_waitcnt vmcnt(0)")
            I(a, f"s_branch {labl}")
            a.label(labq)
            I(a, "s_barrier")
            I(a, "s_and_b32 s58, s2, 1"); I(a, f"s_mul_i32 s59, s58, {28*128}"); I(a, f"s_sub_u32 s{S_QOFF}, s{S_QOFF}, s59")
            I(a, f"s_mul_i32 s59, s58, {28*64*2048}"); I(a, f"s_sub_u32 s{S_POFF}, s{S_POFF}, s59")
            stage_issue(a, g)
            I(a, f"s_mov_b32 s{S_CNT}, 9")
            a.label("p2_ld_loopb")
            I(a, "s_waitcnt vmcnt(16)")
            if YDEF:
                I(a, f"s_cmp_eq_u32 s{S_CNT}, 8"); I(a, "s_cbranch_scc1 p2_ld_ypub")
                a.label("p2_ld_ypub_r")
            I(a, "s_barrier"); stage_issue(a, g)
            if YDEF: a.label("p2_ld_ypub_r2")
            I(a, f"s_sub_u32 s{S_CNT}, s{S_CNT}, 1"); I(a, f"s_cmp_lg_u32 s{S_CNT}, 0"); I(a, "s_cbranch_scc1 p2_ld_loopb")
        ypub = Asm(); ypub.nlabel = a.nlabel + 1000
        ypub.label("p2_ld_ypub")
        I(ypub, "s_cmp_eq_u32 s35, 1"); I(ypub, "s_cbranch_scc0 p2_ld_ypub_r")
        I(ypub, "s_waitcnt vmcnt(0)"); I(ypub, "s_barrier")
        I(ypub, f"s_cmp_eq_u32 s{S_WAVE}, 3"); I(ypub, "s_cbranch_scc0 p2_ld_ypub_n")
        I(ypub, "v_mov_b32 v29, s34")
        I(ypub, f"buffer_store_dword v29, v28, s[{FS}:{FS+3}], 0 offen sc1")
        ypub.label("p2_ld_ypub_n")
        stage_issue(ypub, g)
        I(ypub, "s_branch p2_ld_ypub_r2")
        fused["ypub"] = ypub.lines
        I(a, "s_and_b32 s58, s2, 7"); I(a, "s_lshl_b32 s58, s58, 7"); I(a, "s_add_u32 s58, s58, 65536")
        I(a, "v_lshlrev_b32 v30, 2, v1"); I(a, "v_add_u32 v30, s58, v30"); I(a, "v_mov_b32 v25, 0x7ffffff0")
        I(a, f"s_cmp_eq_u32 s{S_WAVE}, 3"); I(a, "s_cselect_b32 s58, 32, 0"); I(a, "v_cmp_gt_u32 vcc, s58, v1"); I(a, "s_nop 1"); I(a, "v_cndmask_b32 v30, v25, v30, vcc")
        I(a, "s_waitcnt vmcnt(16)"); I(a, "s_barrier"); stage_issue(a, g)
        I(a, f"buffer_load_dword v31, v30, s[{FS}:{FS+3}], 0 offen sc1")
        I(a, "s_waitcnt vmcnt(17)"); I(a, "s_barrier"); stage_issue(a, g)
        I(a, "s_waitcnt vmcnt(17)"); I(a, "s_barrier"); stage_issue(a, g)
        I(a, "s_waitcnt vmcnt(16)")
        labq = a.newlabel("yq"); labl = a.newlabel("yl")
        I(a, f"s_cmp_eq_u32 s{S_WAVE}, 3"); I(a, f"s_cbranch_scc0 {labq}")
        I(a, "s_mov_b32 s59, 0x8000")
        a.label(labl)
        I(a, "v_cmp_ne_u32 vcc, s34, v31"); I(a, "s_nop 4")
        I(a, "s_cmp_eq_u32 vcc_lo, 0"); I(a, f"s_cbranch_scc1 {labq}")
        I(a, "s_sub_u32 s59, s59, 1"); I(a, f"s_cbranch_scc1 {labq}")
        I(a, f"buffer_load_dword v31, v30, s[{FS}:{FS+3}], 0 offen sc1"); I(a, "s_waitcnt vmcnt(0)")
        I(a, f"s_branch {labl}")
        a.label(labq)
        I(a, "s_barrier"); stage_issue(a, g)
    else:
        PFX = 0
        I(a, f"s_mov_b32 s{S_CNT}, {g.nk-NS}")
        if trace:
            I(a, f"s_waitcnt vmcnt({(NS-2)*PER})"); I(a, "s_barrier"); tr(); stage_issue(a, g)
            I(a, f"s_waitcnt vmcnt({(NS-3)*PER + PER+1})"); I(a, "s_barrier"); tr(); stage_issue(a, g)
            I(a, f"s_mov_b32 s{S_CNT}, {g.nk-NS-2}")
        a.label("p2_ld_loop")
        I(a, f"s_waitcnt vmcnt({(NS-2)*(PER+X)})"); I(a, "s_barrier"); tr(); stage_issue(a, g)
        I(a, f"s_sub_u32 s{S_CNT}, s{S_CNT}, 1"); I(a, f"s_cmp_lg_u32 s{S_CNT}, 0"); I(a, "s_cbranch_scc1 p2_ld_loop")
    E = 164
    def extra_rows():
        if not DIST: return
        lab = a.newlabel("r4")
        I(a, "s_cmp_eq_u32 s30, 1024"); I(a, f"s_cbranch_scc0 {lab}")
        I(a, "v_cmp_gt_u32 vcc, 8, v1"); I(a, "v_mov_b32 v45, 0x7ff00000"); I(a, "s_nop 0"); I(a, "v_cndmask_b32 v44, v45, v43, vcc")
        for z in range(1, 4):
            r = E + 8*(z-1)
            I(a, f"s_mov_b32 s58, {(1024+z)*YP}"); I(a, f"s_add_u32 s59, s58, s63")
            I(a, f"buffer_load_dwordx3 v[{r}:{r+2}], v44, s[24:27], s58 offen")
            I(a, f"buffer_load_dwordx2 v[{r+4}:{r+5}], v44, s[24:27], s59 offen")
        a.label(lab)
    if YSPLIT == 9:
        YM = 16384; YX = 49152
        y_loads_pre(a, 30, 31, "p2")
        I(a, "s_lshl_b32 s60, s29, 7"); I(a, "s_sub_u32 s61, 896, s60"); I(a, "s_cmp_eq_u32 s62, 1"); I(a, "s_cselect_b32 s60, s61, s60")
        I(a, f"s_lshr_b32 s58, s{S_WAVE}, 1"); I(a, "s_lshl_b32 s59, s58, 4")
        for q in range(2):
            I(a, f"v_lshrrev_b32 v44, 3, v1"); I(a, f"v_add_u32 v44, s30, v44"); I(a, f"v_add_u32 v44, s59, v44"); I(a, f"v_add_u32 v44, {8*q}, v44")
            I(a, "v_sub_u32 v45, 2048, v44"); I(a, "v_min_u32 v45, v44, v45"); I(a, f"v_mul_u32_u24 v45, {YP}, v45")
            I(a, "v_and_b32 v44, 7, v1"); I(a, f"v_lshl_add_u32 v{20+q}, v44, 4, v45"); I(a, f"v_add_u32 v{20+q}, s60, v{20+q}")
        I(a, f"s_and_b32 s61, s{S_WAVE}, 1"); I(a, "s_lshl_b32 s61, s61, 12"); I(a, "s_lshl_b32 s59, s59, 7"); I(a, "s_add_u32 s61, s61, s59"); I(a, f"s_add_u32 s61, s61, {YM}")
        def ydma(arr):
            so = ["0", "s63", "s64", "s65"][arr]
            for q in range(2):
                I(a, f"s_add_u32 m0, s61, {arr*8192 + q*1024}"); I(a, "s_nop 0")
                I(a, f"buffer_load_dwordx4 v{20+q}, s[24:27], {so} offen lds")
        I(a, "s_lshl_b32 s59, s28, 7"); I(a, "s_lshl_b32 s58, s67, 5"); I(a, "s_add_u32 s59, s59, s58")
        I(a, "v_lshrrev_b32 v44, 5, v1"); I(a, "v_lshlrev_b32 v44, 6, v44"); I(a, "v_and_b32 v45, 31, v1"); I(a, "v_add_u32 v44, v44, v45"); I(a, "v_add_u32 v44, s59, v44")
        I(a, "v_sub_u32 v45, 2048, v44"); I(a, "v_min_u32 v45, v44, v45"); I(a, f"v_mul_u32_u24 v22, {YP}, v45"); I(a, "v_add_u32 v22, s60, v22"); I(a, "v_add_u32 v22, 128, v22")
        ny = 0
        for j, t in enumerate(range(g.nk - NS, g.nk)):
            rem = max(min(t + NS - 1, g.nk - 1) - (t + 1), 0)
            if t + 1 <= g.nk - 1: I(a, f"s_waitcnt vmcnt({rem*(PER+X) + ny})")
            else: I(a, f"s_waitcnt vmcnt({5 if fused else 4})")
            I(a, "s_barrier")
            if j == 0:
                ydma(0); ydma(1); ny += 4
            if j == 1:
                ydma(2); ydma(3); ny += 4
                lab = a.newlabel("yx"); labe = a.newlabel("yxe")
                I(a, "s_cmp_eq_u32 s62, 1"); I(a, f"s_cbranch_scc0 {lab}"); I(a, f"s_cmp_lt_u32 s{S_WAVE}, 2"); I(a, f"s_cbranch_scc0 {lab}")
                I(a, f"s_lshl_b32 s58, s{S_WAVE}, 10"); I(a, f"s_add_u32 m0, s58, {YX}"); I(a, f"s_mul_i32 s58, s{S_WAVE}, {2*YARR}")
                I(a, f"buffer_load_dwordx4 v22, s[24:27], s58 offen lds")
                I(a, f"s_branch {labe}")
                a.label(lab)
                I(a, "v_mov_b32 v23, 0x7ffffff0"); I(a, "buffer_load_dword v24, v23, s[24:27], 0 offen")
                a.label(labe)
                ny += 1
            if j == 2:
                for i in range(4):
                    I(a, f"v_add_u32 v44, {8*i}, v42"); I(a, f"v_lshlrev_b32 v44, 3, v44")
                    I(a, f"buffer_load_dwordx2 v[{32+i*2}:{32+i*2+1}], v44, s[36:39], 0 offen")
                ny += 4
                if fused:
                    srd(a, 92, 20, 2048)
                    I(a, "v_and_b32 v44, 7, v1"); I(a, "v_lshlrev_b32 v44, 4, v44")
                    I(a, "buffer_load_dwordx4 v[188:191], v44, s[92:95], s31 offen")
                    ny += 1
        extra_rows()
        I(a, f"s_and_b32 s61, s{S_WAVE}, 1"); I(a, "s_lshl_b32 s58, s61, 12"); I(a, f"s_add_u32 s58, s58, {YM}")
        I(a, "v_lshrrev_b32 v44, 3, v1"); I(a, "v_lshlrev_b32 v45, 7, v44"); I(a, "v_add_u32 v45, s58, v45")
        I(a, "v_subrev_u32 v46, s60, v43")
        I(a, "v_add_u32 v20, v45, v46")
        I(a, "s_lshl_b32 s58, s61, 9"); I(a, f"s_add_u32 s58, s58, {YX}")
        I(a, "v_lshlrev_b32 v47, 4, v44"); I(a, "v_add_u32 v47, s58, v47")
        I(a, "v_cmp_eq_u32 vcc, 120, v46"); I(a, "v_add_u32 v21, 8, v20")
        labf = a.newlabel("yf"); labd = a.newlabel("yd")
        I(a, "s_cmp_eq_u32 s62, 1"); I(a, f"s_cbranch_scc0 {labf}")
        for i in range(4):
            b = 64 + i*16
            I(a, f"v_add_u32 v48, {i*1024}, v21"); I(a, f"v_add_u32 v49, {i*128}, v47"); I(a, "v_cndmask_b32 v22, v48, v49, vcc")
            I(a, f"v_add_u32 v48, {i*1024 + 2*8192}, v21"); I(a, f"v_add_u32 v49, {i*128 + 1024}, v47"); I(a, "v_cndmask_b32 v23, v48, v49, vcc")
            I(a, f"ds_read_b64 v[{b}:{b+1}], v20 offset:{i*1024}"); I(a, f"ds_read_b32 v{b+2}, v22")
            I(a, f"ds_read_b64 v[{b+4}:{b+5}], v20 offset:{i*1024 + 8192}")
            I(a, f"ds_read_b64 v[{b+8}:{b+9}], v20 offset:{i*1024 + 2*8192}"); I(a, f"ds_read_b32 v{b+10}, v23")
            I(a, f"ds_read_b64 v[{b+12}:{b+13}], v20 offset:{i*1024 + 3*8192}")
            if i % 2 == 1: I(a, "s_waitcnt lgkmcnt(0)")
        I(a, f"s_branch {labd}")
        a.label(labf)
        for i in range(4):
            b = 64 + i*16
            for z in range(4):
                I(a, f"ds_read_b64 v[{b+4*z}:{b+4*z+1}], v20 offset:{i*1024 + z*8192}")
            if i % 2 == 1: I(a, "s_waitcnt lgkmcnt(0)")
        a.label(labd)
    elif YSPLIT == 0:
        y_loads(a, 30, 31, "p2")
        extra_rows()
        for t in range(g.nk - NS, g.nk):
            rem = max(min(t + NS - 1, g.nk - 1) - (t + 1), 0)
            if t + 1 <= g.nk - 1: I(a, f"s_waitcnt vmcnt({rem*(PER+X) + 20})")
            I(a, "s_barrier")
    else:
        y_loads_pre(a, 30, 31, "p2")
        ny = 0
        sched = {1: [[0], [1], [2], [3]], 2: [[], [0, 1], [2, 3], []], 3: [[], [], [], [0, 1, 2, 3]], 4: [[], [0], [1], [2, 3]]}[YSPLIT]
        for j, t in enumerate(range(g.nk - NS, g.nk)):
            rem = max(min(t + NS - 1, g.nk - 1) - (t + 1), 0)
            if t + 1 <= g.nk - 1: I(a, f"s_waitcnt vmcnt({rem*(PER+X) + ny})")
            I(a, "s_barrier")
            for i in sched[j]:
                y_loads_i(a, i); ny += 5
        extra_rows()
    st(5)
    I(a, "s_waitcnt vmcnt(0)")
    if DIST:
        lab = a.newlabel("r5")
        I(a, "s_cmp_eq_u32 s30, 1024"); I(a, f"s_cbranch_scc0 {lab}")
        for off in (0, 1, 2, 4, 5):
            d = 64 + off
            I(a, f"v_lshlrev_b32 v46, 16, v{d}"); I(a, f"v_and_b32 v47, 0xffff0000, v{d}")
            for z in range(1, 4):
                r = E + 8*(z-1) + off
                I(a, f"v_lshlrev_b32 v48, 16, v{r}"); I(a, f"v_and_b32 v49, 0xffff0000, v{r}")
                I(a, "v_pk_add_f32 v[46:47], v[46:47], v[48:49]")
            I(a, f"v_cvt_pk_bf16_f32 v{d}, v46, v47")
        a.label(lab)
    y_precombine(a)
    if fused:
        for q in range(4):
            I(a, f"v_lshlrev_b32 v{192+2*q}, 16, v{188+q}"); I(a, f"v_and_b32 v{193+2*q}, 0xffff0000, v{188+q}")
        for i in range(4):
            og = 33 + 2*i
            I(a, f"v_mov_b32 v46, v{og}"); I(a, f"v_mov_b32 v47, v{og}")
            for p in range(4):
                d = T1 + i*8 + p*2
                I(a, f"v_pk_fma_f32 v[{d}:{d+1}], v[{192+2*p}:{193+2*p}], v[46:47], v[{d}:{d+1}]")
    W = 50
    I(a, f"s_lshl_b32 s66, s{S_WAVE}, 12")
    I(a, f"v_lshrrev_b32 v{W}, 3, v1"); I(a, f"v_and_b32 v{W+2}, 7, v1"); I(a, f"v_xor_b32 v{W+2}, v{W+2}, v{W}")
    I(a, f"v_lshlrev_b32 v{W+3}, 7, v{W}"); I(a, f"v_lshl_add_u32 v{W+3}, v{W+2}, 4, v{W+3}"); I(a, f"v_add_u32 v{W+12}, s66, v{W+3}")
    I(a, f"v_add_u32 v{W}, s30, v{W}"); I(a, f"v_lshlrev_b32 v{W}, 11, v{W}"); I(a, f"v_and_b32 v{W+2}, 7, v1")
    I(a, f"v_lshl_add_u32 v{W}, v{W+2}, 4, v{W}"); I(a, f"v_add_u32 v{W+13}, s31, v{W}")
    st(6)
    if not WFLAG: I(a, "s_barrier"); I(a, "s_barrier")
    I(a, "s_barrier")
    for i in range(4):
        I(a, f"ds_read_b128 v[{64+4*i}:{64+4*i+3}], v{W+12} offset:{i*1024}")
    for i in range(4):
        I(a, f"s_waitcnt lgkmcnt({3-i})")
        og = 33 + 2*i
        I(a, f"v_mov_b32 v46, v{og}"); I(a, f"v_mov_b32 v47, v{og}")
        for p in range(4):
            bb = 64 + 4*i + p; d = T1 + i*8 + p*2
            I(a, f"v_lshlrev_b32 v48, 16, v{bb}"); I(a, f"v_and_b32 v49, 0xffff0000, v{bb}")
            I(a, f"v_pk_fma_f32 v[{d}:{d+1}], v[48:49], v[46:47], v[{d}:{d+1}]")
            I(a, f"v_cvt_pk_bf16_f32 v{bb}, v{d}, v{d+1}")
        I(a, f"s_mov_b32 s{S_TMP2}, {i*8*2048}")
        I(a, f"buffer_store_dwordx4 v[{64+4*i}:{64+4*i+3}], v{W+13}, s[16:19], s{S_TMP2} offen {os.environ.get('OSC', 'sc0 sc1')}")
    if stamps: I(a, "s_waitcnt vmcnt(0)")
    st(7); st.dump(8, 1)
    I(a, "s_endpgm")
    if fused: a.lines += fused["ypub"] + fused.get("fa", []) + fused.get("fb", []) + fused.get("ya", [])
    if fused:
        a.label("f_cp")
        if PRC >= 0: I(a, f"s_setprio {PRC}")
        st(1)
        common()
    else:
        a.label("p2_compute")
    compute_setup16(a, g)
    def xs_srds():
        I(a, "s_mov_b32 s6, s4"); I(a, "s_mov_b32 s7, s5"); add64(a, 6, XS_OFF); srd(a, 56, 6, 256*16384)
        I(a, "s_mov_b32 s6, s4"); I(a, "s_mov_b32 s7, s5"); add64(a, 6, FLAG_OFF); srd(a, 8, 6, 1024*128)
    def stg_addrs():
        I(a, f"s_lshl_b32 s66, s{S_WAVE}, 12")
        I(a, "v_and_b32 v18, 15, v1"); I(a, "v_lshlrev_b32 v19, 7, v18"); I(a, f"v_add_u32 v19, s66, v19")
        I(a, "v_bfe_u32 v24, v1, 4, 1"); I(a, "v_lshl_add_u32 v19, v24, 3, v19")
        I(a, "v_and_b32 v18, 7, v18"); I(a, "v_lshrrev_b32 v24, 5, v1")
        for nb in range(4):
            I(a, f"v_add_u32 v25, {2*nb}, v24"); I(a, "v_xor_b32 v25, v25, v18"); I(a, f"v_lshl_add_u32 v{20+nb}, v25, 4, v19")
    if fused:
        for nb in range(4):
            for mb in range(4):
                for r in range(4): I(a, f"v_mov_b32 v{acc16(g,nb,mb)+r}, 0")
        stg_addrs()
        I(a, "s_waitcnt lgkmcnt(0)")
        srd(a, 84 if not stamps else 88, 62, 256)
        NS_ = 84 if not stamps else 88
        I(a, "v_mov_b32 v27, 0"); I(a, f"buffer_load_dword v26, v27, s[{NS_}:{NS_+3}], 0 offen")
        xs_srds()
        I(a, "s_mov_b32 s6, s4"); I(a, "s_mov_b32 s7, s5"); add64(a, 6, HF_OFF)
        I(a, f"s_mov_b32 s60, s6"); I(a, "s_and_b32 s61, s7, 0xffff"); I(a, "s_mov_b32 s62, 131072"); I(a, "s_mov_b32 s63, 0x00020000")
        I(a, "v_mov_b32 v25, 0x7ffffff0")
        if LOCF:
            I(a, "s_lshr_b32 s64, s28, 1"); I(a, "s_and_b32 s65, s2, 3"); I(a, "s_lshl_b32 s66, s64, 2"); I(a, "s_add_u32 s66, s66, s65"); I(a, "s_lshl_b32 s66, s66, 7"); I(a, "s_add_u32 s66, s66, 8192")
            I(a, "s_lshl_b32 s64, s64, 9"); I(a, "s_mul_i32 s65, s65, 112"); I(a, "s_add_u32 s64, s64, s65")
            I(a, "v_lshlrev_b32 v28, 2, v1"); I(a, "v_add_u32 v30, s64, v28"); I(a, "v_add_u32 v29, s66, v28")
            I(a, "v_cmp_gt_u32 vcc, 28, v1"); I(a, "s_nop 1"); I(a, "v_cndmask_b32 v30, v25, v30, vcc"); I(a, "v_cndmask_b32 v29, v25, v29, vcc")
        else:
            I(a, "s_lshr_b32 s64, s28, 1"); I(a, "s_lshl_b32 s64, s64, 9"); I(a, "s_mul_i32 s65, s67, 224"); I(a, "s_add_u32 s64, s64, s65")
            I(a, "v_lshlrev_b32 v30, 2, v1"); I(a, "v_add_u32 v30, s64, v30"); I(a, "v_cmp_gt_u32 vcc, 56, v1"); I(a, "s_nop 1"); I(a, "v_cndmask_b32 v30, v25, v30, vcc")
        st(2)
        if AFAST:
            lab_np = a.newlabel("ap"); I(a, "s_cmp_ge_u32 s2, 224"); I(a, f"s_cbranch_scc1 {lab_np}")
            I(a, "s_barrier")
            a.label(lab_np)
        elif not MERGE: I(a, "s_barrier")
        I(a, "s_waitcnt vmcnt(0)")
        lp = a.newlabel("np"); lx = a.newlabel("npx")
        I(a, "s_mov_b32 s69, 0x8000")
        a.label(lp)
        I(a, "v_readfirstlane_b32 s68, v26")
        I(a, "s_sub_u32 s69, s69, 1"); I(a, f"s_cbranch_scc1 {lx}")
        I(a, "s_cmp_lg_u32 s68, 0"); I(a, f"s_cbranch_scc1 {lx}")
        I(a, f"buffer_load_dword v26, v27, s[{NS_}:{NS_+3}], 0 offen sc1"); I(a, "s_waitcnt vmcnt(0)")
        I(a, f"s_branch {lp}")
        a.label(lx)
        labl = a.newlabel("hl"); labq = a.newlabel("hq")
        I(a, f"s_cmp_eq_u32 s{S_WAVE}, 0"); I(a, f"s_cbranch_scc0 {labq}")
        I(a, "s_mov_b32 s69, 0x8000")
        if LOCF:
            I(a, "s_getreg_b32 s65, hwreg(HW_REG_XCC_ID)"); I(a, "s_add_u32 s65, s65, 1"); I(a, "s_lshl_b32 s65, s65, 1"); I(a, "s_add_u32 s65, s65, s68")
            a.label(labl)
            for z in range(LOCN):
                I(a, f"buffer_load_dword v31, v29, s[60:63], 0 offen sc0"); I(a, "s_waitcnt vmcnt(0)")
                I(a, "v_cmp_ne_u32 vcc, s65, v31"); I(a, "s_nop 4")
                I(a, "s_and_b32 s64, vcc_lo, 0xfffffff"); I(a, f"s_cbranch_scc0 {labq}")
                if LOCS: I(a, f"s_sleep {LOCS}")
            I(a, f"buffer_load_dword v31, v30, s[60:63], 0 offen sc1"); I(a, "s_waitcnt vmcnt(0)")
            I(a, "v_cmp_ne_u32 vcc, s68, v31"); I(a, "s_nop 4")
            I(a, "s_and_b32 s64, vcc_lo, 0xfffffff"); I(a, f"s_cbranch_scc0 {labq}")
            I(a, "s_sub_u32 s69, s69, 1"); I(a, f"s_cbranch_scc1 {labq}")
            I(a, f"s_branch {labl}")
        else:
            a.label(labl)
            I(a, f"buffer_load_dword v31, v30, s[60:63], 0 offen sc1"); I(a, "s_waitcnt vmcnt(0)")
            I(a, "v_cmp_ne_u32 vcc, s68, v31"); I(a, "s_nop 4")
            I(a, "s_and_b32 s64, vcc_hi, 0xffffff"); I(a, "s_or_b32 s64, s64, vcc_lo"); I(a, f"s_cbranch_scc0 {labq}")
            I(a, "s_sub_u32 s69, s69, 1"); I(a, f"s_cbranch_scc1 {labq}")
            if HSLEEP: I(a, f"s_sleep {HSLEEP}")
            I(a, f"s_branch {labl}")
        a.label(labq)
        I(a, "s_barrier")
        st(3)
    else:
        for nb in range(4):
            for mb in (2, 3):
                for r in range(4): I(a, f"v_mov_b32 v{acc16(g,nb,mb)+r}, 0")
        I(a, "s_waitcnt lgkmcnt(0)")
        if not fused: st(1)
        if fused:
            srd(a, 84 if not stamps else 88, 62, 256)
            NS_ = 84 if not stamps else 88
            I(a, "v_mov_b32 v27, 0"); I(a, f"buffer_load_dword v26, v27, s[{NS_}:{NS_+3}], 0 offen")
        srd(a, 32, 20, 2048)
        I(a, "v_lshrrev_b32 v8, 4, v1"); I(a, "v_lshlrev_b32 v8, 3, v8")
        for nb in range(4):
            I(a, f"buffer_load_dwordx2 v[{10+2*nb}:{10+2*nb+1}], v8, s[32:35], s31 offen offset:{nb*32}")
        I(a, "s_mov_b32 s6, s4"); I(a, "s_mov_b32 s7, s5"); add64(a, 6, XS_OFF); srd(a, 56, 6, 256*16384)
        I(a, "s_mov_b32 s6, s4"); I(a, "s_mov_b32 s7, s5"); add64(a, 6, FLAG_OFF); srd(a, 8, 6, 1024*128)
        I(a, f"s_lshl_b32 s66, s{S_WAVE}, 12")
        I(a, "v_and_b32 v18, 15, v1"); I(a, "v_lshlrev_b32 v19, 7, v18"); I(a, f"v_add_u32 v19, s66, v19")
        I(a, "v_bfe_u32 v24, v1, 4, 1"); I(a, "v_lshl_add_u32 v19, v24, 3, v19")
        I(a, "v_and_b32 v18, 7, v18"); I(a, "v_lshrrev_b32 v24, 5, v1")
        for nb in range(4):
            I(a, f"v_add_u32 v25, {2*nb}, v24"); I(a, "v_xor_b32 v25, v25, v18"); I(a, f"v_lshl_add_u32 v{20+nb}, v25, 4, v19")
        I(a, "s_waitcnt vmcnt(0)")
        if fused:
            lp = a.newlabel("np"); lx = a.newlabel("npx")
            I(a, "s_mov_b32 s69, 0x8000")
            a.label(lp)
            I(a, "v_readfirstlane_b32 s68, v26")
            I(a, "s_sub_u32 s69, s69, 1"); I(a, f"s_cbranch_scc1 {lx}")
            I(a, "s_cmp_lg_u32 s68, 0"); I(a, f"s_cbranch_scc1 {lx}")
            I(a, f"buffer_load_dword v26, v27, s[{NS_}:{NS_+3}], 0 offen sc1"); I(a, "s_waitcnt vmcnt(0)")
            I(a, f"s_branch {lp}")
            a.label(lx)
        for nb in range(4):
            for j in range(4):
                src = 10 + 2*nb + j//2
                for mb in (0, 1):
                    d = acc16(g, nb, mb) + j
                    if j % 2 == 0: I(a, f"v_lshlrev_b32 v{d}, 16, v{src}")
                    else: I(a, f"v_and_b32 v{d}, 0xffff0000, v{src}")
        if fused:
            st(2)
            I(a, "s_barrier")
            I(a, "s_barrier")
            st(3)
    compute_loop16(a, g, stamp=(None if fused else f"s_memtime s[78:79]") if stamps else None)
    st(5)
    I(a, "s_nop 7"); I(a, "s_nop 7")
    I(a, "v_lshlrev_b32 v8, 4, v1")
    I(a, f"s_xor_b32 s61, s2, {PX}")
    I(a, f"s_lshl_b32 s60, s61, 14"); I(a, f"s_lshl_b32 s62, s{S_WAVE}, 12"); I(a, "s_add_u32 s60, s60, s62")
    for nb in range(4):
        t = 32 + nb*4
        for z, mb in enumerate((2, 3)):
            c = acc16(g, nb, mb)
            I(a, f"v_cvt_pk_bf16_f32 v{t+2*z}, v{c}, v{c+1}"); I(a, f"v_cvt_pk_bf16_f32 v{t+2*z+1}, v{c+2}, v{c+3}")
        I(a, f"buffer_store_dwordx4 v[{t}:{t+3}], v8, s[56:59], s60 offen offset:{nb*1024} sc1")
    if not fused: st(2)
    I(a, "s_waitcnt vmcnt(0)")
    if not fused: st(3)
    if WFLAG:
        I(a, f"s_lshl_b32 s62, s2, 2"); I(a, f"s_add_u32 s62, s62, s{S_WAVE}"); I(a, "s_lshl_b32 s62, s62, 7"); I(a, "v_mov_b32 v12, s62"); I(a, "v_mov_b32 v13, 1")
        I(a, f"buffer_store_dword v13, v12, s[8:11], 0 offen sc1")
        I(a, f"s_lshl_b32 s62, s61, 2"); I(a, f"s_add_u32 s62, s62, s{S_WAVE}"); I(a, "s_lshl_b32 s62, s62, 7"); I(a, "v_mov_b32 v12, s62")
        I(a, "s_mov_b32 s69, 0x20000")
        a.label("p2_poll")
        I(a, f"buffer_load_dword v13, v12, s[8:11], 0 offen sc1")
        I(a, "s_waitcnt vmcnt(0)")
        I(a, "v_readfirstlane_b32 s62, v13")
        I(a, "s_sub_u32 s69, s69, 1"); I(a, "s_cbranch_scc1 p2_waitb")
        I(a, "s_cmp_eq_u32 s62, 1"); I(a, "s_cbranch_scc0 p2_poll")
        a.label("p2_waitb")
    else:
        I(a, "s_barrier")
        I(a, f"s_cmp_eq_u32 s{S_WAVE}, 0"); I(a, "s_cbranch_scc0 p2_waitb")
        I(a, "s_lshl_b32 s62, s2, 7"); I(a, "v_mov_b32 v12, s62"); I(a, "v_mov_b32 v13, s68" if fused else "v_mov_b32 v13, 1")
        I(a, f"buffer_store_dword v13, v12, s[8:11], 0 offen sc1")
        I(a, "s_lshl_b32 s62, s61, 7"); I(a, "v_mov_b32 v12, s62")
        I(a, "s_mov_b32 s69, 0x20000")
        a.label("p2_poll")
        I(a, f"buffer_load_dword v13, v12, s[8:11], 0 offen sc1")
        I(a, "s_waitcnt vmcnt(0)")
        I(a, "v_readfirstlane_b32 s62, v13")
        I(a, "s_sub_u32 s69, s69, 1"); I(a, "s_cbranch_scc1 p2_waitb")
        I(a, "s_cmp_eq_u32 s62, s68" if fused else "s_cmp_eq_u32 s62, 1"); I(a, "s_cbranch_scc0 p2_poll")
        a.label("p2_waitb")
        I(a, "s_barrier")
    st(6)
    I(a, f"s_lshl_b32 s60, s2, 14"); I(a, f"s_lshl_b32 s62, s{S_WAVE}, 12"); I(a, "s_add_u32 s60, s60, s62")
    for nb in range(4):
        t = 32 + nb*4
        I(a, f"buffer_load_dwordx4 v[{t}:{t+3}], v8, s[56:59], s60 offen offset:{nb*1024} sc1")
    for nb in range(4):
        t = 32 + nb*4
        I(a, f"s_waitcnt vmcnt({3-nb})")
        for z, mb in enumerate((0, 1)):
            c = acc16(g, nb, mb)
            for hh in range(2):
                I(a, f"v_lshlrev_b32 v10, 16, v{t+2*z+hh}"); I(a, f"v_and_b32 v11, 0xffff0000, v{t+2*z+hh}")
                I(a, f"v_pk_add_f32 v[{c+2*hh}:{c+2*hh+1}], v[{c+2*hh}:{c+2*hh+1}], v[10:11]")
            tt = 48 + (nb*2+z)*2
            I(a, f"v_cvt_pk_bf16_f32 v{tt}, v{c}, v{c+1}"); I(a, f"v_cvt_pk_bf16_f32 v{tt+1}, v{c+2}, v{c+3}")
            I(a, f"ds_write_b64 v{20+nb}, v[{tt}:{tt+1}] offset:{mb*2048}")
    I(a, "s_waitcnt lgkmcnt(0)")
    I(a, "s_barrier")
    st(7); st.dump(8, 0)
    a.label("p2_end")
    I(a, "s_endpgm")
    return g
```
